```python
import torch

def _softmax(x, axis=-1):
    return torch.softmax(x, dim=axis)
def _gelu(x):
    return torch.nn.functional.gelu(x, approximate="tanh")
def _silu(x):
    return torch.nn.functional.silu(x)
def _sigmoid(x):
    return torch.sigmoid(x)
def _layernorm(x, axis=-1, eps=1e-5):
    m = x.mean(dim=axis, keepdim=True)
    v = x.var(dim=axis, keepdim=True, unbiased=False)
    return (x - m) / torch.sqrt(v + eps)
def _scatter_add(tgt, idx, src, axis=0):
    return tgt.clone().index_add_(axis, idx, src)
def _segment_sum(src, seg, n):
    out = torch.zeros((n,) + src.shape[1:], dtype=src.dtype)
    return out.index_add_(0, seg, src)
def _pad(x, pw):
    flat = tuple(v for pair in reversed(pw) for v in pair)
    return torch.nn.functional.pad(x, flat)

kernel_name = 'gated_mix__linear_attn_block__dense_activation_mish__prompt'

def setup_inputs():

    _w = (lambda a: (lambda t: t.to(torch.bfloat16) if t.is_floating_point() else t)(torch.as_tensor(a)))
    def _A_setup():
        B, S, D = 1, 2048, 512
        return {
            "x": _w((lambda *s: torch.randn(*s, dtype=torch.bfloat16) * 0.05)(B, S, D)),
            "wqkv": _w((lambda *s: torch.randn(*s, dtype=torch.bfloat16) * 0.8)(D, 3 * D)),
            "wo": _w((lambda *s: torch.randn(*s, dtype=torch.bfloat16) * 0.1)(D, D)),
        }
    _A_in = _A_setup()

    def _B_setup():
        B, S, D, F = 1, 2048, 512, 1792
        return {
            "x": _w((lambda *s: torch.randn(*s, dtype=torch.bfloat16) * 0.05)(B, S, D)),
            "w1": _w((lambda *s: torch.randn(*s, dtype=torch.bfloat16) * 12.8)(D, F) * (D ** -0.5)),
            "b1": _w((lambda *s: torch.randn(*s, dtype=torch.bfloat16) * 0.4)(F)),
            "w2": _w((lambda *s: torch.randn(*s, dtype=torch.bfloat16) * 0.05)(F, D) * (F ** -0.5)),
        }
    _B_in = _B_setup()

    return {
        "A_x": _A_in["x"],
        "A_wqkv": _A_in["wqkv"],
        "A_wo": _A_in["wo"],
        "B_x": _B_in["x"],
        "B_w1": _B_in["w1"],
        "B_b1": _B_in["b1"],
        "B_w2": _B_in["w2"],
        "gate_w": _w((lambda *s: torch.randn(*s, dtype=torch.bfloat16) * 0.05)(512) * 16.0),
    }

def reference(A_x, A_wqkv, A_wo, B_x, B_w1, B_b1, B_w2, gate_w):
    def _A_ref(x, wqkv, wo):
        B, S, D = x.shape
        H = 32; Dh = D // H
        qkv = (lambda x, *d: x.permute(*d))((x @ wqkv).reshape(B, S, 3, H, Dh), 2, 0, 3, 1, 4)
        q, k, v = qkv[0], qkv[1], qkv[2]
        phi = lambda t: torch.where(t > 0, t + 1, torch.exp(t)) + 1e-6
        pq, pk = phi(q), phi(k)
        kv = torch.einsum("bhsd,bhse->bhde", pk, v)
        z = torch.einsum("bhsd->bhd", pk)
        num = torch.einsum("bhqd,bhde->bhqe", pq, kv)
        den = torch.einsum("bhqd,bhd->bhq", pq, z)[..., None] + 1e-6
        o = num / den
        return (lambda x, *d: x.permute(*d))(o, 0, 2, 1, 3).reshape(B, S, D) @ wo

    def _B_ref(x, w1, b1, w2):
        h = torch.einsum("bsd,df->bsf", x, w1) + b1
        sp = torch.log1p(torch.exp(-torch.abs(h))) + torch.where(h > 0, h, torch.zeros_like(h))
        act = h * torch.tanh(sp)
        return torch.einsum("bsf,fd->bsd", act, w2)

    x = A_x
    g = _sigmoid((x * gate_w).sum(-1, keepdims=True))
    a = _A_ref(x, A_wqkv, A_wo)
    b = _B_ref(x, B_w1, B_b1, B_w2)
    return g * a + (1 - g) * b
```

```python
import re

KN = "gated_mix__linear_attn_block__dense_activation_mish__prompt"

TRANS = ("v_exp_f32", "v_rcp_f32", "v_log_f32", "v_rsq_f32", "v_sqrt_f32")


def regs_of(tok):
    tok = tok.strip()
    tok = tok.lstrip("-").strip("|")
    m = re.fullmatch(r"([vs])(\d+)", tok)
    if m:
        return m.group(1), {int(m.group(2))}
    m = re.fullmatch(r"([vs])\[(\d+):(\d+)\]", tok)
    if m:
        return m.group(1), set(range(int(m.group(2)), int(m.group(3)) + 1))
    if tok == "vcc":
        return "s", {106, 107}
    if tok == "m0":
        return "s", {124}
    if tok == "exec":
        return "s", {126, 127}
    return None


class I:
    __slots__ = ("text", "kind", "vm", "lg", "pre", "mn", "vr", "vw", "sr", "sw", "cls", "srcc", "sdata", "comment")

    def __init__(self, text, kind="i"):
        self.text = text
        self.kind = kind
        self.vm = 63
        self.lg = 15
        self.pre = 0
        self.comment = ""
        if kind == "i":
            self.parse()

    def parse(self):
        t = self.text.split(";")[0].strip()
        parts = t.split(None, 1)
        mn = parts[0]
        self.mn = mn
        ops = []
        if len(parts) > 1:
            cur = ""
            for ch in parts[1]:
                if ch == ",":
                    ops.append(cur.strip()); cur = ""
                else:
                    cur += ch
            ops.append(cur.strip())
            last = ops[-1].split()
            mods = last[1:]
            ops[-1] = last[0] if last else ""
        else:
            mods = []
        self.vr, self.vw, self.sr, self.sw = set(), set(), set(), set()
        self.srcc = set(); self.sdata = set()

        def rd(tok):
            r = regs_of(tok)
            if r: (self.vr if r[0] == "v" else self.sr).update(r[1])

        def wr(tok):
            r = regs_of(tok)
            if r: (self.vw if r[0] == "v" else self.sw).update(r[1])

        if mn.startswith("v_mfma"):
            self.cls = "mfma"
            wr(ops[0]); rd(ops[1]); rd(ops[2]); rd(ops[3])
            r = regs_of(ops[3])
            if r and r[0] == "v": self.srcc = set(r[1])
        elif mn.startswith("v_cmp"):
            self.cls = "valu"
            wr(ops[0])
            for o in ops[1:]: rd(o)
        elif mn.startswith("v_permlane"):
            self.cls = "perm"
            for o in ops: rd(o); wr(o)
        elif mn.startswith("v_"):
            self.cls = "trans" if mn.replace("_e32", "").replace("_e64", "") in TRANS else "valu"
            wr(ops[0])
            for o in ops[1:]: rd(o)
            if mn.startswith(("v_fmac", "v_mac", "v_dot2c")): rd(ops[0])
            if mn.startswith("v_cndmask") and len(ops) == 3: rd("vcc")
        elif mn.startswith("ds_read"):
            self.cls = "ds"
            wr(ops[0]); rd(ops[1])
        elif mn.startswith("ds_write"):
            self.cls = "ds"
            for o in ops: rd(o)
        elif mn.startswith("buffer_load"):
            self.cls = "vmem"
            if "lds" in mods:
                self.cls = "dma"
                for o in ops: rd(o)
                rd("m0")
            else:
                wr(ops[0])
                if "d16" in mn: rd(ops[0])
                for o in ops[1:]: rd(o)
        elif mn.startswith(("buffer_store", "buffer_atomic")):
            self.cls = "vmem"
            for o in ops: rd(o)
            if "x4" in mn or "x3" in mn:
                self.sdata = set(regs_of(ops[0])[1])
        elif mn.startswith("s_"):
            self.cls = "salu"
            if mn.startswith(("s_cmp", "s_cbranch", "s_branch", "s_barrier", "s_nop", "s_waitcnt", "s_setprio", "s_endpgm", "s_sleep", "s_setpc", "s_bitcmp")):
                for o in ops: rd(o)
            else:
                wr(ops[0])
                for o in ops[1:]: rd(o)
                if mn.startswith(("s_addk", "s_mulk")): rd(ops[0])
        else:
            raise ValueError("unknown instr " + t)

    def states(self):
        if self.kind == "wait":
            return 1 if (self.vm < 63 or self.lg < 15) else 0
        if self.kind != "i":
            return 0
        if self.mn == "s_nop":
            return int(self.text.split()[1], 0) + 1
        return 1

    def render(self):
        out = []
        n = self.pre
        while n > 0:
            k = min(n, 16)
            out.append(f"    s_nop {k-1}")
            n -= k
        if self.kind == "wait":
            p = []
            if self.vm < 63: p.append(f"vmcnt({self.vm})")
            if self.lg < 15: p.append(f"lgkmcnt({self.lg})")
            if p: out.append("    s_waitcnt " + " ".join(p) + (("  ; " + self.comment) if self.comment else ""))
        elif self.kind == "label":
            out.append(self.text + ":")
        elif self.kind == "raw":
            out.append(self.text)
        else:
            out.append("    " + self.text)
        return out


class Gen:
    def __init__(self):
        self.blocks = {}
        self.order = []
        self.cur = None
        self.replay = None
        self.stack = []
        self.traces = []
        self.trace = None
        self.vm = []
        self.lg = []
        self.maxvm = 0
        self.nlab = 0

    def start_trace(self, name):
        self.trace = []
        self.traces.append((name, self.trace))
        self.vm = []; self.lg = []

    def block(self, name, fn, *args, align=None, **kw):
        self.stack.append((self.cur, self.replay))
        if name in self.blocks:
            self.cur = None
            self.replay = [self.blocks[name], 0]
            if align: self.replay[1] += 1
            self.replay[1] += 1
        else:
            self.blocks[name] = []
            self.order.append(name)
            self.cur = self.blocks[name]
            self.replay = None
            if align: self.cur.append(I(f".p2align {align}", "raw"))
            self.cur.append(I(name, "label"))
        fn(*args, **kw)
        if self.replay is not None:
            assert self.replay[1] == len(self.replay[0]), f"replay length mismatch in {name}"
        self.cur, self.replay = self.stack.pop()

    def _put(self, text, kind):
        if self.replay is not None:
            lst, idx = self.replay
            o = lst[idx]
            assert o.kind == kind and (kind == "wait" or o.text == text), f"replay mismatch: {o.text!r} vs {text!r}"
            self.replay[1] += 1
        else:
            o = I(text, kind)
            self.cur.append(o)
        self.trace.append(o)
        return o

    def __call__(self, s, tag=None):
        for l in s.strip("\n").split("\n"):
            l = l.strip()
            if not l or l.startswith(";"): continue
            o = self._put(l, "i")
            if o.cls in ("vmem", "dma"):
                self.vm.append(tag)
                self.maxvm = max(self.maxvm, len(self.vm))
                assert len(self.vm) <= 63, "too many outstanding vm ops"
            elif o.cls == "ds":
                self.lg.append(tag)
            elif o.mn.startswith("s_waitcnt"):
                m = re.search(r"vmcnt\((\d+)\)", l)
                if m:
                    n = int(m.group(1)); self.vm = self.vm[len(self.vm) - n:] if n < len(self.vm) else self.vm
                    if n == 0: self.vm = []
                m = re.search(r"lgkmcnt\((\d+)\)", l)
                if m:
                    n = int(m.group(1)); self.lg = self.lg[len(self.lg) - n:] if n < len(self.lg) else self.lg
                    if n == 0: self.lg = []

    def label(self, name):
        self._put(name, "label")

    def raw(self, t):
        self._put(t, "raw")

    def wait(self, vm=None, lg=None, comment=""):
        o = self._put("", "wait")
        if comment: o.comment = comment
        for lst_name, tags, attr, cap in (("vm", vm, "vm", 63), ("lg", lg, "lg", 15)):
            if tags is None: continue
            if isinstance(tags, str): tags = [tags]
            lst = getattr(self, lst_name)
            last = -1
            for k, t in enumerate(lst):
                if t in tags: last = k
            if last >= 0:
                n = len(lst) - 1 - last
                n = min(n, cap - 1)
                setattr(o, attr, min(getattr(o, attr), n))
                setattr(self, lst_name, lst[len(lst) - n:] if n > 0 else [])
        return o

    def optional(self):
        g = self
        class C:
            def __enter__(s):
                s.vm = list(g.vm); s.lg = list(g.lg)
            def __exit__(s, *a):
                g.vm = s.vm; g.lg = s.lg
        return C()

    def hazards(self):
        changed = True
        it = 0
        while changed:
            changed = False
            it += 1
            for name, tr in self.traces:
                hist = []
                pos = 0
                for o in tr:
                    if o.kind not in ("i", "wait"): continue
                    pos += o.pre
                    if o.kind == "i":
                        need = 0
                        for (p, q) in reversed(hist):
                            dist = pos - p - 1
                            if dist >= 20: break
                            r = self.req(q, o)
                            if r > dist: need = max(need, r - dist)
                        if need:
                            o.pre += need; pos += need; changed = True
                        hist.append((pos + o.states() - 1, o))
                        if len(hist) > 40: hist = hist[-40:]
                    pos += o.states()
            assert it < 10

    @staticmethod
    def req(q, o):
        r = 0
        qc, oc = q.cls, o.cls
        valu_q = qc in ("valu", "trans", "perm")
        valu_o = oc in ("valu", "trans", "perm")
        if valu_q and oc == "mfma" and (q.vw & o.vr): r = max(r, 2)
        if qc == "mfma":
            if oc == "mfma":
                ab = o.vr - o.srcc if o.srcc else o.vr
                t = o.text.split(None, 1)[1].split(",")
                abr = set()
                for tok in t[1:3]:
                    x = regs_of(tok)
                    if x and x[0] == "v": abr |= x[1]
                if q.vw & abr: r = max(r, 12)
                if (q.vw & o.srcc) and q.vw != o.srcc: r = max(r, 10)
                if (q.vw & o.vw) and not (q.vw == o.srcc): r = max(r, 12)
            else:
                if (q.vw & o.vr) or (q.vw & o.vw): r = max(r, 12)
                if valu_o and (q.srcc & o.vw): r = max(r, 7)
        if qc == "trans" and valu_o and oc != "trans" and (q.vw & o.vr): r = max(r, 1)
        if qc == "trans" and oc == "trans" and (q.vw & o.vr): r = max(r, 1)
        if valu_q and q.sw:
            if valu_o and (q.sw & o.sr): r = max(r, 2)
            if oc in ("vmem", "dma") and (q.sw & o.sr): r = max(r, 5)
            if oc == "salu" and (q.sw & o.sr): r = max(r, 1)
        if valu_q and o.mn.startswith(("v_readfirstlane", "v_readlane")) and (q.vw & o.vr): r = max(r, 1)
        if valu_q and oc == "perm" and (q.vw & o.vr): r = max(r, 2)
        if q.sdata and (q.sdata & o.vw): r = max(r, 2)
        if qc == "salu" and 124 in q.sw and oc == "dma": r = max(r, 1)
        return r

    def text(self, order=None):
        out = []
        for n in (order or self.order):
            for o in self.blocks[n]:
                out.extend(o.render())
        return "\n".join(out)
```

```python
import sys
from fw import *

OPT = dict(stamp=0, D=3, D2=2, spin=3000)
for a in sys.argv[1:]:
    k, v = a.split("="); OPT[k] = int(v)
STAMP = OPT["stamp"]; D = OPT["D"]; D2 = OPT["D2"]

LA, LB, LC = 0, 65536, 131072
ACT, KVP, KVF, GOF, FLG, STP = 0, 0xA00000, 0xB00000, 0xB10000, 0xB20000, 0xB30000
WS_SIZE = 0xB28000 if not STAMP else 0xC00000
XS = [LC, LC + 16384, LB, LB + 16384, LB + 32768, LB + 49152, LC, LC + 16384]
SX, SW, SW2, SWO, SWS, SOUT, SB, SDBG = "s[32:35]", "s[36:39]", "s[40:43]", "s[44:47]", "s[48:51]", "s[52:55]", "s[56:59]", "s[60:63]"
sW, sRW, sRB, sCGI, sISW1, sSTR, sSTR32, sRW1K = "s64", "s65", "s66", "s67", "s68", "s69", "s70", "s71"
sX = ["s72", "s73", "s74", "s75"]
sP = ["s76", "s77", "s78", "s79"]
sXM = "s[80:81]"; sRET = "s[82:83]"
sST, sFL, sPUB, sLOG2E, sT, sT2, sHAVE, sMASK, sCNT = "s84", "s85", "s86", "s87", "s88", "s89", "s90", "s91", "s92"
sROWT, sNBO, sKQ, sACT2, sGATE = "s93", "s94", "s95", "s96", "s97"
sTM = "s[98:99]"
sRB2, sW2O, sEPS, sROWB = "s4", "s5", "s6", "s7"
sRET2 = "s[30:31]"
vLANE, vXD, vWD, vU6D, vW2D = "v1", "v2", "v3", "v4", "v5"
vXB = ["v6", "v7", "v8", "v9"]; vXC = ["v10", "v11", "v12", "v13"]
vWA, vWB, vL16, vONE, vSTAMP, vBIAS2, vT0, vPA2, vPA, vPR = "v14", "v15", "v16", "v17", "v18", "v19", "v20", "v21", "v22", "v23"
ACC = 96; WBUF = 64; XR = 128; TMP = 32

g = Gen()
m0cur = [None]


def vr(a, n=4):
    return f"v[{a}:{a+n-1}]"


def set_m0(target, base=sRW1K):
    if m0cur[0] is not None and m0cur[0][0] == base and -32768 <= target - m0cur[0][1] <= 32767:
        d = target - m0cur[0][1]
        g(f"s_addk_i32 m0, {d & 0xffff:#x}")
    else:
        g(f"s_add_u32 m0, {base}, {target:#x}")
    m0cur[0] = (base, target)


def stamp(i):
    if not STAMP: return
    g(f"s_memtime {sTM}")
    g("s_waitcnt lgkmcnt(0)")
    g(f"v_writelane_b32 {vSTAMP}, s98, {i}")


def dma_x(c):
    for i in range(4):
        set_m0(XS[c] + i * 4096 - c * 128)
        g(f"buffer_load_dwordx4 {vXD}, {SX}, {sX[i]} offen offset:{c*128} lds", tag=f"x{c}")


def dma_w_begin(col):
    g(f"s_sub_u32 {sT2}, {col}, {sSTR32}")


def dma_w(item, region, tag, voff=vWD):
    for i in range(2):
        set_m0(region + item * 8192 + i * 4096)
        g(f"s_add_u32 {sT2}, {sT2}, {sSTR32}")
        g(f"buffer_load_dwordx4 {voff}, {SW}, {sT2} offen lds", tag=tag)


def dma_w2_p1(group, kq, e, region, tag):
    row = 448 * kq + (192 if group == 3 else (256 * e + 64 * group))
    slot = kq if group == 3 else kq * 2 + e
    for i in range(2):
        set_m0(region + slot * 8192 + i * 4096)
        g(f"s_add_u32 {sT2}, {sNBO}, {(row + i * 32) * 1024:#x}")
        g(f"buffer_load_dwordx4 {vW2D}, {SW2}, {sT2} offen lds", tag=tag)


def publish():
    g("s_mov_b64 exec, 1")
    g(f"buffer_store_dword {vONE}, off, {SWS}, {sPUB} sc1", tag="pub")
    g("s_mov_b64 exec, -1")


def call(name, fn, *a, ret=sRET, **kw):
    g(f"s_call_b64 {ret}, {name}")
    m0cur[0] = None if kw.pop("clobm0", False) else m0cur[0]
    g.block(name, fn, *a, align=3, **kw)


def MP(orient, cert, pubwait):
    NBUF = D + 1
    def trread(s):
        b = WBUF + (s % NBUF) * 8
        for u, va in ((0, vWA), (1, vWB)):
            g(f"ds_read_b64_tr_b16 {vr(b+u*4, 2)}, {va} offset:{s*2048}", tag=f"w{s}")
            g(f"ds_read_b64_tr_b16 {vr(b+u*4+2, 2)}, {va} offset:{s*2048+512}", tag=f"w{s}")
    def chunk_start(q):
        g.wait(vm=cert[q], comment=f"cert {q}")
        g("s_barrier")
        if q == 3:
            publish()
        g(f"s_mov_b64 exec, {sXM}")
        for c in (2 * q, 2 * q + 1):
            regs, off = (vXC, XS[c] - LC) if XS[c] >= LC else (vXB, XS[c] - LB)
            for sp in range(4):
                s = c * 4 + sp
                g(f"ds_read_b128 {vr(XR+4*s)}, {regs[sp]} offset:{off}", tag=f"xr{s}")
        g("s_mov_b64 exec, -1")
    cert = list(cert)
    cert[3] = list(cert[3]) + list(pubwait)
    chunk_start(0)
    for s in range(D): trread(s)
    if orient == "T":
        g(f"v_mfma_f32_32x32x16_bf16 {vr(ACC,16)}, v[28:31], v[24:27], 0")
        g(f"v_mfma_f32_32x32x16_bf16 {vr(ACC+16,16)}, v[28:31], v[26:29], 0")
    for s in range(32):
        n = s + D
        if n < 32:
            if n % 8 == 0: chunk_start(n // 8)
            trread(n)
        g.wait(lg=[f"w{s}", f"xr{s}"])
        b = WBUF + (s % NBUF) * 8
        for u in range(2):
            acc = vr(ACC + 16 * u, 16)
            c = acc if (orient == "T" or s > 0) else "0"
            if orient == "T":
                g(f"v_mfma_f32_32x32x16_bf16 {acc}, {vr(b+u*4)}, {vr(XR+4*s)}, {c}")
            else:
                g(f"v_mfma_f32_32x32x16_bf16 {acc}, {vr(XR+4*s)}, {vr(b+u*4)}, {c}")
    g(f"s_setpc_b64 {sRET}")


def MU6(pubwait):
    NBUF = D + 1
    def trread(s):
        b = WBUF + (s % NBUF) * 8
        for u, va in ((0, vWA), (1, vWB)):
            g(f"ds_read_b64_tr_b16 {vr(b+u*4, 2)}, {va} offset:{s*2048}", tag=f"w{s}")
            g(f"ds_read_b64_tr_b16 {vr(b+u*4+2, 2)}, {va} offset:{s*2048+512}", tag=f"w{s}")
    g("s_barrier")
    for s in range(D): trread(s)
    acc = vr(ACC, 16)
    g(f"v_mfma_f32_32x32x16_bf16 {acc}, v[28:31], v[24:27], 0")
    for s in range(16):
        n = s + D
        if n < 16: trread(n)
        if s == 10:
            g.wait(vm=pubwait)
            g("s_barrier")
            publish()
        g.wait(lg=[f"w{s}"])
        b = WBUF + (s % NBUF) * 8
        g(f"v_mfma_f32_32x32x16_bf16 {acc}, {vr(b)}, {vr(XR+4*s)}, {acc}")
        g(f"v_mfma_f32_32x32x16_bf16 {acc}, {vr(b+4)}, {vr(XR+4*(s+16))}, {acc}")


PK = TMP + 16


def EH(q):
    h = [f"v{ACC+8*q+i}" for i in range(8)]
    e = [f"v{TMP+i}" for i in range(8)]
    u = [f"v{TMP+8+i}" for i in range(8)]
    for i in range(8): g(f"v_mul_f32 {e[i]}, {sLOG2E}, {h[i]}")
    for i in range(8): g(f"v_exp_f32 {e[i]}, {e[i]}")
    for i in range(8): g(f"v_fma_f32 {u[i]}, {e[i]}, 0.5, 1.0")
    for i in range(8): g(f"v_fma_f32 {u[i]}, -{e[i]}, {u[i]}, -1.0")
    for i in range(8): g(f"v_rcp_f32 {u[i]}, {u[i]}")
    for i in range(8): g(f"v_fmac_f32 {h[i]}, {h[i]}, {u[i]}")
    for i in range(4): g(f"v_cvt_pk_bf16_f32 v{PK+i}, {h[2*i]}, {h[2*i+1]}")
    g(f"buffer_store_dwordx4 {vr(PK)}, {vL16}, {SWS}, {sST} offen offset:{q*1024} sc1", tag="st")
    g(f"s_setpc_b64 {sRET}")


def PH(q):
    h = [f"v{ACC+8*q+i}" for i in range(8)]
    e = [f"v{TMP+i}" for i in range(8)]
    for i in range(8): g(f"v_mul_f32 {e[i]}, {sLOG2E}, {h[i]}")
    for i in range(8): g(f"v_exp_f32_e64 {e[i]}, {e[i]} clamp")
    for i in range(8): g(f"v_max_f32 {h[i]}, {sEPS}, {h[i]}")
    for i in range(8): g(f"v_add_f32 {h[i]}, {e[i]}, {h[i]}")
    for i in range(4): g(f"v_cvt_pk_bf16_f32 v{PK+i}, {h[2*i]}, {h[2*i+1]}")
    g(f"s_setpc_b64 {sRET}")


def SPIN():
    g(f"s_mov_b32 {sCNT}, 0")
    g.label("SPIN_loop")
    g(f"buffer_load_dword {vPR}, {vPA}, {SWS}, 0 offen sc1")
    g("s_waitcnt vmcnt(0)")
    g(f"v_cmp_eq_u32 vcc, 1, {vPR}")
    g(f"s_add_u32 {sCNT}, {sCNT}, 1")
    g(f"s_mov_b32 {sHAVE}, vcc_lo")
    g(f"s_and_b32 {sT}, {sHAVE}, {sMASK}")
    g(f"s_cmp_eq_u32 {sT}, {sMASK}")
    g("s_cbranch_scc1 SPIN_done")
    g("s_sleep 2")
    g(f"s_cmp_lt_u32 {sCNT}, {OPT['spin']}")
    g("s_cbranch_scc1 SPIN_loop")
    g.label("SPIN_done")
    g(f"s_setpc_b64 {sRET2}")


def poll_issue():
    g(f"buffer_load_dword {vPR}, {vPA}, {SWS}, 0 offen sc1", tag="poll")


def poll_take():
    g.wait(vm="poll")
    g(f"v_cmp_eq_u32 vcc, 1, {vPR}")
    g("s_nop 0")
    g(f"s_mov_b32 {sHAVE}, vcc_lo")


def ensure(mask, lab):
    g(f"s_mov_b32 {sMASK}, {mask:#x}")
    g(f"s_and_b32 {sT}, {sHAVE}, {sMASK}")
    g(f"s_cmp_eq_u32 {sT}, {sMASK}")
    g(f"s_cbranch_scc1 {lab}")
    with g.optional():
        call("SPIN", SPIN, ret=sRET2)
    g.label(lab)


def prologue():
    g(f"""
    s_cmp_ge_u32 s2, 256
    s_cbranch_scc1 END
    s_load_dwordx16 s[8:23], s[0:1], 0
    s_load_dwordx4 s[24:27], s[0:1], 64
    s_load_dwordx2 s[28:29], s[0:1], 80
    v_lshrrev_b32 v64, 6, v0
    v_and_b32 {vLANE}, 63, v0
    v_readfirstlane_b32 {sW}, v64
    s_and_b32 s3, s2, 7            ; xcd
    s_lshr_b32 {sT}, s2, 3         ; j
    s_lshr_b32 {sT2}, s2, 6        ; t
    s_and_b32 {sNBO}, {sT}, 7      ; j&7
    s_and_b32 {sRB}, s3, 1
    s_lshl_b32 {sRB}, {sRB}, 3
    s_or_b32 {sRB}, {sRB}, {sNBO}
    s_lshl_b32 {sNBO}, {sNBO}, 7
    s_lshr_b32 {sISW1}, {sT2}, 1
    s_and_b32 {sCGI}, s3, 6
    s_and_b32 {sT}, {sT2}, 1
    s_or_b32 {sCGI}, {sCGI}, {sT}
    s_lshl_b32 {sRB2}, s3, 2
    s_or_b32 {sRB2}, {sRB2}, {sT2}
    s_and_b32 {sRW}, {sW}, 3
    s_lshl_b32 {sRW1K}, {sRW}, 10
    s_lshl_b32 {sSTR}, {sISW1}, 9
    s_add_u32 {sSTR}, {sSTR}, 3072
    s_lshl_b32 {sSTR32}, {sSTR}, 5
    s_lshl_b32 {sX[0]}, {sRB}, 17
    s_add_u32 {sX[1]}, {sX[0]}, 0x8000
    s_add_u32 {sX[2]}, {sX[0]}, 0x10000
    s_add_u32 {sX[3]}, {sX[0]}, 0x18000
    v_lshrrev_b32 v64, 3, {vLANE}          ; l3
    v_and_b32 v65, 7, {vLANE}              ; pos
    v_lshrrev_b32 v66, 4, {vLANE}          ; l4
    s_lshl_b32 {sT}, {sRW}, 3
    v_add_u32 v64, {sT}, v64               ; rw*8+l3
    s_and_b32 {sT}, {sRW}, 1
    s_lshl_b32 {sT}, {sT}, 2
    v_add_u32 v67, {sT}, v66
    v_xor_b32 v67, v67, v65
    v_lshlrev_b32 v67, 4, v67
    v_lshl_add_u32 {vXD}, v64, 10, v67
    v_and_b32 v67, 1, v66
    v_lshlrev_b32 v67, 2, v67
    v_xor_b32 v67, v67, v65                ; pw
    v_lshlrev_b32 v68, 4, v67
    v_mul_lo_u32 v69, v64, {sSTR}
    v_add_u32 {vWD}, v69, v68
    v_lshl_add_u32 {vW2D}, v64, 10, v68
    s_mul_i32 {sP[3]}, {sCGI}, 448
    s_and_b32 {sT}, {sCGI}, 1
    s_lshl_b32 {sT2}, {sT}, 6
    s_add_u32 {sP[0]}, {sP[3]}, {sT2}
    s_add_u32 {sP[1]}, {sP[0]}, 128
    s_add_u32 {sP[2]}, {sP[0]}, 256
    s_cmp_eq_u32 {sT}, 0
    s_cselect_b32 {sT2}, 384, 0
    s_add_u32 {sP[3]}, {sP[3]}, {sT2}
    s_cmp_eq_u32 {sISW1}, 1
    s_cbranch_scc1 PRO_w1
    s_lshl_b32 {sP[2]}, {sCGI}, 7
    s_add_u32 {sP[0]}, {sP[2]}, 1024
    s_add_u32 {sP[1]}, {sP[2]}, 2048
    """)
    g.label("PRO_w1")
    g(f"""
    s_mov_b32 s34, 0x200000
    s_mov_b32 s35, 0x20000
    s_mov_b32 s39, 0x20000
    s_mul_i32 s58, {sISW1}, 2560
    s_add_u32 s58, s58, 1024
    s_mov_b32 s59, 0x20000
    s_lshl_b32 s38, {sSTR}, 9
    s_waitcnt lgkmcnt(0)
    s_mov_b32 s32, s8
    s_and_b32 s33, s9, 0xffff
    s_cmp_eq_u32 {sISW1}, 1
    s_cselect_b32 s36, s16, s10
    s_cselect_b32 s37, s17, s11
    s_cselect_b32 s56, s18, s22
    s_cselect_b32 s57, s19, s23
    s_and_b32 s37, s37, 0xffff
    s_and_b32 s57, s57, 0xffff
    s_cmp_ge_u32 {sW}, 4
    s_cbranch_scc1 S_P0
    """)


def setup2():
    g(f"""
    s_mov_b32 s40, s20
    s_and_b32 s41, s21, 0xffff
    s_mov_b32 s42, 0x1c0000
    s_mov_b32 s43, 0x20000
    s_mov_b32 s44, s12
    s_and_b32 s45, s13, 0xffff
    s_mov_b32 s46, 0x80000
    s_mov_b32 s47, 0x20000
    s_mov_b32 s48, s28
    s_and_b32 s49, s29, 0xffff
    s_mov_b32 s50, {WS_SIZE:#x}
    s_mov_b32 s51, 0x20000
    s_mov_b32 s52, s24
    s_and_b32 s53, s25, 0xffff
    s_mov_b32 s54, 0x200000
    s_mov_b32 s55, 0x20000
    s_mov_b32 s60, s26
    s_and_b32 s61, s27, 0xffff
    s_mov_b32 s62, 256
    s_mov_b32 s63, 0x20000
    s_mov_b32 {sLOG2E}, 0x3fb8aa3b
    s_mov_b32 {sEPS}, 0x358637bd
    v_lshrrev_b32 v68, 2, v67
    v_lshl_add_u32 v68, v68, 8, v64
    v_mul_lo_u32 v68, v68, {sSTR}
    v_and_b32 v69, 3, v67
    v_lshl_add_u32 {vU6D}, v69, 4, v68
    v_and_b32 v64, 31, {vLANE}             ; row
    v_lshrrev_b32 v65, 5, {vLANE}          ; h
    v_bfe_u32 v66, {vLANE}, 1, 3           ; m
    v_xor_b32 v66, v66, v65                ; h ^ m
    s_lshl_b32 {sT}, {sRW}, 12
    s_add_u32 {sT}, {sT}, {LB}
    v_lshl_add_u32 v67, v64, 7, {sT}
    """)
    for sp in range(4):
        g(f"v_xor_b32 v68, {2*sp}, v66")
        g(f"v_lshl_add_u32 {vXB[sp]}, v68, 4, v67")
        g(f"v_add_u32 {vXC[sp]}, 0x10000, {vXB[sp]}")
    g(f"""
    v_bfe_u32 v68, {vLANE}, 2, 2           ; r
    v_lshlrev_b32 v69, 7, v68
    v_bfe_u32 v68, {vLANE}, 3, 1
    v_lshl_add_u32 v69, v68, 6, v69
    v_bfe_u32 v68, {vLANE}, 4, 1
    v_lshl_add_u32 v69, v68, 5, v69
    v_and_b32 v68, 3, {vLANE}
    v_lshl_add_u32 {vT0}, v68, 3, v69
    v_lshl_add_u32 {vWA}, v65, 10, {vT0}
    v_lshlrev_b32 {vL16}, 4, {vLANE}
    v_mov_b32 {vONE}, 1
    v_mov_b32 {vSTAMP}, 0
    v_mov_b32 v24, 0x3f80
    v_mov_b32 v25, 0
    v_mov_b32 v26, 1.0
    v_mov_b32 v27, 0
    v_mov_b32 v28, 0
    v_mov_b32 v29, 0
    v_mov_b32 v30, 0
    v_mov_b32 v31, 0
    v_mov_b32 {vBIAS2}, 0
    s_lshl_b32 {sFL}, {sISW1}, 7
    s_lshl_b32 {sT}, {sRB}, 3
    s_add_u32 {sFL}, {sFL}, {sT}
    s_add_u32 {sFL}, {sFL}, {sCGI}
    s_lshl_b32 {sFL}, {sFL}, 7
    s_add_u32 {sFL}, {sFL}, {FLG:#x}
    s_add_u32 {sPUB}, {sFL}, 124
    s_lshl_b32 {sT}, {sRB}, 2
    s_add_u32 {sT}, {sT}, {sRW}
    s_mul_i32 {sROWB}, {sT}, {144*1024}
    s_lshr_b32 {sKQ}, {sW}, 1
    s_and_b32 {sT}, {sW}, 1
    s_lshl_b32 {sROWT}, {sRB2}, 1
    s_add_u32 {sROWT}, {sROWT}, {sT}
    s_mul_i32 {sACT2}, {sROWT}, {144*1024}
    s_lshr_b32 {sT}, {sROWT}, 2            ; rb_c
    s_lshl_b32 {sT}, {sT}, 3
    s_lshl_b32 {sT2}, {sKQ}, 1
    s_add_u32 {sT2}, {sT2}, {sT}
    s_and_b32 {sCNT}, {sROWT}, 3           ; rwc
    s_lshl_b32 {sCNT}, {sCNT}, 2
    ; lanes 0-7
    v_lshrrev_b32 v68, 2, {vLANE}
    v_add_u32 v68, {sT2}, v68
    v_lshlrev_b32 v68, 7, v68
    v_and_b32 v69, 3, {vLANE}
    v_lshl_add_u32 v68, v69, 4, v68
    v_add_u32 v68, {128*128}, v68
    v_add_u32 v68, {sCNT}, v68
    ; lanes 8,9
    v_and_b32 v69, 1, {vLANE}
    v_add_u32 v69, {sT2}, v69
    v_lshlrev_b32 v69, 7, v69
    v_add_u32 v69, {sCNT}, v69
    v_cmp_gt_u32 vcc, 8, {vLANE}
    v_cndmask_b32 v68, v69, v68, vcc
    ; lane 10..15
    s_lshl_b32 {sT}, {sT}, 7
    s_add_u32 {sT}, {sT}, {sCNT}
    s_add_u32 {sT}, {sT}, 48
    v_mov_b32 v69, {sT}
    v_cmp_gt_u32 vcc, 10, {vLANE}
    v_cndmask_b32 v68, v69, v68, vcc
    v_and_b32 v69, 15, {vLANE}
    v_lshlrev_b32 v69, 3, v69
    v_bfe_u32 v70, {vLANE}, 2, 1
    v_add_u32 v69, v69, v70
    s_lshl_b32 {sT2}, {sKQ}, 1
    v_add_u32 v69, {sT2}, v69
    v_lshlrev_b32 v69, 7, v69
    v_add_u32 v69, 32, v69
    v_cmp_gt_u32 vcc, 16, {vLANE}
    v_cndmask_b32 v68, v69, v68, vcc
    v_add_u32 {vPA2}, {FLG:#x}, v68
    """)


def bias_loads(pa, pb, second_hi):
    g(f"v_lshlrev_b32 v68, 1, {vLANE}")
    g("v_mov_b32 v22, 0")
    g("v_mov_b32 v23, 0")
    g("s_mov_b32 exec_hi, 0")
    g(f"buffer_load_ushort v28, v68, {SB}, {sP[pa]} offen", tag="bias")
    g(f"buffer_load_ushort v22, v68, {SB}, {sP[pa]} offen offset:64", tag="bias")
    g(f"buffer_load_ushort {vBIAS2}, v68, {SB}, {sP[pb]} offen", tag="bias")
    if second_hi:
        g(f"buffer_load_ushort v23, v68, {SB}, {sP[pb]} offen offset:64", tag="bias")
    g("s_mov_b64 exec, -1")


def bias_fix():
    g.wait(vm="bias")
    g("v_lshl_or_b32 v28, v22, 16, v28")
    g(f"v_lshl_or_b32 {vBIAS2}, v23, 16, {vBIAS2}")


def set_st(p, extra=0):
    g(f"s_lshl_b32 {sST}, {sP[p]}, 5")
    g(f"s_add_u32 {sST}, {sST}, {sROWB}")
    if extra: g(f"s_add_u32 {sST}, {sST}, {extra:#x}")


def set_pub(dw_const, add_rw=True):
    if add_rw:
        g(f"s_lshl_b32 {sPUB}, {sRW}, 2")
        g(f"s_add_u32 {sPUB}, {sPUB}, {sFL}")
        if dw_const: g(f"s_add_u32 {sPUB}, {sPUB}, {dw_const*4}")
    else:
        g(f"s_add_u32 {sPUB}, {sFL}, {dw_const*4}")


def chk_issue():
    g(f"v_lshlrev_b32 v52, 2, {vLANE}")
    g(f"buffer_load_dword v53, v52, {SDBG}, 0 offen sc1", tag="chk")


def chk_verify(lab):
    g.wait(vm="chk")
    g(f"s_mov_b32 {sCNT}, 0")
    g.label(lab + "_l")
    g("v_cmp_eq_u32 vcc, 1, v53")
    g(f"s_add_u32 {sCNT}, {sCNT}, 1")
    g(f"s_and_b32 {sT}, vcc_lo, 15")
    g(f"s_cmp_eq_u32 {sT}, 15")
    g(f"s_cbranch_scc1 {lab}")
    with g.optional():
        g(f"buffer_load_dword v53, v52, {SDBG}, 0 offen sc1")
        g("s_waitcnt vmcnt(0)")
        g(f"s_cmp_lt_u32 {sCNT}, {OPT['spin']}")
        g(f"s_cbranch_scc1 {lab}_l")
    g.label(lab)


def L_start():
    setup2()
    g(f"v_xor_b32 {vWB}, 64, {vWA}")
    g(f"s_mov_b64 {sXM}, -1")
    g("s_cmp_lg_u32 s2, 0")
    g("s_cbranch_scc1 L_noclr")
    with g.optional():
        g(f"s_lshl_b32 {sT}, {sRW}, 13")
        g(f"s_add_u32 {sT}, {sT}, {FLG:#x}")
        for i in range(2):
            for k in range(4):
                g(f"buffer_store_dwordx4 v[28:31], {vL16}, {SWS}, {sT} offen offset:{k*1024} sc1")
            if i == 0: g(f"s_add_u32 {sT}, {sT}, 4096")
        g("s_waitcnt vmcnt(0)")
        g(f"s_lshl_b32 {sT}, {sRW}, 2")
        g("s_mov_b64 exec, 1")
        g(f"buffer_store_dword {vONE}, off, {SDBG}, {sT} sc1")
        g("s_mov_b64 exec, -1")
    g.label("L_noclr")
    stamp(0)
    g(f"s_cmp_eq_u32 {sISW1}, 0")
    g("s_cbranch_scc1 QL")


NOC = [[], [], [], []]


def W1L():
    bias_loads(0, 2, True)
    bias_fix()
    call("MP_T", MP, "T", NOC, [])
    stamp(1)
    g(f"s_mov_b64 {sXM}, 0")
    chk_issue()
    set_st(0)
    m0cur[0] = None
    dma_w_begin(sP[2])
    for it in range(4): dma_w(it, LA, f"p2_{it}")
    g("s_barrier")
    call("EH0", EH, 0)
    for it in range(4, 8): dma_w(it, LA, f"p2_{it}")
    g("s_barrier")
    call("EH1", EH, 1)
    dma_w_begin(sP[3])
    for it in range(4): dma_w(it, LC, "u6", voff=vU6D)
    g("s_barrier")
    call("EH2", EH, 2)
    chk_verify("W1L_chk")
    g("s_barrier")
    call("EH3", EH, 3)
    stamp(2)
    g(f"v_mov_b32 v28, {vBIAS2}")
    set_pub(0)
    call("MP_T", MP, "T", [["p2_0", "p2_1"], ["p2_2", "p2_3"], ["p2_4", "p2_5"], ["p2_6", "p2_7"]], ["st", "u6"])
    stamp(3)
    set_st(2)
    set_pub(8)
    items = [(kq, e) for kq in range(4) for e in range(2)]
    g("s_barrier")
    for (kq, e) in items[0:3]: dma_w2_p1(1, kq, e, LA, "g1")
    call("EH0", EH, 0)
    g("s_barrier")
    for (kq, e) in items[3:6]: dma_w2_p1(1, kq, e, LA, "g1")
    call("EH1", EH, 1)
    g("s_barrier")
    for (kq, e) in items[6:8]: dma_w2_p1(1, kq, e, LA, "g1")
    call("EH2", EH, 2)
    call("EH3", EH, 3)
    stamp(4)
    g("s_branch P2")


def QL():
    call("MP_N", MP, "N", NOC, [])
    stamp(1)
    g(f"s_mov_b64 {sXM}, 0")
    chk_issue()
    m0cur[0] = None
    dma_w_begin(sP[2])
    for it in range(4): dma_w(it, LA, f"p2_{it}")
    g(f"s_lshl_b32 {sT}, {sRW}, 11")
    g(f"s_add_u32 {sT}, {sT}, {LC}")
    g(f"v_add_u32 v54, {sT}, {vL16}")
    for q in range(4):
        g("s_barrier")
        call(f"PH{q}", PH, q)
        g(f"ds_write_b128 v54, {vr(PK)} offset:{(q>>1)*8192 + (q&1)*1024}", tag="pkw")
        if q == 0:
            for it in range(4, 8): dma_w(it, LA, f"p2_{it}")
        if q == 2:
            chk_verify("QL_chk")
    g.wait(lg="pkw")
    stamp(2)
    call("MP_T", MP, "T", [["p2_0", "p2_1"], ["p2_2", "p2_3"], ["p2_4", "p2_5"], ["p2_6", "p2_7"]], [])
    stamp(3)
    set_st(2, 112 * 1024)
    set_pub(0)
    items = [(kq, e) for kq in range(4) for e in range(2)]
    g("s_barrier")
    for q in range(4):
        if q < 3:
            for (kq, e) in items[3*q:3*q+3]: dma_w2_p1(1, kq, e, LA, "g1")
        call(f"PH{q}", PH, q)
        g(f"buffer_store_dwordx4 {vr(PK)}, {vL16}, {SWS}, {sST} offen offset:{q*1024} sc1", tag="st")
    stamp(4)
    g("s_branch P2")


def S_P0():
    m0cur[0] = None
    g(f"s_or_b32 {sGATE}, {sISW1}, {sCGI}")
    g("s_cbranch_scc1 S_nogl")
    with g.optional():
        g(f"v_and_b32 v0, 31, {vLANE}")
        g("v_lshlrev_b32 v0, 5, v0")
        g(f"v_lshrrev_b32 v71, 5, {vLANE}")
        g("v_lshl_add_u32 v0, v71, 4, v0")
        for c in range(8):
            g(f"buffer_load_dwordx4 {vr(TMP+4*c)}, v0, {SB}, 0 offen offset:{c*128}")
    g.label("S_nogl")
    dma_w_begin(sP[0])
    for c in range(6):
        dma_x(c)
        dma_w(c, LA, f"w0_{c}")
    dma_w(6, LA, "w0_6"); dma_w(7, LA, "w0_7")
    setup2()
    bias_loads(1, 3, False)
    g(f"v_add_u32 {vWA}, {LB}, {vWA}")
    g(f"v_xor_b32 {vWB}, 64, {vWA}")
    g(f"s_mov_b64 {sXM}, 0")
    stamp(0)
    dma_w_begin(sP[1])
    for q in range(4):
        g.wait(vm=[f"x{2*q}", f"x{2*q+1}", f"w0_{2*q}", f"w0_{2*q+1}"])
        g("s_barrier")
        if q == 1:
            dma_x(6); dma_x(7)
        if q >= 2:
            for it in range(4 * (q - 2), 4 * (q - 2) + 4): dma_w(it, LB, f"p1_{it}")
        for c in (2 * q, 2 * q + 1):
            regs, off = (vXC, XS[c] - LC) if XS[c] >= LC else (vXB, XS[c] - LB)
            for sp in range(4):
                s = c * 4 + sp
                g(f"ds_read_b128 {vr(XR+4*s)}, {regs[sp]} offset:{off}", tag="xr")
        g.wait(lg="xr")
        g(f"s_cmp_lg_u32 {sGATE}, 0")
        g(f"s_cbranch_scc1 S_nog{q}")
        with g.optional():
            for s in range(8 * q, 8 * q + 8):
                acc = vr(64 + 16 * (s & 3), 16)
                g(f"v_mfma_f32_32x32x16_bf16 {acc}, {vr(TMP+4*(s>>2))}, {vr(XR+4*s)}, {acc if s >= 4 else 0}")
            if q == 3:
                g("v_add_f32 v32, v64, v81")
                g("v_add_f32 v33, v98, v115")
                g("v_add_f32 v32, v32, v33")
                g(f"v_mul_f32 v32, {sLOG2E}, v32")
                g("v_exp_f32_e64 v32, -v32")
                g("v_add_f32 v32, 1.0, v32")
                g("v_rcp_f32 v32, v32")
                g(f"s_lshl_b32 {sT}, {sRB}, 9")
                g(f"s_lshl_b32 {sCNT}, {sRW}, 7")
                g(f"s_add_u32 {sT}, {sT}, {sCNT}")
                g(f"s_add_u32 {sT}, {sT}, {GOF:#x}")
                g(f"v_lshlrev_b32 v33, 2, {vLANE}")
                g("s_mov_b32 exec_hi, 0")
                g(f"buffer_store_dword v32, v33, {SWS}, {sT} offen sc1")
                g("s_mov_b64 exec, -1")
                set_pub(12)
        g.label(f"S_nog{q}")
    stamp(1)
    g(f"s_cmp_eq_u32 {sISW1}, 0")
    g("s_cbranch_scc1 QS")


P1CERT = [["p1_0", "p1_1"], ["p1_2", "p1_3"], ["p1_4", "p1_5"], ["p1_6", "p1_7"]]


def W1S():
    bias_fix()
    call("MP_T", MP, "T", P1CERT, ["p1_7"])
    stamp(2)
    set_st(1)
    items = [(kq, e) for kq in range(4) for e in range(2)]
    m0cur[0] = None
    for q in range(4):
        g("s_barrier")
        if q < 3:
            for (kq, e) in items[3*q:3*q+3]: dma_w2_p1(0, kq, e, LB, "g0")
        call(f"EH{q}", EH, q)
    stamp(3)
    g(f"v_mov_b32 v28, {vBIAS2}")
    g(f"v_add_u32 {vWA}, {LC-LB}, {vWA}")
    g(f"v_add_u32 {vWB}, {LC-LB}, {vWB}")
    set_pub(4)
    MU6(["st", "g0"])
    set_st(3)
    set_pub(12)
    g("s_barrier")
    for kq in range(4): dma_w2_p1(3, kq, 0, LC, "g3")
    call("EH0", EH, 0)
    call("EH1", EH, 1)
    stamp(4)
    g("s_branch P2")


def QS():
    call("MP_N", MP, "N", P1CERT, ["p1_7"])
    stamp(2)
    g(f"s_lshl_b32 {sT}, {sRW}, 11")
    g(f"s_add_u32 {sT}, {sT}, {LC+16384}")
    g(f"v_add_u32 v54, {sT}, {vL16}")
    g(f"v_and_b32 v55, 47, {vLANE}")
    g(f"s_and_b32 {sT}, {sRW}, 1")
    g(f"s_lshl_b32 {sT}, {sT}, 8")
    g(f"s_lshr_b32 {sT2}, {sRW}, 1")
    g(f"s_lshl_b32 {sT2}, {sT2}, 13")
    g(f"s_add_u32 {sT}, {sT}, {sT2}")
    g(f"s_add_u32 {sT}, {sT}, {LC}")
    g(f"v_lshl_add_u32 v55, v55, 4, {sT}")
    for i in range(32): g(f"v_mov_b32 v{XR+32+i}, 0x3f803f80")
    for q in range(4):
        for i in range(4): g(f"v_cvt_pk_bf16_f32 v{TMP+4*q+i}, v{ACC+8*q+2*i}, v{ACC+8*q+2*i+1}")
        g(f"ds_write_b128 v54, {vr(TMP+4*q)} offset:{(q>>1)*8192 + (q&1)*1024}", tag="vw")
    g.wait(lg="vw")
    g("s_barrier")
    g("s_setprio 2")
    for k in range(8):
        g(f"ds_read_b128 {vr(XR+4*k)}, v55 offset:{k*1024}", tag=f"a{k}")
    g("s_mov_b32 exec_lo, 0xffff")
    g("s_mov_b32 exec_hi, 0xffff")
    g.wait(lg="a3")
    for k in range(8):
        g(f"ds_read_b128 {vr(XR+32+4*k)}, v55 offset:{16384+k*1024}", tag=f"b{k}")
    g("s_mov_b64 exec, -1")
    g(f"s_lshl_b32 {sT}, {sCGI}, 2")
    g(f"s_add_u32 {sT}, {sT}, {sRW}")
    g(f"s_lshl_b32 {sT}, {sT}, 4")
    g(f"s_add_u32 {sT}, {sT}, {sRB}")
    g(f"s_lshl_b32 {sT}, {sT}, 11")
    g(f"s_add_u32 {sT}, {sT}, {KVP:#x}")
    g(f"v_lshlrev_b32 v56, 5, {vLANE}")
    for k in range(8):
        g.wait(lg=[f"a{k}", f"b{k}"])
        g(f"v_mfma_f32_32x32x16_bf16 {vr(ACC,16)}, {vr(XR+4*k)}, {vr(XR+32+4*k)}, {vr(ACC,16) if k else 0}")
    g(f"buffer_store_dwordx4 {vr(ACC)}, v56, {SWS}, {sT} offen sc1", tag="kvst")
    g(f"buffer_store_dwordx4 {vr(ACC+4)}, v56, {SWS}, {sT} offen offset:16 sc1", tag="kvst")
    g("s_setprio 0")
    items = [(kq, e) for kq in range(4) for e in range(2)]
    m0cur[0] = None
    for (kq, e) in items[0:4]: dma_w2_p1(0, kq, e, LB, "g0")
    g("s_barrier")
    for (kq, e) in items[4:8]: dma_w2_p1(0, kq, e, LB, "g0")
    set_pub(4)
    g.wait(vm="kvst")
    publish()
    g("s_barrier")
    for kq in range(4): dma_w2_p1(3, kq, 0, LC, "g3")
    g("s_barrier")
    stamp(3)
    g("s_barrier")
    set_pub(31, False)
    g(f"s_and_b32 {sT}, {sCGI}, 1")
    g(f"s_lshl_b32 {sT}, {sT}, 2")
    g(f"s_add_u32 {sT}, {sT}, {sRW}")
    g(f"s_and_b32 {sT2}, {sRB}, 7")
    g(f"s_cmp_lg_u32 {sT}, {sT2}")
    g("s_cbranch_scc1 QS_nored")
    with g.optional():
        g(f"v_and_b32 v36, 15, {vLANE}")
        g(f"s_lshl_b32 {sT}, {sCGI}, 7")
        g(f"s_lshl_b32 {sT2}, {sRW}, 2")
        g(f"s_add_u32 {sT}, {sT}, {sT2}")
        g(f"s_add_u32 {sT}, {sT}, {FLG+16:#x}")
        g(f"v_lshl_add_u32 {vPA}, v36, 10, {sT}")
        g(f"s_mov_b32 {sMASK}, 0xffff")
        call("SPIN", SPIN, ret=sRET2)
        g.vm = []
        g(f"s_lshl_b32 {sT}, {sCGI}, 2")
        g(f"s_add_u32 {sT}, {sT}, {sRW}")
        g(f"s_lshr_b32 {sCNT}, {sRB}, 3")
        g(f"s_lshl_b32 {sT2}, {sT}, 15")
        g(f"s_lshl_b32 {sMASK}, {sCNT}, 10")
        g(f"s_add_u32 {sT2}, {sT2}, {sMASK}")
        g(f"s_add_u32 {sT2}, {sT2}, {KVP:#x}")
        for r in range(16):
            g(f"buffer_load_dwordx4 {vr(XR+4*r)}, {vL16}, {SWS}, {sT2} offen offset:{(r&1)*2048} sc1", tag=f"r{r}")
            if r & 1 and r < 15: g(f"s_add_u32 {sT2}, {sT2}, 4096")
        g(f"s_lshl_b32 {sT}, {sT}, 10")
        g(f"s_lshl_b32 {sCNT}, {sCNT}, 9")
        g(f"s_add_u32 {sT}, {sT}, {sCNT}")
        g(f"s_add_u32 {sT}, {sT}, {KVF:#x}")
        g(f"v_lshlrev_b32 v56, 3, {vLANE}")
        for r in range(1, 16):
            g.wait(vm=f"r{r}")
            for i in range(4): g(f"v_add_f32 v{XR+i}, v{XR+i}, v{XR+4*r+i}")
        g(f"v_cvt_pk_bf16_f32 v{XR+4}, v{XR}, v{XR+1}")
        g(f"v_cvt_pk_bf16_f32 v{XR+5}, v{XR+2}, v{XR+3}")
        g(f"buffer_store_dwordx2 {vr(XR+4,2)}, v56, {SWS}, {sT} offen sc1")
        set_pub(8, False)
    g.label("QS_nored")
    stamp(4)


AG = {0: 128, 1: 160, 3: 192, 2: 208}
PQ = 32
KVR = 128
VG, VG1 = "v6", "v7"


def P2():
    g(f"v_mov_b32 {vPA}, {vPA2}")
    poll_issue()
    g(f"v_lshrrev_b32 v33, 5, {vLANE}")
    g(f"v_lshl_add_u32 v8, v33, 9, {vT0}")
    g(f"s_lshl_b32 {sT}, {sKQ}, 14")
    g(f"v_add_u32 v10, {sT}, v8")
    g("v_xor_b32 v11, 64, v10")
    g(f"v_add_u32 v12, {LB}, v10")
    g(f"v_add_u32 v13, {LB}, v11")
    g(f"s_lshl_b32 {sT}, {sKQ}, 13")
    g(f"s_add_u32 {sT}, {sT}, {LC}")
    g(f"v_add_u32 v14, {sT}, v8")
    g("v_xor_b32 v15, 64, v14")
    g(f"s_mul_i32 {sT}, {sKQ}, {28*1024}")
    g(f"s_add_u32 {sST}, {sACT2}, {sT}")
    g(f"s_lshl_b32 {sRW1K}, {sW}, 10")
    g(f"s_lshr_b32 {sT}, {sW}, 2")
    g(f"s_lshl_b32 {sT}, {sT}, 15")
    g(f"s_add_u32 {sW2O}, {sNBO}, {sT}")
    m0cur[0] = None
    g.wait(vm=["poll", "st", "g0", "g1", "g3"])
    g(f"v_cmp_eq_u32 vcc, 1, {vPR}")
    publish()
    g(f"s_mov_b32 {sHAVE}, vcc_lo")
    ensure(0x33, "P2_e0")

    def act_loads(grp):
        its = [(3, 0)] if grp == 3 else [(grp, 0), (4 + grp, 1)]
        for (it, e) in its:
            g(f"s_add_u32 {sT}, {sST}, {it*4096}")
            for sp in range(4):
                g(f"buffer_load_dwordx4 {vr(AG[grp]+16*e+4*sp)}, {vL16}, {SWS}, {sT} offen offset:{sp*1024} sc1", tag=f"a{grp}_{e*4+sp}")

    act_loads(0); act_loads(1)
    ensure(0x300, "P2_e1")
    g(f"s_lshl_b32 {sT}, {sKQ}, 13")
    g(f"s_add_u32 {sT}, {sT}, {sACT2}")
    g(f"s_add_u32 {sT}, {sT}, {112*1024}")
    for hd in range(8):
        if hd == 4: g(f"s_add_u32 {sT}, {sT}, 4096")
        g(f"buffer_load_dwordx4 {vr(PQ+4*hd)}, {vL16}, {SWS}, {sT} offen offset:{(hd&3)*1024} sc1", tag=f"pq{hd}")
    g("s_barrier")
    stamp(5)

    NB2 = D2 + 1
    seq = []
    for i in range(8): seq.append(("g0", AG[0] + 4 * i, "v12", "v13", i * 2048, f"a0_{i}"))
    for i in range(8): seq.append(("g1", AG[1] + 4 * i, "v10", "v11", i * 2048, f"a1_{i}"))
    for i in range(4): seq.append(("g3", AG[3] + 4 * i, "v14", "v15", i * 2048, f"a3_{i}"))
    for i in range(8): seq.append(("g2", AG[2] + 4 * i, "v12", "v13", i * 2048, f"a2_{i}"))
    for i in range(8): seq.append(("hd", PQ + 4 * i, "v10", "v11", i * 2048, None))

    def trread(n):
        _, _, a, b_, imm, _ = seq[n]
        b = WBUF + (n % NB2) * 8
        for u, va in ((0, a), (1, b_)):
            g(f"ds_read_b64_tr_b16 {vr(b+u*4, 2)}, {va} offset:{imm}", tag=f"w{n}")
            g(f"ds_read_b64_tr_b16 {vr(b+u*4+2, 2)}, {va} offset:{imm+1024}", tag=f"w{n}")

    def dma2(srd, row, region, slot, tag):
        set_m0(region + slot * 8192)
        g(f"s_add_u32 {sT2}, {sW2O}, {row*1024:#x}")
        g(f"buffer_load_dwordx4 {vW2D}, {srd}, {sT2} offen lds", tag=tag)

    def run(lo, hi, first=False):
        for n in range(lo, min(lo + D2, hi)): trread(n)
        for n in range(lo, hi):
            if n + D2 < hi: trread(n + D2)
            _, breg, _, _, _, vmtag = seq[n]
            g.wait(vm=vmtag, lg=f"w{n}")
            b = WBUF + (n % NB2) * 8
            for u in range(2):
                acc = vr(ACC + 16 * u, 16)
                g(f"v_mfma_f32_32x32x16_bf16 {acc}, {vr(b+4*u)}, {vr(breg)}, {acc if n else 0}")

    run(0, 8)
    g("s_barrier")
    for kq in range(4):
        for e in range(2): dma2(SW2, 448 * kq + 256 * e + 128, LB, kq * 2 + e, "wg2")
    poll_issue()
    run(8, 16)
    g("s_barrier")
    for kq in range(4):
        for e in range(2): dma2(SWO, 128 * kq + 64 * e, LA, kq * 2 + e, "wo")
    poll_take()
    ensure(0xcc, "P2_e2")
    act_loads(3); act_loads(2)
    ensure(0xffff0400, "P2_e3")
    g(f"s_lshl_b32 {sT}, {sKQ}, 13")
    g(f"s_add_u32 {sT}, {sT}, {KVF:#x}")
    for hd in range(8):
        if hd == 4: g(f"s_add_u32 {sT}, {sT}, 4096")
        g(f"buffer_load_dwordx4 {vr(KVR+4*hd)}, {vL16}, {SWS}, {sT} offen offset:{(hd&3)*1024} sc1", tag=f"kv{hd}")
    g(f"v_and_b32 v9, 31, {vLANE}")
    g("v_lshlrev_b32 v9, 2, v9")
    g(f"s_lshl_b32 {sT}, {sROWT}, 7")
    g(f"s_add_u32 {sT}, {sT}, {GOF:#x}")
    g(f"buffer_load_dword {VG}, v9, {SWS}, {sT} offen sc1", tag="g")
    stamp(6)
    run(16, 20)
    g.wait(vm="wg2")
    g("s_barrier")
    run(20, 28)
    stamp(7)
    g.wait(vm=["g", "wo"])
    g("s_barrier")
    g(f"v_sub_f32 {VG1}, 1.0, {VG}")
    NT = [160, 176, 192, 208]
    def nd(hd):
        g(f"v_mfma_f32_32x32x16_bf16 {vr(NT[hd%4],16)}, {vr(KVR+4*hd)}, {vr(PQ+4*hd)}, 0")
    for hd in range(3): nd(hd)
    for i in range(32): g(f"v_mul_f32 v{ACC+i}, {VG1}, v{ACC+i}")
    for hd in range(8):
        if hd + 3 < 8: nd(hd + 3)
        t = NT[hd % 4]
        g(f"v_add_f32 v{t+8}, {sEPS}, v{t+8}")
        g(f"v_rcp_f32 v{t+8}, v{t+8}")
        g(f"v_mul_f32 v{t+8}, {VG}, v{t+8}")
        for i in range(8): g(f"v_mul_f32 v{t+i}, v{t+8}, v{t+i}")
        for i in range(4): g(f"v_cvt_pk_bf16_f32 v{PQ+4*hd+i}, v{t+2*i}, v{t+2*i+1}")
    run(28, 36)
    stamp(8)
    RS = 272
    g(f"v_and_b32 v8, 31, {vLANE}")
    g(f"v_mul_u32_u24 v8, {RS}, v8")
    g(f"v_lshrrev_b32 v9, 5, {vLANE}")
    g("v_lshl_add_u32 v8, v9, 7, v8")
    g(f"s_mul_i32 {sT}, {sW}, {32*RS}")
    g(f"s_add_u32 {sT}, {sT}, {LB}")
    g(f"v_add_u32 v8, {sT}, v8")
    for u in range(2):
        for gq in range(4):
            g(f"ds_write_b128 v8, {vr(ACC+16*u+4*gq)} offset:{(u*4+gq)*16}", tag="rw")
    g(f"v_lshrrev_b32 v9, 3, {vLANE}")
    g(f"v_mul_u32_u24 v10, {RS}, v9")
    g(f"v_and_b32 v11, 7, {vLANE}")
    g("v_lshl_add_u32 v10, v11, 4, v10")
    g(f"s_mul_i32 {sT}, {sW}, {8*RS}")
    g(f"s_add_u32 {sT}, {sT}, {LB}")
    g(f"v_add_u32 v10, {sT}, v10")
    g("v_lshlrev_b32 v12, 10, v9")
    g("v_lshl_add_u32 v12, v11, 4, v12")
    g(f"s_lshl_b32 {sT}, {sRB2}, 16")
    g(f"s_lshl_b32 {sT2}, {sW}, 13")
    g(f"s_add_u32 {sT}, {sT}, {sT2}")
    g(f"s_add_u32 {sT}, {sT}, {sNBO}")
    g.wait(lg="rw")
    g("s_barrier")
    for kq in range(4):
        for hh in range(2):
            g(f"ds_read_b128 {vr(128+8*kq+4*hh)}, v10 offset:{kq*64*RS + hh*128}", tag=f"rr{kq}")
    for kq in range(1, 4):
        g.wait(lg=f"rr{kq}")
        for i in range(8): g(f"v_add_f32 v{128+i}, v{128+i}, v{128+8*kq+i}")
    for i in range(4): g(f"v_cvt_pk_bf16_f32 v{160+i}, v{128+2*i}, v{128+2*i+1}")
    g(f"buffer_store_dwordx4 v[160:163], v12, {SOUT}, {sT} offen")
    if STAMP:
        stamp(9)
        g("s_lshl_b32 s3, s2, 3")
        g(f"s_add_u32 s3, s3, {sW}")
        g("s_lshl_b32 s3, s3, 6")
        g(f"s_add_u32 s3, s3, {STP:#x}")
        g(f"v_lshlrev_b32 v9, 2, {vLANE}")
        g("s_mov_b64 exec, 0xffff")
        g(f"buffer_store_dword {vSTAMP}, v9, {SWS}, s3 offen")
    g.label("END")
    g("s_endpgm")


ENTRY = KN + "_kernel"
for role in ("W1L", "QL", "W1S", "QS"):
    g.start_trace(role)
    g.block(ENTRY, prologue)
    if role in ("W1L", "QL"):
        g.block("L_start", L_start)
    else:
        g.block("S_P0", S_P0, align=3)
    g.block(role, {"W1L": W1L, "QL": QL, "W1S": W1S, "QS": QS}[role])
    g.block("P2", P2, align=3)
g.hazards()
order = [ENTRY, "L_start", "W1L", "QL", "S_P0", "W1S", "MP_T", "MP_N", "EH0", "EH1", "EH2", "EH3",
         "PH0", "PH1", "PH2", "PH3", "SPIN", "QS", "P2"]
assert sorted(order) == sorted(g.order), (g.order)

hdr = open("cdna_kernels/" + KN + ".s.ref").read().split("\n")
top = [l for l in hdr if l.startswith(";") and "@launch" not in l]
print("\n".join(top))
print("; @launch grid=(256,1,1) block=(512,1,1) lds=163840")
print('.amdgcn_target "amdgcn-amd-amdhsa--gfx950"\n.text')
print(f".globl {ENTRY}\n.p2align 8\n.type {ENTRY},@function")
print(g.text(order))
print(f""".section .rodata,"a"
.p2align 6
.amdhsa_kernel {ENTRY}
  .amdhsa_next_free_vgpr 256
  .amdhsa_next_free_sgpr 102
  .amdhsa_accum_offset 256
  .amdhsa_group_segment_fixed_size 0
  .amdhsa_kernarg_size 88
  .amdhsa_user_sgpr_count 2
  .amdhsa_user_sgpr_kernarg_segment_ptr 1
  .amdhsa_system_sgpr_workgroup_id_x 1
.end_amdhsa_kernel""")
print(f"; maxvm={g.maxvm}", file=sys.stderr)
for name, tr in g.traces:
    print(f"; trace {name}: barriers={sum(1 for o in tr if o.kind=='i' and o.mn=='s_barrier')} instrs={len(tr)}", file=sys.stderr)
```

```python
import re

KN = "gated_mix__linear_attn_block__dense_activation_mish__prompt"

TRANS = ("v_exp_f32", "v_rcp_f32", "v_log_f32", "v_rsq_f32", "v_sqrt_f32")


def regs_of(tok):
    tok = tok.strip()
    tok = tok.lstrip("-").strip("|")
    m = re.fullmatch(r"([vs])(\d+)", tok)
    if m:
        return m.group(1), {int(m.group(2))}
    m = re.fullmatch(r"([vs])\[(\d+):(\d+)\]", tok)
    if m:
        return m.group(1), set(range(int(m.group(2)), int(m.group(3)) + 1))
    if tok == "vcc":
        return "s", {106, 107}
    if tok == "m0":
        return "s", {124}
    if tok == "exec":
        return "s", {126, 127}
    return None


class I:
    __slots__ = ("text", "kind", "vm", "lg", "pre", "mn", "vr", "vw", "sr", "sw", "cls", "srcc", "sdata", "comment")

    def __init__(self, text, kind="i"):
        self.text = text
        self.kind = kind
        self.vm = 63
        self.lg = 15
        self.pre = 0
        self.comment = ""
        if kind == "i":
            self.parse()

    def parse(self):
        t = self.text.split(";")[0].strip()
        parts = t.split(None, 1)
        mn = parts[0]
        self.mn = mn
        ops = []
        if len(parts) > 1:
            cur = ""
            for ch in parts[1]:
                if ch == ",":
                    ops.append(cur.strip()); cur = ""
                else:
                    cur += ch
            ops.append(cur.strip())
            last = ops[-1].split()
            mods = last[1:]
            ops[-1] = last[0] if last else ""
        else:
            mods = []
        self.vr, self.vw, self.sr, self.sw = set(), set(), set(), set()
        self.srcc = set(); self.sdata = set()

        def rd(tok):
            r = regs_of(tok)
            if r: (self.vr if r[0] == "v" else self.sr).update(r[1])

        def wr(tok):
            r = regs_of(tok)
            if r: (self.vw if r[0] == "v" else self.sw).update(r[1])

        if mn.startswith("v_mfma"):
            self.cls = "mfma"
            wr(ops[0]); rd(ops[1]); rd(ops[2]); rd(ops[3])
            r = regs_of(ops[3])
            if r and r[0] == "v": self.srcc = set(r[1])
        elif mn.startswith("v_cmp"):
            self.cls = "valu"
            wr(ops[0])
            for o in ops[1:]: rd(o)
        elif mn.startswith("v_permlane"):
            self.cls = "perm"
            for o in ops: rd(o); wr(o)
        elif mn.startswith("v_"):
            self.cls = "trans" if mn.replace("_e32", "").replace("_e64", "") in TRANS else "valu"
            wr(ops[0])
            for o in ops[1:]: rd(o)
            if mn.startswith(("v_fmac", "v_mac", "v_dot2c")): rd(ops[0])
            if mn.startswith("v_cndmask") and len(ops) == 3: rd("vcc")
        elif mn.startswith("ds_read"):
            self.cls = "ds"
            wr(ops[0]); rd(ops[1])
        elif mn.startswith("ds_write"):
            self.cls = "ds"
            for o in ops: rd(o)
        elif mn.startswith("global_load"):
            self.cls = "vmem"
            wr(ops[0])
            for o in ops[1:]: rd(o)
        elif mn.startswith("buffer_load"):
            self.cls = "vmem"
            if "lds" in mods:
                self.cls = "dma"
                for o in ops: rd(o)
                rd("m0")
            else:
                wr(ops[0])
                if "d16" in mn: rd(ops[0])
                for o in ops[1:]: rd(o)
        elif mn.startswith(("buffer_store", "buffer_atomic")):
            self.cls = "vmem"
            for o in ops: rd(o)
            if "x4" in mn or "x3" in mn:
                self.sdata = set(regs_of(ops[0])[1])
        elif mn.startswith("s_"):
            self.cls = "salu"
            if mn.startswith(("s_cmp", "s_cbranch", "s_branch", "s_barrier", "s_nop", "s_waitcnt", "s_setprio", "s_endpgm", "s_sleep", "s_setpc", "s_bitcmp")):
                for o in ops: rd(o)
            else:
                wr(ops[0])
                for o in ops[1:]: rd(o)
                if mn.startswith(("s_addk", "s_mulk")): rd(ops[0])
        else:
            raise ValueError("unknown instr " + t)

    def states(self):
        if self.kind == "wait":
            return 1 if (self.vm < 63 or self.lg < 15) else 0
        if self.kind != "i":
            return 0
        if self.mn == "s_nop":
            return int(self.text.split()[1], 0) + 1
        return 1

    def render(self):
        out = []
        n = self.pre
        while n > 0:
            k = min(n, 16)
            out.append(f"    s_nop {k-1}")
            n -= k
        if self.kind == "wait":
            p = []
            if self.vm < 63: p.append(f"vmcnt({self.vm})")
            if self.lg < 15: p.append(f"lgkmcnt({self.lg})")
            if p: out.append("    s_waitcnt " + " ".join(p) + (("  ; " + self.comment) if self.comment else ""))
        elif self.kind == "label":
            out.append(self.text + ":")
        elif self.kind == "raw":
            out.append(self.text)
        else:
            out.append("    " + self.text)
        return out


class Gen:
    def __init__(self):
        self.blocks = {}
        self.order = []
        self.cur = None
        self.replay = None
        self.stack = []
        self.traces = []
        self.trace = None
        self.vm = []
        self.lg = []
        self.maxvm = 0
        self.nlab = 0

    def start_trace(self, name):
        self.trace = []
        self.traces.append((name, self.trace))
        self.vm = []; self.lg = []

    def block(self, name, fn, *args, align=None, **kw):
        self.stack.append((self.cur, self.replay))
        if name in self.blocks:
            self.cur = None
            self.replay = [self.blocks[name], 0]
            if align: self.replay[1] += 1
            self.replay[1] += 1
        else:
            self.blocks[name] = []
            self.order.append(name)
            self.cur = self.blocks[name]
            self.replay = None
            if align: self.cur.append(I(f".p2align {align}", "raw"))
            self.cur.append(I(name, "label"))
        fn(*args, **kw)
        if self.replay is not None:
            assert self.replay[1] == len(self.replay[0]), f"replay length mismatch in {name}"
        self.cur, self.replay = self.stack.pop()

    def _put(self, text, kind):
        if self.replay is not None:
            lst, idx = self.replay
            o = lst[idx]
            assert o.kind == kind and (kind == "wait" or o.text == text), f"replay mismatch: {o.text!r} vs {text!r}"
            self.replay[1] += 1
        else:
            o = I(text, kind)
            self.cur.append(o)
        self.trace.append(o)
        return o

    def __call__(self, s, tag=None):
        for l in s.strip("\n").split("\n"):
            l = l.strip()
            if not l or l.startswith(";"): continue
            o = self._put(l, "i")
            if o.cls in ("vmem", "dma"):
                self.vm.append(tag)
                self.maxvm = max(self.maxvm, len(self.vm))
                assert len(self.vm) <= 63, "too many outstanding vm ops"
            elif o.cls == "ds":
                self.lg.append(tag)
            elif o.mn.startswith("s_waitcnt"):
                m = re.search(r"vmcnt\((\d+)\)", l)
                if m:
                    n = int(m.group(1)); self.vm = self.vm[len(self.vm) - n:] if n < len(self.vm) else self.vm
                    if n == 0: self.vm = []
                m = re.search(r"lgkmcnt\((\d+)\)", l)
                if m:
                    n = int(m.group(1)); self.lg = self.lg[len(self.lg) - n:] if n < len(self.lg) else self.lg
                    if n == 0: self.lg = []

    def label(self, name):
        self._put(name, "label")

    def raw(self, t):
        self._put(t, "raw")

    def wait(self, vm=None, lg=None, comment=""):
        o = self._put("", "wait")
        if comment: o.comment = comment
        for lst_name, tags, attr, cap in (("vm", vm, "vm", 63), ("lg", lg, "lg", 15)):
            if tags is None: continue
            if isinstance(tags, str): tags = [tags]
            lst = getattr(self, lst_name)
            last = -1
            for k, t in enumerate(lst):
                if t in tags: last = k
            if last >= 0:
                n = len(lst) - 1 - last
                n = min(n, cap - 1)
                setattr(o, attr, min(getattr(o, attr), n))
                setattr(self, lst_name, lst[len(lst) - n:] if n > 0 else [])
        return o

    def optional(self):
        g = self
        class C:
            def __enter__(s):
                s.vm = list(g.vm); s.lg = list(g.lg)
            def __exit__(s, *a):
                g.vm = s.vm; g.lg = s.lg
        return C()

    def hazards(self):
        changed = True
        it = 0
        while changed:
            changed = False
            it += 1
            for name, tr in self.traces:
                hist = []
                pos = 0
                for o in tr:
                    if o.kind not in ("i", "wait"): continue
                    pos += o.pre
                    if o.kind == "i":
                        need = 0
                        for (p, q) in reversed(hist):
                            dist = pos - p - 1
                            if dist >= 20: break
                            r = self.req(q, o)
                            if r > dist: need = max(need, r - dist)
                        if need:
                            o.pre += need; pos += need; changed = True
                        hist.append((pos + o.states() - 1, o))
                        if len(hist) > 40: hist = hist[-40:]
                    pos += o.states()
            assert it < 10

    @staticmethod
    def req(q, o):
        r = 0
        qc, oc = q.cls, o.cls
        valu_q = qc in ("valu", "trans", "perm")
        valu_o = oc in ("valu", "trans", "perm")
        if valu_q and oc == "mfma" and (q.vw & o.vr): r = max(r, 2)
        if qc == "mfma":
            if oc == "mfma":
                ab = o.vr - o.srcc if o.srcc else o.vr
                t = o.text.split(None, 1)[1].split(",")
                abr = set()
                for tok in t[1:3]:
                    x = regs_of(tok)
                    if x and x[0] == "v": abr |= x[1]
                if q.vw & abr: r = max(r, 12)
                if (q.vw & o.srcc) and q.vw != o.srcc: r = max(r, 10)
                if (q.vw & o.vw) and not (q.vw == o.srcc): r = max(r, 12)
            else:
                if (q.vw & o.vr) or (q.vw & o.vw): r = max(r, 12)
                if valu_o and (q.srcc & o.vw): r = max(r, 7)
        if qc == "trans" and valu_o and oc != "trans" and (q.vw & o.vr): r = max(r, 1)
        if qc == "trans" and oc == "trans" and (q.vw & o.vr): r = max(r, 1)
        if valu_q and q.sw:
            if valu_o and (q.sw & o.sr): r = max(r, 2)
            if oc in ("vmem", "dma") and (q.sw & o.sr): r = max(r, 5)
            if oc == "salu" and (q.sw & o.sr): r = max(r, 1)
        if valu_q and o.mn.startswith(("v_readfirstlane", "v_readlane")) and (q.vw & o.vr): r = max(r, 1)
        if valu_q and oc == "perm" and (q.vw & o.vr): r = max(r, 2)
        if q.sdata and (q.sdata & o.vw): r = max(r, 2)
        if qc == "salu" and 124 in q.sw and oc == "dma": r = max(r, 1)
        return r

    def text(self, order=None):
        out = []
        for n in (order or self.order):
            for o in self.blocks[n]:
                out.extend(o.render())
        return "\n".join(out)
```

```python
import sys
from fw import *

OPT = dict(wsoff=0, nt=0, nopoll=0, nost=0, nosc=0, stamp=0, D=3, D2=2, spin=3000, PD=6)
for a in sys.argv[1:]:
    k, v = a.split("="); OPT[k] = int(v, 0)
STAMP = OPT["stamp"]; D = OPT["D"]; D2 = OPT["D2"]

LA, LB, LC = 0, 65536, 131072
ACT, KVP, KVF, GOF, FLG, STP = 0, 0xA00000, 0xB00000, 0xB10000, 0xB20000, 0xB30000
WS_SIZE = 0xB28000 if not STAMP else 0xC00000
XS = [LC, LC + 16384, LB, LB + 16384, LB + 32768, LB + 49152, LC, LC + 16384]
SX, SW, SW2, SWO, SWS, SOUT, SB, SDBG = "s[32:35]", "s[36:39]", "s[40:43]", "s[44:47]", "s[48:51]", "s[52:55]", "s[56:59]", "s[60:63]"
sW, sRW, sRB, sCGI, sISW1, sSTR, sSTR32, sRW1K = "s64", "s65", "s66", "s67", "s68", "s69", "s70", "s71"
sX = ["s72", "s73", "s74", "s75"]
sP = ["s76", "s77", "s78", "s79"]
sXM = "s[80:81]"; sRET = "s[82:83]"
sST, sFL, sPUB, sLOG2E, sT, sT2, sHAVE, sMASK, sCNT = "s84", "s85", "s86", "s87", "s88", "s89", "s90", "s91", "s92"
sROWT, sNBO, sKQ, sACT2, sGATE = "s93", "s94", "s95", "s96", "s97"
sTM = "s[98:99]"
sRB2, sW2O, sEPS, sROWB = "s4", "s5", "s6", "s7"
sRET2 = "s[30:31]"
sDOFF, sDA, sDB, sDC = "s3", "s14", "s15", "s100"
SD = SB
vDV = "v0"
vLANE, vXD, vWD, vU6D, vW2D = "v1", "v2", "v3", "v4", "v5"
vXB = ["v6", "v7", "v8", "v9"]; vXC = ["v10", "v11", "v12", "v13"]
vWA, vWB, vL16, vONE, vSTAMP, vBIAS2, vT0, vPA2, vPA, vPR = "v14", "v15", "v16", "v17", "v18", "v19", "v20", "v21", "v22", "v23"
ACC = 96; WBUF = 64; XR = 128; TMP = 32

g = Gen()
m0cur = [None]


def vr(a, n=4):
    return f"v[{a}:{a+n-1}]"


def set_m0(target, base=sRW1K):
    if m0cur[0] is not None and m0cur[0][0] == base and -32768 <= target - m0cur[0][1] <= 32767:
        d = target - m0cur[0][1]
        g(f"s_addk_i32 m0, {d & 0xffff:#x}")
    else:
        g(f"s_add_u32 m0, {base}, {target:#x}")
    m0cur[0] = (base, target)


def stamp(i):
    if not STAMP: return
    g(f"s_memtime {sTM}")
    g("s_waitcnt lgkmcnt(0)")
    g(f"v_writelane_b32 {vSTAMP}, s98, {i}")


def dma_x(c):
    for i in range(4):
        set_m0(XS[c] + i * 4096 - c * 128)
        g(f"buffer_load_dwordx4 {vXD}, {SX}, {sX[i]} offen offset:{c*128} lds", tag=f"x{c}")


def dma_w_begin(col):
    g(f"s_sub_u32 {sT2}, {col}, {sSTR32}")


def dma_w(item, region, tag, voff=vWD):
    for i in range(2):
        set_m0(region + item * 8192 + i * 4096)
        g(f"s_add_u32 {sT2}, {sT2}, {sSTR32}")
        g(f"buffer_load_dwordx4 {voff}, {SW}, {sT2} offen lds", tag=tag)


def dma_w2_p1(group, kq, e, region, tag):
    row = 448 * kq + (192 if group == 3 else (256 * e + 64 * group))
    slot = kq if group == 3 else kq * 2 + e
    for i in range(2):
        set_m0(region + slot * 8192 + i * 4096)
        g(f"s_add_u32 {sT2}, {sNBO}, {(row + i * 32) * 1024:#x}")
        g(f"buffer_load_dwordx4 {vW2D}, {SW2}, {sT2} offen lds", tag=tag)


def publish():
    g("s_mov_b64 exec, 1")
    g(f"buffer_store_dword {vONE}, off, {SWS}, {sPUB} sc1", tag="pub")
    g("s_mov_b64 exec, -1")


def call(name, fn, *a, ret=sRET, **kw):
    g(f"s_call_b64 {ret}, {name}")
    m0cur[0] = None if kw.pop("clobm0", False) else m0cur[0]
    g.block(name, fn, *a, align=3, **kw)


def MP(orient, cert, pubwait):
    NBUF = D + 1
    def trread(s):
        b = WBUF + (s % NBUF) * 8
        for u, va in ((0, vWA), (1, vWB)):
            g(f"ds_read_b64_tr_b16 {vr(b+u*4, 2)}, {va} offset:{s*2048}", tag=f"w{s}")
            g(f"ds_read_b64_tr_b16 {vr(b+u*4+2, 2)}, {va} offset:{s*2048+512}", tag=f"w{s}")
    def chunk_start(q):
        g.wait(vm=cert[q], comment=f"cert {q}")
        g("s_barrier")
        if q == 3:
            publish()
        g(f"s_mov_b64 exec, {sXM}")
        for c in (2 * q, 2 * q + 1):
            regs, off = (vXC, XS[c] - LC) if XS[c] >= LC else (vXB, XS[c] - LB)
            for sp in range(4):
                s = c * 4 + sp
                g(f"ds_read_b128 {vr(XR+4*s)}, {regs[sp]} offset:{off}", tag=f"xr{s}")
        g("s_mov_b64 exec, -1")
    cert = list(cert)
    cert[3] = list(cert[3]) + list(pubwait)
    chunk_start(0)
    for s in range(D): trread(s)
    if orient == "T":
        g(f"v_mfma_f32_32x32x16_bf16 {vr(ACC,16)}, v[28:31], v[24:27], 0")
        g(f"v_mfma_f32_32x32x16_bf16 {vr(ACC+16,16)}, v[28:31], v[26:29], 0")
    for s in range(32):
        n = s + D
        if n < 32:
            if n % 8 == 0: chunk_start(n // 8)
            trread(n)
        g.wait(lg=[f"w{s}", f"xr{s}"])
        b = WBUF + (s % NBUF) * 8
        for u in range(2):
            acc = vr(ACC + 16 * u, 16)
            c = acc if (orient == "T" or s > 0) else "0"
            if orient == "T":
                g(f"v_mfma_f32_32x32x16_bf16 {acc}, {vr(b+u*4)}, {vr(XR+4*s)}, {c}")
            else:
                g(f"v_mfma_f32_32x32x16_bf16 {acc}, {vr(XR+4*s)}, {vr(b+u*4)}, {c}")
    g(f"s_setpc_b64 {sRET}")


def MU6(pubwait):
    NBUF = D + 1
    def trread(s):
        b = WBUF + (s % NBUF) * 8
        for u, va in ((0, vWA), (1, vWB)):
            g(f"ds_read_b64_tr_b16 {vr(b+u*4, 2)}, {va} offset:{s*2048}", tag=f"w{s}")
            g(f"ds_read_b64_tr_b16 {vr(b+u*4+2, 2)}, {va} offset:{s*2048+512}", tag=f"w{s}")
    g.wait(vm="u6")
    g("s_barrier")
    for s in range(D): trread(s)
    acc = vr(ACC, 16)
    g(f"v_mfma_f32_32x32x16_bf16 {acc}, v[28:31], v[24:27], 0")
    for s in range(16):
        n = s + D
        if n < 16: trread(n)
        if s == 10:
            g.wait(vm=pubwait)
            g("s_barrier")
            publish()
        g.wait(lg=[f"w{s}"])
        b = WBUF + (s % NBUF) * 8
        g(f"v_mfma_f32_32x32x16_bf16 {acc}, {vr(b)}, {vr(XR+4*s)}, {acc}")
        g(f"v_mfma_f32_32x32x16_bf16 {acc}, {vr(b+4)}, {vr(XR+4*(s+16))}, {acc}")
        if s % 2 == 0: slot((s // 2) % 4, "g0")


PK = TMP + 16


def slot(k, tag):
    g(f"buffer_load_dwordx4 {vDV}, {SD}, {sDOFF} offen lds", tag=tag)
    g("s_addk_i32 m0, 0x1000")
    g(f"s_add_u32 {sDOFF}, {sDOFF}, {[sDA, sDB, sDA, sDC][k]}")


def stream(kind, region, col=None, grp=None, start=0):
    m0cur[0] = None
    if kind in ("w", "u6"):
        g(f"s_mov_b64 s[56:57], s[36:37]")
        g(f"s_mov_b32 s58, s38")
        g(f"v_mov_b32 {vDV}, {vWD if kind == 'w' else vU6D}")
        g(f"s_mov_b32 {sDOFF}, {col}")
        for r in (sDA, sDB, sDC): g(f"s_mov_b32 {r}, {sSTR32}")
        g(f"s_add_u32 m0, {sRW1K}, {region:#x}")
    else:
        g(f"s_mov_b64 s[56:57], s[40:41]")
        g(f"s_mov_b32 s58, s42")
        g(f"v_mov_b32 {vDV}, {vW2D}")
        row = (192 if grp == 3 else 64 * grp)
        g(f"s_add_u32 {sDOFF}, {sNBO}, {row*1024:#x}")
        g(f"s_mov_b32 {sDA}, {32*1024:#x}")
        g(f"s_mov_b32 {sDB}, {(416 if grp == 3 else 224)*1024:#x}")
        g(f"s_mov_b32 {sDC}, {(416 if grp == 3 else 160)*1024:#x}")
        g(f"s_add_u32 m0, {sRW1K}, {region:#x}")


def EH(q, tags):
    h = [f"v{ACC+8*q+i}" for i in range(8)]
    e = [f"v{TMP+i}" for i in range(8)]
    u = [f"v{TMP+8+i}" for i in range(8)]
    slot(0, tags[0])
    for i in range(8): g(f"v_mul_f32 {e[i]}, {sLOG2E}, {h[i]}")
    for i in range(6): g(f"v_exp_f32 {e[i]}, {e[i]}")
    slot(1, tags[0])
    for i in range(6, 8): g(f"v_exp_f32 {e[i]}, {e[i]}")
    for i in range(8): g(f"v_fma_f32 {u[i]}, {e[i]}, 0.5, 1.0")
    for i in range(6): g(f"v_fma_f32 {u[i]}, -{e[i]}, {u[i]}, -1.0")
    slot(2, tags[1])
    for i in range(6, 8): g(f"v_fma_f32 {u[i]}, -{e[i]}, {u[i]}, -1.0")
    for i in range(8): g(f"v_rcp_f32 {u[i]}, {u[i]}")
    slot(3, tags[1])
    for i in range(8): g(f"v_fmac_f32 {h[i]}, {h[i]}, {u[i]}")
    for i in range(4): g(f"v_cvt_pk_bf16_f32 v{PK+i}, {h[2*i]}, {h[2*i+1]}")
    g(f"buffer_store_dwordx4 {vr(PK)}, {vL16}, {SWS}, {sST} offen offset:{q*1024} sc1", tag="st")
    g(f"s_setpc_b64 {sRET}")


def PH(q, tags):
    h = [f"v{ACC+8*q+i}" for i in range(8)]
    e = [f"v{TMP+i}" for i in range(8)]
    slot(0, tags[0])
    for i in range(8): g(f"v_mul_f32 {e[i]}, {sLOG2E}, {h[i]}")
    for i in range(2): g(f"v_exp_f32_e64 {e[i]}, {e[i]} clamp")
    slot(1, tags[0])
    for i in range(2, 8): g(f"v_exp_f32_e64 {e[i]}, {e[i]} clamp")
    slot(2, tags[1])
    for i in range(8): g(f"v_max_f32 {h[i]}, {sEPS}, {h[i]}")
    for i in range(4): g(f"v_add_f32 {h[i]}, {e[i]}, {h[i]}")
    slot(3, tags[1])
    for i in range(4, 8): g(f"v_add_f32 {h[i]}, {e[i]}, {h[i]}")
    for i in range(4): g(f"v_cvt_pk_bf16_f32 v{PK+i}, {h[2*i]}, {h[2*i+1]}")
    g(f"s_setpc_b64 {sRET}")


def SPIN():
    g(f"s_mov_b32 {sCNT}, 0")
    g.label("SPIN_loop")
    g(f"buffer_load_dword {vPR}, {vPA}, {SWS}, 0 offen sc1")
    g("s_waitcnt vmcnt(0)")
    g(f"v_cmp_eq_u32 vcc, 1, {vPR}")
    g(f"s_add_u32 {sCNT}, {sCNT}, 1")
    g(f"s_mov_b32 {sHAVE}, vcc_lo")
    g(f"s_and_b32 {sT}, {sHAVE}, {sMASK}")
    g(f"s_cmp_eq_u32 {sT}, {sMASK}")
    g("s_cbranch_scc1 SPIN_done")
    g("s_sleep 2")
    g(f"s_cmp_lt_u32 {sCNT}, {OPT['spin']}")
    g("s_cbranch_scc1 SPIN_loop")
    g.label("SPIN_done")
    g(f"s_setpc_b64 {sRET2}")


def poll_issue():
    g(f"buffer_load_dword {vPR}, {vPA}, {SWS}, 0 offen sc1", tag="poll")


def poll_take():
    g.wait(vm="poll")
    g(f"v_cmp_eq_u32 vcc, 1, {vPR}")
    g("s_nop 0")
    g(f"s_mov_b32 {sHAVE}, vcc_lo")


def ensure(mask, lab):
    if OPT["nopoll"]: return
    g(f"s_mov_b32 {sMASK}, {mask:#x}")
    g(f"s_and_b32 {sT}, {sHAVE}, {sMASK}")
    g(f"s_cmp_eq_u32 {sT}, {sMASK}")
    g(f"s_cbranch_scc1 {lab}")
    with g.optional():
        call("SPIN", SPIN, ret=sRET2)
    g.label(lab)


ENTRY = KN + "_kernel"
def prologue():
    g(f"""
    s_cmp_ge_u32 s2, 256
    s_cbranch_scc1 END
    s_load_dwordx16 s[8:23], s[0:1], 0
    s_load_dwordx4 s[24:27], s[0:1], 64
    s_load_dwordx2 s[28:29], s[0:1], 80
    s_getpc_b64 s[30:31]
    v_lshlrev_b32 v65, 7, v0
    v_min_u32 v65, CODE_END-{ENTRY}-256, v65
    global_load_dword v255, v65, s[30:31]
    v_lshrrev_b32 v64, 6, v0
    v_and_b32 {vLANE}, 63, v0
    v_readfirstlane_b32 {sW}, v64
    s_and_b32 s3, s2, 7            ; xcd
    s_lshr_b32 {sT}, s2, 3         ; j
    s_lshr_b32 {sT2}, s2, 6        ; t
    s_and_b32 {sNBO}, {sT}, 7      ; j&7
    s_and_b32 {sRB}, s3, 1
    s_lshl_b32 {sRB}, {sRB}, 3
    s_or_b32 {sRB}, {sRB}, {sNBO}
    s_lshl_b32 {sNBO}, {sNBO}, 7
    s_lshr_b32 {sISW1}, {sT2}, 1
    s_and_b32 {sCGI}, s3, 6
    s_and_b32 {sT}, {sT2}, 1
    s_or_b32 {sCGI}, {sCGI}, {sT}
    s_lshl_b32 {sRB2}, s3, 2
    s_or_b32 {sRB2}, {sRB2}, {sT2}
    s_and_b32 {sRW}, {sW}, 3
    s_lshl_b32 {sRW1K}, {sRW}, 10
    s_lshl_b32 {sSTR}, {sISW1}, 9
    s_add_u32 {sSTR}, {sSTR}, 3072
    s_lshl_b32 {sSTR32}, {sSTR}, 5
    s_lshl_b32 {sX[0]}, {sRB}, 17
    s_add_u32 {sX[1]}, {sX[0]}, 0x8000
    s_add_u32 {sX[2]}, {sX[0]}, 0x10000
    s_add_u32 {sX[3]}, {sX[0]}, 0x18000
    v_lshrrev_b32 v64, 3, {vLANE}          ; l3
    v_and_b32 v65, 7, {vLANE}              ; pos
    v_lshrrev_b32 v66, 4, {vLANE}          ; l4
    s_lshl_b32 {sT}, {sRW}, 3
    v_add_u32 v64, {sT}, v64               ; rw*8+l3
    s_and_b32 {sT}, {sRW}, 1
    s_lshl_b32 {sT}, {sT}, 2
    v_add_u32 v67, {sT}, v66
    v_xor_b32 v67, v67, v65
    v_lshlrev_b32 v67, 4, v67
    v_lshl_add_u32 {vXD}, v64, 10, v67
    v_and_b32 v67, 1, v66
    v_lshlrev_b32 v67, 2, v67
    v_xor_b32 v67, v67, v65                ; pw
    v_lshlrev_b32 v68, 4, v67
    v_mul_lo_u32 v69, v64, {sSTR}
    v_add_u32 {vWD}, v69, v68
    v_lshl_add_u32 {vW2D}, v64, 10, v68
    s_mul_i32 {sP[3]}, {sCGI}, 448
    s_and_b32 {sT}, {sCGI}, 1
    s_lshl_b32 {sT2}, {sT}, 6
    s_add_u32 {sP[0]}, {sP[3]}, {sT2}
    s_add_u32 {sP[1]}, {sP[0]}, 128
    s_add_u32 {sP[2]}, {sP[0]}, 256
    s_cmp_eq_u32 {sT}, 0
    s_cselect_b32 {sT2}, 384, 0
    s_add_u32 {sP[3]}, {sP[3]}, {sT2}
    s_cmp_eq_u32 {sISW1}, 1
    s_cbranch_scc1 PRO_w1
    s_lshl_b32 {sP[2]}, {sCGI}, 7
    s_add_u32 {sP[0]}, {sP[2]}, 1024
    s_add_u32 {sP[1]}, {sP[2]}, 2048
    """)
    g.label("PRO_w1")
    g(f"""
    s_mov_b32 s34, 0x200000
    s_mov_b32 s35, 0x20000
    s_mov_b32 s39, 0x20000
    s_mul_i32 s58, {sISW1}, 2560
    s_add_u32 s58, s58, 1024
    s_mov_b32 s59, 0x20000
    s_lshl_b32 s38, {sSTR}, 9
    s_waitcnt lgkmcnt(0)
    s_mov_b32 s32, s8
    s_and_b32 s33, s9, 0xffff
    s_cmp_eq_u32 {sISW1}, 1
    s_cselect_b32 s36, s16, s10
    s_cselect_b32 s37, s17, s11
    s_cselect_b32 s56, s18, s22
    s_cselect_b32 s57, s19, s23
    s_and_b32 s37, s37, 0xffff
    s_and_b32 s57, s57, 0xffff
    s_cmp_ge_u32 {sW}, 4
    s_cbranch_scc1 S_P0
    """)


def setup2():
    g(f"""
    s_mov_b32 s40, s20
    s_and_b32 s41, s21, 0xffff
    s_mov_b32 s42, 0x1c0000
    s_mov_b32 s43, 0x20000
    s_mov_b32 s44, s12
    s_and_b32 s45, s13, 0xffff
    s_mov_b32 s46, 0x80000
    s_mov_b32 s47, 0x20000
    s_add_u32 s48, s28, {OPT['wsoff']:#x}
    s_addc_u32 s49, s29, 0
    s_and_b32 s49, s49, 0xffff
    s_mov_b32 s50, {WS_SIZE:#x}
    s_mov_b32 s51, 0x20000
    s_mov_b32 s52, s24
    s_and_b32 s53, s25, 0xffff
    s_mov_b32 s54, 0x200000
    s_mov_b32 s55, 0x20000
    s_mov_b32 s60, s26
    s_and_b32 s61, s27, 0xffff
    s_mov_b32 s62, 256
    s_mov_b32 s63, 0x20000
    s_mov_b32 {sLOG2E}, 0x3fb8aa3b
    s_mov_b32 {sEPS}, 0x358637bd
    ; u6 dma offset
    v_lshrrev_b32 v68, 2, v67
    v_lshl_add_u32 v68, v68, 8, v64
    v_mul_lo_u32 v68, v68, {sSTR}
    v_and_b32 v69, 3, v67
    v_lshl_add_u32 {vU6D}, v69, 4, v68
    v_and_b32 v64, 31, {vLANE}             ; row
    v_lshrrev_b32 v65, 5, {vLANE}          ; h
    v_bfe_u32 v66, {vLANE}, 1, 3           ; m
    v_xor_b32 v66, v66, v65                ; h ^ m
    s_lshl_b32 {sT}, {sRW}, 12
    s_add_u32 {sT}, {sT}, {LB}
    v_lshl_add_u32 v67, v64, 7, {sT}
    """)
    for sp in range(4):
        g(f"v_xor_b32 v68, {2*sp}, v66")
        g(f"v_lshl_add_u32 {vXB[sp]}, v68, 4, v67")
        g(f"v_add_u32 {vXC[sp]}, 0x10000, {vXB[sp]}")
    g(f"""
    v_bfe_u32 v68, {vLANE}, 2, 2           ; r
    v_lshlrev_b32 v69, 7, v68
    v_bfe_u32 v68, {vLANE}, 3, 1
    v_lshl_add_u32 v69, v68, 6, v69
    v_bfe_u32 v68, {vLANE}, 4, 1
    v_lshl_add_u32 v69, v68, 5, v69
    v_and_b32 v68, 3, {vLANE}
    v_lshl_add_u32 {vT0}, v68, 3, v69
    v_lshl_add_u32 {vWA}, v65, 10, {vT0}
    v_lshlrev_b32 {vL16}, 4, {vLANE}
    v_mov_b32 {vONE}, 1
    v_mov_b32 {vSTAMP}, 0
    v_mov_b32 v24, 0x3f80
    v_mov_b32 v25, 0
    v_mov_b32 v26, 1.0
    v_mov_b32 v27, 0
    v_mov_b32 v28, 0
    v_mov_b32 v29, 0
    v_mov_b32 v30, 0
    v_mov_b32 v31, 0
    v_mov_b32 {vBIAS2}, 0
    s_lshl_b32 {sFL}, {sISW1}, 7
    s_lshl_b32 {sT}, {sRB}, 3
    s_add_u32 {sFL}, {sFL}, {sT}
    s_add_u32 {sFL}, {sFL}, {sCGI}
    s_lshl_b32 {sFL}, {sFL}, 7
    s_add_u32 {sFL}, {sFL}, {FLG:#x}
    s_add_u32 {sPUB}, {sFL}, 124
    s_lshl_b32 {sT}, {sRB}, 2
    s_add_u32 {sT}, {sT}, {sRW}
    s_mul_i32 {sROWB}, {sT}, {144*1024}
    s_lshr_b32 {sKQ}, {sW}, 1
    s_and_b32 {sT}, {sW}, 1
    s_lshl_b32 {sROWT}, {sRB2}, 1
    s_add_u32 {sROWT}, {sROWT}, {sT}
    s_mul_i32 {sACT2}, {sROWT}, {144*1024}
    s_lshr_b32 {sT}, {sROWT}, 2            ; rb_c
    s_lshl_b32 {sT}, {sT}, 3
    s_lshl_b32 {sT2}, {sKQ}, 1
    s_add_u32 {sT2}, {sT2}, {sT}
    s_and_b32 {sCNT}, {sROWT}, 3           ; rwc
    s_lshl_b32 {sCNT}, {sCNT}, 2
    ; lanes 0-7
    v_lshrrev_b32 v68, 2, {vLANE}
    v_add_u32 v68, {sT2}, v68
    v_lshlrev_b32 v68, 7, v68
    v_and_b32 v69, 3, {vLANE}
    v_lshl_add_u32 v68, v69, 4, v68
    v_add_u32 v68, {128*128}, v68
    v_add_u32 v68, {sCNT}, v68
    ; lanes 8,9
    v_and_b32 v69, 1, {vLANE}
    v_add_u32 v69, {sT2}, v69
    v_lshlrev_b32 v69, 7, v69
    v_add_u32 v69, {sCNT}, v69
    v_cmp_gt_u32 vcc, 8, {vLANE}
    v_cndmask_b32 v68, v69, v68, vcc
    ; lane 10..15
    s_lshl_b32 {sT}, {sT}, 7
    s_add_u32 {sT}, {sT}, {sCNT}
    s_add_u32 {sT}, {sT}, 48
    v_mov_b32 v69, {sT}
    v_cmp_gt_u32 vcc, 10, {vLANE}
    v_cndmask_b32 v68, v69, v68, vcc
    v_and_b32 v69, 15, {vLANE}
    v_lshlrev_b32 v69, 3, v69
    v_bfe_u32 v70, {vLANE}, 2, 1
    v_add_u32 v69, v69, v70
    s_lshl_b32 {sT2}, {sKQ}, 1
    v_add_u32 v69, {sT2}, v69
    v_lshlrev_b32 v69, 7, v69
    v_add_u32 v69, 32, v69
    v_cmp_gt_u32 vcc, 16, {vLANE}
    v_cndmask_b32 v68, v69, v68, vcc
    v_add_u32 {vPA2}, {FLG:#x}, v68
    """)


def bias_loads(pa, pb, second_hi):
    g(f"v_lshlrev_b32 v68, 1, {vLANE}")
    g("v_mov_b32 v22, 0")
    g("v_mov_b32 v23, 0")
    g("s_mov_b32 exec_hi, 0")
    g(f"buffer_load_ushort v28, v68, {SB}, {sP[pa]} offen", tag="bias")
    g(f"buffer_load_ushort v22, v68, {SB}, {sP[pa]} offen offset:64", tag="bias")
    g(f"buffer_load_ushort {vBIAS2}, v68, {SB}, {sP[pb]} offen", tag="bias")
    if second_hi:
        g(f"buffer_load_ushort v23, v68, {SB}, {sP[pb]} offen offset:64", tag="bias")
    g("s_mov_b64 exec, -1")


def bias_fix():
    g.wait(vm="bias")
    g("v_lshl_or_b32 v28, v22, 16, v28")
    g(f"v_lshl_or_b32 {vBIAS2}, v23, 16, {vBIAS2}")


def set_st(p, extra=0):
    g(f"s_lshl_b32 {sST}, {sP[p]}, 5")
    g(f"s_add_u32 {sST}, {sST}, {sROWB}")
    if extra: g(f"s_add_u32 {sST}, {sST}, {extra:#x}")


def set_pub(dw_const, add_rw=True):
    if add_rw:
        g(f"s_lshl_b32 {sPUB}, {sRW}, 2")
        g(f"s_add_u32 {sPUB}, {sPUB}, {sFL}")
        if dw_const: g(f"s_add_u32 {sPUB}, {sPUB}, {dw_const*4}")
    else:
        g(f"s_add_u32 {sPUB}, {sFL}, {dw_const*4}")


def chk_issue():
    g(f"v_lshlrev_b32 v52, 2, {vLANE}")
    g(f"buffer_load_dword v53, v52, {SDBG}, 0 offen sc1", tag="chk")


def chk_verify(lab):
    g.wait(vm="chk")
    g(f"s_mov_b32 {sCNT}, 0")
    g.label(lab + "_l")
    g("v_cmp_eq_u32 vcc, 1, v53")
    g(f"s_add_u32 {sCNT}, {sCNT}, 1")
    g(f"s_and_b32 {sT}, vcc_lo, 15")
    g(f"s_cmp_eq_u32 {sT}, 15")
    g(f"s_cbranch_scc1 {lab}")
    with g.optional():
        g(f"buffer_load_dword v53, v52, {SDBG}, 0 offen sc1")
        g("s_waitcnt vmcnt(0)")
        g(f"s_cmp_lt_u32 {sCNT}, {OPT['spin']}")
        g(f"s_cbranch_scc1 {lab}_l")
    g.label(lab)


def L_start():
    setup2()
    g(f"v_xor_b32 {vWB}, 64, {vWA}")
    g(f"s_mov_b64 {sXM}, -1")
    g("s_cmp_lg_u32 s2, 0")
    g("s_cbranch_scc1 L_noclr")
    with g.optional():
        g(f"s_lshl_b32 {sT}, {sRW}, 13")
        g(f"s_add_u32 {sT}, {sT}, {FLG:#x}")
        for i in range(2):
            for k in range(4):
                g(f"buffer_store_dwordx4 v[28:31], {vL16}, {SWS}, {sT} offen offset:{k*1024} sc1")
            if i == 0: g(f"s_add_u32 {sT}, {sT}, 4096")
        g("s_waitcnt vmcnt(0)")
        g(f"s_lshl_b32 {sT}, {sRW}, 2")
        g("s_mov_b64 exec, 1")
        g(f"buffer_store_dword {vONE}, off, {SDBG}, {sT} sc1")
        g("s_mov_b64 exec, -1")
    g.label("L_noclr")
    stamp(0)
    g(f"s_cmp_eq_u32 {sISW1}, 0")
    g("s_cbranch_scc1 QL")


NOC = [[], [], [], []]


P2CERT = [["p2_0", "p2_1"], ["p2_2", "p2_3"], ["p2_4", "p2_5"], ["p2_6", "p2_7"]]


def poll1():
    g(f"v_mov_b32 {vPA}, {vPA2}")
    poll_issue()


def W1L():
    bias_loads(0, 2, True)
    bias_fix()
    call("MP_T", MP, "T", NOC, [])
    stamp(1)
    g(f"s_mov_b64 {sXM}, 0")
    chk_issue()
    set_st(0)
    stream("w", LA, sP[2])
    for q in range(4):
        if q == 3: chk_verify("W1L_chk")
        g("s_barrier")
        call(f"EH{q}", EH, q, P2CERT[q])
    stamp(2)
    g(f"v_mov_b32 v28, {vBIAS2}")
    set_pub(0)
    call("MP_T", MP, "T", P2CERT, ["st"])
    stamp(3)
    set_st(2)
    set_pub(8)
    stream("w2", LA, grp=1)
    for q in range(4):
        if q < 3: g("s_barrier")
        if q == 3: poll1()
        call(f"EH{q}", EH, q, ["g1", "g1"])
    poll_take()
    stamp(4)
    g("s_branch P2")


def QL():
    call("MP_N", MP, "N", NOC, [])
    stamp(1)
    g(f"s_mov_b64 {sXM}, 0")
    chk_issue()
    stream("w", LA, sP[2])
    g(f"s_lshl_b32 {sT}, {sRW}, 11")
    g(f"s_add_u32 {sT}, {sT}, {LC}")
    g(f"v_add_u32 v54, {sT}, {vL16}")
    for q in range(4):
        if q == 3: chk_verify("QL_chk")
        g("s_barrier")
        call(f"PH{q}", PH, q, P2CERT[q])
        g(f"ds_write_b128 v54, {vr(PK)} offset:{(q>>1)*8192 + (q&1)*1024}", tag="pkw")
    g.wait(lg="pkw")
    stamp(2)
    call("MP_T", MP, "T", P2CERT, [])
    stamp(3)
    set_st(2, 112 * 1024)
    set_pub(0)
    stream("w2", LA, grp=1)
    g("s_barrier")
    for q in range(4):
        if q == 3: poll1()
        call(f"PH{q}", PH, q, ["g1", "g1"])
        g(f"buffer_store_dwordx4 {vr(PK)}, {vL16}, {SWS}, {sST} offen offset:{q*1024} sc1", tag="st")
    poll_take()
    stamp(4)
    g("s_branch P2")


def S_P0():
    m0cur[0] = None
    g(f"s_or_b32 {sGATE}, {sISW1}, {sCGI}")
    g("s_cbranch_scc1 S_nogl")
    with g.optional():
        g(f"v_and_b32 v0, 31, {vLANE}")
        g("v_lshlrev_b32 v0, 5, v0")
        g(f"v_lshrrev_b32 v71, 5, {vLANE}")
        g("v_lshl_add_u32 v0, v71, 4, v0")
        for c in range(8):
            g(f"buffer_load_dwordx4 {vr(TMP+4*c)}, v0, {SB}, 0 offen offset:{c*128}")
    g.label("S_nogl")
    dma_w_begin(sP[0])
    def chunk(q):
        for c in (2 * q, 2 * q + 1):
            dma_x(c)
            dma_w(c, LA, f"w0_{c}")
    chunk(0)
    g(f"s_mov_b32 {sDA}, {sT2}")
    setup2()
    bias_loads(1, 3, False)
    g(f"s_mov_b32 {sT2}, {sDA}")
    g(f"v_add_u32 {vWA}, {LB}, {vWA}")
    g(f"v_xor_b32 {vWB}, 64, {vWA}")
    g(f"s_mov_b64 {sXM}, 0")
    stamp(0)
    chunk(1)
    for q in range(4):
        g.wait(vm=[f"x{2*q}", f"x{2*q+1}", f"w0_{2*q}", f"w0_{2*q+1}"], lg="xr")
        g("s_barrier")
        for c in (2 * q, 2 * q + 1):
            regs, off = (vXC, XS[c] - LC) if XS[c] >= LC else (vXB, XS[c] - LB)
            for sp in range(4):
                s = c * 4 + sp
                g(f"ds_read_b128 {vr(XR+4*s)}, {regs[sp]} offset:{off}", tag="xr")
        if q < 2: chunk(q + 2)
        if q == 2: dma_w_begin(sP[1])
        if q >= 2:
            for it in range(4 * (q - 2), 4 * (q - 2) + 4): dma_w(it, LB, f"p1_{it}")
        if q == 3: g.wait(lg="xr")
        g(f"s_cmp_lg_u32 {sGATE}, 0")
        g(f"s_cbranch_scc1 S_nog{q}")
        with g.optional():
            g.wait(lg="xr")
            for s in range(8 * q, 8 * q + 8):
                acc = vr(64 + 16 * (s & 3), 16)
                g(f"v_mfma_f32_32x32x16_bf16 {acc}, {vr(TMP+4*(s>>2))}, {vr(XR+4*s)}, {acc if s >= 4 else 0}")
            if q == 3:
                g("v_add_f32 v32, v64, v81")
                g("v_add_f32 v33, v98, v115")
                g("v_add_f32 v32, v32, v33")
                g(f"v_mul_f32 v32, {sLOG2E}, v32")
                g("v_exp_f32_e64 v32, -v32")
                g("v_add_f32 v32, 1.0, v32")
                g("v_rcp_f32 v32, v32")
                g(f"s_lshl_b32 {sT}, {sRB}, 9")
                g(f"s_lshl_b32 {sCNT}, {sRW}, 7")
                g(f"s_add_u32 {sT}, {sT}, {sCNT}")
                g(f"s_add_u32 {sT}, {sT}, {GOF:#x}")
                g(f"v_lshlrev_b32 v33, 2, {vLANE}")
                g("s_mov_b32 exec_hi, 0")
                g(f"buffer_store_dword v32, v33, {SWS}, {sT} offen sc1")
                g("s_mov_b64 exec, -1")
                set_pub(12)
        g.label(f"S_nog{q}")
    stamp(1)
    g(f"s_cmp_eq_u32 {sISW1}, 0")
    g("s_cbranch_scc1 QS")


P1CERT = [["p1_0", "p1_1"], ["p1_2", "p1_3"], ["p1_4", "p1_5"], ["p1_6", "p1_7"]]


def W1S():
    bias_fix()
    call("MP_T", MP, "T", P1CERT, ["p1_7"])
    stamp(2)
    set_st(1)
    stream("u6", LC, sP[3])
    for q in range(4):
        if q == 2: stream("w2", LB, grp=0)
        g("s_barrier")
        call(f"EH{q}", EH, q, ["u6", "u6"] if q < 2 else ["g0", "g0"])
    stamp(3)
    g(f"v_mov_b32 v28, {vBIAS2}")
    g(f"v_add_u32 {vWA}, {LC-LB}, {vWA}")
    g(f"v_add_u32 {vWB}, {LC-LB}, {vWB}")
    set_pub(4)
    MU6(["st"])
    set_st(3)
    set_pub(12)
    stream("w2", LC, grp=3)
    g("s_barrier")
    call("EH0", EH, 0, ["g3", "g3"])
    poll1()
    call("EH1", EH, 1, ["g3", "g3"])
    poll_take()
    stamp(4)
    g("s_branch P2")


def QS():
    call("MP_N", MP, "N", P1CERT, ["p1_7"])
    stamp(2)
    g(f"s_lshl_b32 {sT}, {sRW}, 11")
    g(f"s_add_u32 {sT}, {sT}, {LC+16384}")
    g(f"v_add_u32 v54, {sT}, {vL16}")
    g(f"v_and_b32 v55, 47, {vLANE}")
    g(f"s_and_b32 {sT}, {sRW}, 1")
    g(f"s_lshl_b32 {sT}, {sT}, 8")
    g(f"s_lshr_b32 {sT2}, {sRW}, 1")
    g(f"s_lshl_b32 {sT2}, {sT2}, 13")
    g(f"s_add_u32 {sT}, {sT}, {sT2}")
    g(f"s_add_u32 {sT}, {sT}, {LC}")
    g(f"v_lshl_add_u32 v55, v55, 4, {sT}")
    for i in range(32): g(f"v_mov_b32 v{XR+32+i}, 0x3f803f80")
    for q in range(4):
        for i in range(4): g(f"v_cvt_pk_bf16_f32 v{TMP+4*q+i}, v{ACC+8*q+2*i}, v{ACC+8*q+2*i+1}")
        g(f"ds_write_b128 v54, {vr(TMP+4*q)} offset:{(q>>1)*8192 + (q&1)*1024}", tag="vw")
    g.wait(lg="vw")
    g("s_barrier")
    g("s_setprio 2")
    for k in range(8):
        g(f"ds_read_b128 {vr(XR+4*k)}, v55 offset:{k*1024}", tag=f"a{k}")
    g("s_mov_b32 exec_lo, 0xffff")
    g("s_mov_b32 exec_hi, 0xffff")
    g.wait(lg="a3")
    for k in range(8):
        g(f"ds_read_b128 {vr(XR+32+4*k)}, v55 offset:{16384+k*1024}", tag=f"b{k}")
    g("s_mov_b64 exec, -1")
    g(f"s_lshl_b32 {sT}, {sCGI}, 2")
    g(f"s_add_u32 {sT}, {sT}, {sRW}")
    g(f"s_lshl_b32 {sT}, {sT}, 4")
    g(f"s_add_u32 {sT}, {sT}, {sRB}")
    g(f"s_lshl_b32 {sT}, {sT}, 11")
    g(f"s_add_u32 {sT}, {sT}, {KVP:#x}")
    g(f"v_lshlrev_b32 v56, 5, {vLANE}")
    for k in range(8):
        g.wait(lg=[f"a{k}", f"b{k}"])
        g(f"v_mfma_f32_32x32x16_bf16 {vr(ACC,16)}, {vr(XR+4*k)}, {vr(XR+32+4*k)}, {vr(ACC,16) if k else 0}")
    g(f"buffer_store_dwordx4 {vr(ACC)}, v56, {SWS}, {sT} offen sc1", tag="kvst")
    g(f"buffer_store_dwordx4 {vr(ACC+4)}, v56, {SWS}, {sT} offen offset:16 sc1", tag="kvst")
    g("s_setprio 0")
    items = [(kq, e) for kq in range(4) for e in range(2)]
    m0cur[0] = None
    for (kq, e) in items[0:4]: dma_w2_p1(0, kq, e, LB, "g0")
    g("s_barrier")
    for (kq, e) in items[4:8]: dma_w2_p1(0, kq, e, LB, "g0")
    set_pub(4)
    g.wait(vm="kvst")
    publish()
    g("s_barrier")
    for kq in range(4): dma_w2_p1(3, kq, 0, LC, "g3")
    g("s_barrier")
    stamp(3)
    g("s_barrier")
    set_pub(31, False)
    g(f"s_and_b32 {sT}, {sCGI}, 1")
    g(f"s_lshl_b32 {sT}, {sT}, 2")
    g(f"s_add_u32 {sT}, {sT}, {sRW}")
    g(f"s_and_b32 {sT2}, {sRB}, 7")
    g(f"s_cmp_lg_u32 {sT}, {sT2}")
    g("s_cbranch_scc1 QS_nored")
    with g.optional():
        g(f"v_and_b32 v36, 15, {vLANE}")
        g(f"s_lshl_b32 {sT}, {sCGI}, 7")
        g(f"s_lshl_b32 {sT2}, {sRW}, 2")
        g(f"s_add_u32 {sT}, {sT}, {sT2}")
        g(f"s_add_u32 {sT}, {sT}, {FLG+16:#x}")
        g(f"v_lshl_add_u32 {vPA}, v36, 10, {sT}")
        g(f"s_mov_b32 {sMASK}, 0xffff")
        if OPT["nopoll"]: g(f"s_mov_b32 {sMASK}, 0")
        call("SPIN", SPIN, ret=sRET2)
        g.vm = []
        g(f"s_lshl_b32 {sT}, {sCGI}, 2")
        g(f"s_add_u32 {sT}, {sT}, {sRW}")
        g(f"s_lshr_b32 {sCNT}, {sRB}, 3")
        g(f"s_lshl_b32 {sT2}, {sT}, 15")
        g(f"s_lshl_b32 {sMASK}, {sCNT}, 10")
        g(f"s_add_u32 {sT2}, {sT2}, {sMASK}")
        g(f"s_add_u32 {sT2}, {sT2}, {KVP:#x}")
        for r in range(16):
            g(f"buffer_load_dwordx4 {vr(XR+4*r)}, {vL16}, {SWS}, {sT2} offen offset:{(r&1)*2048} sc1", tag=f"r{r}")
            if r & 1 and r < 15: g(f"s_add_u32 {sT2}, {sT2}, 4096")
        g(f"s_lshl_b32 {sT}, {sT}, 10")
        g(f"s_lshl_b32 {sCNT}, {sCNT}, 9")
        g(f"s_add_u32 {sT}, {sT}, {sCNT}")
        g(f"s_add_u32 {sT}, {sT}, {KVF:#x}")
        g(f"v_lshlrev_b32 v56, 3, {vLANE}")
        for r in range(1, 16):
            g.wait(vm=f"r{r}")
            for i in range(4): g(f"v_add_f32 v{XR+i}, v{XR+i}, v{XR+4*r+i}")
        g(f"v_cvt_pk_bf16_f32 v{XR+4}, v{XR}, v{XR+1}")
        g(f"v_cvt_pk_bf16_f32 v{XR+5}, v{XR+2}, v{XR+3}")
        g(f"buffer_store_dwordx2 {vr(XR+4,2)}, v56, {SWS}, {sT} offen sc1")
        set_pub(8, False)
    g.label("QS_nored")
    poll1()
    poll_take()
    stamp(4)


AG = {0: 128, 1: 160, 3: 192, 2: 208}
PQ = 32
KVR = 128
VG, VG1 = "v6", "v7"


def P2():
    PD = OPT["PD"]
    g(f"v_lshrrev_b32 v9, 5, {vLANE}")
    g(f"v_lshl_add_u32 v8, v9, 9, {vT0}")
    g(f"s_lshl_b32 {sT}, {sKQ}, 14")
    g(f"v_add_u32 v10, {sT}, v8")
    g("v_xor_b32 v11, 64, v10")
    g(f"v_add_u32 v12, {LB}, v10")
    g(f"v_add_u32 v13, {LB}, v11")
    g(f"s_lshl_b32 {sT}, {sKQ}, 13")
    g(f"s_add_u32 {sT}, {sT}, {LC}")
    g(f"v_add_u32 v14, {sT}, v8")
    g("v_xor_b32 v15, 64, v14")
    g(f"s_mul_i32 {sT}, {sKQ}, {28*1024}")
    g(f"s_add_u32 {sST}, {sACT2}, {sT}")
    g(f"s_lshl_b32 {sRW1K}, {sW}, 10")
    g(f"s_lshr_b32 {sT}, {sW}, 2")
    g(f"s_lshl_b32 {sT}, {sT}, 15")
    g(f"s_add_u32 {sW2O}, {sNBO}, {sT}")
    g(f"s_lshl_b32 {sDA}, {sKQ}, 13")
    g(f"s_add_u32 {sDB}, {sDA}, {sACT2}")
    g(f"v_and_b32 v9, 31, {vLANE}")
    g("v_lshlrev_b32 v9, 2, v9")
    m0cur[0] = None
    stamp(10)
    if STAMP: g(f"v_writelane_b32 {vSTAMP}, {sHAVE}, 14")
    ensure(0x33, "P2_e0")
    stamp(11)

    def ld(reg, base, off, tag, so):
        def f():
            if off % 4096 == 0: g(f"s_add_u32 {so}, {base}, {off:#x}")
            g(f"buffer_load_dwordx4 {vr(reg)}, {vL16}, {SWS}, {so} offen offset:{off % 4096} sc1", tag=tag)
        return f
    def acts(grp):
        its = [(3, 0)] if grp == 3 else [(grp, 0), (4 + grp, 1)]
        return [ld(AG[grp] + 16 * e + 4 * sp, sST, it * 4096 + sp * 1024, f"a{grp}_{e*4+sp}", "s72" if grp < 2 else "s74") for (it, e) in its for sp in range(4)]
    def dma2(srd, row, region, slot_, tag):
        def f():
            set_m0(region + slot_ * 8192)
            g(f"s_add_u32 {sT2}, {sW2O}, {row*1024:#x}")
            g(f"buffer_load_dwordx4 {vW2D}, {srd}, {sT2} offen lds", tag=tag)
        return f
    def gload():
        g(f"s_lshl_b32 {sT}, {sROWT}, 7")
        g(f"s_add_u32 {sT}, {sT}, {GOF:#x}")
        g(f"buffer_load_dword {VG}, v9, {SWS}, {sT} offen sc1", tag="g")
    def take(mask, lab, st=None):
        def f():
            poll_take()
            if STAMP and st: g(f"v_writelane_b32 {vSTAMP}, {sHAVE}, {st}")
            ensure(mask, lab)
        return f
    A0, A1, A3, A2 = acts(0), acts(1), acts(3), acts(2)
    PQL = [ld(PQ + 4 * hd, sDB, 112 * 1024 + hd * 1024, f"pq{hd}", "s73") for hd in range(8)]
    KVL = [ld(KVR + 4 * hd, sDA, KVF + hd * 1024, f"kv{hd}", "s75") for hd in range(8)]
    WG2 = [dma2(SW2, 448 * kq + 256 * e + 128, LB, kq * 2 + e, "wg2") for kq in range(4) for e in range(2)]
    WO = [dma2(SWO, 128 * kq + 64 * e, LA, kq * 2 + e, "wo") for kq in range(4) for e in range(2)]
    sched = {n: [] for n in range(-1, 36)}
    first = A0 + A1
    sched[-1] = first[:PD]
    for i, f in enumerate(first[PD:]): sched[i].append(f)
    n0 = 16 - PD
    sched[2].append(poll_issue)
    sched[n0 - 2].append(take(0x300, "P2_e1"))
    for i, f in enumerate(PQL): sched[n0 - 2 + i // 2].append(f)
    sched[n0].append(poll_issue)
    for i, f in enumerate(WG2): sched[8 + i].append(f)
    sched[n0 + 3].append(take(0xcc, "P2_e2", 15))
    for i, f in enumerate(A3 + A2): sched[n0 + 3 + i // 2].append(f)
    for i, f in enumerate(WO): sched[16 + i].append(f)
    sched[17].append(poll_issue)
    sched[21].append(take(0xffff0400, "P2_e3"))
    sched[21].append(gload)
    for i, f in enumerate(KVL): sched[21 + i // 2].append(f)

    NB2 = D2 + 1
    seq = []
    for i in range(8): seq.append(("g0", AG[0] + 4 * i, "v12", "v13", i * 2048, f"a0_{i}"))
    for i in range(8): seq.append(("g1", AG[1] + 4 * i, "v10", "v11", i * 2048, f"a1_{i}"))
    for i in range(4): seq.append(("g3", AG[3] + 4 * i, "v14", "v15", i * 2048, f"a3_{i}"))
    for i in range(8): seq.append(("g2", AG[2] + 4 * i, "v12", "v13", i * 2048, f"a2_{i}"))
    for i in range(8): seq.append(("hd", PQ + 4 * i, "v10", "v11", i * 2048, None))

    def trread(n):
        _, _, a, b_, imm, _ = seq[n]
        b = WBUF + (n % NB2) * 8
        for u, va in ((0, a), (1, b_)):
            g(f"ds_read_b64_tr_b16 {vr(b+u*4, 2)}, {va} offset:{imm}", tag=f"w{n}")
            g(f"ds_read_b64_tr_b16 {vr(b+u*4+2, 2)}, {va} offset:{imm+1024}", tag=f"w{n}")

    def run(lo, hi, pre=True, lim=None):
        lim = lim or hi
        if pre:
            for n in range(lo, min(lo + D2, lim)): trread(n)
        for n in range(lo, hi):
            if n + D2 < lim: trread(n + D2)
            for f in sched[n]: f()
            _, breg, _, _, _, vmtag = seq[n]
            g.wait(vm=vmtag, lg=f"w{n}")
            b = WBUF + (n % NB2) * 8
            for u in range(2):
                acc = vr(ACC + 16 * u, 16)
                g(f"v_mfma_f32_32x32x16_bf16 {acc}, {vr(b+4*u)}, {vr(breg)}, {acc if n else 0}")

    for f in sched[-1]: f()
    stamp(12)
    g.wait(vm=["st", "g0", "g1", "g3", "poll"])
    g(f"s_waitcnt vmcnt({PD})")
    publish()
    g("s_barrier")
    stamp(5)
    run(0, 8, lim=20)
    g("s_barrier")
    run(8, 16, pre=False, lim=20)
    g("s_barrier")
    stamp(6)
    run(16, 20, pre=False)
    g.wait(vm="wg2")
    g("s_barrier")
    run(20, 28)
    stamp(7)
    g.wait(vm=["g", "wo"] + [f"kv{i}" for i in range(8)])
    g("s_barrier")
    stamp(13)
    g(f"v_sub_f32 {VG1}, 1.0, {VG}")
    NT = [160, 176, 192, 208]
    def nd(hd):
        g(f"v_mfma_f32_32x32x16_bf16 {vr(NT[hd%4],16)}, {vr(KVR+4*hd)}, {vr(PQ+4*hd)}, 0")
    for hd in range(3): nd(hd)
    for i in range(32): g(f"v_mul_f32 v{ACC+i}, {VG1}, v{ACC+i}")
    for hd in range(8):
        if hd + 3 < 8: nd(hd + 3)
        t = NT[hd % 4]
        g(f"v_add_f32 v{t+8}, {sEPS}, v{t+8}")
        g(f"v_rcp_f32 v{t+8}, v{t+8}")
        g(f"v_mul_f32 v{t+8}, {VG}, v{t+8}")
        for i in range(8): g(f"v_mul_f32 v{t+i}, v{t+8}, v{t+i}")
        for i in range(4): g(f"v_cvt_pk_bf16_f32 v{PQ+4*hd+i}, v{t+2*i}, v{t+2*i+1}")
    run(28, 36)
    stamp(8)
    RS = 272
    g(f"v_and_b32 v8, 31, {vLANE}")
    g(f"v_mul_u32_u24 v8, {RS}, v8")
    g(f"v_lshrrev_b32 v9, 5, {vLANE}")
    g("v_lshl_add_u32 v8, v9, 7, v8")
    g(f"s_mul_i32 {sT}, {sW}, {32*RS}")
    g(f"s_add_u32 {sT}, {sT}, {LB}")
    g(f"v_add_u32 v8, {sT}, v8")
    for u in range(2):
        for gq in range(4):
            g(f"ds_write_b128 v8, {vr(ACC+16*u+4*gq)} offset:{(u*4+gq)*16}", tag="rw")
    g(f"v_lshrrev_b32 v9, 3, {vLANE}")
    g(f"v_mul_u32_u24 v10, {RS}, v9")
    g(f"v_and_b32 v11, 7, {vLANE}")
    g("v_lshl_add_u32 v10, v11, 4, v10")
    g(f"s_mul_i32 {sT}, {sW}, {8*RS}")
    g(f"s_add_u32 {sT}, {sT}, {LB}")
    g(f"v_add_u32 v10, {sT}, v10")
    g("v_lshlrev_b32 v12, 10, v9")
    g("v_lshl_add_u32 v12, v11, 4, v12")
    g(f"s_lshl_b32 {sT}, {sRB2}, 16")
    g(f"s_lshl_b32 {sT2}, {sW}, 13")
    g(f"s_add_u32 {sT}, {sT}, {sT2}")
    g(f"s_add_u32 {sT}, {sT}, {sNBO}")
    g.wait(lg="rw")
    g("s_barrier")
    for kq in range(4):
        for hh in range(2):
            g(f"ds_read_b128 {vr(128+8*kq+4*hh)}, v10 offset:{kq*64*RS + hh*128}", tag=f"rr{kq}")
    for kq in range(1, 4):
        g.wait(lg=f"rr{kq}")
        for i in range(8): g(f"v_add_f32 v{128+i}, v{128+i}, v{128+8*kq+i}")
    for i in range(4): g(f"v_cvt_pk_bf16_f32 v{160+i}, v{128+2*i}, v{128+2*i+1}")
    g(f"buffer_store_dwordx4 v[160:163], v12, {SOUT}, {sT} offen")
    if STAMP:
        stamp(9)
        g("s_lshl_b32 s3, s2, 3")
        g(f"s_add_u32 s3, s3, {sW}")
        g("s_lshl_b32 s3, s3, 6")
        g(f"s_add_u32 s3, s3, {STP:#x}")
        g(f"v_lshlrev_b32 v9, 2, {vLANE}")
        g("s_mov_b64 exec, 0xffff")
        g(f"buffer_store_dword {vSTAMP}, v9, {SWS}, s3 offen")
    g.label("END")
    g("s_endpgm")
    g.label("CODE_END")


ENTRY = KN + "_kernel"
for role in ("W1L", "QL", "W1S", "QS"):
    g.start_trace(role)
    g.block(ENTRY, prologue)
    if role in ("W1L", "QL"):
        g.block("L_start", L_start)
    else:
        g.block("S_P0", S_P0, align=3)
    g.block(role, {"W1L": W1L, "QL": QL, "W1S": W1S, "QS": QS}[role])
    g.block("P2", P2, align=3)
g.hazards()
order = [ENTRY, "L_start", "W1L", "QL", "S_P0", "W1S", "MP_T", "MP_N", "EH0", "EH1", "EH2", "EH3",
         "PH0", "PH1", "PH2", "PH3", "SPIN", "QS", "P2"]
assert sorted(order) == sorted(g.order), (g.order)

hdr = open("cdna_kernels/" + KN + ".s.ref").read().split("\n")
top = [l for l in hdr if l.startswith(";") and "@launch" not in l]
print("\n".join(top))
print("; @launch grid=(256,1,1) block=(512,1,1) lds=163840")
print('.amdgcn_target "amdgcn-amd-amdhsa--gfx950"\n.text')
print(f".globl {ENTRY}\n.p2align 8\n.type {ENTRY},@function")
txt = g.text(order)
if OPT["nost"]:
    txt = "\n".join(l.replace("buffer_store_dwordx4 v[48:51], v16", "buffer_store_dword v48, v17") for l in txt.split("\n"))
if OPT["nosc"]:
    txt = "\n".join(l.replace(" sc1", "") if "dwordx4" in l and "store" in l else l for l in txt.split("\n"))
if OPT["nt"]:
    txt = "\n".join(l.replace(" lds", " nt lds") if l.rstrip().endswith(" lds") and (OPT["nt"] == 1 or "s[32:35]" not in l) else l for l in txt.split("\n"))
print(txt)
print(f""".section .rodata,"a"
.p2align 6
.amdhsa_kernel {ENTRY}
  .amdhsa_next_free_vgpr 256
  .amdhsa_next_free_sgpr 102
  .amdhsa_accum_offset 256
  .amdhsa_group_segment_fixed_size 0
  .amdhsa_kernarg_size 88
  .amdhsa_user_sgpr_count 2
  .amdhsa_user_sgpr_kernarg_segment_ptr 1
  .amdhsa_system_sgpr_workgroup_id_x 1
.end_amdhsa_kernel""")
print(f"; maxvm={g.maxvm}", file=sys.stderr)
for name, tr in g.traces:
    print(f"; trace {name}: barriers={sum(1 for o in tr if o.kind=='i' and o.mn=='s_barrier')} instrs={len(tr)}", file=sys.stderr)
```

```python
import re

KN = "gated_mix__linear_attn_block__dense_activation_mish__prompt"

TRANS = ("v_exp_f32", "v_rcp_f32", "v_log_f32", "v_rsq_f32", "v_sqrt_f32")


def regs_of(tok):
    tok = tok.strip()
    tok = tok.lstrip("-").strip("|")
    m = re.fullmatch(r"([vs])(\d+)", tok)
    if m:
        return m.group(1), {int(m.group(2))}
    m = re.fullmatch(r"([vs])\[(\d+):(\d+)\]", tok)
    if m:
        return m.group(1), set(range(int(m.group(2)), int(m.group(3)) + 1))
    if tok == "vcc":
        return "s", {106, 107}
    if tok == "m0":
        return "s", {124}
    if tok == "exec":
        return "s", {126, 127}
    return None


class I:
    __slots__ = ("text", "kind", "vm", "lg", "pre", "mn", "vr", "vw", "sr", "sw", "cls", "srcc", "sdata", "comment")

    def __init__(self, text, kind="i"):
        self.text = text
        self.kind = kind
        self.vm = 63
        self.lg = 15
        self.pre = 0
        self.comment = ""
        if kind == "i":
            self.parse()

    def parse(self):
        t = self.text.split(";")[0].strip()
        parts = t.split(None, 1)
        mn = parts[0]
        self.mn = mn
        ops = []
        if len(parts) > 1:
            cur = ""
            for ch in parts[1]:
                if ch == ",":
                    ops.append(cur.strip()); cur = ""
                else:
                    cur += ch
            ops.append(cur.strip())
            last = ops[-1].split()
            mods = last[1:]
            ops[-1] = last[0] if last else ""
        else:
            mods = []
        self.vr, self.vw, self.sr, self.sw = set(), set(), set(), set()
        self.srcc = set(); self.sdata = set()

        def rd(tok):
            r = regs_of(tok)
            if r: (self.vr if r[0] == "v" else self.sr).update(r[1])

        def wr(tok):
            r = regs_of(tok)
            if r: (self.vw if r[0] == "v" else self.sw).update(r[1])

        if mn.startswith("v_mfma"):
            self.cls = "mfma"
            wr(ops[0]); rd(ops[1]); rd(ops[2]); rd(ops[3])
            r = regs_of(ops[3])
            if r and r[0] == "v": self.srcc = set(r[1])
        elif mn.startswith("v_cmp"):
            self.cls = "valu"
            wr(ops[0])
            for o in ops[1:]: rd(o)
        elif mn.startswith("v_permlane"):
            self.cls = "perm"
            for o in ops: rd(o); wr(o)
        elif mn.startswith("v_"):
            self.cls = "trans" if mn.replace("_e32", "").replace("_e64", "") in TRANS else "valu"
            wr(ops[0])
            for o in ops[1:]: rd(o)
            if mn.startswith(("v_fmac", "v_mac", "v_dot2c")): rd(ops[0])
            if mn.startswith("v_cndmask") and len(ops) == 3: rd("vcc")
        elif mn.startswith("ds_read"):
            self.cls = "ds"
            wr(ops[0]); rd(ops[1])
        elif mn.startswith("ds_write"):
            self.cls = "ds"
            for o in ops: rd(o)
        elif mn.startswith("global_load"):
            self.cls = "vmem"
            wr(ops[0])
            for o in ops[1:]: rd(o)
        elif mn.startswith("buffer_load"):
            self.cls = "vmem"
            if "lds" in mods:
                self.cls = "dma"
                for o in ops: rd(o)
                rd("m0")
            else:
                wr(ops[0])
                if "d16" in mn: rd(ops[0])
                for o in ops[1:]: rd(o)
        elif mn.startswith(("buffer_store", "buffer_atomic")):
            self.cls = "vmem"
            for o in ops: rd(o)
            if "x4" in mn or "x3" in mn:
                self.sdata = set(regs_of(ops[0])[1])
        elif mn.startswith("s_"):
            self.cls = "salu"
            if mn.startswith(("s_cmp", "s_cbranch", "s_branch", "s_barrier", "s_nop", "s_waitcnt", "s_setprio", "s_endpgm", "s_sleep", "s_setpc", "s_bitcmp")):
                for o in ops: rd(o)
            else:
                wr(ops[0])
                for o in ops[1:]: rd(o)
                if mn.startswith(("s_addk", "s_mulk")): rd(ops[0])
        else:
            raise ValueError("unknown instr " + t)

    def states(self):
        if self.kind == "wait":
            return 1 if (self.vm < 63 or self.lg < 15) else 0
        if self.kind != "i":
            return 0
        if self.mn == "s_nop":
            return int(self.text.split()[1], 0) + 1
        return 1

    def render(self):
        out = []
        n = self.pre
        while n > 0:
            k = min(n, 16)
            out.append(f"    s_nop {k-1}")
            n -= k
        if self.kind == "wait":
            p = []
            if self.vm < 63: p.append(f"vmcnt({self.vm})")
            if self.lg < 15: p.append(f"lgkmcnt({self.lg})")
            if p: out.append("    s_waitcnt " + " ".join(p) + (("  ; " + self.comment) if self.comment else ""))
        elif self.kind == "label":
            out.append(self.text + ":")
        elif self.kind == "raw":
            out.append(self.text)
        else:
            out.append("    " + self.text)
        return out


class Gen:
    def __init__(self):
        self.blocks = {}
        self.order = []
        self.cur = None
        self.replay = None
        self.stack = []
        self.traces = []
        self.trace = None
        self.vm = []
        self.lg = []
        self.maxvm = 0
        self.nlab = 0

    def start_trace(self, name):
        self.trace = []
        self.traces.append((name, self.trace))
        self.vm = []; self.lg = []

    def block(self, name, fn, *args, align=None, **kw):
        self.stack.append((self.cur, self.replay))
        if name in self.blocks:
            self.cur = None
            self.replay = [self.blocks[name], 0]
            if align: self.replay[1] += 1
            self.replay[1] += 1
        else:
            self.blocks[name] = []
            self.order.append(name)
            self.cur = self.blocks[name]
            self.replay = None
            if align: self.cur.append(I(f".p2align {align}", "raw"))
            self.cur.append(I(name, "label"))
        fn(*args, **kw)
        if self.replay is not None:
            assert self.replay[1] == len(self.replay[0]), f"replay length mismatch in {name}"
        self.cur, self.replay = self.stack.pop()

    def _put(self, text, kind):
        if self.replay is not None:
            lst, idx = self.replay
            o = lst[idx]
            assert o.kind == kind and (kind == "wait" or o.text == text), f"replay mismatch: {o.text!r} vs {text!r}"
            self.replay[1] += 1
        else:
            o = I(text, kind)
            self.cur.append(o)
        self.trace.append(o)
        return o

    def __call__(self, s, tag=None, weak=False):
        for l in s.strip("\n").split("\n"):
            l = l.strip()
            if not l or l.startswith(";"): continue
            o = self._put(l, "i")
            if o.cls in ("vmem", "dma"):
                self.vm.append(("~" + tag) if weak else tag)
                self.maxvm = max(self.maxvm, len(self.vm))
                assert len(self.vm) <= 63, "too many outstanding vm ops"
            elif o.cls == "ds":
                self.lg.append(tag)
            elif o.mn.startswith("s_waitcnt"):
                m = re.search(r"vmcnt\((\d+)\)", l)
                if m:
                    n = int(m.group(1))
                    if n == 0: self.vm = []
                    elif not any(t and t[0] == "~" for t in self.vm):
                        self.vm = self.vm[len(self.vm) - n:] if n < len(self.vm) else self.vm
                m = re.search(r"lgkmcnt\((\d+)\)", l)
                if m:
                    n = int(m.group(1)); self.lg = self.lg[len(self.lg) - n:] if n < len(self.lg) else self.lg
                    if n == 0: self.lg = []

    def label(self, name):
        self._put(name, "label")

    def raw(self, t):
        self._put(t, "raw")

    def wait(self, vm=None, lg=None, comment=""):
        o = self._put("", "wait")
        if comment: o.comment = comment
        for lst_name, tags, attr, cap in (("vm", vm, "vm", 63), ("lg", lg, "lg", 15)):
            if tags is None: continue
            if isinstance(tags, str): tags = [tags]
            lst = getattr(self, lst_name)
            last = -1
            for k, t in enumerate(lst):
                if t in tags or (t and t[0] == "~" and t[1:] in tags): last = k
            if last >= 0:
                n = sum(1 for t in lst[last + 1:] if not (t and t[0] == "~"))
                if n > cap - 1:
                    n = cap - 1
                    c = 0; last = len(lst) - 1
                    while c < n:
                        if not (lst[last] and lst[last][0] == "~"): c += 1
                        last -= 1
                setattr(o, attr, min(getattr(o, attr), n))
                setattr(self, lst_name, lst[last + 1:])
        return o

    def optional(self):
        g = self
        class C:
            def __enter__(s):
                s.vm = list(g.vm); s.lg = list(g.lg)
            def __exit__(s, *a):
                g.vm = s.vm; g.lg = s.lg
        return C()

    def hazards(self):
        changed = True
        it = 0
        while changed:
            changed = False
            it += 1
            for name, tr in self.traces:
                hist = []
                pos = 0
                for o in tr:
                    if o.kind not in ("i", "wait"): continue
                    pos += o.pre
                    if o.kind == "i":
                        need = 0
                        for (p, q) in reversed(hist):
                            dist = pos - p - 1
                            if dist >= 20: break
                            r = self.req(q, o)
                            if r > dist: need = max(need, r - dist)
                        if need:
                            o.pre += need; pos += need; changed = True
                        hist.append((pos + o.states() - 1, o))
                        if len(hist) > 40: hist = hist[-40:]
                    pos += o.states()
            assert it < 10

    @staticmethod
    def req(q, o):
        r = 0
        qc, oc = q.cls, o.cls
        valu_q = qc in ("valu", "trans", "perm")
        valu_o = oc in ("valu", "trans", "perm")
        if valu_q and oc == "mfma" and (q.vw & o.vr): r = max(r, 2)
        if qc == "mfma":
            if oc == "mfma":
                ab = o.vr - o.srcc if o.srcc else o.vr
                t = o.text.split(None, 1)[1].split(",")
                abr = set()
                for tok in t[1:3]:
                    x = regs_of(tok)
                    if x and x[0] == "v": abr |= x[1]
                if q.vw & abr: r = max(r, 12)
                if (q.vw & o.srcc) and q.vw != o.srcc: r = max(r, 10)
                if (q.vw & o.vw) and not (q.vw == o.srcc): r = max(r, 12)
            else:
                if (q.vw & o.vr) or (q.vw & o.vw): r = max(r, 12)
                if valu_o and (q.srcc & o.vw): r = max(r, 7)
        if qc == "trans" and valu_o and oc != "trans" and (q.vw & o.vr): r = max(r, 1)
        if qc == "trans" and oc == "trans" and (q.vw & o.vr): r = max(r, 1)
        if valu_q and q.sw:
            if valu_o and (q.sw & o.sr): r = max(r, 2)
            if oc in ("vmem", "dma") and (q.sw & o.sr): r = max(r, 5)
            if oc == "salu" and (q.sw & o.sr): r = max(r, 1)
        if valu_q and o.mn.startswith(("v_readfirstlane", "v_readlane")) and (q.vw & o.vr): r = max(r, 1)
        if valu_q and oc == "perm" and (q.vw & o.vr): r = max(r, 2)
        if q.sdata and (q.sdata & o.vw): r = max(r, 2)
        if qc == "salu" and 124 in q.sw and oc == "dma": r = max(r, 1)
        return r

    def text(self, order=None):
        out = []
        for n in (order or self.order):
            for o in self.blocks[n]:
                out.extend(o.render())
        return "\n".join(out)
```

```python
import sys
from fw import *

OPT = dict(stamp=0, D=3, D2=4, spin=3000, rot=1, tw2=1, tp1=0, t3=6, npub=10, np1=16, np2=24, prio=1,
           nopoll=0, pubm=12, osc=0, cpl=2)
for a in sys.argv[1:]:
    k, v = a.split("="); OPT[k] = int(v, 0)
STAMP = OPT["stamp"]; D = OPT["D"]; D2 = OPT["D2"]

LA, LB, LC = 0, 65536, 131072
ACT, KVP, FLG, SCO, STP, PART = 0, 0x900000, 0x980000, 0x9C0000, 0x9E0000, 0xA00000
WS_SIZE = 0x1200000
XS = [LC, LC + 16384, LB, LB + 16384, LB + 32768, LB + 49152, LC, LC + 16384]
SG = "s[4:7]"
SX, SW, SW2, SWO, SWS, SOUT, SB, SDBG = "s[32:35]", "s[36:39]", "s[40:43]", "s[44:47]", "s[48:51]", "s[52:55]", "s[56:59]", "s[60:63]"
sW, sRW, sRB, sCGI, sISW1, sSTR, sROT, sRW1K = "s64", "s65", "s66", "s67", "s68", "s69", "s70", "s71"
sXR = ["s72", "s73", "s74", "s75"]
sP = ["s76", "s77", "s78", "s79"]
sWC = [f"s{80+i}" for i in range(8)]
sT, sT2, sHAVE, sMASK, sCNT, sKQ, sR8, sPAR, sTT, sLOG2E = "s88", "s89", "s90", "s91", "s92", "s93", "s94", "s95", "s96", "s97"
sTM = "s[98:99]"; sEPS = "s100"; sST = "s101"
sRET = "s[30:31]"
sACT, sFA, sFP, sPUB, sRs, sRo, sRu, sRm, sRmu, sPART, sAp, sAo, sOUT, sSCO, sKV, sL2 = [f"s{8+i}" for i in range(16)]
sT3 = "s3"
vLANE, vXD, vWD0, vWD1, vW2D = "v1", "v2", "v3", "v4", "v5"
vXB = ["v6", "v7", "v8", "v9"]; vXC = ["v10", "v11", "v12", "v13"]
vWA, vWB, vL16, vONE, vSTAMP, vBIAS2, vT0, vWOD, vPA, vPR = "v14", "v15", "v16", "v17", "v18", "v19", "v20", "v21", "v22", "v23"
vWDB = "v0"
vEL = vBIAS2
vSC = "v24"
ACC = 96; WBUF = 64; XR = 128; TMP = 32; IDENT = 44
G0, G1, Z0, Z1, Z2, OO, TACC = 48, 144, 128, 136, 176, 160, 192

g = Gen()


def vr(a, n=4):
    return f"v[{a}:{a+n-1}]"


def stamp(i):
    if not STAMP: return
    g(f"s_memtime {sTM}")
    g("s_waitcnt lgkmcnt(0)")
    g(f"v_writelane_b32 {vSTAMP}, s98, {i}")


def mfma(d, a, b, c):
    g(f"v_mfma_f32_32x32x16_bf16 {vr(d,16)}, {a}, {b}, {c}")


def dx(c, i):
    def f():
        g(f"s_add_u32 m0, {sRW1K}, {XS[c] + i*4096:#x}")
        g(f"s_xor_b32 {sT2}, {sXR[i]}, {c*128:#x}")
        g(f"buffer_load_dwordx4 {vXD}, {SX}, {sT2} offen lds", tag=f"x{c}")
    return f


def dw(region, c, i, tag):
    def f():
        g(f"s_add_u32 m0, {sRW1K}, {region + c*8192 + i*4096:#x}")
        g(f"buffer_load_dwordx4 {(vWD0, vWD1)[i]}, {SW}, {sWC[c]} offen lds", tag=tag)
    return f


def set_wcol(p):
    g(f"v_add_u32 {vWD0}, {sP[p]}, {vWDB}")
    g(f"s_lshl_b32 {sT2}, {sSTR}, 5")
    g(f"v_add_u32 {vWD1}, {sT2}, {vWD0}")


def set_u6():
    g(f"""
    v_lshrrev_b32 v32, 3, {vLANE}
    s_lshl_b32 {sT2}, {sRW}, 3
    v_add_u32 v32, {sT2}, v32
    v_bfe_u32 v33, {vLANE}, 4, 1
    v_bfe_u32 v34, {vLANE}, 2, 1
    v_xor_b32 v33, v33, v34
    s_lshr_b32 {sT2}, {sROT}, 2
    v_xor_b32 v33, {sT2}, v33
    v_lshl_add_u32 v32, v33, 8, v32
    v_mul_lo_u32 v32, v32, {sSTR}
    v_and_b32 v33, 3, {vLANE}
    v_lshl_add_u32 v32, v33, 4, v32
    v_add_u32 {vWD0}, {sP[3]}, v32
    s_lshl_b32 {sT2}, {sSTR}, 5
    v_add_u32 {vWD1}, {sT2}, {vWD0}
    """)


def du(cc, i):
    def f():
        if i == 0:
            g(f"s_xor_b32 {sT3}, {sROT}, {cc}")
            g(f"s_and_b32 {sT3}, {sT3}, 3")
            g(f"s_mul_i32 {sT3}, {sT3}, {3584*64}")
        g(f"s_add_u32 m0, {sRW1K}, {LC + cc*8192 + i*4096:#x}")
        g(f"buffer_load_dwordx4 {(vWD0, vWD1)[i]}, {SW}, {sT3} offen lds", tag="u6")
    return f


def d2(area, i):
    prel, pp, hh = (i >> 2) & 1, (i >> 1) & 1, i & 1
    if area == "U": prel, pp = (i >> 1) & 1, 0
    def f():
        if area in ("GL", "GS", "P2"):
            base = {"GL": LB, "GS": LB + 32768, "P2": LA}[area]
            gofs = {"GL": 0, "GS": 1 << 16, "P2": 1 << 17}[area]
            g(f"s_xor_b32 m0, {sRm}, {base + (i << 12):#x}")
            g(f"s_xor_b32 {sT2}, {sRs}, {gofs | prel << 18 | pp << 15 | hh << 7:#x}")
            g(f"buffer_load_dwordx4 {vW2D}, {SW2}, {sT2} offen lds", tag="w" + area)
        elif area == "O":
            g(f"s_xor_b32 m0, {sRm}, {LA + 32768 + (i << 12):#x}")
            g(f"s_xor_b32 {sT2}, {sRo}, {prel << 16 | pp << 15 | hh << 7:#x}")
            g(f"buffer_load_dwordx4 {vWOD}, {SWO}, {sT2} offen lds", tag="wO")
        else:
            g(f"s_xor_b32 m0, {sRmu}, {LC + (i << 12):#x}")
            g(f"s_xor_b32 {sT2}, {sRu}, {0x30000 | prel << 15 | hh << 7:#x}")
            g(f"buffer_load_dwordx4 {vW2D}, {SW2}, {sT2} offen lds", tag="wU")
    return f


def D2A(area):
    return [d2(area, i) for i in range(4 if area == "U" else 8)]


def publish(kind, wait="st"):
    def f():
        g.wait(vm=wait)
        g("s_mov_b64 exec, 1")
        g(f"buffer_store_dword {vONE}, off, {SWS}, {sPUB} offset:{kind*4} sc1", tag="pub")
        g("s_mov_b64 exec, -1")
    return f


def SPIN():
    g(f"s_mov_b32 {sCNT}, 0")
    g("s_mov_b64 exec, 0xffff")
    g.label("SPIN_loop")
    g(f"buffer_load_dword {vPR}, {vPA}, {SWS}, 0 offen sc1")
    g("s_waitcnt vmcnt(0)")
    g(f"v_cmp_eq_u32 vcc, 1, {vPR}")
    g(f"s_add_u32 {sCNT}, {sCNT}, 1")
    g(f"s_mov_b32 {sHAVE}, vcc_lo")
    g(f"s_and_b32 {sT}, {sHAVE}, {sMASK}")
    g(f"s_cmp_eq_u32 {sT}, {sMASK}")
    g("s_cbranch_scc1 SPIN_done")
    g("s_sleep 1")
    g(f"s_cmp_lt_u32 {sCNT}, {OPT['spin']}")
    g("s_cbranch_scc1 SPIN_loop")
    g.label("SPIN_done")
    g("s_mov_b64 exec, -1")
    g(f"s_setpc_b64 {sRET}")


def poll_issue():
    g("s_mov_b64 exec, 0xffff")
    g(f"buffer_load_dword {vPR}, {vPA}, {SWS}, 0 offen sc1", tag="poll")
    g("s_mov_b64 exec, -1")


def poll_take():
    g.wait(vm="poll")
    g(f"v_cmp_eq_u32 vcc, 1, {vPR}")
    g("s_nop 0")
    g(f"s_and_b32 {sHAVE}, vcc_lo, 0xffff")


nlab = [0]
def ensure(mask):
    if OPT["nopoll"]: return
    nlab[0] += 1
    lab = f"EN{nlab[0]}"
    g(f"s_and_b32 {sT}, {sHAVE}, {mask:#x}")
    g(f"s_cmp_eq_u32 {sT}, {mask:#x}")
    g(f"s_cbranch_scc1 {lab}")
    with g.optional():
        g(f"s_mov_b32 {sMASK}, {mask:#x}")
        g(f"s_call_b64 {sRET}, SPIN")
        g.block("SPIN", SPIN, align=3)
    g.label(lab)


def aload(reg, base, off, n, tag):
    def f():
        if off: g(f"s_add_u32 {sT}, {base}, {off:#x}")
        for i in range(n):
            g(f"buffer_load_dwordx4 {vr(reg+4*i)}, {vL16}, {SWS}, {sT if off else base} offen offset:{i*1024} sc1", tag=f"{tag}{i}")
    return f


def MP(orient, bars, ev=None, xread=False, bias=False):
    ev = ev or {}
    NBUF = D + 1
    def trread(s):
        b = WBUF + (s % NBUF) * 8
        for u, va in ((0, vWA), (1, vWB)):
            g(f"ds_read_b64_tr_b16 {vr(b+u*4, 2)}, {va} offset:{s*2048}", tag=f"w{s}")
            g(f"ds_read_b64_tr_b16 {vr(b+u*4+2, 2)}, {va} offset:{s*2048+512}", tag=f"w{s}")
    def pre(n):
        if n in bars:
            g.wait(**bars[n])
            g("s_barrier")
            if xread: xreads(n // 8, lambda s: f"xr{s}")
        trread(n)
    for s in range(D): pre(s)
    if bias:
        mfma(ACC, "v[28:31]", "v[24:27]", 0)
        mfma(ACC + 16, "v[28:31]", "v[26:29]", 0)
    for s in range(32):
        if s + D < 32: pre(s + D)
        g.wait(lg=[f"w{s}", f"xr{s}"])
        b = WBUF + (s % NBUF) * 8
        for u in range(2):
            acc = ACC + 16 * u
            c = vr(acc, 16) if (bias or s > 0) else "0"
            if orient == "T": mfma(acc, vr(b + u * 4), vr(XR + 4 * s), c)
            else: mfma(acc, vr(XR + 4 * s), vr(b + u * 4), c)
        for f in ev.get(s, []): f()


def xreads(q, tagf):
    for c in (2 * q, 2 * q + 1):
        regs, off = (vXC, XS[c] - LC) if XS[c] >= LC else (vXB, XS[c] - LB)
        for sp in range(4):
            s = c * 4 + sp
            g(f"ds_read_b128 {vr(XR+4*s)}, {regs[sp]} offset:{off}", tag=tagf(s))


def MU6(ev):
    NBUF = D + 1
    def trread(s):
        b = WBUF + (s % NBUF) * 8
        for u, va in ((0, vWA), (1, vWB)):
            g(f"ds_read_b64_tr_b16 {vr(b+u*4, 2)}, {va} offset:{s*2048}", tag=f"w{s}")
            g(f"ds_read_b64_tr_b16 {vr(b+u*4+2, 2)}, {va} offset:{s*2048+512}", tag=f"w{s}")
    for s in range(D): trread(s)
    mfma(ACC, "v[28:31]", "v[24:27]", 0)
    for f in ev.get(-1, []): f()
    for s in range(16):
        if s + D < 16: trread(s + D)
        g.wait(lg=[f"w{s}"])
        b = WBUF + (s % NBUF) * 8
        mfma(ACC, vr(b), vr(XR + 4 * s), vr(ACC, 16))
        mfma(ACC, vr(b + 4), vr(XR + 4 * (s + 16)), vr(ACC, 16))
        for f in ev.get(s, []): f()


def weave(ins, slots):
    cost = [8 if i.startswith(("v_exp", "v_rcp")) else 4 for i in ins]
    tot = sum(cost); n = len(slots); k = 0; acc = 0
    for i, c in zip(ins, cost):
        while k < n and acc >= tot * k / n:
            slots[k](); k += 1
        g(i); acc += c
    while k < n:
        slots[k](); k += 1


def EH(q, dst, slots):
    h = [f"v{ACC+8*q+i}" for i in range(8)]
    e = [f"v{TMP+i}" for i in range(8)]
    u = [f"v{TMP+8+i}" for i in range(8)]
    ins = []
    for i in range(8): ins.append(f"v_mul_f32 {e[i]}, {sLOG2E}, {h[i]}")
    for i in range(8): ins.append(f"v_exp_f32 {e[i]}, {e[i]}")
    for i in range(8): ins.append(f"v_fma_f32 {u[i]}, {e[i]}, 0.5, 1.0")
    for i in range(8): ins.append(f"v_fma_f32 {u[i]}, -{e[i]}, {u[i]}, -1.0")
    for i in range(8): ins.append(f"v_rcp_f32 {u[i]}, {u[i]}")
    for i in range(8): ins.append(f"v_fmac_f32 {h[i]}, {h[i]}, {u[i]}")
    for i in range(4): ins.append(f"v_cvt_pk_bf16_f32 v{dst+i}, {h[2*i]}, {h[2*i+1]}")
    weave(ins, slots)
    g(f"buffer_store_dwordx4 {vr(dst)}, {vL16}, {SWS}, {sST} offen offset:{q*1024} sc1", tag="st")


def PH(q, dst, slots):
    h = [f"v{ACC+8*q+i}" for i in range(8)]
    e = [f"v{TMP+i}" for i in range(8)]
    ins = []
    for i in range(8): ins.append(f"v_mul_f32 {e[i]}, {sLOG2E}, {h[i]}")
    for i in range(8): ins.append(f"v_exp_f32_e64 {e[i]}, {e[i]} clamp")
    for i in range(8): ins.append(f"v_max_f32 {h[i]}, {sEPS}, {h[i]}")
    for i in range(8): ins.append(f"v_add_f32 {h[i]}, {e[i]}, {h[i]}")
    for i in range(4): ins.append(f"v_cvt_pk_bf16_f32 v{dst+i}, {h[2*i]}, {h[2*i+1]}")
    weave(ins, slots)


def split(lst, counts):
    out = []; k = 0
    for c in counts:
        out.append(lst[k:k + c]); k += c
    assert k == len(lst), (k, len(lst))
    return out


ENTRY = KN + "_kernel"
def prologue():
    if STAMP:
        g(f"s_memtime {sTM}")
        g("s_memrealtime s[90:91]")
    g(f"""
    s_cmp_ge_u32 s2, 256
    s_cbranch_scc1 END
    s_load_dwordx16 s[8:23], s[0:1], 0
    s_load_dwordx4 s[24:27], s[0:1], 64
    s_load_dwordx2 s[28:29], s[0:1], 80
    s_getpc_b64 s[30:31]
    s_lshr_b32 {sT}, s2, 3         ; j
    s_lshl_b32 {sT2}, {sT}, 4
    v_lshrrev_b32 v65, 5, v0
    v_and_b32 v66, 1, v0
    v_add3_u32 v65, v65, v66, {sT2}
    v_lshlrev_b32 v65, 7, v65
    v_min_u32 v65, CODE_END-{ENTRY}-256, v65
    s_mov_b64 exec, 3
    """)
    g("global_load_dword v255, v65, s[30:31]", tag="cp")
    g(f"""
    s_mov_b64 exec, -1
    v_lshrrev_b32 v64, 6, v0
    v_and_b32 {vLANE}, 63, v0
    v_readfirstlane_b32 {sW}, v64
    s_lshr_b32 {sTT}, s2, 6        ; t
    s_and_b32 {sR8}, {sT}, 7
    s_and_b32 {sRB}, s2, 1
    s_lshl_b32 {sRB}, {sRB}, 3
    s_or_b32 {sRB}, {sRB}, {sR8}
    s_bfe_u32 {sKQ}, s2, 0x20001
    s_lshr_b32 {sISW1}, {sTT}, 1
    s_and_b32 {sPAR}, {sTT}, 1
    s_lshl_b32 {sCGI}, {sKQ}, 1
    s_or_b32 {sCGI}, {sCGI}, {sPAR}
    s_lshl_b32 {sROT}, {sTT}, 1
    s_xor_b32 {sROT}, {sROT}, {sR8}
    """)
    if not OPT["rot"]: g(f"s_mov_b32 {sROT}, 0")
    g(f"""
    s_and_b32 {sRW}, {sW}, 3
    s_lshl_b32 {sRW1K}, {sRW}, 10
    s_lshl_b32 {sSTR}, {sISW1}, 9
    s_add_u32 {sSTR}, {sSTR}, 3072
    s_lshl_b32 {sXR[0]}, {sRB}, 17
    s_lshl_b32 {sT}, {sROT}, 7
    s_or_b32 {sXR[0]}, {sXR[0]}, {sT}
    s_add_u32 {sXR[1]}, {sXR[0]}, 0x8000
    s_add_u32 {sXR[2]}, {sXR[0]}, 0x10000
    s_add_u32 {sXR[3]}, {sXR[0]}, 0x18000
    v_lshrrev_b32 v64, 3, {vLANE}          ; l3
    v_and_b32 v65, 7, {vLANE}              ; pos
    v_lshrrev_b32 v66, 4, {vLANE}          ; l4
    s_lshl_b32 {sT}, {sRW}, 3
    v_add_u32 v64, {sT}, v64               ; rw*8+l3
    s_and_b32 {sT}, {sRW}, 1
    s_lshl_b32 {sT}, {sT}, 2
    v_add_u32 v67, {sT}, v66
    v_xor_b32 v67, v67, v65
    v_lshlrev_b32 v67, 4, v67
    v_lshl_add_u32 {vXD}, v64, 10, v67
    v_and_b32 v67, 1, v66
    v_lshlrev_b32 v67, 2, v67
    v_xor_b32 v67, v67, v65                ; pw
    v_lshlrev_b32 v68, 4, v67
    v_mul_lo_u32 v69, v64, {sSTR}
    v_add_u32 {vWDB}, v69, v68
    v_lshl_add_u32 {vW2D}, v64, 10, v68
    s_mul_i32 {sP[3]}, {sCGI}, 448
    s_lshl_b32 {sT2}, {sPAR}, 6
    s_add_u32 {sP[0]}, {sP[3]}, {sT2}
    s_add_u32 {sP[1]}, {sP[0]}, 128
    s_add_u32 {sP[2]}, {sP[0]}, 256
    s_cmp_eq_u32 {sPAR}, 0
    s_cselect_b32 {sT2}, 384, 0
    s_add_u32 {sP[3]}, {sP[3]}, {sT2}
    s_cmp_eq_u32 {sISW1}, 1
    s_cbranch_scc1 PRO_w1
    s_lshl_b32 {sP[2]}, {sCGI}, 7
    s_add_u32 {sP[0]}, {sP[2]}, 1024
    s_add_u32 {sP[1]}, {sP[2]}, 2048
    """)
    g.label("PRO_w1")
    g(f"s_lshl_b32 {sT}, {sSTR}, 6")
    for c in range(8):
        g(f"s_xor_b32 {sWC[c]}, {sROT}, {c}")
        g(f"s_mul_i32 {sWC[c]}, {sWC[c]}, {sT}")
    set_wcol(0)
    g(f"""
    s_mov_b32 s34, 0x200000
    s_mov_b32 s35, 0x20000
    s_mov_b32 s39, 0x20000
    s_lshl_b32 s38, {sSTR}, 9
    s_cmp_eq_u32 {sISW1}, 1
    s_waitcnt lgkmcnt(0)
    s_mov_b32 s32, s8
    s_cselect_b32 s36, s16, s10
    s_cselect_b32 s37, s17, s11
    s_and_b32 s33, s9, 0xffff
    s_and_b32 s37, s37, 0xffff
    s_cmp_lt_u32 {sW}, 4
    s_cbranch_scc1 L_start
    """)


def setup2():
    if STAMP:
        g(f"v_mov_b32 {vSTAMP}, 0")
        g(f"v_writelane_b32 {vSTAMP}, s98, 0")
        g(f"v_writelane_b32 {vSTAMP}, s90, 14")
    g(f"""
    s_mov_b32 s40, s20
    s_and_b32 s41, s21, 0xffff
    s_mov_b32 s42, 0x1c0000
    s_mov_b32 s43, 0x20000
    s_mov_b32 s44, s12
    s_and_b32 s45, s13, 0xffff
    s_mov_b32 s46, 0x80000
    s_mov_b32 s47, 0x20000
    s_mov_b32 s48, s28
    s_and_b32 s49, s29, 0xffff
    s_mov_b32 s50, {WS_SIZE:#x}
    s_mov_b32 s51, 0x20000
    s_mov_b32 s52, s24
    s_and_b32 s53, s25, 0xffff
    s_mov_b32 s54, 0x200000
    s_mov_b32 s55, 0x20000
    s_mov_b32 s56, s18
    s_and_b32 s57, s19, 0xffff
    s_mov_b32 s58, 3584
    s_mov_b32 s59, 0x20000
    s_mov_b32 s60, s26
    s_and_b32 s61, s27, 0xffff
    s_mov_b32 s62, 256
    s_mov_b32 s63, 0x20000
    s_mov_b32 s4, s22
    s_and_b32 s5, s23, 0xffff
    s_mov_b32 s6, 1024
    s_mov_b32 s7, 0x20000
    s_mov_b32 {sLOG2E}, 0x3fb8aa3b
    s_mov_b32 {sEPS}, 0x358637bd
    v_and_b32 v64, 31, {vLANE}             ; row
    v_lshrrev_b32 v65, 5, {vLANE}          ; h
    v_bfe_u32 v66, {vLANE}, 1, 3           ; m
    v_xor_b32 v66, v66, v65                ; h ^ m
    s_lshl_b32 {sT}, {sRW}, 12
    s_add_u32 {sT}, {sT}, {LB}
    v_lshl_add_u32 v67, v64, 7, {sT}
    """)
    for sp in range(4):
        g(f"v_xor_b32 v68, {2*sp}, v66")
        g(f"v_lshl_add_u32 {vXB[sp]}, v68, 4, v67")
        g(f"v_add_u32 {vXC[sp]}, 0x10000, {vXB[sp]}")
    g(f"""
    v_bfe_u32 v68, {vLANE}, 2, 2           ; r
    v_lshlrev_b32 v69, 7, v68
    v_bfe_u32 v68, {vLANE}, 3, 1
    v_lshl_add_u32 v69, v68, 6, v69
    v_bfe_u32 v68, {vLANE}, 4, 1
    v_lshl_add_u32 {vT0}, v68, 5, v69
    v_and_b32 v68, 3, {vLANE}
    v_lshl_add_u32 v69, v68, 3, {vT0}
    v_lshl_add_u32 {vWA}, v65, 10, v69
    v_lshl_add_u32 {vT0}, v65, 9, {vT0}
    v_and_b32 v68, 1, {vLANE}
    v_lshl_add_u32 {vT0}, v68, 4, {vT0}
    v_bfe_u32 v68, {vLANE}, 1, 1
    v_lshl_add_u32 {vT0}, v68, 3, {vT0}
    s_and_b32 {sT}, {sKQ}, 1
    s_lshl_b32 {sT}, {sT}, 6
    s_lshr_b32 {sT2}, {sW}, 2
    s_lshl_b32 {sT2}, {sT2}, 5
    s_or_b32 {sT}, {sT}, {sT2}
    v_xor_b32 {vT0}, {sT}, {vT0}
    v_lshlrev_b32 {vL16}, 4, {vLANE}
    v_mov_b32 {vONE}, 1
    v_mov_b32 v24, 0x3f80
    v_mov_b32 v25, 0
    v_mov_b32 v26, 1.0
    v_mov_b32 v27, 0
    v_mov_b32 v28, 0
    v_mov_b32 v29, 0
    v_mov_b32 v30, 0
    v_mov_b32 v31, 0
    v_mov_b32 {vBIAS2}, 0
    s_lshl_b32 {sT}, {sTT}, 8
    s_lshl_b32 {sT2}, {sKQ}, 17
    s_add_u32 {sT2}, {sT2}, {sT}
    v_add_u32 {vWOD}, {sT2}, {vW2D}
    s_mul_i32 {sT2}, {sKQ}, {448*1024}
    s_add_u32 {sT2}, {sT2}, {sT}
    v_add_u32 {vW2D}, {sT2}, {vW2D}
    s_lshr_b32 {sT}, {sKQ}, 1
    s_xor_b32 {sT}, {sT}, {sR8}
    s_xor_b32 {sT}, {sT}, 1
    s_and_b32 {sT}, {sT}, 1
    s_lshl_b32 {sT}, {sT}, 7               ; (b0^ho)<<7
    s_and_b32 {sT2}, {sR8}, 2
    s_lshl_b32 {sT2}, {sT2}, 14            ; b1<<15
    s_or_b32 {sRs}, {sT}, {sT2}
    s_lshl_b32 {sT2}, {sPAR}, 15
    s_xor_b32 {sRu}, {sRs}, {sT2}
    s_lshr_b32 {sT}, {sR8}, 2
    s_xor_b32 {sT}, {sT}, {sPAR}
    s_lshl_b32 {sT2}, {sT}, 16
    s_or_b32 {sRo}, {sRs}, {sT2}
    s_lshl_b32 {sT2}, {sT}, 18
    s_or_b32 {sRs}, {sRs}, {sT2}
    s_lshl_b32 {sT}, {sR8}, 12
    s_or_b32 {sRm}, {sT}, {sRW1K}
    s_and_b32 {sRmu}, {sRm}, 0x3fff
    s_lshl_b32 {sT}, {sRB}, 2
    s_add_u32 {sT}, {sT}, {sRW}
    s_lshl_b32 {sOUT}, {sT}, 15
    s_lshl_b32 {sT}, {sT}, 2
    s_add_u32 {sT}, {sT}, {sKQ}
    s_mul_i32 {sACT}, {sT}, {36*1024}
    s_lshl_b32 {sSCO}, {sT}, 9
    s_add_u32 {sSCO}, {sSCO}, {SCO:#x}
    s_lshl_b32 {sT}, {sPAR}, 14
    s_add_u32 {sAp}, {sACT}, {sT}
    s_xor_b32 {sT}, {sT}, 0x4000
    s_add_u32 {sAo}, {sACT}, {sT}
    ; flags
    s_lshl_b32 {sT}, {sRB}, 2
    s_add_u32 {sT}, {sT}, {sKQ}            ; quad
    s_lshl_b32 {sT}, {sT}, 12
    s_add_u32 {sT}, {sT}, {FLG:#x}
    s_lshl_b32 {sT2}, {sPAR}, 11
    s_add_u32 {sL2}, {sT}, {sT2}
    s_lshl_b32 {sT2}, {sISW1}, 9
    s_add_u32 {sFP}, {sL2}, {sT2}
    s_lshl_b32 {sT2}, {sW}, 6
    s_add_u32 {sFP}, {sFP}, {sT2}
    s_lshr_b32 {sT2}, {sRW}, 1
    s_lshl_b32 {sT2}, {sT2}, 11
    s_add_u32 {sFA}, {sT}, {sT2}
    s_and_b32 {sT2}, {sRW}, 1
    s_lshl_b32 {sT2}, {sT2}, 7
    s_add_u32 {sFA}, {sFA}, {sT2}
    s_add_u32 {sFA}, {sFA}, 1024
    s_lshl_b32 {sT2}, {sTT}, 4
    s_add_u32 {sPUB}, {sFA}, {sT2}
    s_lshl_b32 {sT2}, {sPAR}, 2
    v_xor_b32 v68, {sT2}, {vLANE}
    v_and_b32 v68, 15, v68
    v_lshl_add_u32 {vPA}, v68, 2, {sFA}
    s_lshl_b32 {sT}, {sRB}, 2
    s_add_u32 {sT}, {sT}, {sTT}
    s_lshl_b32 {sT}, {sT}, 2
    s_add_u32 {sT}, {sT}, {sKQ}
    s_lshl_b32 {sT}, {sT}, 3
    s_add_u32 {sT}, {sT}, {sW}
    s_lshl_b32 {sT}, {sT}, 12
    s_add_u32 {sPART}, {sT}, {PART:#x}
    ; out
    s_lshl_b32 {sT}, {sTT}, 8
    s_add_u32 {sOUT}, {sOUT}, {sT}
    s_lshl_b32 {sT}, {sKQ}, 6
    s_add_u32 {sOUT}, {sOUT}, {sT}
    s_lshr_b32 {sT}, {sW}, 2
    s_lshl_b32 {sT}, {sT}, 5
    s_add_u32 {sOUT}, {sOUT}, {sT}
    s_lshl_b32 {sKV}, {sCGI}, 16
    s_add_u32 {sKV}, {sKV}, {sRW1K}
    s_add_u32 {sKV}, {sKV}, {KVP:#x}
    """)


def bias_loads(pa, pb, second_hi):
    g(f"v_lshlrev_b32 v68, 1, {vLANE}")
    g("v_mov_b32 v62, 0")
    g("v_mov_b32 v63, 0")
    g("s_mov_b32 exec_hi, 0")
    g(f"buffer_load_ushort v28, v68, {SB}, {sP[pa]} offen", tag="bias")
    g(f"buffer_load_ushort v62, v68, {SB}, {sP[pa]} offen offset:64", tag="bias")
    g(f"buffer_load_ushort {vBIAS2}, v68, {SB}, {sP[pb]} offen", tag="bias")
    if second_hi:
        g(f"buffer_load_ushort v63, v68, {SB}, {sP[pb]} offen offset:64", tag="bias")
    g("s_mov_b64 exec, -1")


def bias_fix():
    g.wait(vm="bias")
    g("v_lshl_or_b32 v28, v62, 16, v28")
    g(f"v_lshl_or_b32 {vBIAS2}, v63, 16, {vBIAS2}")


def chk_issue():
    g(f"v_lshlrev_b32 {vXD}, 2, {vLANE}")
    g(f"buffer_load_dword {vPR}, {vXD}, {SDBG}, 0 offen sc1", tag="chk")


def chk_verify(lab):
    g.wait(vm="chk")
    g(f"s_mov_b32 {sCNT}, 0")
    g.label(lab + "_l")
    g(f"v_cmp_eq_u32 vcc, 0x10001, {vPR}")
    g(f"s_add_u32 {sCNT}, {sCNT}, 1")
    g("s_cmp_eq_u64 vcc, -1")
    g(f"s_cbranch_scc1 {lab}")
    with g.optional():
        g("s_sleep 2")
        g(f"buffer_load_dword {vPR}, {vXD}, {SDBG}, 0 offen sc1")
        g("s_waitcnt vmcnt(0)")
        g(f"s_cmp_lt_u32 {sCNT}, {OPT['spin']}")
        g(f"s_cbranch_scc1 {lab}_l")
    g.label(lab)


def ident():
    a, b, c = "v40", "v41", "v42"
    g(f"v_mov_b32 {b}, 0x3f80")
    g(f"v_and_b32 {a}, 1, {vLANE}")
    g(f"v_lshlrev_b32 {a}, 4, {a}")
    g(f"v_lshlrev_b32 {a}, {a}, {b}")
    g(f"v_lshrrev_b32 {b}, 3, {vLANE}")
    g(f"v_xor_b32 {b}, {b}, {vLANE}")
    g(f"v_and_b32 {b}, 4, {b}")
    g(f"v_and_b32 {c}, 0x1a, {vLANE}")
    g(f"v_or_b32 {b}, {b}, {c}")
    for k, key in enumerate((0, 2, 8, 10)):
        g(f"v_cmp_eq_u32 vcc, {key}, {b}")
        g(f"v_cndmask_b32 v{IDENT+k}, 0, {a}, vcc")


def L_start():
    setup2()
    g(f"v_xor_b32 {vWB}, 64, {vWA}")
    g(f"s_cmp_eq_u32 {sISW1}, 0")
    g("s_cbranch_scc1 QL")


P0BARS = {0: dict(vm=["cp"]), 8: {}, 16: {}, 24: {}}


def W1L():
    bias_loads(0, 2, True)
    bias_fix()
    stamp(1)
    MP("T", P0BARS, xread=True, bias=True)
    stamp(2)
    chk_issue()
    set_wcol(2)
    g(f"s_mov_b32 {sST}, {sAp}")
    p2 = [dw(LA, c, i, f"p2_{c}") for c in range(8) for i in range(2)]
    u6 = [du(cc, i) for cc in range(4) for i in range(2)]
    sl = split(p2, [6, 6, 4]) + [u6]
    for q in range(4):
        if q == 3:
            chk_verify("W1L_chk")
            set_u6()
        g("s_barrier")
        EH(q, G0 + 4 * q, sl[q])
    stamp(3)
    g(f"v_mov_b32 v28, {vBIAS2}")
    if OPT["prio"]: g("s_setprio 1")
    def getG1():
        poll_take()
        ensure(0x1000)
        aload(G1, sAo, 0, 4, "g1_")()
    MP("T", {0: dict(vm=["p2_3"]), 16: dict(vm=["p2_7", "u6"])}, bias=True,
       ev={OPT["pubm"]: [publish(0)], 26: [poll_issue]})
    if OPT["prio"]: g("s_setprio 0")
    stamp(4)
    g(f"s_add_u32 {sST}, {sAp}, 0x2000")
    g("s_barrier")
    getG1()
    sl = split(D2A("O"), [3, 3, 2, 0])
    for q in range(4):
        if q == 3: g("s_barrier")
        EH(q, Z0 + 4 * q, sl[q])
    stamp(5)
    P2("W1L")


def QL():
    g(f"s_cmp_lg_u32 {sW}, 0")
    g("s_cbranch_scc1 QL_noclr")
    with g.optional():
        for i in range(4): g(f"v_mov_b32 v{32+i}, -1")
        g(f"s_lshl_b32 {sT}, {sRB}, 12")
        g(f"s_add_u32 {sT}, {sT}, {sKV}")
        g(f"buffer_store_dwordx4 v[28:31], {vL16}, {SWS}, {sL2} offen sc1")
        g("s_mov_b64 exec, 0xffff")
        g(f"buffer_store_dwordx4 v[28:31], {vL16}, {SWS}, {sL2} offen offset:1024 sc1")
        g("s_mov_b64 exec, -1")
        for k in range(4):
            g(f"buffer_store_dwordx4 v[32:35], {vL16}, {SWS}, {sT} offen offset:{k*1024} sc1")
        g(f"s_lshl_b32 {sT}, s2, 1")
        g("s_waitcnt vmcnt(0)")
        g("s_mov_b64 exec, 1")
        g(f"buffer_store_short {vONE}, off, {SDBG}, {sT} sc1")
        g("s_mov_b64 exec, -1")
    g.label("QL_noclr")
    stamp(1)
    MP("N", P0BARS, xread=True)
    stamp(2)
    chk_issue()
    set_wcol(2)
    p2 = [dw(LA, c, i, f"p2_{c}") for c in range(8) for i in range(2)]
    def tw2():
        g(f"s_lshl_b32 {sT}, {sPAR}, 3")
        g(f"s_add_u32 {sT}, {sT}, {sR8}")
        g(f"s_lshl_b32 {sT}, {sT}, 2")
        g(f"s_add_u32 {sT}, {sT}, {sRW}")
        g(f"s_mul_i32 {sT2}, {sT}, {7*1024}")
        g(f"s_mul_i32 {sT3}, {sKQ}, {448*1024}")
        g(f"s_add_u32 {sT2}, {sT2}, {sT3}")
        g(f"v_lshlrev_b32 v60, 7, {vLANE}")
        g("s_mov_b32 exec_hi, 0xffffff")
        g(f"buffer_load_dword v61, v60, {SW2}, {sT2} offen", tag="tw")
        g(f"s_lshl_b32 {sT2}, {sT}, 11")
        g(f"s_lshl_b32 {sT3}, {sKQ}, 17")
        g(f"s_add_u32 {sT2}, {sT2}, {sT3}")
        g("s_mov_b64 exec, 0xffff")
        g(f"buffer_load_dword v62, v60, {SWO}, {sT2} offen", tag="tw")
        g("s_mov_b64 exec, -1")
    sl = split(p2, [6, 6, 4]) + [[tw2] if OPT["tw2"] else []]
    g(f"s_lshl_b32 {sT}, {sRW}, 11")
    g(f"s_add_u32 {sT}, {sT}, {LC}")
    g(f"v_add_u32 v54, {sT}, {vL16}")
    for q in range(4):
        if q == 3: chk_verify("QL_chk")
        g("s_barrier")
        PH(q, 48, sl[q])
        g(f"ds_write_b128 v54, {vr(48)} offset:{(q>>1)*8192 + (q&1)*1024}", tag="pkw")
        if q < 3: g.wait(lg="pkw")
    stamp(3)
    MP("T", {0: dict(vm=["p2_7"], lg=["pkw"])}, ev={26: [poll_issue]})
    stamp(4)
    g("s_barrier")
    poll_take()
    ensure(0x1100)
    aload(G0, sAp, 0, 4, "g0_")()
    aload(G1, sAo, 0, 4, "g1_")()
    sl = split(D2A("O") + D2A("P2"), [4, 4, 4, 4])
    PQ = 176
    for q in range(4): PH(q, PQ + 4 * q, sl[q])
    g(f"v_add_u32 v32, {LC+16384}, {vL16}")
    g(f"v_lshlrev_b32 v33, 2, {vLANE}")
    g(f"s_lshl_b32 {sT}, {sRW}, 8")
    g(f"s_add_u32 {sT}, {sT}, {LC+16384+4096}")
    g(f"v_add_u32 v34, {sT}, v33")
    g(f"s_lshl_b32 {sT}, {sPAR}, 12")
    g(f"s_add_u32 {sST}, {sACT}, {sT}")
    g(f"s_add_u32 {sST}, {sST}, {28*1024}")
    g(f"s_lshl_b32 {sT}, {sPAR}, 8")
    g(f"s_add_u32 {sT3}, {sSCO}, {sT}")
    stamp(10)
    g("s_barrier")
    stamp(11)
    g(f"ds_read_b32 {vEL}, v34", tag="el")
    for hd in range(4): g(f"ds_read_b128 {vr(ACC+4*hd)}, v32 offset:{hd*1024}", tag=f"kv{hd}")
    for hd in range(4):
        g.wait(lg=f"kv{hd}")
        mfma(TACC + 16 * hd, vr(ACC + 4 * hd), vr(PQ + 4 * hd), 0)
    g(f"v_add_f32 {vSC}, 1.0, {vEL}")
    g(f"v_rcp_f32 {vSC}, {vSC}")
    for hd in range(4):
        t = TACC + 16 * hd
        g(f"v_add_f32 v{t+8}, {sEPS}, v{t+8}")
        g(f"v_rcp_f32 v{t+8}, v{t+8}")
        g(f"v_mul_f32 v{t+8}, {vEL}, v{t+8}")
        for i in range(8): g(f"v_mul_f32 v{t+i}, v{t+8}, v{t+i}")
        for i in range(4): g(f"v_cvt_pk_bf16_f32 v{Z0+4*hd+i}, v{t+2*i}, v{t+2*i+1}")
        g(f"buffer_store_dwordx4 {vr(Z0+4*hd)}, {vL16}, {SWS}, {sST} offen offset:{hd*1024} sc1", tag="st")
        if hd == 0: g(f"buffer_store_dword {vSC}, v33, {SWS}, {sT3} offen sc1", tag="st")
    stamp(5)
    P2("QL")


def gate_mfmas(q, first):
    for s in range(8 * q, 8 * q + 8):
        acc = 64 + 16 * (s & 3)
        mfma(acc, vr(TMP + 4 * (s >> 2)), vr(XR + 4 * s), 0 if (first and s < 8 * q + 4) else vr(acc, 16))


def S_P0():
    def chunk(q):
        for c in (2 * q, 2 * q + 1):
            for i in range(4): dx(c, i)()
            for i in range(2): dw(LA, c, i, f"w0_{c}")()
    chunk(0)
    setup2()
    g(f"s_cmp_eq_u32 {sISW1}, 0")
    g("s_cbranch_scc1 S_gl")
    with g.optional():
        bias_loads(1, 3, False)
        g("s_branch S_gld")
    g.label("S_gl")
    with g.optional():
        g(f"v_and_b32 v68, 3, {vLANE}")
        g("v_lshlrev_b32 v68, 5, v68")
        g(f"v_lshrrev_b32 v69, 5, {vLANE}")
        g("v_lshl_add_u32 v68, v69, 4, v68")
        g(f"s_lshl_b32 {sT}, {sROT}, 7")
        for c in range(8):
            g(f"s_xor_b32 {sT2}, {sT}, {c*128}")
            g(f"buffer_load_dwordx4 {vr(TMP+4*c)}, v68, {SG}, {sT2} offen")
    g.label("S_gld")
    g(f"v_add_u32 {vWA}, {LB}, {vWA}")
    g(f"v_xor_b32 {vWB}, 64, {vWA}")
    stamp(1)
    chunk(1)
    for q in range(4):
        g.wait(vm=[f"x{2*q}", f"x{2*q+1}", f"w0_{2*q}", f"w0_{2*q+1}"], lg="xr")
        g("s_barrier")
        xreads(q, lambda s: "xr")
        if q < 2: chunk(q + 2)
        if q == 2: set_wcol(1)
        if q >= 2:
            for c in range(4 * (q - 2), 4 * (q - 2) + 4):
                for i in range(2): dw(LB, c, i, f"p1_{c}")()
        if 1 <= q:
            g(f"s_cmp_lg_u32 {sISW1}, 0")
            g(f"s_cbranch_scc1 S_nog{q}")
            with g.optional():
                gate_mfmas(q - 1, q == 1)
            g.label(f"S_nog{q}")
    stamp(2)
    g(f"s_cmp_eq_u32 {sISW1}, 0")
    g("s_cbranch_scc1 QS")


P1BARS = {0: dict(vm=["p1_1"], lg=["xr"]), 8: dict(vm=["p1_3"]), 16: dict(vm=["p1_5"]), 24: dict(vm=["p1_7"])}


def W1S():
    g("v_lshl_or_b32 v28, v62, 16, v28")
    MP("T", P1BARS, bias=True)
    stamp(3)
    g(f"s_add_u32 {sST}, {sAp}, 0x1000")
    sl = split(D2A("GL") + D2A("GS"), [5, 5, 4, 2])
    for q in range(4):
        if q in (0, 2): g("s_barrier")
        EH(q, G0 + 4 * q, sl[q])
    stamp(4)
    g(f"v_mov_b32 v28, {vBIAS2}")
    g(f"v_add_u32 {vWA}, {LC-LB}, {vWA}")
    g(f"v_add_u32 {vWB}, {LC-LB}, {vWB}")
    ev = {-1: [lambda: g("s_barrier")], 2: [publish(1)], 9: [poll_issue]}
    for i, f in enumerate(D2A("P2")): ev.setdefault(i, []).append(f)
    def getG1():
        poll_take()
        ensure(0x2000)
        aload(G1, sAo, 0x1000, 4, "g1_")()
    MU6(ev)
    stamp(10)
    g(f"s_lshl_b32 {sT}, {sPAR}, 11")
    g(f"s_add_u32 {sST}, {sACT}, {sT}")
    g(f"s_add_u32 {sST}, {sST}, {12*1024}")
    g.wait(vm=["wGL", "wGS"])
    g("s_barrier")
    getG1()
    sl = split(D2A("U"), [2, 2])
    for q in range(2): EH(q, Z0 + 4 * q, sl[q])
    stamp(5)
    P2("W1S")


def QS():
    g("v_add_f32 v31, v64, v81")
    g("v_add_f32 v30, v98, v115")
    g("v_add_f32 v31, v31, v30")
    MP("N", P1BARS)
    stamp(3)
    g("s_setprio 2")
    g(f"s_lshl_b32 {sT}, {sRW}, 11")
    g(f"s_add_u32 {sT}, {sT}, {LC+16384}")
    g(f"v_add_u32 v54, {sT}, {vL16}")
    g(f"v_and_b32 v55, 47, {vLANE}")
    g(f"s_and_b32 {sT}, {sRW}, 1")
    g(f"s_lshl_b32 {sT}, {sT}, 8")
    g(f"s_lshr_b32 {sT2}, {sRW}, 1")
    g(f"s_lshl_b32 {sT2}, {sT2}, 13")
    g(f"s_add_u32 {sT}, {sT}, {sT2}")
    g(f"s_add_u32 {sT}, {sT}, {LC}")
    g(f"v_lshl_add_u32 v55, v55, 4, {sT}")
    for q in range(4):
        for i in range(4): g(f"v_cvt_pk_bf16_f32 v{TMP+4*q+i}, v{ACC+8*q+2*i}, v{ACC+8*q+2*i+1}")
        g(f"ds_write_b128 v54, {vr(TMP+4*q)} offset:{(q>>1)*8192 + (q&1)*1024}", tag="vw")
    for i in range(32): g(f"v_mov_b32 v{XR+32+i}, 0x3f803f80")
    g.wait(lg="vw")
    g("s_barrier")
    for k in range(8):
        g(f"ds_read_b128 {vr(XR+4*k)}, v55 offset:{k*1024}", tag=f"a{k}")
    g("s_mov_b32 exec_lo, 0xffff")
    g("s_mov_b32 exec_hi, 0xffff")
    g.wait(lg="a3")
    for k in range(8):
        g(f"ds_read_b128 {vr(XR+32+4*k)}, v55 offset:{16384+k*1024}", tag=f"b{k}")
    g("s_mov_b64 exec, -1")
    g(f"s_lshl_b32 {sT}, {sRB}, 12")
    g(f"s_add_u32 {sT}, {sT}, {sKV}")
    for k in range(8):
        g.wait(lg=[f"a{k}", f"b{k}"])
        mfma(192, vr(XR + 4 * k), vr(XR + 32 + 4 * k), vr(192, 16) if k else 0)
    for i in range(4): g(f"v_cvt_pk_bf16_f32 v{TMP+i}, v{192+2*i}, v{192+2*i+1}")
    g(f"buffer_store_dwordx4 {vr(TMP)}, {vL16}, {SWS}, {sT} offen sc1", tag="kvst")
    g("s_setprio 0")
    stamp(4)
    gl = D2A("GL") + D2A("GS")
    for s in range(24, 32):
        acc = 64 + 16 * (s & 3)
        mfma(acc, vr(TMP + 4 * (s >> 2)), vr(XR + 4 * s), 0 if s < 28 else vr(acc, 16))
        gl[s - 24]()
    ident()
    g("v_add_f32 v31, v31, v64")
    g("v_add_f32 v30, v81, v98")
    g("v_add_f32 v31, v31, v115")
    g("v_add_f32 v31, v31, v30")
    g(f"v_mul_f32 v31, {sLOG2E}, v31")
    g("v_min_f32 v31, 0x42640000, v31")
    g(f"v_exp_f32 {vEL}, v31")
    g(f"v_add_f32 {vSC}, 1.0, {vEL}")
    g(f"v_rcp_f32 {vSC}, {vSC}")
    g(f"s_add_u32 {sT3}, {sRW1K}, {LC+16384}")
    g(f"v_add_u32 v54, {sT3}, {vL16}")
    g(f"s_lshl_b32 {sT3}, {sRW}, 8")
    g(f"s_add_u32 {sT3}, {sT3}, {LC+16384+4096}")
    g(f"v_lshl_add_u32 v55, {vLANE}, 2, {sT3}")
    g.wait(vm="kvst")
    stamp(10)
    g("s_setprio 2")
    def kvloads(tag):
        g(f"s_mov_b32 {sT}, {sKV}")
        for r in range(16):
            g(f"buffer_load_dwordx4 {vr(XR+4*r)}, {vL16}, {SWS}, {sT} offen sc1", tag=tag and f"r{r}")
            if r < 15: g(f"s_add_u32 {sT}, {sT}, 4096")
    kvloads(True)
    for f in gl[8:]: f()
    g("s_barrier")
    for f in D2A("U"): f()
    poll_issue()
    g(f"ds_write_b32 v55, {vEL}", tag="kvw")
    g(f"s_mov_b32 {sCNT}, 0")
    g.label("QS_sum")
    for r in range(16):
        g.wait(vm=f"r{r}")
        mfma(ACC, vr(IDENT), vr(XR + 4 * r), vr(ACC, 16) if r else 0)
    g(f"v_cmp_u_f32 vcc, v{ACC}, v{ACC}")
    g(f"s_add_u32 {sCNT}, {sCNT}, 1")
    g("s_cmp_eq_u64 vcc, 0")
    g("s_cbranch_scc1 QS_ok")
    with g.optional():
        g(f"s_cmp_ge_u32 {sCNT}, {0 if OPT['nopoll'] else 400}")
        g("s_cbranch_scc1 QS_ok")
        kvloads(None)
        g("s_waitcnt vmcnt(0)")
        g("s_branch QS_sum")
    g.label("QS_ok")
    if STAMP: g(f"v_writelane_b32 {vSTAMP}, {sCNT}, 13")
    for i in range(4): g(f"v_cvt_pk_bf16_f32 v{TMP+i}, v{ACC+2*i}, v{ACC+2*i+1}")
    g(f"ds_write_b128 v54, {vr(TMP)}", tag="kvw")
    g.wait(vm=["wGL", "wGS"], lg="kvw")
    stamp(11)
    g("s_barrier")
    g("s_setprio 0")
    poll_take()
    ensure(0x2200)
    aload(G0, sAp, 0x1000, 4, "g0_")()
    aload(G1, sAo, 0x1000, 4, "g1_")()
    stamp(5)
    P2("QS")


def P2(role):
    cls = 0 if role[-1] == "L" else 1
    isq = role[0] == "Q"
    aA, aB, aC = ("v6", "v7"), ("v8", "v9"), ("v10", "v11")
    vXW, vXR, vOA, vFA = "v12", "v13", "v14", "v15"
    g(f"v_xor_b32 v6, 64, {vT0}")
    g(f"v_mov_b32 v7, {vT0}")
    g(f"v_add_u32 v8, {LB}, v6")
    g(f"v_add_u32 v9, {LB}, v7")
    g(f"v_add_u32 v10, {LC}, v6")
    g(f"v_add_u32 v11, {LC}, v7")
    def unit(reg, ar, off, tag, j0):
        return [(reg + 4 * s, ar, off + s * 2048, tag and f"{tag}{j0+s}") for s in range(2)]
    gb = cls * 32768
    own = {"W1L": ("g0_", "z0_", "z1_"), "W1S": ("g0_", "z0_"), "QL": ("z0_", "z1_"), "QS": ()}[role]
    tg = lambda t: None if t in own else t
    steps = unit(G0, aB, gb, tg("g0_"), 0) + unit(G0 + 8, aB, gb + 8192, tg("g0_"), 2) + \
        unit(G1, aB, gb + 16384, "g1_", 0) + unit(G1 + 8, aB, gb + 24576, "g1_", 2)
    u6o = lambda: (g(f"s_lshl_b32 {sT3}, {sPAR}, 11"), g(f"s_sub_u32 {sT3}, {sACT}, {sT3}"))
    u6p = lambda: (g(f"s_lshl_b32 {sT3}, {sPAR}, 11"), g(f"s_add_u32 {sT3}, {sACT}, {sT3}"))
    op_ = lambda: (g(f"s_lshl_b32 {sT3}, {sPAR}, 12"), g(f"s_add_u32 {sT3}, {sACT}, {sT3}"))
    oo_ = lambda: (g(f"s_lshl_b32 {sT3}, {sPAR}, 12"), g(f"s_sub_u32 {sT3}, {sACT}, {sT3}"))
    def scload(other):
        def f():
            g(f"s_lshl_b32 {sT3}, {sPAR}, 8")
            if other: g(f"s_xor_b32 {sT3}, {sT3}, 256")
            g(f"s_add_u32 {sT3}, {sT3}, {sSCO}")
            g(f"v_lshlrev_b32 {vXD}, 2, {vLANE}")
            g(f"buffer_load_dword {vSC}, {vXD}, {SWS}, {sT3} offen sc1", tag="sc")
        return f
    if role == "W1L":
        steps += unit(Z0, aA, 0, None, 0) + unit(Z1, aA, 8192, None, 0) + unit(Z2, aC, 8192, "z2_", 0) + \
            unit(OO, aA, 32768, "o_", 0) + unit(OO + 8, aA, 32768 + 8192, "o_", 2)
        late = [(0x8001, [u6o, aload(Z2, sT3, 14 * 1024, 2, "z2_"), op_, aload(OO, sT3, 28 * 1024, 4, "o_"), scload(0)])]
        kind = 2
    elif role == "QL":
        steps += unit(Z0, aA, 32768, None, 0) + unit(Z1, aA, 32768 + 8192, None, 0) + unit(Z2, aC, 8192, "z2_", 0) + \
            unit(OO, aA, 0, "o_", 0) + unit(OO + 8, aA, 8192, "o_", 2)
        late = [(0x8400, [u6o, aload(Z2, sT3, 14 * 1024, 2, "z2_"), aload(OO, sAp, 0x2000, 4, "o_")])]
        kind = 0
    else:
        steps += unit(Z0, aC, 0, tg("z0_"), 0) + unit(Z1, aA, 16384, "z1_", 0) + unit(Z2, aA, 16384 + 8192, "z2_", 0) + \
            unit(OO, aA, 49152, "o_", 0) + unit(OO + 8, aA, 49152 + 8192, "o_", 2)
        l = [aload(Z1, sAo, 0x2000, 2, "z1_"), aload(Z2, sAo, 0x2800, 2, "z2_"), oo_, aload(OO, sT3, 32 * 1024, 4, "o_")]
        if isq: late = [(0x4810, [u6p, aload(Z0, sT3, 12 * 1024, 2, "z0_")] + l)]
        else: late = [(0x4010, l + [scload(1)])]
        kind = None if isq else 3
    nt3 = OPT["t3"]
    order = []
    for p in range(6): order += [(p, t) for t in range(4)]
    order += [(6, 0), (6, 1), (7, 0), (7, 1), (6, 2), (6, 3), (7, 2), (7, 3)]
    for p in range(8, 18): order += [(p, t) for t in range(4)]
    defer = [(p, 3) for p in range(18 - nt3, 18)]
    order = [o for o in order if o not in defer] + defer
    N = len(order)
    nx = N - nt3
    firstA = min(i for i, (p, t) in enumerate(order) if p >= 8)
    assert all(not (p < 8 and t < 2) for (p, t) in order[firstA - D2:]), "B half0 must be dead at PB1"
    ev = {}
    def at(n, f): ev.setdefault(n, []).append(f)
    if kind is not None: at(OPT["npub"], publish(kind))
    at(OPT["np1"], poll_issue)
    def dolate():
        poll_take()
        stamp(6)
        for mask, fs in late:
            ensure(mask)
            for f in fs: f()
        stamp(7)
    at(OPT["np2"], dolate)
    def misc():
        if role != "QS": ident()
        g(f"s_lshl_b32 {sT}, {sW}, 13")
        g(f"v_add_u32 {vXW}, {sT}, {vL16}")
        g(f"v_xor_b32 {vXR}, 0x8000, {vXW}")
        g(f"v_and_b32 {vOA}, 31, {vLANE}")
        g(f"v_lshlrev_b32 {vOA}, 10, {vOA}")
        g(f"v_lshrrev_b32 v40, 5, {vLANE}")
        g(f"v_lshl_add_u32 {vOA}, v40, 4, {vOA}")
        g(f"v_sub_u32 {vFA}, 3, {vLANE}")
        g(f"v_lshlrev_b32 {vFA}, 12, {vFA}")
        g(f"v_xor_b32 {vFA}, {sFP}, {vFA}")
        g(f"v_lshl_add_u32 {vFA}, {vLANE}, 2, {vFA}")
        g(f"s_lshl_b32 {sT}, {sW}, 11")
        g(f"s_add_u32 {sT}, {sT}, {LC+16384}")
        g(f"v_add_u32 v3, {sT}, {vL16}")
        g(f"v_xor_b32 v4, 0x2000, v3")
        g(f"v_add_u32 v5, {LB}, {vXW}")
        g(f"v_add_u32 v21, {LB}, {vXR}")
    at(2, misc)

    NB2 = 8
    def trread(n):
        p, t = order[n]
        _, ar, off, _ = steps[p]
        b = WBUF + (n % NB2) * 4
        o = off + (t >> 1) * 4096
        g(f"ds_read_b64_tr_b16 {vr(b, 2)}, {ar[t & 1]} offset:{o}", tag=f"w{n}")
        g(f"ds_read_b64_tr_b16 {vr(b+2, 2)}, {ar[t & 1]} offset:{o+1024}", tag=f"w{n}")
    XB = ACC
    PR = 32
    def xsend012():
        for t, (a, o) in enumerate((("v5", 0), ("v5", 2048), ("v3", 0))):
            for i in range(2):
                g(f"ds_write_b128 {a}, {vr(TACC+16*t+8+4*i)} offset:{o+i*1024}", tag="xw")
    def xrecv012():
        g.wait(lg="xw")
        g("s_barrier")
        for t, (a, o) in enumerate((("v21", 0), ("v21", 2048), ("v4", 0))):
            for i in range(2):
                g(f"ds_read_b128 {vr(XB+8*t+4*i)}, {a} offset:{o+i*1024}", tag=f"xr{t}")
    def xfin(t):
        def f():
            g(f"s_xor_b32 {sT}, {sPART}, {(3-t) << 15:#x}")
            g.wait(lg=f"xr{t}")
            for i in range(8): g(f"v_add_f32 v{XB+8*t+i}, v{XB+8*t+i}, v{TACC+16*t+i}")
            for i in range(4): g(f"v_cvt_pk_bf16_f32 v{PR+4*t+i}, v{XB+8*t+2*i}, v{XB+8*t+2*i+1}")
            g(f"buffer_store_dwordx4 {vr(PR+4*t)}, {vL16}, {SWS}, {sT} offen offset:{t*1024} sc1", tag="pst")
        return f
    xs = [xsend012, xrecv012, xfin(0), xfin(1), xfin(2)]
    for i, f in enumerate(xs): at(min(nx + i, N - 1), f)
    seen = set()
    for n in range(D2): trread(n)
    for n in range(N):
        m = n + D2
        if m < N:
            if m == firstA:
                g.wait(vm=["wP2", "wO", "wU"])
                stamp(8)
                g("s_barrier")
            trread(m)
        p, t = order[n]
        breg, _, _, vt = steps[p]
        g.wait(vm=vt, lg=f"w{n}")
        acc = TACC + 16 * t
        mfma(acc, vr(WBUF + (n % NB2) * 4), vr(breg), vr(acc, 16) if t in seen else 0)
        seen.add(t)
        if n == nx - 1: stamp(9)
        for f in ev.get(n, []): f()
    T3 = TACC + 48
    for i in range(2):
        g(f"ds_write_b128 {vXW}, {vr(T3+8+4*i)} offset:{i*1024}", tag="xw")
    g(f"v_lshl_add_u32 {vPA}, {vLANE}, 2, {sFP}")
    g.wait(lg="xw")
    g("s_barrier")
    for i in range(2):
        g(f"ds_read_b128 {vr(XB+24+4*i)}, {vXR} offset:{i*1024}", tag="xr3")
    g.wait(vm="pst")
    g("s_mov_b64 exec, 7")
    g(f"buffer_store_dword {vONE}, {vFA}, {SWS}, 0 offen sc1", tag="pub")
    g("s_mov_b64 exec, -1")
    stamp(12)
    g.wait(vm="sc", lg="xr3")
    for i in range(8): g(f"v_mul_f32 v{XB+24+i}, {vSC}, v{XB+24+i}")
    g(f"s_mov_b32 {sHAVE}, 0")
    ensure(7)
    for t in range(3):
        g(f"buffer_load_dwordx4 {vr(PR+4*t)}, {vL16}, {SWS}, {sPART} offen offset:{t*1024} sc1", tag=f"pr{t}")
    if role != "QS": stamp(13)
    for t in range(3):
        g.wait(vm=f"pr{t}")
        mfma(T3, vr(IDENT), vr(PR + 4 * t), vr(T3, 16))
    for i in range(8): g(f"v_fmac_f32 v{XB+24+i}, {vSC}, v{T3+i}")
    for i in range(4): g(f"v_cvt_pk_bf16_f32 v{XB+i}, v{XB+24+2*i}, v{XB+24+2*i+1}")
    g(f"buffer_store_dwordx4 {vr(XB)}, {vOA}, {SOUT}, {sOUT} offen{' sc1' if OPT['osc'] else ''}")
    if STAMP:
        stamp(15)
        g("s_lshl_b32 s3, s2, 3")
        g(f"s_add_u32 s3, s3, {sW}")
        g("s_lshl_b32 s3, s3, 6")
        g(f"s_add_u32 s3, s3, {STP:#x}")
        g(f"v_lshlrev_b32 v9, 2, {vLANE}")
        g("s_mov_b64 exec, 0xffff")
        g(f"buffer_store_dword {vSTAMP}, v9, {SWS}, s3 offen")
    if role == "QL": g.label("END")
    g("s_endpgm")
    if role == "QL": g.label("CODE_END")


for role in ("W1L", "QL", "W1S", "QS"):
    g.start_trace(role)
    g.block(ENTRY, prologue)
    if role in ("W1L", "QL"):
        g.block("L_start", L_start, align=3)
    else:
        g.block("S_P0", S_P0)
    g.block(role, {"W1L": W1L, "QL": QL, "W1S": W1S, "QS": QS}[role], align=(3 if role[0] == "Q" else None))
g.hazards()
order = [ENTRY, "S_P0", "W1S", "QS", "SPIN", "L_start", "W1L", "QL"]
if OPT["nopoll"]: order.remove("SPIN")
assert sorted(order) == sorted(g.order), (g.order)

hdr = open("cdna_kernels/" + KN + ".s.ref").read().split("\n")
top = [l for l in hdr if l.startswith(";") and "@launch" not in l]
print("\n".join(top))
print("; @launch grid=(256,1,1) block=(512,1,1) lds=163840")
print('.amdgcn_target "amdgcn-amd-amdhsa--gfx950"\n.text')
print(f".globl {ENTRY}\n.p2align 8\n.type {ENTRY},@function")
print(g.text(order))
print(f""".section .rodata,"a"
.p2align 6
.amdhsa_kernel {ENTRY}
  .amdhsa_next_free_vgpr 256
  .amdhsa_next_free_sgpr 102
  .amdhsa_accum_offset 256
  .amdhsa_group_segment_fixed_size 0
  .amdhsa_kernarg_size 88
  .amdhsa_user_sgpr_count 2
  .amdhsa_user_sgpr_kernarg_segment_ptr 1
  .amdhsa_system_sgpr_workgroup_id_x 1
.end_amdhsa_kernel""")
print(f"; maxvm={g.maxvm}", file=sys.stderr)
for name, tr in g.traces:
    print(f"; trace {name}: barriers={sum(1 for o in tr if o.kind=='i' and o.mn=='s_barrier')} instrs={len(tr)}", file=sys.stderr)
```

```python
import sys
from fw import *

OPT = dict(stamp=0, D=6, BL=2, DP=3, D2=4, lim=20000, rot=1, tw=1, tlb=1, t3=10, sp=0, slp=1,
           ga=114, kvl=108, kpos=2, qga=100, dsp=2, osc=0, nochk=0,
           wgc=8, wgo=24, qgc=16, qgo=30, prl=0, pl=6)
for a in sys.argv[1:]:
    k, v = a.split("="); assert k in OPT, k; OPT[k] = int(v, 0)
STAMP = OPT["stamp"]
LIM = OPT["lim"] << 16 if STAMP else OPT["lim"]

LA, LB, LC = 0, 65536, 131072
PARTO, KVP, STP, FA, FK, FP = 640 * 1024, 0x1000000, 0x1080000, 0x10A0000, 0x10B0000, 0x10C0000
WS_SIZE = 0x1100000
SX, SW, SW2, SWO, SWS, SOUT, SB, SDBG = "s[32:35]", "s[36:39]", "s[40:43]", "s[44:47]", "s[48:51]", "s[52:55]", "s[56:59]", "s[60:63]"
sW, sRW, sRB, sCGI, sISW1, sSTR, sROT, sW1K, sXR, sCLS, sNON, sM = [f"s{64+i}" for i in range(12)]
sP = ["s76", "s77", "s78", "s79"]
sWC = [f"s{80+i}" for i in range(8)]
sT, sT2, sT3, sTB, sCNT, sKQ, sR8, sPAR, sTT, sLOG2E = [f"s{88+i}" for i in range(10)]
sTM = "s[98:99]"; sEPS = "s100"; sST = "s101"
sMK = "s[4:5]"
sAp, sAo, sRs, sRo, sRu, sRm, sRmu, sPART, sOUT, sKV, sFA, sPUB, sFP, sFK, sHAVE, sMASK = [f"s{8+i}" for i in range(16)]
sRET = "s[30:31]"
vWDB, vLANE, vXD, vWDa, vWDb, vW2D = "v0", "v1", "v2", "v3", "v4", "v5"
vX = ["v6", "v7", "v8", "v9"]
vWlo, vWhi, vU, vWOD, TG0, TG1, vL16, vCHK, vSTAMP, vBIAS2, vT0, vUD, vE0, vE1 = [f"v{10+i}" for i in range(14)]
vPR, vNON, vPA = "v0", "v2", "v4"
ACC0, ACC1, ACC2, ACC3, XR, TMP, TACC = 96, 112, 80, 48, 128, 32, 192

g = Gen()
retries = []


def vr(a, n=4):
    return f"v[{a}:{a+n-1}]"


def stamp(i):
    if not STAMP: return
    g(f"s_memtime {sTM}")
    g("s_waitcnt lgkmcnt(0)")
    g(f"v_writelane_b32 {vSTAMP}, s98, {i}")


def st(i):
    return lambda: stamp(i)


def mfma(d, a, b, c):
    g(f"v_mfma_f32_32x32x16_bf16 {vr(d,16)}, {a}, {b}, {c}")


def dx(c, i):
    def f():
        g(f"s_add_u32 m0, {sW1K}, {(c % 4) * 32768 + i * 8192:#x}")
        g(f"s_xor_b32 {sT2}, {sXR}, {c << 7 | i << 16:#x}")
        g(f"buffer_load_dwordx4 {vXD}, {SX}, {sT2} offen lds", tag=f"ck{c}")
    return f


def dw(lds, c, va, tag):
    def f():
        g(f"s_add_u32 m0, {sW1K}, {lds:#x}")
        g(f"buffer_load_dwordx4 {va}, {SW}, {sWC[c]} offen lds", tag=tag)
    return f


def CK(c):
    if c < 8:
        b = (c % 4) * 32768 + 16384
        return [dx(c, 0), dx(c, 1), dw(b, c, vWDa, f"ck{c}"), dw(b + 8192, c, vWDb, f"ck{c}")]
    l = [dw(LA + cc * 8192, cc, vWDa, f"ck{c}") for cc in range(4 * (c - 8), 4 * (c - 8) + 4)]
    if c == 8:
        f0 = l[0]
        l[0] = lambda: (g(f"v_add_u32 {vWDa}, {sP[2]}, {vWDB}"), f0())
    return l


def du(n):
    def f():
        g(f"s_xor_b32 {sT2}, {sROT}, {sCLS}")
        g(f"s_xor_b32 {sT2}, {sT2}, {2*n}")
        g(f"s_add_u32 m0, {sW1K}, {LC + n*8192:#x}")
        g(f"s_mul_i32 {sT2}, {sT2}, {3584*64}")
        g(f"buffer_load_dwordx4 {vUD}, {SW}, {sT2} offen lds", tag="u6")
    return f


def d2(area, n):
    i = 2 * n
    prel, pp = (i >> 2) & 1, (i >> 1) & 1
    if area == "U": prel, pp = n, 0
    def f():
        if area in ("G0", "G1", "P2"):
            base = {"G0": LB, "G1": LB + 32768, "P2": LA}[area]
            gofs = {"G0": 0, "G1": 1 << 16, "P2": 1 << 17}[area]
            g(f"s_xor_b32 m0, {sRm}, {base + (i << 12):#x}")
            g(f"s_xor_b32 {sT2}, {sRs}, {gofs | prel << 18 | pp << 15:#x}")
            g(f"buffer_load_dwordx4 {vW2D}, {SW2}, {sT2} offen lds", tag="w" + area)
        elif area == "O":
            g(f"s_xor_b32 m0, {sRm}, {LA + 32768 + (i << 12):#x}")
            g(f"s_xor_b32 {sT2}, {sRo}, {prel << 16 | pp << 15:#x}")
            g(f"buffer_load_dwordx4 {vWOD}, {SWO}, {sT2} offen lds", tag="wO")
        else:
            g(f"s_xor_b32 m0, {sRmu}, {LC + 16384 + (i << 12):#x}")
            g(f"s_xor_b32 {sT2}, {sRu}, {0x30000 | prel << 15:#x}")
            g(f"buffer_load_dwordx4 {vW2D}, {SW2}, {sT2} offen lds", tag="wU")
    return f


def D2A(area):
    return [d2(area, n) for n in range(2 if area == "U" else 4)]


def touch():
    g(f"s_lshr_b32 {sT}, s2, 3")
    g(f"s_lshl_b32 {sT}, {sT}, 3")
    g(f"s_add_u32 {sT}, {sT}, {sW}")
    g(f"s_mul_i32 {sT2}, {sT}, {14*128}")
    g(f"s_mul_i32 {sT3}, {sKQ}, {448*1024}")
    g(f"s_add_u32 {sT2}, {sT2}, {sT3}")
    g(f"v_lshlrev_b32 {vE0}, 7, {vLANE}")
    g("s_mov_b64 exec, 0x3fff")
    g(f"buffer_load_dword {vE1}, {vE0}, {SW2}, {sT2} offen", tag="tw")
    g(f"s_lshl_b32 {sT2}, {sT}, 9")
    g(f"s_lshl_b32 {sT3}, {sKQ}, 17")
    g(f"s_add_u32 {sT2}, {sT2}, {sT3}")
    g("s_mov_b64 exec, 15")
    g(f"buffer_load_dword {vE1}, {vE0}, {SWO}, {sT2} offen", tag="tw")
    g("s_mov_b64 exec, -1")


def publish(kind):
    def f():
        g("s_mov_b64 exec, 1")
        g(f"buffer_store_dword {vNON}, off, {SWS}, {sPUB} offset:{kind*4} sc1", tag="pub")
        g("s_mov_b64 exec, -1")
    return f


def SPIN():
    g("s_mov_b64 exec, 0xffff")
    g.label("SPIN_loop")
    g(f"buffer_load_dword {vPR}, {vPA}, {SWS}, 0 offen sc1")
    g("s_waitcnt vmcnt(0)")
    g(f"v_cmp_eq_u32 vcc, {sNON}, {vPR}")
    g(f"s_add_u32 {sCNT}, {sCNT}, {0x10000 if STAMP else 1}")
    g(f"s_mov_b32 {sHAVE}, vcc_lo")
    g(f"s_and_b32 {sT}, {sHAVE}, {sMASK}")
    g(f"s_cmp_eq_u32 {sT}, {sMASK}")
    g("s_cbranch_scc1 SPIN_done")
    if OPT["slp"]: g(f"s_sleep {OPT['slp']}")
    g(f"s_cmp_lt_u32 {sCNT}, {LIM:#x}")
    g("s_cbranch_scc1 SPIN_loop")
    g.label("SPIN_done")
    g("s_mov_b64 exec, -1")
    g(f"s_setpc_b64 {sRET}")


def poll_issue():
    g("s_mov_b64 exec, 0xffff")
    g(f"buffer_load_dword {vPR}, {vPA}, {SWS}, 0 offen sc1", tag="poll")
    g("s_mov_b64 exec, -1")


nlab = [0]
def take(mask, fresh=True):
    def f():
        nlab[0] += 1
        lab = f"EN{nlab[0]}"
        if fresh:
            g.wait(vm="poll")
            g(f"v_cmp_eq_u32 vcc, {sNON}, {vPR}")
            g(f"s_and_b32 {sHAVE}, vcc_lo, 0xffff")
        g(f"s_and_b32 {sT}, {sHAVE}, {mask:#x}")
        g(f"s_cmp_eq_u32 {sT}, {mask:#x}")
        g(f"s_cbranch_scc1 {lab}")
        with g.optional():
            g(f"s_mov_b32 {sMASK}, {mask:#x}")
            g(f"s_call_b64 {sRET}, SPIN")
            g.block("SPIN", SPIN, align=3)
        g.label(lab)
    return f


def fetch(it, pos, grp, mask, hi, step=1, pre=(), post=()):
    it[pos - OPT["pl"]].post += list(pre) + [poll_issue]
    it[pos].post += [take(mask)] + list(post)
    for i, f in enumerate(grp): it[min(pos + step * i, hi)].post.append(f)


class Grp:
    def __init__(s, name, frags):
        s.name = name; s.frags = frags

    def loads(s, tagged=True):
        out = []
        cur = [None]
        def one(i, reg, base, off):
            def f(first=True):
                hi = off & ~4095 if off >= 4096 else 0
                if hi: g(f"s_add_u32 {sT3}, {base}, {hi:#x}")
                g(f"buffer_load_dwordx4 {vr(reg)}, {vL16}, {SWS}, {sT3 if hi else base} offen offset:{off - hi} sc1",
                  tag=f"{s.name}{i}" if tagged else None)
            return f
        return [one(i, *fr) for i, fr in enumerate(s.frags)]

    def decode(s, waits=True):
        out = []
        for i, (reg, _, _) in enumerate(s.frags):
            if waits: out.append(lambda i=i: g.wait(vm=f"{s.name}{i}"))
            out.append(f"v_xor_b32 v{reg}, {TG0}, v{reg}")
            out.append(f"v_xor_b32 v{reg+1}, {TG1}, v{reg+1}")
            out.append(f"v_or_b32 {vCHK}, v{reg}, v{reg+1}" if i == 0 else f"v_or3_b32 {vCHK}, v{reg}, v{reg+1}, {vCHK}")
        out.append(f"v_and_b32 {vCHK}, {sTB}, {vCHK}")
        return out

    def check(s):
        def fin():
            if OPT["nochk"]: return
            g(f"v_cmp_ne_u32 vcc, 0, {vCHK}")
            g("s_cmp_lg_u64 vcc, 0")
            g(f"s_cbranch_scc1 RT_{s.name}")
            g.label(f"OK_{s.name}")
            retries.append(s)
        return s.decode() + [fin]

    def retry(s):
        g(f"s_add_u32 {sCNT}, {sCNT}, 1")
        g(f"s_and_b32 {sT}, {sCNT}, 0xffff")
        g(f"s_cmp_gt_u32 {sT}, {OPT['lim']}")
        g(f"s_cbranch_scc1 OK_{s.name}")
        if OPT["slp"]: g(f"s_sleep {OPT['slp']}")
        for f in s.loads(False): f()
        g("s_waitcnt vmcnt(0)")
        emit(s.decode(False))
        g(f"v_cmp_ne_u32 vcc, 0, {vCHK}")
        g("s_cmp_lg_u64 vcc, 0")
        g(f"s_cbranch_scc1 RT_{s.name}")
        g(f"s_branch OK_{s.name}")


def emit(lst):
    for x in lst:
        if isinstance(x, str): g(x)
        else: x()


def tstore(reg, base, off, keep=True, tag="st"):
    l = [f"v_and_or_b32 v{reg}, v{reg}, {sM}, {TG0}", f"v_and_or_b32 v{reg+1}, v{reg+1}, {sM}, {TG1}",
         lambda: g(f"buffer_store_dwordx4 {vr(reg)}, {vL16}, {SWS}, {base} offen offset:{off} sc1", tag=tag)]
    return l


def untag(reg):
    return [f"v_xor_b32 v{reg}, {TG0}, v{reg}", f"v_xor_b32 v{reg+1}, {TG1}, v{reg+1}"]


def EH(b, base, off, prev=None):
    h = [f"v{b+i}" for i in range(8)]
    e = [f"v{TMP+i}" for i in range(8)]
    u = [f"v{TMP+8+i}" for i in range(8)]
    ins = []
    for i in range(8): ins.append(f"v_mul_f32 {e[i]}, {sLOG2E}, {h[i]}")
    if prev is not None: ins += untag(prev)
    for i in range(8): ins.append(f"v_exp_f32 {e[i]}, {e[i]}")
    for i in range(8): ins.append(f"v_fma_f32 {u[i]}, {e[i]}, 0.5, 1.0")
    for i in range(8): ins.append(f"v_fma_f32 {u[i]}, -{e[i]}, {u[i]}, -1.0")
    for i in range(8): ins.append(f"v_rcp_f32 {u[i]}, {u[i]}")
    for i in range(8): ins.append(f"v_fmac_f32 {h[i]}, {h[i]}, {u[i]}")
    for i in range(4): ins.append(f"v_cvt_pk_bf16_f32 {h[i]}, {h[2*i]}, {h[2*i+1]}")
    return ins + tstore(b, base, off)


def PH(b):
    h = [f"v{b+i}" for i in range(8)]
    e = [f"v{TMP+i}" for i in range(8)]
    ins = []
    for i in range(8): ins.append(f"v_mul_f32 {e[i]}, {sLOG2E}, {h[i]}")
    for i in range(8): ins.append(f"v_exp_f32_e64 {e[i]}, {e[i]} clamp")
    for i in range(8): ins.append(f"v_max_f32 {h[i]}, {sEPS}, {h[i]}")
    for i in range(8): ins.append(f"v_add_f32 {h[i]}, {e[i]}, {h[i]}")
    for i in range(4): ins.append(f"v_cvt_pk_bf16_f32 {h[i]}, {h[2*i]}, {h[2*i+1]}")
    return ins


def cost(x):
    if not isinstance(x, str): return 4
    return 8 if x.startswith(("v_exp", "v_rcp")) else 4


def merge(main, side):
    tot = sum(cost(x) for x in main); n = len(side); k = 0; acc = 0; out = []
    for x in main:
        while k < n and acc >= tot * k / n:
            out.append(side[k]); k += 1
        out.append(x); acc += cost(x)
    return out + side[k:]


class Item:
    def __init__(s, addr, imm, second, buf, acc, other, orient="T", zero=False, D=3, lg=(), vm=()):
        s.addr, s.imm, s.second, s.buf, s.acc, s.other, s.orient, s.zero, s.D = addr, imm, second, buf, acc, other, orient, zero, D
        s.lg, s.vm = list(lg), list(vm)
        s.bar = None
        s.rvm = []
        s.post = []


def spread(items, lo, hi, fill):
    tot = sum(cost(x) for x in fill); n = hi - lo; acc = 0
    for x in fill:
        k = min(n - 1, int(acc * n / tot)) if tot else 0
        items[lo + k].post.append(x); acc += cost(x)


def run(items):
    N = len(items); nxt = 0
    prev = {}
    for m, it in enumerate(items):
        it.prev = max([p for b, p in prev.items() if b == it.buf], default=-1)
        prev[it.buf] = m
    for n in range(N):
        while nxt < N and nxt <= n + items[nxt].D and items[nxt].prev < n:
            it = items[nxt]
            if it.bar is not None:
                if nxt - n > it.bar.get("lead", 0): break
                emit(it.bar.get("before", []))
                g.wait(vm=it.bar.get("vm"), lg=it.bar.get("lg"))
                emit(it.bar.get("at", []))
                g("s_barrier")
                it.bar_at = n
                emit(it.bar.get("after", []))
                it.bar = None
            if it.rvm: g.wait(vm=it.rvm)
            if it.second is None:
                g(f"ds_read_b128 {vr(it.buf)}, {it.addr} offset:{it.imm}", tag=f"w{nxt}")
            else:
                g(f"ds_read_b64_tr_b16 {vr(it.buf, 2)}, {it.addr} offset:{it.imm}", tag=f"w{nxt}")
                g(f"ds_read_b64_tr_b16 {vr(it.buf+2, 2)}, {it.addr} offset:{it.imm + it.second}", tag=f"w{nxt}")
            nxt += 1
        assert nxt > n
        it = items[n]
        g.wait(vm=it.vm or None, lg=[f"w{n}"] + it.lg)
        c = 0 if it.zero else vr(it.acc, 16)
        if it.orient == "T": mfma(it.acc, vr(it.buf), vr(it.other), c)
        else: mfma(it.acc, vr(it.other), vr(it.buf), c)
        emit(it.post)


ENTRY = KN + "_kernel"
def prologue():
    if STAMP:
        g(f"s_memtime {sTM}")
        g("s_memrealtime s[6:7]")
    g(f"""
    s_cmp_ge_u32 s2, 256
    s_cbranch_scc1 END
    s_load_dwordx16 s[8:23], s[0:1], 0
    s_load_dwordx4 s[24:27], s[0:1], 64
    s_load_dwordx2 s[28:29], s[0:1], 80
    s_getpc_b64 s[30:31]
    s_and_b32 {sT}, s2, 0xf8
    v_lshrrev_b32 v64, 6, v0
    v_add_u32 v65, {sT}, v64
    v_lshlrev_b32 v65, 7, v65
    v_min_u32 v65, CODE_END-{ENTRY}-256, v65
    s_mov_b64 exec, 1
    """)
    g("global_load_dword v255, v65, s[30:31]", tag="cp")
    g(f"""
    s_mov_b64 exec, -1
    v_and_b32 {vLANE}, 63, v0
    v_readfirstlane_b32 {sW}, v64
    s_lshr_b32 {sTT}, s2, 6        ; t
    s_bfe_u32 {sR8}, s2, 0x30003
    s_and_b32 {sRB}, s2, 1
    s_lshl_b32 {sRB}, {sRB}, 3
    s_or_b32 {sRB}, {sRB}, {sR8}
    s_bfe_u32 {sKQ}, s2, 0x20001
    s_lshr_b32 {sISW1}, {sTT}, 1
    s_and_b32 {sPAR}, {sTT}, 1
    s_lshl_b32 {sCGI}, {sKQ}, 1
    s_or_b32 {sCGI}, {sCGI}, {sPAR}
    s_lshl_b32 {sROT}, {sTT}, 1
    s_xor_b32 {sROT}, {sROT}, {sR8}
    """)
    if not OPT["rot"]: g(f"s_mov_b32 {sROT}, 0")
    g(f"""
    s_and_b32 {sRW}, {sW}, 3
    s_lshr_b32 {sCLS}, {sW}, 2
    s_lshl_b32 {sW1K}, {sW}, 10
    s_lshl_b32 {sSTR}, {sISW1}, 9
    s_add_u32 {sSTR}, {sSTR}, 3072
    s_lshl_b32 {sXR}, {sRB}, 17
    s_lshl_b32 {sT}, {sROT}, 7
    s_or_b32 {sXR}, {sXR}, {sT}
    v_lshrrev_b32 v64, 3, v0               ; w*8+l3
    v_and_b32 v65, 7, v0                   ; pos
    v_bfe_u32 v67, v0, 4, 3                ; (row>>1)&7
    v_xor_b32 v67, v67, v65
    v_lshlrev_b32 v67, 4, v67
    v_lshl_add_u32 {vXD}, v64, 10, v67
    v_bfe_u32 v67, v0, 4, 1
    v_lshlrev_b32 v67, 2, v67
    v_xor_b32 v67, v67, v65                ; pw
    v_lshlrev_b32 v68, 4, v67
    v_mul_lo_u32 v69, v64, {sSTR}
    v_add_u32 {vWDB}, v69, v68
    s_mul_i32 {sP[3]}, {sCGI}, 448
    s_lshl_b32 {sT2}, {sPAR}, 6
    s_add_u32 {sP[0]}, {sP[3]}, {sT2}
    s_add_u32 {sP[1]}, {sP[0]}, 128
    s_add_u32 {sP[2]}, {sP[0]}, 256
    s_cmp_eq_u32 {sPAR}, 0
    s_cselect_b32 {sT2}, 384, 0
    s_add_u32 {sP[3]}, {sP[3]}, {sT2}
    s_cmp_eq_u32 {sISW1}, 1
    s_cbranch_scc1 PRO_w1
    s_lshl_b32 {sP[2]}, {sCGI}, 7
    s_add_u32 {sP[0]}, {sP[2]}, 1024
    s_add_u32 {sP[1]}, {sP[2]}, 2048
    """)
    g.label("PRO_w1")
    g(f"s_lshl_b32 {sT}, {sSTR}, 6")
    for c in range(8):
        g(f"s_xor_b32 {sWC[c]}, {sROT}, {c}")
        g(f"s_mul_i32 {sWC[c]}, {sWC[c]}, {sT}")
    g(f"""
    v_add_u32 {vWDa}, {sP[0]}, {vWDB}
    v_add_u32 {vWDb}, {sP[1]}, {vWDB}
    s_mov_b32 s34, 0x200000
    s_mov_b32 s35, 0x20000
    s_mov_b32 s39, 0x20000
    s_lshl_b32 s38, {sSTR}, 9
    s_mul_i32 s58, {sISW1}, 2560
    s_add_u32 s58, s58, 1024
    s_mov_b32 s59, 0x20000
    s_cmp_eq_u32 {sISW1}, 1
    s_waitcnt lgkmcnt(0)
    s_mov_b32 s32, s8
    s_cselect_b32 s36, s16, s10
    s_cselect_b32 s37, s17, s11
    s_cselect_b32 s56, s18, s22
    s_cselect_b32 s57, s19, s23
    s_and_b32 s33, s9, 0xffff
    s_and_b32 s37, s37, 0xffff
    s_and_b32 s57, s57, 0xffff
    """)
    c0, c1 = CK(0), CK(1)
    emit(c0 + c1[:2])
    setup2()
    emit(c1[2:])
    g(f"s_cmp_eq_u32 {sISW1}, 0")
    g("s_cbranch_scc1 QQ")


def setup2():
    if STAMP:
        g(f"v_mov_b32 {vSTAMP}, 0")
        g(f"v_writelane_b32 {vSTAMP}, s98, 0")
        g(f"v_writelane_b32 {vSTAMP}, s6, 14")
    g(f"""
    s_mov_b32 s60, s26
    s_and_b32 s61, s27, 0xffff
    s_mov_b32 s62, 256
    s_mov_b32 s63, 0x20000
    s_or_b32 {sT}, s2, {sW}
    s_cbranch_scc1 S2_non
    """)
    with g.optional():
        g(f"""
        s_memrealtime s[4:5]
        s_waitcnt lgkmcnt(0)
        s_mul_i32 {sT}, s4, 0x9e3779b1
        s_or_b32 {sT}, {sT}, 1
        v_mov_b32 v66, {sT}
        s_mov_b64 exec, 1
        buffer_store_dword v66, off, {SDBG}, 0 sc1
        s_mov_b64 exec, -1
        """)
    g.label("S2_non")
    g(f"""
    s_mov_b32 s40, s20
    s_and_b32 s41, s21, 0xffff
    s_mov_b32 s42, 0x1c0000
    s_mov_b32 s43, 0x20000
    s_mov_b32 s44, s12
    s_and_b32 s45, s13, 0xffff
    s_mov_b32 s46, 0x80000
    s_mov_b32 s47, 0x20000
    s_mov_b32 s48, s28
    s_and_b32 s49, s29, 0xffff
    s_mov_b32 s50, {WS_SIZE:#x}
    s_mov_b32 s51, 0x20000
    s_mov_b32 s52, s24
    s_and_b32 s53, s25, 0xffff
    s_mov_b32 s54, 0x200000
    s_mov_b32 s55, 0x20000
    s_mov_b32 {sLOG2E}, 0x3fb8aa3b
    s_mov_b32 {sEPS}, 0x358637bd
    s_mov_b32 {sM}, 0xfffefffe
    s_mov_b32 {sTB}, 0x10001
    s_mov_b32 {sCNT}, 0
    v_and_b32 v64, 31, v64                 ; rw*8+l3
    v_lshl_add_u32 {vW2D}, v64, 10, v68
    v_lshrrev_b32 v69, 2, v67
    v_lshl_add_u32 v69, v69, 5, v64
    v_mul_lo_u32 v69, v69, {sSTR}
    v_and_b32 v70, 3, v67
    v_lshl_add_u32 v69, v70, 4, v69
    v_add_u32 {vUD}, {sP[3]}, v69
    s_lshl_b32 {sT}, {sTT}, 8
    s_lshl_b32 {sT2}, {sKQ}, 17
    s_add_u32 {sT2}, {sT2}, {sT}
    v_add_u32 {vWOD}, {sT2}, {vW2D}
    s_mul_i32 {sT2}, {sKQ}, {448*1024}
    s_add_u32 {sT2}, {sT2}, {sT}
    v_add_u32 {vW2D}, {sT2}, {vW2D}
    v_and_b32 v64, 31, {vLANE}             ; row
    v_lshrrev_b32 v65, 5, {vLANE}          ; h
    v_bfe_u32 v66, {vLANE}, 1, 3           ; m
    v_xor_b32 v66, v66, v65                ; h ^ m
    s_lshl_b32 {sT}, {sCLS}, 2
    v_xor_b32 v66, {sT}, v66
    s_lshl_b32 {sT}, {sRW}, 12
    v_lshl_add_u32 v67, v64, 7, {sT}
    """)
    for sp in range(4):
        g(f"v_xor_b32 v68, {2*sp}, v66")
        g(f"v_lshl_add_u32 {vX[sp]}, v68, 4, v67")
    g(f"""
    v_bfe_u32 v68, {vLANE}, 2, 2           ; r
    v_lshlrev_b32 v69, 7, v68
    v_bfe_u32 v68, {vLANE}, 3, 1
    v_lshl_add_u32 v69, v68, 6, v69
    v_bfe_u32 v68, {vLANE}, 4, 1
    v_lshl_add_u32 {vT0}, v68, 5, v69
    v_and_b32 v68, 3, {vLANE}
    v_lshl_add_u32 v69, v68, 3, {vT0}
    v_lshl_add_u32 v69, v65, 10, v69
    s_mul_i32 {sT}, {sCLS}, {4096+64}
    v_xor_b32 {vWlo}, {sT}, v69
    v_xor_b32 {vWhi}, 0x1000, {vWlo}
    s_mul_i32 {sT}, {sCLS}, {64+32}
    s_add_u32 {sT}, {sT}, {LC}
    v_xor_b32 {vU}, {sT}, v69
    v_lshl_add_u32 {vT0}, v65, 9, {vT0}
    v_and_b32 v68, 1, {vLANE}
    v_lshl_add_u32 {vT0}, v68, 4, {vT0}
    v_bfe_u32 v68, {vLANE}, 1, 1
    v_lshl_add_u32 {vT0}, v68, 3, {vT0}
    s_and_b32 {sT}, {sKQ}, 1
    s_lshl_b32 {sT}, {sT}, 6
    s_lshl_b32 {sT2}, {sCLS}, 5
    s_or_b32 {sT}, {sT}, {sT2}
    v_xor_b32 {vT0}, {sT}, {vT0}
    v_lshlrev_b32 {vL16}, 4, {vLANE}
    s_xor_b32 {sT3}, {sR8}, {sCLS}
    s_lshr_b32 {sT}, {sKQ}, 1
    s_xor_b32 {sT}, {sT}, {sT3}
    s_xor_b32 {sT}, {sT}, 1
    s_and_b32 {sT}, {sT}, 1
    s_lshl_b32 {sT}, {sT}, 7               ; (b0^ho)<<7
    s_and_b32 {sT2}, {sR8}, 2
    s_lshl_b32 {sT2}, {sT2}, 14            ; b1<<15
    s_or_b32 {sRs}, {sT}, {sT2}
    s_lshl_b32 {sT2}, {sPAR}, 15
    s_xor_b32 {sRu}, {sRs}, {sT2}
    s_lshr_b32 {sT}, {sR8}, 2
    s_xor_b32 {sT}, {sT}, {sPAR}
    s_lshl_b32 {sT2}, {sT}, 16
    s_or_b32 {sRo}, {sRs}, {sT2}
    s_lshl_b32 {sT2}, {sT}, 18
    s_or_b32 {sRs}, {sRs}, {sT2}
    s_lshl_b32 {sT}, {sT3}, 12
    s_lshl_b32 {sT2}, {sRW}, 10
    s_or_b32 {sRm}, {sT}, {sT2}
    s_and_b32 {sRmu}, {sRm}, 0x3fff
    s_lshl_b32 {sT}, {sRW}, 2
    s_add_u32 {sT}, {sT}, {sKQ}
    s_lshl_b32 {sT}, {sT}, 2
    s_add_u32 {sT}, {sT}, {sCLS}
    s_lshl_b32 {sT2}, {sPAR}, 1
    s_add_u32 {sAp}, {sT}, {sT2}
    s_xor_b32 {sAo}, {sAp}, 2
    s_mul_i32 {sAp}, {sAp}, 10240
    s_mul_i32 {sAo}, {sAo}, 10240
    s_lshl_b32 {sT3}, {sRB}, 20
    s_add_u32 {sAp}, {sAp}, {sT3}
    s_add_u32 {sAo}, {sAo}, {sT3}
    s_lshl_b32 {sT}, {sTT}, 3
    s_add_u32 {sT}, {sT}, {sW}
    s_mul_i32 {sT}, {sT}, 12288
    s_lshl_b32 {sT2}, {sKQ}, 10
    s_add_u32 {sT}, {sT}, {sT2}
    s_add_u32 {sT}, {sT}, {sT3}
    s_add_u32 {sPART}, {sT}, {PARTO:#x}
    ; out
    s_lshl_b32 {sT}, {sRB}, 2
    s_add_u32 {sT}, {sT}, {sRW}
    s_lshl_b32 {sOUT}, {sT}, 15
    s_lshl_b32 {sT}, {sTT}, 8
    s_add_u32 {sOUT}, {sOUT}, {sT}
    s_lshl_b32 {sT}, {sKQ}, 6
    s_add_u32 {sOUT}, {sOUT}, {sT}
    s_lshl_b32 {sT}, {sCLS}, 5
    s_add_u32 {sOUT}, {sOUT}, {sT}
    s_lshl_b32 {sT}, {sRB}, 2
    s_add_u32 {sT2}, {sT}, {sRW}
    s_lshl_b32 {sT2}, {sT2}, 2
    s_add_u32 {sT2}, {sT2}, {sKQ}
    s_lshl_b32 {sT2}, {sT2}, 1
    s_add_u32 {sT2}, {sT2}, {sCLS}
    s_lshl_b32 {sT2}, {sT2}, 7
    s_add_u32 {sFA}, {sT2}, {FA:#x}
    s_lshl_b32 {sT2}, {sTT}, 4
    s_add_u32 {sPUB}, {sFA}, {sT2}
    s_add_u32 {sT}, {sT}, {sTT}
    s_lshl_b32 {sT}, {sT}, 3
    s_add_u32 {sT}, {sT}, {sW}
    s_lshl_b32 {sT}, {sT}, 2
    s_add_u32 {sT}, {sT}, {sKQ}
    s_lshl_b32 {sT}, {sT}, 7
    s_add_u32 {sFP}, {sT}, {FP:#x}
    s_lshl_b32 {sFK}, {sCGI}, 9
    s_add_u32 {sFK}, {sFK}, {FK:#x}
    s_lshl_b32 {sKV}, {sCGI}, 16
    s_add_u32 {sKV}, {sKV}, {KVP:#x}
    """)
    if OPT["tlb"]:
        g(f"s_cmp_lg_u32 {sW}, 7")
        g("s_cbranch_scc1 S2_tlb")
        with g.optional():
            g(f"s_mul_i32 {sT2}, {sKQ}, {448*1024}")
            g("s_mov_b64 exec, 1")
            g(f"buffer_load_dword v254, off, {SWS}, {sPART}")
            g(f"buffer_load_dword v254, off, {SWS}, {sKV}")
            g(f"buffer_load_dword v254, off, {SOUT}, {sOUT}")
            g(f"buffer_load_dword v254, off, {SW2}, {sT2}")
            g(f"buffer_load_dword v254, off, {SWO}, 0")
            g(f"buffer_load_dword v254, off, {SB}, 0")
            g("s_mov_b64 exec, -1")
        g.label("S2_tlb")
    if OPT["sp"]:
        g(f"s_cmp_eq_u32 {sCLS}, 0")
        g("s_cbranch_scc1 S2_sp")
        g(f"s_setprio {OPT['sp']}")
        g.label("S2_sp")


def nonce(lab):
    def f():
        g("s_waitcnt lgkmcnt(0)")
        g(f"s_cmp_eq_u32 {sNON}, 0")
        g(f"s_cbranch_scc1 RT_{lab}")
        g.label(f"OK_{lab}")
        class R:
            name = lab
            @staticmethod
            def retry():
                g(f"s_add_u32 {sCNT}, {sCNT}, 1")
                g(f"s_cmp_gt_u32 {sCNT}, {OPT['lim']}")
                g(f"s_cbranch_scc1 OK_{lab}")
                g(f"buffer_load_dword {TG0}, off, {SDBG}, 0 sc1")
                g("s_waitcnt vmcnt(0)")
                g(f"v_readfirstlane_b32 {sNON}, {TG0}")
                g(f"s_cmp_eq_u32 {sNON}, 0")
                g(f"s_cbranch_scc1 RT_{lab}")
                g(f"s_branch OK_{lab}")
        retries.append(R)
        g(f"v_and_b32 {TG1}, 7, {vLANE}")
        g(f"v_lshrrev_b32_e64 {TG0}, {TG1}, {sNON}")
        g(f"v_lshrrev_b32 {TG1}, 8, {TG0}")
        g(f"v_and_b32 {TG0}, {sTB}, {TG0}")
        g(f"v_and_b32 {TG1}, {sTB}, {TG1}")
        g(f"v_mov_b32 {vNON}, {sNON}")
    return f


def setFA():
    return [f"s_lshl_b32 {sT}, {sPAR}, 2", f"v_xor_b32 {vPA}, {sT}, {vLANE}", f"v_lshl_add_u32 {vPA}, {vPA}, 2, {sFA}"]


def ident(I):
    a, b, c = vE0, vE1, vCHK
    l = [f"v_mov_b32 {b}, 0x3f80",
         f"v_and_b32 {a}, 1, {vLANE}",
         f"v_lshlrev_b32 {a}, 4, {a}",
         f"v_lshlrev_b32 {a}, {a}, {b}",
         f"v_lshrrev_b32 {b}, 3, {vLANE}",
         f"v_xor_b32 {b}, {b}, {vLANE}",
         f"v_and_b32 {b}, 4, {b}",
         f"v_and_b32 {c}, 0x1a, {vLANE}",
         f"v_or_b32 {b}, {b}, {c}"]
    def f():
        emit(l)
        for k, key in enumerate((0, 2, 8, 10)):
            g(f"v_cmp_eq_u32 vcc, {key}, {b}")
            g(f"v_cndmask_b32 v{I+k}, 0, {a}, vcc")
    return f


def toggle(withx=True):
    l = [f"v_xor_b32 {r}, 0x10000, {r}" for r in (vX if withx else []) + [vWlo, vWhi]]
    return l


def phase1(orient):
    it = []
    for n in range(64):
        s = n >> 1; c = s >> 2; sp = s & 3; u = n & 1
        it.append(Item(vWlo if sp < 2 else vWhi, (c & 1) * 32768 + 16384 + u * 8192 + (sp & 1) * 2048, 512,
                       64 + 4 * (n % 8), (ACC0, ACC1)[u], XR + 4 * s, orient, zero=(s == 0), D=OPT["D"], lg=[f"xr{s}"]))
    for c in range(8):
        def xr(c=c):
            for sp in range(4):
                g(f"ds_read_b128 {vr(XR+16*c+4*sp)}, {vX[sp]} offset:{(c & 1) * 32768}", tag=f"xr{4*c+sp}")
        nx = CK(c + 2)
        k = OPT["dsp"]
        it[8 * c].bar = dict(vm=[f"ck{c}"], lead=OPT["BL"],
                             after=(toggle() if c in (2, 4, 6) else []) + [xr] + nx[:k] + ([st(1)] if c == 0 else []))
        for j, f in enumerate(nx[k:]): it[8 * c + 1 + 2 * j].post.append(f)
    for s in range(32):
        c = s >> 2; sp = s & 3
        it.append(Item(vWlo if sp < 2 else vWhi, c * 8192 + (sp & 1) * 2048, 512, 64 + 4 * (s % 4), ACC2, XR + 4 * s,
                       zero=(s == 0), D=OPT["DP"]))
    it[40].post.append(f"s_load_dword {sNON}, s[26:27], 0")
    if OPT["tw"]: it[OPT["tw"] if OPT["tw"] > 1 else 54].post.append(touch)
    it[63].post.append(st(2))
    it[95].post.append(st(4))
    return it


def p2items(steps, bufs, nb):
    nt3 = OPT["t3"]
    order = []
    for p in range(18): order += [(p, t) for t in range(4)]
    defer = [(p, 3) for p in range(18 - nt3, 18)]
    order = [o for o in order if o not in defer] + defer
    seen = set(); it = []
    for n, (p, t) in enumerate(order):
        breg, ar, off = steps[p]
        it.append(Item(ar[t & 1], off + (t >> 1) * 4096, 1024, bufs[n % len(bufs)], TACC + 16 * t, breg,
                       zero=(t not in seen), D=OPT["D2"]))
        seen.add(t)
    first = {p: min(i for i, (q, _) in enumerate(order) if q == p) for p in range(18)}
    return it, order, len(order) - nt3, first


aA, aB, aC = ("v6", "v7"), ("v8", "v9"), ("v10", "v11")
vXW, vXRd, vOA, vFA = "v12", "v24", "v25", "v27"


def p2addr():
    return [f"s_lshl_b32 {sT}, {sCLS}, 13",
            f"v_add_u32 v7, {sT}, {vT0}",
            "v_xor_b32 v6, 64, v7",
            f"v_add_u32 v8, {LB}, v6",
            f"v_add_u32 v9, {LB}, v7",
            f"s_lshl_b32 {sT}, {sCLS}, 11",
            f"s_add_u32 {sT}, {sT}, {LC+16384}",
            f"v_add_u32 v11, {sT}, {vT0}",
            "v_xor_b32 v10, 64, v11"]


def p2misc():
    g(f"s_lshl_b32 {sT}, {sW}, 13")
    g(f"v_add_u32 {vXW}, {sT}, {vL16}")
    g(f"v_xor_b32 {vXRd}, 0x8000, {vXW}")
    g(f"v_and_b32 {vOA}, 31, {vLANE}")
    g(f"v_lshlrev_b32 {vOA}, 10, {vOA}")
    g(f"v_lshrrev_b32 v3, 5, {vLANE}")
    g(f"v_lshl_add_u32 {vOA}, v3, 4, {vOA}")
    g(f"s_lshl_b32 {sT}, {sW}, 11")
    g(f"s_add_u32 {sT}, {sT}, {LC}")
    g(f"v_add_u32 v3, {sT}, {vL16}")
    g(f"v_xor_b32 v26, 0x2000, v3")
    g(f"v_sub_u32 {vFA}, 3, {vLANE}")
    g(f"v_lshlrev_b32 {vFA}, 7, {vFA}")
    g(f"v_xor_b32 {vFA}, {sFP}, {vFA}")
    g(f"v_lshl_add_u32 {vFA}, {vLANE}, 2, {vFA}")
    g(f"v_add_u32 v19, {LB}, {vXW}")
    g(f"v_add_u32 v21, {LB}, {vXRd}")


def p2tail(role, it, base, nx, XB, IDENT, vSC):
    PR = 52
    N = len(it) - base
    def xsend012():
        for t, (a, o) in enumerate((("v19", 0), ("v19", 2048), ("v3", 0))):
            for i in range(2):
                g(f"ds_write_b128 {a}, {vr(TACC+16*t+8+4*i)} offset:{o+i*1024}", tag="xw")
    def xrecv012():
        g.wait(lg="xw")
        g("s_barrier")
        for t, (a, o) in enumerate((("v21", 0), ("v21", 2048), ("v26", 0))):
            for i in range(2):
                g(f"ds_read_b128 {vr(XB[t]+4*i)}, {a} offset:{o+i*1024}", tag=f"xr{t}")
    def xfin(t):
        def f():
            g(f"s_xor_b32 {sT}, {sPART}, {(3-t) << 10:#x}")
            if t: g(f"s_add_u32 {sT}, {sT}, {t*4096}")
            g.wait(lg=f"xr{t}")
            for i in range(8): g(f"v_add_f32 v{XB[t]+i}, v{XB[t]+i}, v{TACC+16*t+i}")
            for i in range(4): g(f"v_cvt_pk_bf16_f32 v{XB[t]+i}, v{XB[t]+2*i}, v{XB[t]+2*i+1}")
            emit(tstore(XB[t], sT, 0, tag="pst"))
        return f
    GP = Grp(role + "pr", [(PR + 4 * t, sPART, t * 4096) for t in range(3)])
    it[base + nx - 1].post.append(st(11))
    def pflag():
        g("s_mov_b64 exec, 7")
        g(f"buffer_store_dword {vNON}, {vFA}, {SWS}, 0 offen sc1", tag="pub")
        g("s_mov_b64 exec, -1")
        g(f"v_lshl_add_u32 {vPA}, {vLANE}, 2, {sFP}")
        stamp(12)
    xs = [xsend012, xrecv012, xfin(0), xfin(1), lambda: (xfin(2)(), pflag())]
    for i, f in enumerate(xs): it[base + min(nx + i, N - 1)].post.append(f)
    it[base + max(min(nx + 5, N - 1), N - 1 - OPT["prl"])].post.append(poll_issue)
    def tail():
        T3 = TACC + 48
        for i in range(2):
            g(f"ds_write_b128 {vXW}, {vr(T3+8+4*i)} offset:{i*1024}", tag="xw")
        g.wait(lg="xw")
        g("s_barrier")
        for i in range(2):
            g(f"ds_read_b128 {vr(XB[3]+4*i)}, {vXRd} offset:{i*1024}", tag="xr3")
        take(7)()
        emit(GP.loads())
        g.wait(lg="xr3")
        for i in range(8): g(f"v_mul_f32 v{XB[3]+i}, {vSC}, v{XB[3]+i}")
        emit(GP.check())
        for t in range(3):
            mfma(T3, vr(IDENT), vr(PR + 4 * t), vr(T3, 16))
        for i in range(8): g(f"v_fmac_f32 v{XB[3]+i}, {vSC}, v{T3+i}")
        for i in range(4): g(f"v_cvt_pk_bf16_f32 v{XB[3]+i}, v{XB[3]+2*i}, v{XB[3]+2*i+1}")
        g(f"buffer_store_dwordx4 {vr(XB[3])}, {vOA}, {SOUT}, {sOUT} offen{' sc1' if OPT['osc'] else ''}")
        if STAMP:
            stamp(15)
            g(f"v_writelane_b32 {vSTAMP}, {sCNT}, 13")
            g("s_lshl_b32 s3, s2, 3")
            g(f"s_add_u32 s3, s3, {sW}")
            g("s_lshl_b32 s3, s3, 6")
            g(f"s_add_u32 s3, s3, {STP:#x}")
            g(f"v_lshlrev_b32 v9, 2, {vLANE}")
            g("s_mov_b64 exec, 0xffff")
            g(f"buffer_store_dword {vSTAMP}, v9, {SWS}, s3 offen")
        if role == "W": g.label("END")
        g("s_endpgm")
    return tail


def unit(regs, ar, off):
    return [(r, ar, off + s * 2048) for s, r in enumerate(regs)]


def WW():
    g(f"""
    v_mov_b32 v24, 0x3f80
    v_mov_b32 v25, 0
    v_mov_b32 v26, 1.0
    v_mov_b32 v27, 0
    v_mov_b32 v28, 0
    v_mov_b32 v29, 0
    v_mov_b32 v30, 0
    v_mov_b32 v31, 0
    v_mov_b32 {vBIAS2}, 0
    v_mov_b32 v62, 0
    v_mov_b32 v63, 0
    s_lshl_b32 {sT}, {sCLS}, 6
    v_lshl_add_u32 v60, {vLANE}, 1, {sT}
    s_lshl_b32 {sT}, {sCLS}, 5
    v_lshl_add_u32 v61, {vLANE}, 1, {sT}
    s_mov_b32 exec_hi, 0
    """)
    g(f"buffer_load_ushort v28, v60, {SB}, {sP[0]} offen", tag="bias")
    g(f"buffer_load_ushort v62, v60, {SB}, {sP[1]} offen", tag="bias")
    g(f"buffer_load_ushort {vBIAS2}, v60, {SB}, {sP[2]} offen", tag="bias")
    g("s_mov_b32 exec_lo, 0xffff")
    g(f"buffer_load_ushort v63, v61, {SB}, {sP[3]} offen", tag="bias")
    g("s_mov_b64 exec, -1")
    it = phase1("T")
    for n in range(16):
        c, j = n >> 1, n & 1
        it.append(Item(vU, c * 4096 + j * 2048, 512, 64 + 4 * (n % 4), ACC3, XR + 16 * c + 4 * j, D=OPT["DP"]))
    def bias1():
        g.wait(vm="bias")
        g("v_lshl_or_b32 v28, v62, 16, v28")
        g(f"v_lshl_or_b32 {vBIAS2}, v63, 16, {vBIAS2}")
        mfma(ACC0, "v[28:31]", "v[24:27]", vr(ACC0, 16))
        mfma(ACC1, "v[28:31]", "v[26:29]", vr(ACC1, 16))
    it[29].post.append(bias1)
    it[33].post.append(f"v_mov_b32 v28, {vBIAS2}")
    it[37].post.append(lambda: mfma(ACC3, "v[28:31]", "v[26:29]", 0))
    it[64].post.append(lambda: mfma(ACC2, "v[28:31]", "v[24:27]", vr(ACC2, 16)))
    it[63].post.append(nonce("Wn"))
    it[63].post.append(f"s_add_u32 {sST}, {sAp}, 0x1000")
    it[64].bar = dict(vm=["ck8"], lead=OPT["BL"], after=toggle(False) + [st(3)])
    it[80].bar = dict(vm=["ck9"], lead=OPT["BL"])
    it[96].bar = dict(vm=["u6"], lead=OPT["BL"])
    Ga = Grp("Wga", [(r, sAo, i * 1024) for i, r in enumerate((136, 140, 152, 156))])
    Gc = Grp("Wgc", [(r, sAo, 4096 + i * 1024) for i, r in enumerate((168, 172, 184))])
    Go = Grp("Wgo", [(128, sAp, 7168), (132, sAp, 8192), (188, sAp, 9216), (144, sAo, 7168), (148, sAo, 8192)])
    U6 = [du(n) for n in range(4)]
    e = EH(ACC0, sAp, 0) + EH(ACC0 + 8, sAp, 1024, ACC0) + EH(ACC1, sAp, 2048, ACC0 + 8)
    h = len(e) // 2
    spread(it, 64, 80, merge(e[:h], U6 + D2A("G0")))
    spread(it, 80, 96, merge(e[h:], D2A("G1")))
    e = EH(ACC1 + 8, sAp, 3072, ACC1) + [publish(1)] + EH(ACC2, sST, 0, ACC1 + 8)
    spread(it, 96, 112, merge(e, D2A("P2")))
    it[111].post.append(st(5))
    ec = EH(ACC2 + 8, sST, 1024, ACC2)
    def xw():
        for i in range(2): g(f"ds_write_b128 {vE0}, {vr(ACC3+8+4*i)} offset:{i*1024}", tag="xw")
    def xrd():
        for i in range(2): g(f"ds_read_b128 {vr(ACC3+8+4*i)}, {vE1} offset:{i*1024}", tag="xu")
    it[110].post += [f"s_lshl_b32 {sT}, {sW}, 11", f"s_add_u32 {sT}, {sT}, {LA+32768}", f"v_add_u32 {vE0}, {sT}, {vL16}",
                     f"v_xor_b32 {vE1}, 0x2000, {vE0}"]
    it[111].post += ec[:6] + [xw] + p2addr() + ec[6:24]
    steps = unit((ACC0, ACC0 + 8), aB, 0) + unit((ACC1, ACC1 + 8), aB, 32768) + \
        unit((136, 140), aB, 16384) + unit((152, 156), aB, 32768 + 16384) + \
        unit((ACC2, ACC2 + 8), aA, 0) + unit((ACC3,), aC, 0) + unit((168, 172), aA, 16384) + unit((184,), aC, 8192) + \
        unit((128, 132), aA, 32768) + unit((144, 148), aA, 32768 + 16384)
    p2, order, nx, first = p2items(steps, [64, 68, 72, 76, 108, 116, 124], None)
    B = len(it); it += p2
    it[B].bar = dict(vm=["wG0", "wG1"], lg=["xw"], lead=0, after=[xrd, st(6)] + D2A("U"))
    eu = [lambda: g.wait(lg="xu")] + [f"v_add_f32 v{ACC3+i}, v{ACC3+i}, v{ACC3+8+i}" for i in range(8)] + \
        EH(ACC3, sST, 2048, ACC2 + 8) + [publish(3)]
    spread(it, B, B + first[4] - 4, ec[24:] + eu)
    fetch(it, OPT["ga"], Ga.loads(), 0x2000, B + first[4] - 5, pre=setFA())
    spread(it, B + first[4] - 4, B + first[4], Ga.check() + [st(7)])
    it[B + first[4] + 1].post += untag(ACC3) + [ident(100)]
    it[B + first[8] + 1].post += [p2misc]
    it[B + first[8]].bar = dict(vm=["wP2", "wU"], lead=OPT["D2"], at=[st(8)], after=D2A("O"))
    it[B + first[14]].bar = dict(vm=["wO"], lead=OPT["D2"])
    fetch(it, B + first[4] + OPT["wgc"], Gc.loads(), 0x8000, B + first[11] - 4)
    fetch(it, B + first[4] + OPT["wgo"], Go.loads(), 0x0011, B + first[14] - 4)
    spread(it, B + first[11] - 3, B + first[11], Gc.check())
    spread(it, B + first[14] - 3, B + first[14], [st(9)] + Go.check() + [st(10)])
    assert first[4] + OPT["wgc"] < first[11] - 3 and first[4] + OPT["wgo"] < first[14] - 3
    assert OPT["ga"] < B + first[4] + OPT["wgc"] - OPT["pl"] and OPT["wgc"] < OPT["wgo"] - OPT["pl"]
    tail = p2tail("W", it, B, nx, [160, 176, 32, 40], 100, "v190")
    run(it)
    tail()


def QQ():
    it = phase1("N")
    for n in range(16):
        c, j = n >> 1, n & 1
        x = Item(vU, c * 128 + j * 32, None, 64 + 4 * (n % 4), ACC3, XR + 16 * c + 4 * j, zero=(n == 0), D=OPT["DP"])
        if n == 0: x.rvm = ["gate"]
        it.append(x)
    it[2].post += [f"s_lshl_b32 {sT}, {sW}, 11", f"s_add_u32 {sT}, {sT}, {LC}", f"v_add_u32 v24, {sT}, {vL16}",
                   f"s_and_b32 {sT}, {sRW}, 1", f"s_lshl_b32 {sT}, {sT}, 13", f"s_add_u32 {sT}, {sT}, {LC}",
                   f"v_add_u32 v25, {sT}, {vL16}",
                   f"s_lshl_b32 {sT}, {sCLS}, 6", f"s_add_u32 {sT}, {sT}, {sW1K}", f"s_add_u32 {sT}, {sT}, {LC+8192}",
                   f"v_lshrrev_b32 {vU}, 5, {vLANE}", f"v_lshl_add_u32 {vU}, {vU}, 4, {sT}",
                   f"s_lshl_b32 {sT}, {sROT}, 7", f"v_xor_b32 {vUD}, {sT}, {vL16}"]
    it[4].post += [f"v_mov_b32 v{28+i}, 0x3f803f80" for i in range(4)] + \
                  [f"s_cmp_lt_u32 {sRW}, 2", "s_mov_b32 s5, 0xffff", "s_cselect_b32 s4, s5, 0xffff0000", "s_mov_b32 s5, s4",
                   f"v_add_u32 v26, 1024, {vL16}", f"v_cndmask_b32_e64 v26, v26, {vL16}, {sMK}"]
    def fw(reg, off):
        return lambda: g(f"ds_write_b128 v24, {vr(reg)} offset:{off}", tag="fw")
    vp = []
    for q in range(2):
        vp += [f"v_cvt_pk_bf16_f32 v{ACC1+8*q+i}, v{ACC1+8*q+2*i}, v{ACC1+8*q+2*i+1}" for i in range(4)] + [fw(ACC1 + 8 * q, 16384 + q * 1024)]
    it[63].post += [nonce("Qn")] + PH(ACC0) + [fw(ACC0, 0)] + vp + PH(ACC0 + 8) + [fw(ACC0 + 8, 1024)]
    def job():
        g(f"s_cmp_lg_u32 {sCLS}, 0")
        g("s_cbranch_scc1 Q_nojob")
        with g.optional():
            g("s_setprio 3")
            g(f"s_cmp_lt_u32 {sRW}, 2")
            g("s_cbranch_scc1 Q_jobc")
            with g.optional():
                for k in range(8): g(f"ds_read_b128 {vr(96+4*k)}, v25 offset:{k*1024}", tag=f"a{k}")
                for k in range(8):
                    g.wait(lg=f"a{k}")
                    mfma(ACC3, vr(96 + 4 * k), "v[28:31]", vr(ACC3, 16) if k else 0)
                g("s_branch Q_jobf")
            g.label("Q_jobc")
            for k in range(8):
                g(f"ds_read_b128 {vr(96+4*k)}, v25 offset:{k*1024}", tag=f"a{k}")
                g(f"ds_read_b128 {vr(64+4*k)}, v25 offset:{16384+k*1024}", tag=f"a{k}")
            for k in range(8):
                g.wait(lg=f"a{k}")
                mfma(ACC3, vr(96 + 4 * k), vr(64 + 4 * k), vr(ACC3, 16) if k else 0)
            g.label("Q_jobf")
            g(f"s_lshl_b32 {sT}, {sRB}, 12")
            g(f"s_and_b32 {sT2}, {sRW}, 1")
            g(f"s_lshl_b32 {sT2}, {sT2}, 11")
            g(f"s_add_u32 {sT}, {sT}, {sT2}")
            g(f"s_add_u32 {sT}, {sT}, {sKV}")
            for i in range(4): g(f"v_cvt_pk_bf16_f32 v{TMP+i}, v{ACC3+8+2*i}, v{ACC3+8+2*i+1}")
            g(f"s_mov_b64 exec, {sMK}")
            for i in range(4): g(f"v_cvt_pk_bf16_f32 v{TMP+i}, v{ACC3+2*i}, v{ACC3+2*i+1}")
            g("s_mov_b64 exec, -1")
            emit(tstore(TMP, sT, 0)[:2])
            g(f"buffer_store_dwordx4 {vr(TMP)}, v26, {SWS}, {sT} offen sc1")
            g(f"s_lshr_b32 {sT2}, {sT2}, 3")
            g(f"s_and_b32 {sT}, {sRB}, 8")
            g(f"s_lshl_b32 {sT}, {sT}, 4")
            g(f"s_add_u32 {sT2}, {sT2}, {sT}")
            g(f"s_lshl_b32 {sT}, {sR8}, 3")
            g(f"s_add_u32 {sT2}, {sT2}, {sT}")
            g(f"s_and_b32 {sT}, {sRW}, 2")
            g(f"s_lshl_b32 {sT}, {sT}, 1")
            g(f"s_add_u32 {sT2}, {sT2}, {sT}")
            g(f"s_add_u32 {sT2}, {sT2}, {sFK}")
            g("s_mov_b64 exec, 1")
            g(f"buffer_store_dword {vNON}, off, {SWS}, {sT2} sc1")
            g("s_mov_b64 exec, -1")
            g("s_setprio 0")
        g.label("Q_nojob")
        g(f"s_lshr_b32 {sT}, {sRW}, 1")
        g(f"s_lshl_b32 {sT}, {sT}, 15")
        g(f"s_add_u32 {sKV}, {sKV}, {sT}")
        g(f"s_and_b32 {sT}, {sRW}, 1")
        g(f"s_lshl_b32 {sT2}, {sCLS}, 1")
        g(f"s_add_u32 {sT}, {sT}, {sT2}")
        g(f"s_lshl_b32 {sT}, {sT}, 10")
        g(f"s_add_u32 {sKV}, {sKV}, {sT}")
        g(f"s_add_u32 {sST}, {sAp}, 7168")
        g(f"s_lshr_b32 {sT}, {sW}, 1")
        g(f"s_lshl_b32 {sT}, {sT}, 7")
        g(f"s_add_u32 {sT}, {sT}, {sFK}")
        g(f"v_lshl_add_u32 {vPA}, {vLANE}, 2, {sT}")
    it[64].bar = dict(vm=["ck8"], lg=["fw"], lead=0, after=toggle(False) + [job, st(3)])
    def dgate():
        g(f"s_add_u32 m0, {sW1K}, {LC+8192:#x}")
        g(f"buffer_load_dwordx4 {vUD}, {SB}, 0 offen lds", tag="gate")
    it[80].bar = dict(vm=["ck9"], lead=OPT["BL"], after=[dgate])
    it[96].bar = dict(lead=OPT["BL"])
    spread(it, 64, 80, D2A("G0") + D2A("G1"))
    spread(it, 80, 88, D2A("U"))
    Gk = Grp("Qkv", [(96 + 4 * r, sKV, r * 4096) for r in range(8)])
    Gp = Grp("Qgp", [(r, sAp, i * 1024) for i, r in enumerate((136, 140, 152, 156))])
    Gq = Grp("Qgq", [(r, sAo, i * 1024) for i, r in enumerate((168, 172, 184, 188))])
    Gc = Grp("Qgc", [(r, sAp, 4096 + i * 1024) for i, r in enumerate((128, 132, 144))] +
             [(r, sAo, 4096 + i * 1024) for i, r in enumerate((148, 160, 164))])
    Go = Grp("Qgo", [(176, sAo, 7168), (180, sAo, 8192)])
    IDENT = 84
    spread(it, 96, 112, merge(PH(ACC2) + [ident(IDENT)] + PH(ACC2 + 8), D2A("P2")))
    fetch(it, OPT["kvl"], Gk.loads(), 0xffff, 111, step=0)
    it[111].post += setFA() + [poll_issue]
    it[111].post.append(st(5))
    it[111].post += [f"s_add_u32 {sT}, {sW1K}, {LC}", f"v_add_u32 v24, {sT}, {vL16}",
                     f"s_lshl_b32 {sT2}, {sCLS}, 12", f"s_add_u32 {sT2}, {sT2}, {LC}", f"v_add_u32 v25, {sT2}, {vL16}",
                     f"v_lshl_add_u32 v26, {vLANE}, 2, {sT}", "v_xor_b32 v27, 0x1000, v26"] + p2addr() + \
                    [f"v_mov_b32 v28, v{ACC3}", lambda: g("ds_write_b32 v26, v28 offset:8192", tag="kw")]
    def ksum():
        stamp(7)
        for r in range(8): mfma(ACC3, vr(IDENT), vr(96 + 4 * r), vr(ACC3, 16) if r else 0)
        for i in range(4): g(f"v_cvt_pk_bf16_f32 v{TMP+i}, v{ACC3+2*i}, v{ACC3+2*i+1}")
        g(f"ds_write_b128 v24, {vr(TMP)}", tag="kw")
    def kx():
        g.wait(lg="kw")
        g("s_barrier")
        g("ds_read_b32 v29, v27 offset:8192", tag="kl")
        for r in range(4): g(f"ds_read_b128 {vr(96+4*r)}, v25 offset:{r*1024}", tag=f"kr{r}")
    def ko():
        g.wait(lg="kl")
        g("v_add_f32 v28, v28, v29")
        g(f"v_mul_f32 v28, {sLOG2E}, v28")
        g("v_min_f32 v28, 0x42640000, v28")
        g("v_exp_f32 v28, v28")
        for r in range(4):
            g.wait(lg=f"kr{r}")
            acc = (TMP, ACC3)[r & 1]
            mfma(acc, vr(96 + 4 * r), vr(ACC2 + 8 * (r & 1)), vr(acc, 16) if r >= 2 else 0)
        g("v_add_f32 v122, 1.0, v28")
        g("v_rcp_f32 v122, v122")
        g(f"v_mov_b32 v120, {TG0}")
        g(f"v_mov_b32 v121, {TG1}")
        for hd, (num, den) in enumerate(((TMP, TMP + 8), (ACC3 + 8, ACC3))):
            g(f"v_add_f32 v{den}, {sEPS}, v{den}")
            g(f"v_rcp_f32 v{den}, v{den}")
            g(f"v_mul_f32 v{den}, v28, v{den}")
            for i in range(8): g(f"v_mul_f32 v{num+i}, v{den}, v{num+i}")
            for i in range(4): g(f"v_cvt_pk_bf16_f32 v{112+4*hd+i}, v{num+2*i}, v{num+2*i+1}")
            emit(tstore(112 + 4 * hd, sST, hd * 1024))
        g(f"buffer_store_dwordx4 v[120:123], {vL16}, {SWS}, {sST} offen offset:2048 sc1", tag="st")
        publish(0)()
        emit(untag(112) + untag(116))
        stamp(8)
    steps = unit((136, 140), aB, 0) + unit((152, 156), aB, 32768) + \
        unit((168, 172), aB, 16384) + unit((184, 188), aB, 32768 + 16384) + \
        unit((112, 116), aA, 32768) + \
        unit((128, 132), aA, 0) + unit((144,), aC, 0) + unit((148, 160), aA, 16384) + unit((164,), aC, 8192) + \
        unit((176, 180), aA, 32768 + 16384)
    p2, order, nx, first = p2items(steps, [64, 68, 72, 76, 92], None)
    B = len(it); it += p2
    kp = 0
    ab = [take(0x2200)] + Gp.loads() + Gq.loads()
    def early():
        g.wait(vm="poll")
        g(f"v_cmp_eq_u32 vcc, {sNON}, {vPR}")
        g(f"s_and_b32 {sHAVE}, vcc_lo, 0x2200")
        g(f"s_cmp_lg_u32 {sHAVE}, 0x2200")
        g("s_cbranch_scc1 Q_e1")
        with g.optional(): emit(Gp.loads() + Gq.loads())
        g.label("Q_e1")
    def late():
        g(f"s_cmp_eq_u32 {sHAVE}, 0x2200")
        g("s_cbranch_scc1 Q_e2")
        take(0x2200, False)()
        emit(Gp.loads() + Gq.loads())
        g.label("Q_e2")
    if OPT["kpos"] == 0: kseq = Gk.check() + [ksum] + ab + [kx, ko]
    elif OPT["kpos"] == 1: kseq = Gk.check() + [ksum, kx, ko] + ab
    else: kseq = Gk.check() + [ksum, early, kx, ko, late]
    it[B].bar = dict(vm=["wG0", "wG1"], lead=0, after=[st(6)] + D2A("O") + kseq + Gp.check())
    spread(it, B + first[4] - 4, B + first[4], Gq.check())
    it[B + first[8] + 1].post += [p2misc]
    it[B + first[8]].bar = dict(vm=["wP2", "wU", "wO"], lead=OPT["D2"])
    it[B + first[16]].bar = dict(lead=OPT["D2"])
    assert kp < first[8] - 2
    fetch(it, B + OPT["qgc"], Gc.loads(), 0x8800, B + first[10] - 5)
    fetch(it, B + OPT["qgo"], Go.loads(), 0x0010, B + first[16] - 3)
    spread(it, B + first[10] - 4, B + first[10], Gc.check())
    spread(it, B + first[16] - 2, B + first[16], [st(9)] + Go.check() + [st(10)])
    assert OPT["pl"] <= OPT["qgc"] < first[10] - 4 and OPT["qgc"] + OPT["pl"] < OPT["qgo"] < first[16] - 2
    tail = p2tail("Q", it, B, nx, [96, 104, 32, 40], IDENT, "v122")
    run(it)
    tail()


for role, fn in (("WW", WW), ("QQ", QQ)):
    g.start_trace(role)
    g.block(ENTRY, prologue)
    g.block(role, fn, align=(3 if role == "QQ" else None))
rt = []
for r in retries:
    g.start_trace("RT_" + r.name)
    g.block("RT_" + r.name, r.retry)
    rt.append("RT_" + r.name)
g.start_trace("end"); g.block("CODE_END", lambda: None)
g.hazards()
order = [ENTRY, "WW", "SPIN", "QQ"] + rt + ["CODE_END"]
assert sorted(order) == sorted(g.order), (g.order)

hdr = open("cdna_kernels/" + KN + ".s.ref").read().split("\n")
top = [l for l in hdr if l.startswith(";") and "@launch" not in l]
print("\n".join(top))
print("; @launch grid=(256,1,1) block=(512,1,1) lds=163840")
print('.amdgcn_target "amdgcn-amd-amdhsa--gfx950"\n.text')
print(f".globl {ENTRY}\n.p2align 8\n.type {ENTRY},@function")
print(g.text(order))
print("    s_endpgm")
print(f""".section .rodata,"a"
.p2align 6
.amdhsa_kernel {ENTRY}
  .amdhsa_next_free_vgpr 256
  .amdhsa_next_free_sgpr 102
  .amdhsa_accum_offset 256
  .amdhsa_group_segment_fixed_size 0
  .amdhsa_kernarg_size 88
  .amdhsa_user_sgpr_count 2
  .amdhsa_user_sgpr_kernarg_segment_ptr 1
  .amdhsa_system_sgpr_workgroup_id_x 1
.end_amdhsa_kernel""")
print(f"; maxvm={g.maxvm}", file=sys.stderr)
for name, tr in g.traces[:2]:
    print(f"; trace {name}: barriers={sum(1 for o in tr if o.kind=='i' and o.mn=='s_barrier')} instrs={len(tr)}", file=sys.stderr)
```

```python
import sys
from fw import *

OPT = dict(stamp=0, D=6, BL=2, BL2=4, DP=5, D2=4, lim=20000, rotm=7, tw=58, tlb=0, t3=10, sp=0, slp=1,
           dsp=0, pst=0, osc=0, nochk=0, ew=1, pb=1, np1=5, np2=8, ev=1, tlp=31, ft=31, bl=0,
           wc0=33, wc1=49, u0=49, u1=63, g0=66, g1=94,
           ea0=33, ea1=62, eb0=65, eb1=94, ec1=112, eun=10,
           wga=2, wgc=22, wgo=30, wpl=14,
           qa=84, qb=110, qkv=106, qpl=12, qks=12, kd1=1, kd2=1, qgc=24, qgo=34, jb=66, efk=1, efo=1, efp=1,
           prl=0, sper=8, sb0=999, sb1=0, s0=0, s1=999)
for a in sys.argv[1:]:
    k, v = a.split("="); assert k in OPT, k; OPT[k] = int(v, 0)
STAMP = OPT["stamp"]
LIM = OPT["lim"] << 16 if STAMP else OPT["lim"]

LSC = " sc1"
LA, LB, LC = 0, 98304, 65536
PARTO, KVP, STP, FA, FK, FP = 640 * 1024, 0x1000000, 0x1100000, 0x10A0000, 0x10B0000, 0x10C0000
WS_SIZE = 0x1180000 if STAMP else 0x1100000
SX, SW, SW2, SWO, SWS, SOUT, SB, SDBG = "s[32:35]", "s[36:39]", "s[40:43]", "s[44:47]", "s[48:51]", "s[52:55]", "s[56:59]", "s[60:63]"
sW, sRW, sRB, sCGI, sISW1, sSTR, sROT, sW1K, sXR, sCLS, sNON, sM = [f"s{64+i}" for i in range(12)]
sP = ["s76", "s77", "s78", "s79"]
sWC = [f"s{80+i}" for i in range(8)]
sT, sT2, sT3, sTB, sCNT, sKQ, sR8, sPAR, sTT, sLOG2E = [f"s{88+i}" for i in range(10)]
sTM = "s[98:99]"; sEPS = "s100"; sST = "s101"
sMK = "s[4:5]"
sAp, sAo, sRs, sRo, sRu, sRm, sRmu, sPART, sOUT, sKV, sFA, sPUB, sFP, sFK, sHAVE, sMASK = [f"s{8+i}" for i in range(16)]
sRET = "s[30:31]"
vWDB, vLANE, vXD, vWDa, vWDb, vW2D = "v0", "v1", "v2", "v3", "v4", "v5"
vX = ["v6", "v7", "v8", "v9"]
vWlo, vWhi, vU, vWOD, TG0, TG1, vL16, vCHK, vSTAMP, vBIAS2, vT0, vUD, vE0, vE1 = [f"v{10+i}" for i in range(14)]
vPR, vNON, vPA = "v0", "v2", "v4"
ACC0, ACC1, ACC2, ACC3, XR, TMP, TACC = 96, 112, 80, 48, 128, 32, 192

g = Gen()
retries = []


def vr(a, n=4):
    return f"v[{a}:{a+n-1}]"


SN = {"WW": ["start"], "QQ": ["start"]}
ROLE = [None]
def stamp(name):
    if not STAMP: return
    names = SN[ROLE[0]]
    g(f"v_writelane_b32 {vSTAMP}, s98, {len(names)-1}")
    g(f"s_memtime {sTM}")
    names.append(str(name))
    assert len(names) < 60


def st(i):
    return lambda: stamp(i)


def mfma(d, a, b, c):
    g(f"v_mfma_f32_32x32x16_bf16 {vr(d,16)}, {a}, {b}, {c}")


def dx(c, i):
    def f():
        g(f"s_add_u32 m0, {sW1K}, {(c % 4) * 16384 + i * 8192:#x}")
        g(f"s_xor_b32 {sT2}, {sXR}, {c << 7 | i << 16:#x}")
        g(f"buffer_load_dwordx4 {vXD}, {SX}, {sT2} offen lds", tag=f"ck{c}")
    return f


def dw(lds, c, va, tag):
    def f():
        g(f"s_add_u32 m0, {sW1K}, {lds:#x}")
        g(f"buffer_load_dwordx4 {va}, {SW}, {sWC[c]} offen lds", tag=tag)
    return f


def CK(c):
    return [dx(c, 0), dx(c, 1), dw(LC + (c % 4) * 8192, c, vWDa, f"ck{c}")]


def WBs():
    if OPT["rotm"] == 7: return [dw(LB + c * 8192, c, vWDb, f"wb{c}") for c in range(8)]
    assert OPT["rotm"] == 3
    def sel(flip):
        def f():
            g(f"s_bitcmp{1 - flip}_b32 {sR8}, 2")
            g(f"s_cselect_b32 {sT2}, {sWC[4]}, {sWC[0]}")
            g(f"s_cselect_b32 {sT3}, {4 * 8192:#x}, 0")
            g(f"s_add_u32 {sT3}, {sT3}, {sW1K}")
            g(f"s_add_u32 m0, {sT3}, {LB:#x}")
            g(f"buffer_load_dwordx4 {vWDb}, {SW}, {sT2} offen lds", tag="wb0")
        return f
    return [sel(0), sel(1)] + [dw(LB + c * 8192, c, vWDb, f"wb{c}") for c in (1, 2, 3, 5, 6, 7)]


def head():
    c1 = CK(1)
    return CK(0) + c1[:2] + (WBs()[:1] if OPT["ew"] == 1 else []) + c1[2:] + CK(2) + CK(3)


def WCs():
    l = [dw(LA + c * 8192, c, vWDa, f"wc{c}") for c in range(8)]
    f0 = l[0]
    l[0] = lambda: (g(f"v_add_u32 {vWDa}, {sP[2]}, {vWDB}"), f0())
    return l


def du(n):
    def f():
        g(f"s_xor_b32 {sT2}, {sROT}, {sCLS}")
        g(f"s_xor_b32 {sT2}, {sT2}, {2*n}")
        g(f"s_add_u32 m0, {sW1K}, {LC + n*8192:#x}")
        g(f"s_mul_i32 {sT2}, {sT2}, {3584*64}")
        g(f"buffer_load_dwordx4 {vUD}, {SW}, {sT2} offen lds", tag="u6")
    return f


def d2(area, n):
    i = 2 * n
    prel, pp = (i >> 2) & 1, (i >> 1) & 1
    if area == "U": prel, pp = n, 0
    def f():
        if area in ("G0", "G1", "P2"):
            base = {"G0": LB, "G1": LB + 32768, "P2": LA}[area]
            gofs = {"G0": 0, "G1": 1 << 16, "P2": 1 << 17}[area]
            g(f"s_xor_b32 m0, {sRm}, {base + (i << 12):#x}")
            g(f"s_xor_b32 {sT2}, {sRs}, {gofs | prel << 18 | pp << 15:#x}")
            g(f"buffer_load_dwordx4 {vW2D}, {SW2}, {sT2} offen lds", tag="w" + area)
        elif area == "O":
            g(f"s_xor_b32 m0, {sRm}, {LA + 32768 + (i << 12):#x}")
            g(f"s_xor_b32 {sT2}, {sRo}, {prel << 16 | pp << 15:#x}")
            g(f"buffer_load_dwordx4 {vWOD}, {SWO}, {sT2} offen lds", tag="wO")
        else:
            g(f"s_xor_b32 m0, {sRmu}, {LC + 16384 + (i << 12):#x}")
            g(f"s_xor_b32 {sT2}, {sRu}, {0x30000 | prel << 15:#x}")
            g(f"buffer_load_dwordx4 {vW2D}, {SW2}, {sT2} offen lds", tag="wU")
    return f


def D2A(area):
    return [d2(area, n) for n in range(2 if area == "U" else 4)]


def touch():
    g(f"s_lshr_b32 {sT}, s2, 3")
    g(f"s_lshl_b32 {sT}, {sT}, 3")
    g(f"s_add_u32 {sT}, {sT}, {sW}")
    g(f"s_mul_i32 {sT2}, {sT}, {14*128}")
    g(f"s_mul_i32 {sT3}, {sKQ}, {448*1024}")
    g(f"s_add_u32 {sT2}, {sT2}, {sT3}")
    g(f"v_lshlrev_b32 {vE0}, 7, {vLANE}")
    g("s_mov_b64 exec, 0x3fff")
    g(f"buffer_load_dword {vE1}, {vE0}, {SW2}, {sT2} offen", tag="tw")
    g(f"s_lshl_b32 {sT2}, {sT}, 9")
    g(f"s_lshl_b32 {sT3}, {sKQ}, 17")
    g(f"s_add_u32 {sT2}, {sT2}, {sT3}")
    g("s_mov_b64 exec, 15")
    g(f"buffer_load_dword {vE1}, {vE0}, {SWO}, {sT2} offen", tag="tw")
    g("s_mov_b64 exec, -1")


def publish(kind):
    def f():
        g("s_mov_b64 exec, 1")
        g(f"buffer_store_dword {vNON}, off, {SWS}, {sPUB} offset:{kind*4}{LSC}", tag="pub")
        g("s_mov_b64 exec, -1")
    return f


def SPIN():
    g("s_mov_b64 exec, 0xffff")
    g.label("SPIN_loop")
    g(f"buffer_load_dword {vPR}, {vPA}, {SWS}, 0 offen sc1")
    g("s_waitcnt vmcnt(0)")
    g(f"v_cmp_eq_u32 vcc, {sNON}, {vPR}")
    g(f"s_add_u32 {sCNT}, {sCNT}, {0x10000 if STAMP else 1}")
    g(f"s_mov_b32 {sHAVE}, vcc_lo")
    g(f"s_and_b32 {sT}, {sHAVE}, {sMASK}")
    g(f"s_cmp_eq_u32 {sT}, {sMASK}")
    g("s_cbranch_scc1 SPIN_done")
    if OPT["slp"]: g(f"s_sleep {OPT['slp']}")
    g(f"s_cmp_lt_u32 {sCNT}, {LIM:#x}")
    g("s_cbranch_scc1 SPIN_loop")
    g.label("SPIN_done")
    g("s_mov_b64 exec, -1")
    g(f"s_setpc_b64 {sRET}")


def poll_issue():
    g("s_mov_b64 exec, 0xffff")
    g(f"buffer_load_dword {vPR}, {vPA}, {SWS}, 0 offen sc1", tag="poll")
    g("s_mov_b64 exec, -1")


nlab = [0]
def take(mask, fresh=True):
    def f():
        nlab[0] += 1
        lab = f"EN{nlab[0]}"
        if fresh:
            g.wait(vm="poll")
            g(f"v_cmp_eq_u32 vcc, {sNON}, {vPR}")
            g(f"s_and_b32 {sHAVE}, vcc_lo, 0xffff")
        g(f"s_and_b32 {sT}, {sHAVE}, {mask:#x}")
        g(f"s_cmp_eq_u32 {sT}, {mask:#x}")
        g(f"s_cbranch_scc1 {lab}")
        with g.optional():
            g(f"s_mov_b32 {sMASK}, {mask:#x}")
            g(f"s_call_b64 {sRET}, SPIN")
            g.block("SPIN", SPIN, align=3)
        g.label(lab)
    return f


def fetch(it, pos, grp, mask, hi, pl=0, step=1, pre=(), post=()):
    if mask is not None:
        it[pos - pl].post += list(pre) + [poll_issue]
        it[pos].post += [take(mask)] + list(post)
    for i, f in enumerate(grp): it[min(pos + step * i, hi)].post.append(f)


GN = ["ga", "gp", "gq", "kv", "gc", "go", "pr"]
class Grp:
    def __init__(s, name, frags):
        s.name = name; s.frags = frags

    def loads(s, tagged=True):
        out = []
        cur = [None]
        def one(i, reg, base, off):
            def f(first=True):
                hi = off & ~4095 if off >= 4096 else 0
                fl = " sc1"
                if hi: g(f"s_add_u32 {sT3}, {base}, {hi:#x}")
                g(f"buffer_load_dwordx4 {vr(reg)}, {vL16}, {SWS}, {sT3 if hi else base} offen offset:{off - hi}{fl}",
                  tag=f"{s.name}{i}" if tagged else None)
            return f
        return [one(i, *fr) for i, fr in enumerate(s.frags)]

    def decode(s, waits=True):
        out = []
        for i, (reg, _, _) in enumerate(s.frags):
            if waits: out.append(lambda i=i: g.wait(vm=f"{s.name}{i}"))
            out.append(f"v_xor_b32 v{reg}, {TG0}, v{reg}")
            out.append(f"v_xor_b32 v{reg+1}, {TG1}, v{reg+1}")
            out.append(f"v_or_b32 {vCHK}, v{reg}, v{reg+1}" if i == 0 else f"v_or3_b32 {vCHK}, v{reg}, v{reg+1}, {vCHK}")
        out.append(f"v_and_b32 {vCHK}, {sTB}, {vCHK}")
        return out

    def check(s):
        def fin():
            if OPT["nochk"]: return
            g(f"v_cmp_ne_u32 vcc, 0, {vCHK}")
            g("s_cmp_lg_u64 vcc, 0")
            g(f"s_cbranch_scc1 RT_{s.name}")
            g.label(f"OK_{s.name}")
            retries.append(s)
        return s.decode() + [fin]

    def retry(s):
        if STAMP: g(f"s_or_b32 s3, s3, {1 << GN.index(s.name[1:])}")
        g(f"s_add_u32 {sCNT}, {sCNT}, 1")
        g(f"s_and_b32 {sT}, {sCNT}, 0xffff")
        g(f"s_cmp_gt_u32 {sT}, {OPT['lim']}")
        g(f"s_cbranch_scc1 OK_{s.name}")
        if OPT["slp"]: g(f"s_sleep {OPT['slp']}")
        for f in s.loads(False): f()
        g("s_waitcnt vmcnt(0)")
        emit(s.decode(False))
        g(f"v_cmp_ne_u32 vcc, 0, {vCHK}")
        g("s_cmp_lg_u64 vcc, 0")
        g(f"s_cbranch_scc1 RT_{s.name}")
        g(f"s_branch OK_{s.name}")


def emit(lst):
    for x in lst:
        if isinstance(x, str): g(x)
        else: x()


def tstore(reg, base, off, keep=True, tag="st"):
    l = [f"v_and_or_b32 v{reg}, v{reg}, {sM}, {TG0}", f"v_and_or_b32 v{reg+1}, v{reg+1}, {sM}, {TG1}",
         lambda: g(f"buffer_store_dwordx4 {vr(reg)}, {vL16}, {SWS}, {base} offen offset:{off}{LSC if tag == 'st' else ' sc1'}", tag=tag)]
    return l


def untag(reg):
    return [f"v_xor_b32 v{reg}, {TG0}, v{reg}", f"v_xor_b32 v{reg+1}, {TG1}, v{reg+1}"]


def EH(b, base, off, prev=None):
    h = [f"v{b+i}" for i in range(8)]
    e = [f"v{TMP+i}" for i in range(8)]
    u = [f"v{TMP+8+i}" for i in range(8)]
    ins = []
    for i in range(8): ins.append(f"v_mul_f32 {e[i]}, {sLOG2E}, {h[i]}")
    if prev is not None: ins += untag(prev)
    for i in range(8): ins.append(f"v_exp_f32 {e[i]}, {e[i]}")
    for i in range(8): ins.append(f"v_fma_f32 {u[i]}, {e[i]}, 0.5, 1.0")
    for i in range(8): ins.append(f"v_fma_f32 {u[i]}, -{e[i]}, {u[i]}, -1.0")
    for i in range(8): ins.append(f"v_rcp_f32 {u[i]}, {u[i]}")
    for i in range(8): ins.append(f"v_fmac_f32 {h[i]}, {h[i]}, {u[i]}")
    for i in range(4): ins.append(f"v_cvt_pk_bf16_f32 {h[i]}, {h[2*i]}, {h[2*i+1]}")
    return ins + tstore(b, base, off)


def PH(b):
    h = [f"v{b+i}" for i in range(8)]
    e = [f"v{TMP+i}" for i in range(8)]
    ins = []
    for i in range(8): ins.append(f"v_mul_f32 {e[i]}, {sLOG2E}, {h[i]}")
    for i in range(8): ins.append(f"v_exp_f32_e64 {e[i]}, {e[i]} clamp")
    for i in range(8): ins.append(f"v_max_f32 {h[i]}, {sEPS}, {h[i]}")
    for i in range(8): ins.append(f"v_add_f32 {h[i]}, {e[i]}, {h[i]}")
    for i in range(4): ins.append(f"v_cvt_pk_bf16_f32 {h[i]}, {h[2*i]}, {h[2*i+1]}")
    return ins


def cost(x):
    if not isinstance(x, str): return 4
    return 8 if x.startswith(("v_exp", "v_rcp")) else 4


def merge(main, side):
    tot = sum(cost(x) for x in main); n = len(side); k = 0; acc = 0; out = []
    for x in main:
        while k < n and acc >= tot * k / n:
            out.append(side[k]); k += 1
        out.append(x); acc += cost(x)
    return out + side[k:]


class Item:
    def __init__(s, addr, imm, second, buf, acc, other, orient="T", zero=False, D=3, lg=(), vm=()):
        s.addr, s.imm, s.second, s.buf, s.acc, s.other, s.orient, s.zero, s.D = addr, imm, second, buf, acc, other, orient, zero, D
        s.lg, s.vm = list(lg), list(vm)
        s.bar = None
        s.rvm = []
        s.post = []
        s.pre = []


def spread(items, lo, hi, fill):
    tot = sum(cost(x) for x in fill); n = hi - lo; acc = 0
    for x in fill:
        k = min(n - 1, int(acc * n / tot)) if tot else 0
        items[lo + k].post.append(x); acc += cost(x)


def run(items):
    N = len(items); nxt = 0
    prev = {}
    for m, it in enumerate(items):
        it.prev = max([p for b, p in prev.items() if b == it.buf], default=-1)
        prev[it.buf] = m
    for n in range(N):
        while nxt < N and nxt <= n + items[nxt].D and items[nxt].prev < n:
            it = items[nxt]
            if it.bar is not None:
                if nxt - n > it.bar.get("lead", 0): break
                emit(it.bar.get("before", []))
                sb = OPT["sb0"] <= nxt <= OPT["sb1"]
                if sb: stamp(f"pre{nxt}"); g("s_waitcnt lgkmcnt(0)")
                lgw = list(it.bar.get("lg") or [])
                if it.bar.get("drain"): lgw += [t for t in g.lg if t]
                g.wait(vm=it.bar.get("vm"), lg=lgw or None)
                emit(it.bar.get("at", []))
                if sb: stamp(f"at{nxt}"); g("s_waitcnt lgkmcnt(0)")
                g("s_barrier")
                if sb: stamp(f"bar{nxt}")
                it.bar_at = n
                emit(it.bar.get("after", []))
                items[n].pre += it.bar.get("after2", [])
                it.bar = None
            if it.rvm: g.wait(vm=it.rvm)
            if it.second is None:
                g(f"ds_read_b128 {vr(it.buf)}, {it.addr} offset:{it.imm}", tag=f"w{nxt}")
            else:
                g(f"ds_read_b64_tr_b16 {vr(it.buf, 2)}, {it.addr} offset:{it.imm}", tag=f"w{nxt}")
                if True:
                    g(f"ds_read_b64_tr_b16 {vr(it.buf+2, 2)}, {it.addr} offset:{it.imm + it.second}", tag=f"w{nxt}")
            nxt += 1
        assert nxt > n
        it = items[n]
        emit(it.pre)
        g.wait(vm=it.vm or None, lg=[f"w{n}"] + it.lg)
        c = 0 if it.zero else vr(it.acc, 16)
        if it.orient == "T": mfma(it.acc, vr(it.buf), vr(it.other), c)
        else: mfma(it.acc, vr(it.other), vr(it.buf), c)
        emit(it.post)
        if OPT["sper"] and n % OPT["sper"] == OPT["sper"] - 1 and OPT["s0"] <= n < OPT["s1"]: stamp(f"i{n}")


ENTRY = KN + "_kernel"
def prologue():
    if STAMP:
        g(f"s_memtime {sTM}")
        g("s_memrealtime s[6:7]")
        g(f"v_mov_b32 {vSTAMP}, 0")
        g("s_mov_b32 s3, 0")
    g(f"""
    s_cmp_ge_u32 s2, 256
    s_cbranch_scc1 END
    s_load_dwordx16 s[8:23], s[0:1], 0
    s_load_dwordx4 s[24:27], s[0:1], 64
    s_load_dwordx2 s[28:29], s[0:1], 80
    s_getpc_b64 s[30:31]
    s_and_b32 {sT}, s2, 0xf8
    v_lshrrev_b32 v64, 6, v0
    v_add_u32 v65, {sT}, v64
    v_lshlrev_b32 v65, 7, v65
    v_min_u32 v65, CODE_END-{ENTRY}-256, v65
    s_mov_b64 exec, 1
    """)
    g("global_load_dword v255, v65, s[30:31]", tag="cp")
    g(f"""
    s_mov_b64 exec, -1
    v_and_b32 {vLANE}, 63, v0
    v_readfirstlane_b32 {sW}, v64
    s_lshr_b32 {sTT}, s2, 6        ; t
    s_bfe_u32 {sR8}, s2, 0x30003
    s_and_b32 {sRB}, s2, 1
    s_lshl_b32 {sRB}, {sRB}, 3
    s_or_b32 {sRB}, {sRB}, {sR8}
    s_bfe_u32 {sKQ}, s2, 0x20001
    s_lshr_b32 {sISW1}, {sTT}, 1
    s_and_b32 {sPAR}, {sTT}, 1
    s_lshl_b32 {sCGI}, {sKQ}, 1
    s_or_b32 {sCGI}, {sCGI}, {sPAR}
    s_lshl_b32 {sROT}, {sTT}, 1
    s_xor_b32 {sROT}, {sROT}, {sR8}
    """)
    if OPT["rotm"] != 7: g(f"s_and_b32 {sROT}, {sROT}, {OPT['rotm']}")
    g(f"""
    s_and_b32 {sRW}, {sW}, 3
    s_lshr_b32 {sCLS}, {sW}, 2
    s_lshl_b32 {sW1K}, {sW}, 10
    s_lshl_b32 {sSTR}, {sISW1}, 9
    s_add_u32 {sSTR}, {sSTR}, 3072
    s_lshl_b32 {sXR}, {sRB}, 17
    s_lshl_b32 {sT}, {sROT}, 7
    s_or_b32 {sXR}, {sXR}, {sT}
    v_lshrrev_b32 v64, 3, v0               ; w*8+l3
    v_and_b32 v65, 7, v0                   ; pos
    v_bfe_u32 v67, v0, 4, 3                ; (row>>1)&7
    v_xor_b32 v67, v67, v65
    v_lshlrev_b32 v67, 4, v67
    v_lshl_add_u32 {vXD}, v64, 10, v67
    v_bfe_u32 v67, v0, 4, 1
    v_lshlrev_b32 v67, 2, v67
    v_xor_b32 v67, v67, v65                ; pw
    v_lshlrev_b32 v68, 4, v67
    v_mul_lo_u32 v69, v64, {sSTR}
    v_add_u32 {vWDB}, v69, v68
    s_mul_i32 {sP[3]}, {sCGI}, 448
    s_lshl_b32 {sT2}, {sPAR}, 6
    s_add_u32 {sP[0]}, {sP[3]}, {sT2}
    s_add_u32 {sP[1]}, {sP[0]}, 128
    s_add_u32 {sP[2]}, {sP[0]}, 256
    s_cmp_eq_u32 {sPAR}, 0
    s_cselect_b32 {sT2}, 384, 0
    s_add_u32 {sP[3]}, {sP[3]}, {sT2}
    s_cmp_eq_u32 {sISW1}, 1
    s_cbranch_scc1 PRO_w1
    s_lshl_b32 {sP[2]}, {sCGI}, 7
    s_add_u32 {sP[0]}, {sP[2]}, 1024
    s_add_u32 {sP[1]}, {sP[2]}, 2048
    """)
    g.label("PRO_w1")
    g(f"s_lshl_b32 {sT}, {sSTR}, 6")
    for c in range(8):
        g(f"s_xor_b32 {sWC[c]}, {sROT}, {c}")
        g(f"s_mul_i32 {sWC[c]}, {sWC[c]}, {sT}")
    g(f"""
    v_add_u32 {vWDa}, {sP[0]}, {vWDB}
    v_add_u32 {vWDb}, {sP[1]}, {vWDB}
    s_mov_b32 s34, 0x200000
    s_mov_b32 s35, 0x20000
    s_mov_b32 s39, 0x20000
    s_lshl_b32 s38, {sSTR}, 9
    s_mul_i32 s58, {sISW1}, 2560
    s_add_u32 s58, s58, 1024
    s_mov_b32 s59, 0x20000
    """)
    if OPT["pst"]:
        g("s_waitcnt lgkmcnt(3)")
        stamp("prek")
    g(f"""
    s_cmp_eq_u32 {sISW1}, 1
    s_waitcnt lgkmcnt(0)
    s_mov_b32 s32, s8
    s_cselect_b32 s36, s16, s10
    s_cselect_b32 s37, s17, s11
    s_cselect_b32 s56, s18, s22
    s_cselect_b32 s57, s19, s23
    s_and_b32 s33, s9, 0xffff
    s_and_b32 s37, s37, 0xffff
    s_and_b32 s57, s57, 0xffff
    """)
    def ps(n):
        if OPT["pst"] and STAMP:
            stamp(n); g("s_waitcnt lgkmcnt(0)")
    ps("karg")
    h = head()
    emit(h[:3])
    ps("ck0")
    if OPT["pb"]: g("s_barrier")
    emit(h[3:OPT["np1"]])
    ps("ck1")
    setup2()
    ps("set2")
    emit(h[OPT["np1"]:OPT["np2"]])
    ps("ck2")
    g(f"s_cmp_eq_u32 {sISW1}, 0")
    g("s_cbranch_scc1 QQ")


def setup2():
    if STAMP:
        g(f"v_writelane_b32 {vSTAMP}, s6, 62")
    g(f"""
    s_mov_b32 s60, s26
    s_and_b32 s61, s27, 0xffff
    s_mov_b32 s62, 256
    s_mov_b32 s63, 0x20000
    s_or_b32 {sT}, s2, {sW}
    s_cbranch_scc1 S2_non
    """)
    with g.optional():
        g(f"""
        s_memrealtime s[4:5]
        s_waitcnt lgkmcnt(0)
        s_mul_i32 {sT}, s4, 0x9e3779b1
        s_or_b32 {sT}, {sT}, 1
        v_mov_b32 v66, {sT}
        s_mov_b64 exec, 1
        buffer_store_dword v66, off, {SDBG}, 0 sc1
        s_mov_b64 exec, -1
        """)
    g.label("S2_non")
    g(f"""
    s_mov_b32 s40, s20
    s_and_b32 s41, s21, 0xffff
    s_mov_b32 s42, 0x1c0000
    s_mov_b32 s43, 0x20000
    s_mov_b32 s44, s12
    s_and_b32 s45, s13, 0xffff
    s_mov_b32 s46, 0x80000
    s_mov_b32 s47, 0x20000
    s_mov_b32 s48, s28
    s_and_b32 s49, s29, 0xffff
    s_mov_b32 s50, {WS_SIZE:#x}
    s_mov_b32 s51, 0x20000
    s_mov_b32 s52, s24
    s_and_b32 s53, s25, 0xffff
    s_mov_b32 s54, 0x200000
    s_mov_b32 s55, 0x20000
    s_mov_b32 {sLOG2E}, 0x3fb8aa3b
    s_mov_b32 {sEPS}, 0x358637bd
    s_mov_b32 {sM}, 0xfffefffe
    s_mov_b32 {sTB}, 0x10001
    s_mov_b32 {sCNT}, 0
    v_and_b32 v64, 31, v64                 ; rw*8+l3
    v_lshl_add_u32 {vW2D}, v64, 10, v68
    v_lshrrev_b32 v69, 2, v67
    v_lshl_add_u32 v69, v69, 5, v64
    v_mul_lo_u32 v69, v69, {sSTR}
    v_and_b32 v70, 3, v67
    v_lshl_add_u32 v69, v70, 4, v69
    v_add_u32 {vUD}, {sP[3]}, v69
    s_lshl_b32 {sT}, {sTT}, 8
    s_lshl_b32 {sT2}, {sKQ}, 17
    s_add_u32 {sT2}, {sT2}, {sT}
    v_add_u32 {vWOD}, {sT2}, {vW2D}
    s_mul_i32 {sT2}, {sKQ}, {448*1024}
    s_add_u32 {sT2}, {sT2}, {sT}
    v_add_u32 {vW2D}, {sT2}, {vW2D}
    v_and_b32 v64, 31, {vLANE}             ; row
    v_lshrrev_b32 v65, 5, {vLANE}          ; h
    v_bfe_u32 v66, {vLANE}, 1, 3           ; m
    v_xor_b32 v66, v66, v65                ; h ^ m
    s_lshl_b32 {sT}, {sCLS}, 2
    v_xor_b32 v66, {sT}, v66
    s_lshl_b32 {sT}, {sRW}, 12
    v_lshl_add_u32 v67, v64, 7, {sT}
    """)
    for sp in range(4):
        g(f"v_xor_b32 v68, {2*sp}, v66")
        g(f"v_lshl_add_u32 {vX[sp]}, v68, 4, v67")
    g(f"""
    v_bfe_u32 v68, {vLANE}, 2, 2           ; r
    v_lshlrev_b32 v69, 7, v68
    v_bfe_u32 v68, {vLANE}, 3, 1
    v_lshl_add_u32 v69, v68, 6, v69
    v_bfe_u32 v68, {vLANE}, 4, 1
    v_lshl_add_u32 {vT0}, v68, 5, v69
    v_and_b32 v68, 3, {vLANE}
    v_lshl_add_u32 v69, v68, 3, {vT0}
    v_lshl_add_u32 v69, v65, 10, v69
    s_mul_i32 {sT}, {sCLS}, {4096+64}
    s_add_u32 {sT}, {sT}, {LC}
    v_xor_b32 {vWlo}, {sT}, v69
    v_xor_b32 {vWhi}, 0x1000, {vWlo}
    s_mul_i32 {sT}, {sCLS}, {64+32}
    s_add_u32 {sT}, {sT}, {LC}
    v_xor_b32 {vU}, {sT}, v69
    v_lshl_add_u32 {vT0}, v65, 9, {vT0}
    v_and_b32 v68, 1, {vLANE}
    v_lshl_add_u32 {vT0}, v68, 4, {vT0}
    v_bfe_u32 v68, {vLANE}, 1, 1
    v_lshl_add_u32 {vT0}, v68, 3, {vT0}
    s_and_b32 {sT}, {sKQ}, 1
    s_lshl_b32 {sT}, {sT}, 6
    s_lshl_b32 {sT2}, {sCLS}, 5
    s_or_b32 {sT}, {sT}, {sT2}
    v_xor_b32 {vT0}, {sT}, {vT0}
    v_lshlrev_b32 {vL16}, 4, {vLANE}
    ; rotation constants (r8' = r8 ^ cls)
    s_xor_b32 {sT3}, {sR8}, {sCLS}
    s_lshr_b32 {sT}, {sKQ}, 1
    s_xor_b32 {sT}, {sT}, {sT3}
    s_xor_b32 {sT}, {sT}, 1
    s_and_b32 {sT}, {sT}, 1
    s_lshl_b32 {sT}, {sT}, 7               ; (b0^ho)<<7
    s_and_b32 {sT2}, {sR8}, 2
    s_lshl_b32 {sT2}, {sT2}, 14            ; b1<<15
    s_or_b32 {sRs}, {sT}, {sT2}
    s_lshl_b32 {sT2}, {sPAR}, 15
    s_xor_b32 {sRu}, {sRs}, {sT2}
    s_lshr_b32 {sT}, {sR8}, 2
    s_xor_b32 {sT}, {sT}, {sPAR}
    s_lshl_b32 {sT2}, {sT}, 16
    s_or_b32 {sRo}, {sRs}, {sT2}
    s_lshl_b32 {sT2}, {sT}, 18
    s_or_b32 {sRs}, {sRs}, {sT2}
    s_lshl_b32 {sT}, {sT3}, 12
    s_lshl_b32 {sT2}, {sRW}, 10
    s_or_b32 {sRm}, {sT}, {sT2}
    s_and_b32 {sRmu}, {sRm}, 0x3fff
    s_lshl_b32 {sT}, {sRW}, 2
    s_add_u32 {sT}, {sT}, {sKQ}
    s_lshl_b32 {sT}, {sT}, 2
    s_add_u32 {sT}, {sT}, {sCLS}
    s_lshl_b32 {sT2}, {sPAR}, 1
    s_add_u32 {sAp}, {sT}, {sT2}
    s_xor_b32 {sAo}, {sAp}, 2
    s_mul_i32 {sAp}, {sAp}, 10240
    s_mul_i32 {sAo}, {sAo}, 10240
    s_lshl_b32 {sT3}, {sRB}, 20
    s_add_u32 {sAp}, {sAp}, {sT3}
    s_add_u32 {sAo}, {sAo}, {sT3}
    s_lshl_b32 {sT}, {sTT}, 3
    s_add_u32 {sT}, {sT}, {sW}
    s_mul_i32 {sT}, {sT}, 12288
    s_lshl_b32 {sT2}, {sKQ}, 10
    s_add_u32 {sT}, {sT}, {sT2}
    s_add_u32 {sT}, {sT}, {sT3}
    s_add_u32 {sPART}, {sT}, {PARTO:#x}
    ; out
    s_lshl_b32 {sT}, {sRB}, 2
    s_add_u32 {sT}, {sT}, {sRW}
    s_lshl_b32 {sOUT}, {sT}, 15
    s_lshl_b32 {sT}, {sTT}, 8
    s_add_u32 {sOUT}, {sOUT}, {sT}
    s_lshl_b32 {sT}, {sKQ}, 6
    s_add_u32 {sOUT}, {sOUT}, {sT}
    s_lshl_b32 {sT}, {sCLS}, 5
    s_add_u32 {sOUT}, {sOUT}, {sT}
    s_lshl_b32 {sT}, {sRB}, 2
    s_add_u32 {sT2}, {sT}, {sRW}
    s_lshl_b32 {sT2}, {sT2}, 2
    s_add_u32 {sT2}, {sT2}, {sKQ}
    s_lshl_b32 {sT2}, {sT2}, 1
    s_add_u32 {sT2}, {sT2}, {sCLS}
    s_lshl_b32 {sT2}, {sT2}, 7
    s_add_u32 {sFA}, {sT2}, {FA:#x}
    s_lshl_b32 {sT2}, {sTT}, 4
    s_add_u32 {sPUB}, {sFA}, {sT2}
    s_add_u32 {sT}, {sT}, {sTT}
    s_lshl_b32 {sT}, {sT}, 3
    s_add_u32 {sT}, {sT}, {sW}
    s_lshl_b32 {sT}, {sT}, 2
    s_add_u32 {sT}, {sT}, {sKQ}
    s_lshl_b32 {sT}, {sT}, 7
    s_add_u32 {sFP}, {sT}, {FP:#x}
    s_lshl_b32 {sFK}, {sCGI}, 9
    s_add_u32 {sFK}, {sFK}, {FK:#x}
    s_lshl_b32 {sKV}, {sCGI}, 16
    s_add_u32 {sKV}, {sKV}, {KVP:#x}
    """)
    if OPT["sp"]:
        g(f"s_cmp_eq_u32 {sCLS}, 0")
        g("s_cbranch_scc1 S2_sp")
        g(f"s_setprio {OPT['sp']}")
        g.label("S2_sp")


def tlbt(lab):
    def f():
        g(f"s_cmp_lg_u32 {sW}, 7")
        g(f"s_cbranch_scc1 TLB_{lab}")
        with g.optional():
            g(f"s_mul_i32 {sT2}, {sKQ}, {448*1024}")
            g("s_mov_b64 exec, 1")
            g(f"buffer_load_dword {vE1}, off, {SWS}, {sPART}")
            g(f"buffer_load_dword {vE1}, off, {SWS}, {sKV}")
            g(f"buffer_load_dword {vE1}, off, {SOUT}, {sOUT}")
            g(f"buffer_load_dword {vE1}, off, {SW2}, {sT2}")
            g(f"buffer_load_dword {vE1}, off, {SWO}, 0")
            g("s_mov_b64 exec, -1")
        g.label(f"TLB_{lab}")
    return f


def ftouch():
    g(f"s_lshr_b32 {sT}, {sW}, 1")
    g(f"s_lshl_b32 {sT}, {sT}, 7")
    g(f"s_add_u32 {sT}, {sT}, {sFK}")
    g(f"v_mov_b32 {vE0}, {sFA}")
    g(f"v_writelane_b32 {vE0}, {sFP}, 1")
    g(f"v_writelane_b32 {vE0}, {sT}, 2")
    g("s_mov_b64 exec, 7")
    g(f"buffer_load_dword {vE1}, {vE0}, {SWS}, 0 offen sc1", tag="tw")
    g("s_mov_b64 exec, -1")


def nonce(lab):
    def f():
        g("s_waitcnt lgkmcnt(0)")
        g(f"s_cmp_eq_u32 {sNON}, 0")
        g(f"s_cbranch_scc1 RT_{lab}")
        g.label(f"OK_{lab}")
        class R:
            name = lab
            @staticmethod
            def retry():
                g(f"s_add_u32 {sCNT}, {sCNT}, 1")
                g(f"s_cmp_gt_u32 {sCNT}, {OPT['lim']}")
                g(f"s_cbranch_scc1 OK_{lab}")
                g(f"buffer_load_dword {TG0}, off, {SDBG}, 0 sc1")
                g("s_waitcnt vmcnt(0)")
                g(f"v_readfirstlane_b32 {sNON}, {TG0}")
                g(f"s_cmp_eq_u32 {sNON}, 0")
                g(f"s_cbranch_scc1 RT_{lab}")
                g(f"s_branch OK_{lab}")
        retries.append(R)
        g(f"v_and_b32 {TG1}, 7, {vLANE}")
        g(f"v_lshrrev_b32_e64 {TG0}, {TG1}, {sNON}")
        g(f"v_lshrrev_b32 {TG1}, 8, {TG0}")
        g(f"v_and_b32 {TG0}, {sTB}, {TG0}")
        g(f"v_and_b32 {TG1}, {sTB}, {TG1}")
        g(f"v_mov_b32 {vNON}, {sNON}")
    return f


def setFA():
    return [f"s_lshl_b32 {sT}, {sPAR}, 2", f"v_xor_b32 {vPA}, {sT}, {vLANE}", f"v_lshl_add_u32 {vPA}, {vPA}, 2, {sFA}"]


def ident(I):
    a, b, c = vE0, vE1, vCHK
    l = [f"v_mov_b32 {b}, 0x3f80",
         f"v_and_b32 {a}, 1, {vLANE}",
         f"v_lshlrev_b32 {a}, 4, {a}",
         f"v_lshlrev_b32 {a}, {a}, {b}",
         f"v_lshrrev_b32 {b}, 3, {vLANE}",
         f"v_xor_b32 {b}, {b}, {vLANE}",
         f"v_and_b32 {b}, 4, {b}",
         f"v_and_b32 {c}, 0x1a, {vLANE}",
         f"v_or_b32 {b}, {b}, {c}"]
    def f():
        emit(l)
        for k, key in enumerate((0, 2, 8, 10)):
            g(f"v_cmp_eq_u32 vcc, {key}, {b}")
            g(f"v_cndmask_b32 v{I+k}, 0, {a}, vcc")
    return f


def wadd(d):
    return [f"v_add_u32 {r}, {d:#x}, {r}" if d > 0 else f"v_subrev_u32 {r}, {-d:#x}, {r}" for r in (vWlo, vWhi)]


def place(it, lo, hi, fs):
    n = len(fs)
    for i, f in enumerate(fs): it[lo + (hi - lo) * i // n].post.append(f)


def phase1(orient, cbufs, lab, ev=[], late=[]):
    it = []
    for s in range(32):
        c = s >> 2; sp = s & 3
        it.append(Item(vWlo if sp < 2 else vWhi, (c & 3) * 8192 + (sp & 1) * 2048, 512,
                       64 + 4 * (s % 8), ACC0, XR + 4 * s, orient, zero=(s == 0), D=OPT["D"], lg=[f"xr{s}"]))
    wb = WBs()
    if OPT["ew"]: wb0, wb = wb[0], wb[1:]
    wc = WCs()
    if OPT["ev"]: wb = wb + wc[:1] + ev; wc = wc[1:]
    extra = {0: head()[OPT["np2"]:], 5: wb[:3], 6: wb[3:6], 7: wb[6:]}
    for c in range(8):
        def xr(c=c):
            for sp in range(4):
                g(f"ds_read_b128 {vr(XR+16*c+4*sp)}, {vX[sp]} offset:{(c & 3) * 16384}", tag=f"xr{4*c+sp}")
        nx = extra[c] if c in extra else CK(c + 3)
        if OPT["ew"] == 2 and c == 1: nx = nx + [wb0]
        if c == 1: nx = nx + late
        k = OPT["dsp"]
        it[4 * c].bar = dict(vm=[f"ck{c}"], lead=OPT["BL"], drain=True, after=[xr], after2=nx[:k])
        b0 = max(0, 4 * c - OPT["BL"]); b1 = 4 * c + 4 - OPT["BL"]
        nx = nx[k:]
        for j, f in enumerate(nx): it[b0 + (j if len(nx) <= b1 - b0 else j * (b1 - b0) // len(nx))].post.append(f)
    for s in range(32):
        c = s >> 2; sp = s & 3
        it.append(Item(vWlo if sp < 2 else vWhi, c * 8192 + (sp & 1) * 2048, 512, 64 + 4 * (s % 8), ACC1, XR + 4 * s, orient,
                       zero=(s == 0), D=OPT["D"]))
    for s in range(32):
        c = s >> 2; sp = s & 3
        it.append(Item(vWlo if sp < 2 else vWhi, c * 8192 + (sp & 1) * 2048, 512, cbufs[s % len(cbufs)], ACC2, XR + 4 * s,
                       zero=(s == 0), D=OPT["DP"]))
    it[32].bar = dict(vm=["wb0", "wb1"], lead=OPT["BL"], drain=True, after=wadd(LB - LC))
    it[40].bar = dict(vm=["wb2", "wb3", "wb4"], lead=OPT["BL2"])
    it[52].bar = dict(vm=["wb5", "wb6", "wb7"], lead=OPT["BL2"])
    it[64].bar = dict(vm=[f"wc{c}" for c in range(4)], lead=OPT["BL2"], drain=True, after=wadd(-LB))
    it[80].bar = dict(vm=[f"wc{c}" for c in range(4, 8)], lead=OPT["BL2"])
    place(it, OPT["wc0"], OPT["wc1"], wc)
    it[10].post.append(f"s_load_dword {sNON}, s[26:27], 0")
    it[27].post.append(nonce(lab))
    if OPT["tw"]: it[OPT["tw"]].post.append(touch)
    if OPT["tlb"]: it[OPT["tlp"]].post.append(tlbt(lab))
    if OPT["ft"]: it[OPT["ft"]].post.append(ftouch)
    return it


def p2items(steps, bufs, nb):
    nt3 = OPT["t3"]
    order = []
    for p in range(18): order += [(p, t) for t in range(4)]
    defer = [(p, 3) for p in range(18 - nt3, 18)]
    order = [o for o in order if o not in defer] + defer
    seen = set(); it = []
    for n, (p, t) in enumerate(order):
        breg, ar, off = steps[p]
        it.append(Item(ar[t & 1], off + (t >> 1) * 4096, 1024, bufs[n % len(bufs)], TACC + 16 * t, breg,
                       zero=(t not in seen), D=OPT["D2"]))
        seen.add(t)
    first = {p: min(i for i, (q, _) in enumerate(order) if q == p) for p in range(18)}
    return it, order, len(order) - nt3, first


aA, aB, aC = ("v6", "v7"), ("v8", "v9"), ("v10", "v11")
vXW, vXRd, vOA, vFA = "v12", "v24", "v25", "v27"


def p2addr():
    return [f"s_lshl_b32 {sT}, {sCLS}, 13",
            f"v_add_u32 v7, {sT}, {vT0}",
            "v_xor_b32 v6, 64, v7",
            f"v_add_u32 v8, {LB}, v6",
            f"v_add_u32 v9, {LB}, v7",
            f"s_lshl_b32 {sT}, {sCLS}, 11",
            f"s_add_u32 {sT}, {sT}, {LC+16384}",
            f"v_add_u32 v11, {sT}, {vT0}",
            "v_xor_b32 v10, 64, v11"]


def p2misc():
    g(f"s_lshl_b32 {sT}, {sW}, 13")
    g(f"v_add_u32 {vXW}, {sT}, {vL16}")
    g(f"v_xor_b32 {vXRd}, 0x8000, {vXW}")
    g(f"v_and_b32 {vOA}, 31, {vLANE}")
    g(f"v_lshlrev_b32 {vOA}, 10, {vOA}")
    g(f"v_lshrrev_b32 v3, 5, {vLANE}")
    g(f"v_lshl_add_u32 {vOA}, v3, 4, {vOA}")
    g(f"s_lshl_b32 {sT}, {sW}, 11")
    g(f"s_add_u32 {sT}, {sT}, {LC}")
    g(f"v_add_u32 v3, {sT}, {vL16}")
    g(f"v_xor_b32 v26, 0x2000, v3")
    g(f"v_sub_u32 {vFA}, 3, {vLANE}")
    g(f"v_lshlrev_b32 {vFA}, 7, {vFA}")
    g(f"v_xor_b32 {vFA}, {sFP}, {vFA}")
    g(f"v_lshl_add_u32 {vFA}, {vLANE}, 2, {vFA}")
    g(f"v_add_u32 v19, {LB}, {vXW}")
    g(f"v_add_u32 v21, {LB}, {vXRd}")


def p2tail(role, it, base, nx, XB, IDENT, vSC):
    PR = 52
    N = len(it) - base
    def xsend012():
        for t, (a, o) in enumerate((("v19", 0), ("v19", 2048), ("v3", 0))):
            for i in range(2):
                g(f"ds_write_b128 {a}, {vr(TACC+16*t+8+4*i)} offset:{o+i*1024}", tag="xw")
    def xrecv012():
        g.wait(lg="xw")
        g("s_barrier")
        for t, (a, o) in enumerate((("v21", 0), ("v21", 2048), ("v26", 0))):
            for i in range(2):
                g(f"ds_read_b128 {vr(XB[t]+4*i)}, {a} offset:{o+i*1024}", tag=f"xr{t}")
    def xfin(t):
        def f():
            g(f"s_xor_b32 {sT}, {sPART}, {(3-t) << 10:#x}")
            if t: g(f"s_add_u32 {sT}, {sT}, {t*4096}")
            g.wait(lg=f"xr{t}")
            for i in range(8): g(f"v_add_f32 v{XB[t]+i}, v{XB[t]+i}, v{TACC+16*t+i}")
            for i in range(4): g(f"v_cvt_pk_bf16_f32 v{XB[t]+i}, v{XB[t]+2*i}, v{XB[t]+2*i+1}")
            emit(tstore(XB[t], sT, 0, tag="pst"))
        return f
    GP = Grp(role + "pr", [(PR + 4 * t, sPART, t * 4096) for t in range(3)])
    it[base + nx - 1].post.append(st("t012"))
    def pflag():
        g("s_mov_b64 exec, 7")
        g(f"buffer_store_dword {vNON}, {vFA}, {SWS}, 0 offen sc1", tag="pub")
        g("s_mov_b64 exec, -1")
        g(f"v_lshl_add_u32 {vPA}, {vLANE}, 2, {sFP}")
    xs = [xsend012, xrecv012, xfin(0), xfin(1), lambda: (xfin(2)(), stamp("pst"))]
    k = {0: 4, 1: 0, 2: 1, 3: 2}[OPT["efp"]]
    xs[k] = (lambda f: lambda: (f(), pflag()))(xs[k])
    for i, f in enumerate(xs): it[base + min(nx + i, N - 1)].post.append(f)
    it[base + max(min(nx + 5, N - 1), N - 1 - OPT["prl"])].post.append(poll_issue)
    def tail():
        T3 = TACC + 48
        for i in range(2):
            g(f"ds_write_b128 {vXW}, {vr(T3+8+4*i)} offset:{i*1024}", tag="xw")
        g.wait(lg="xw")
        g("s_barrier")
        for i in range(2):
            g(f"ds_read_b128 {vr(XB[3]+4*i)}, {vXRd} offset:{i*1024}", tag="xr3")
        stamp("xb1")
        take(7)()
        stamp("pflag")
        emit(GP.loads())
        g.wait(lg="xr3")
        for i in range(8): g(f"v_mul_f32 v{XB[3]+i}, {vSC}, v{XB[3]+i}")
        emit(GP.check())
        stamp("pok")
        for t in range(3):
            mfma(T3, vr(IDENT), vr(PR + 4 * t), vr(T3, 16))
        for i in range(8): g(f"v_fmac_f32 v{XB[3]+i}, {vSC}, v{T3+i}")
        for i in range(4): g(f"v_cvt_pk_bf16_f32 v{XB[3]+i}, v{XB[3]+2*i}, v{XB[3]+2*i+1}")
        g(f"buffer_store_dwordx4 {vr(XB[3])}, {vOA}, {SOUT}, {sOUT} offen{' sc1' if OPT['osc'] else ''}")
        if STAMP:
            stamp("end")
            g("s_waitcnt lgkmcnt(0)")
            g(f"v_writelane_b32 {vSTAMP}, s98, {len(SN[ROLE[0]])-1}")
            g(f"v_writelane_b32 {vSTAMP}, {sCNT}, 63")
            g(f"v_writelane_b32 {vSTAMP}, s3, 61")
            g("s_lshl_b32 s3, s2, 3")
            g(f"s_add_u32 s3, s3, {sW}")
            g("s_lshl_b32 s3, s3, 8")
            g(f"s_add_u32 s3, s3, {STP:#x}")
            g(f"v_lshlrev_b32 v9, 2, {vLANE}")
            g(f"buffer_store_dword {vSTAMP}, v9, {SWS}, s3 offen")
        if role == "W": g.label("END")
        g("s_endpgm")
    return tail


def unit(regs, ar, off):
    return [(r, ar, off + s * 2048) for s, r in enumerate(regs)]


def WW():
    g(f"""
    v_mov_b32 v24, 0x3f80
    v_mov_b32 v25, 0
    v_mov_b32 v26, 1.0
    v_mov_b32 v27, 0
    v_mov_b32 v28, 0
    v_mov_b32 v29, 0
    v_mov_b32 v30, 0
    v_mov_b32 v31, 0
    v_mov_b32 {vBIAS2}, 0
    v_mov_b32 v62, 0
    v_mov_b32 v63, 0
    s_lshl_b32 {sT}, {sCLS}, 6
    v_lshl_add_u32 v60, {vLANE}, 1, {sT}
    s_lshl_b32 {sT}, {sCLS}, 5
    v_lshl_add_u32 v61, {vLANE}, 1, {sT}
    """)
    def biasld():
        g("s_mov_b32 exec_hi, 0")
        g(f"buffer_load_ushort v28, v60, {SB}, {sP[0]} offen", tag="bias")
        g(f"buffer_load_ushort v62, v60, {SB}, {sP[1]} offen", tag="bias")
        g(f"buffer_load_ushort {vBIAS2}, v60, {SB}, {sP[2]} offen", tag="bias")
        g("s_mov_b32 exec_lo, 0xffff")
        g(f"buffer_load_ushort v63, v61, {SB}, {sP[3]} offen", tag="bias")
        g("s_mov_b64 exec, -1")
    U6 = [du(n) for n in range(4)]
    if not OPT["bl"]: biasld()
    it = phase1("T", [64, 68, 72, 76, 100, 108], "Wn", ev=U6[:1], late=[biasld] if OPT["bl"] else [])
    if OPT["ev"]: U6 = U6[1:]
    for n in range(16):
        c, j = n >> 1, n & 1
        it.append(Item(vU, c * 4096 + j * 2048, 512, (64, 68, 72, 76, 100, 108)[(n + 2) % 6], ACC3, XR + 16 * c + 4 * j, D=OPT["DP"]))
    def bias1():
        g.wait(vm="bias")
        g("v_lshl_or_b32 v28, v62, 16, v28")
        g(f"v_lshl_or_b32 {vBIAS2}, v63, 16, {vBIAS2}")
        mfma(ACC0, "v[28:31]", "v[24:27]", vr(ACC0, 16))
    it[19].post.append(bias1)
    it[21].post.append(lambda: mfma(ACC1, "v[28:31]", "v[26:29]", 0))
    it[32].zero = False
    it[23].post.append(f"v_mov_b32 v28, {vBIAS2}")
    it[25].post.append(lambda: mfma(ACC3, "v[28:31]", "v[26:29]", 0))
    it[64].post.append(lambda: mfma(ACC2, "v[28:31]", "v[24:27]", vr(ACC2, 16)))
    it[28].post.append(f"s_add_u32 {sST}, {sAp}, 0x1000")
    it[96].bar = dict(vm=["u6"], lead=OPT["BL2"], drain=True)
    Ga = Grp("Wga", [(r, sAo, i * 1024) for i, r in enumerate((136, 140, 152, 156))])
    Gc = Grp("Wgc", [(r, sAo, 4096 + i * 1024) for i, r in enumerate((168, 172, 184))])
    Go = Grp("Wgo", [(128, sAp, 7168), (132, sAp, 8192), (188, sAp, 9216), (144, sAo, 7168), (148, sAo, 8192)])
    place(it, OPT["u0"], OPT["u1"], U6)
    place(it, OPT["g0"], OPT["g1"], D2A("G0") + D2A("G1"))
    place(it, 97, 111, D2A("P2"))
    assert OPT["ea1"] <= 62
    spread(it, OPT["ea0"], OPT["ea1"], EH(ACC0, sAp, 0) + EH(ACC0 + 8, sAp, 1024, ACC0))
    spread(it, OPT["eb0"], OPT["eb1"], EH(ACC1, sAp, 2048, ACC0 + 8) + EH(ACC1 + 8, sAp, 3072, ACC1))
    def xw():
        for i in range(2): g(f"ds_write_b128 {vE0}, {vr(ACC3+8+4*i)} offset:{i*1024}", tag="xw")
    def xrd():
        for i in range(2): g(f"ds_read_b128 {vr(ACC3+8+4*i)}, {vE1} offset:{i*1024}", tag="xu")
    steps = unit((ACC0, ACC0 + 8), aB, 0) + unit((ACC1, ACC1 + 8), aB, 32768) + \
        unit((136, 140), aB, 16384) + unit((152, 156), aB, 32768 + 16384) + \
        unit((ACC2, ACC2 + 8), aA, 0) + unit((ACC3,), aC, 0) + unit((168, 172), aA, 16384) + unit((184,), aC, 8192) + \
        unit((128, 132), aA, 32768) + unit((144, 148), aA, 32768 + 16384)
    p2, order, nx, first = p2items(steps, [64, 68, 72, 76, 108, 116, 124], None)
    B = len(it); it += p2
    it[96].post += p2addr()
    it[B].bar = dict(vm=["wG0", "wG1"], lead=OPT["D2"], after=[st("P2bar")])
    spread(it, 97, OPT["ec1"], EH(ACC2, sST, 0, ACC1 + 8) + EH(ACC2 + 8, sST, 1024, ACC2))
    it[110].post += [f"s_lshl_b32 {sT}, {sW}, 11", f"s_add_u32 {sT}, {sT}, {LA+32768}", f"v_add_u32 {vE0}, {sT}, {vL16}",
                     f"v_xor_b32 {vE1}, 0x2000, {vE0}"]
    it[B].post += [xw]
    xb = B + 2
    it[xb].post += [lambda: g.wait(lg="xw"), "s_barrier", xrd] + D2A("U")
    eu = [lambda: g.wait(lg="xu")] + [f"v_add_f32 v{ACC3+i}, v{ACC3+i}, v{ACC3+8+i}" for i in range(8)] + \
        EH(ACC3, sST, 2048, ACC2 + 8) + [publish(3), st("ust")]
    e0 = max(xb + 2, OPT["ec1"])
    spread(it, e0, e0 + OPT["eun"], eu)
    assert e0 + OPT["eun"] <= B + first[8] - 2
    fetch(it, B + OPT["wga"], Ga.loads(), None, B + first[4] - 5)
    spread(it, B + first[4] - 4, B + first[4], Ga.check() + [st("gaok")])
    it[B + first[8] - 2].post += untag(ACC3)
    it[B + first[8] + 1].post += [p2misc, ident(100)]
    it[B + first[8]].bar = dict(vm=["wP2", "wU"], lead=OPT["D2"], after2=D2A("O")[:1])
    place(it, B + first[8] - OPT["D2"], B + first[8] - OPT["D2"] + 6, D2A("O")[1:])
    it[B + first[14]].bar = dict(vm=["wO"], lead=OPT["D2"])
    fetch(it, B + OPT["wgc"], Gc.loads(), None, B + first[11] - 4)
    fetch(it, B + OPT["wgo"], Go.loads(), 0x0011, B + first[14] - 4, pl=OPT["wpl"], pre=setFA(), post=[st("gofl")])
    spread(it, B + first[11] - 3, B + first[11], Gc.check() + [st("gcok")])
    spread(it, B + first[14] - 3, B + first[14], Go.check() + [st("gook")])
    assert OPT["wgc"] < first[11] - 3 and OPT["wgo"] < first[14] - 3
    tail = p2tail("W", it, B, nx, [160, 176, 32, 40], 100, "v190")
    run(it)
    tail()


def QQ():
    it = phase1("N", [64, 68, 72, 76], "Qn")
    for n in range(16):
        c, j = n >> 1, n & 1
        x = Item(vU, c * 128 + j * 32, None, 64 + 4 * (n % 4), ACC3, XR + 16 * c + 4 * j, zero=(n == 0), D=OPT["DP"])
        if n == 0: x.rvm = ["gate"]
        it.append(x)
    it[2].post += [f"s_lshl_b32 {sT}, {sW}, 11", f"s_add_u32 {sT}, {sT}, {LC}", f"v_add_u32 v24, {sT}, {vL16}",
                   f"s_and_b32 {sT}, {sRW}, 1", f"s_lshl_b32 {sT}, {sT}, 13", f"s_add_u32 {sT}, {sT}, {LC}",
                   f"v_add_u32 v25, {sT}, {vL16}",
                   f"s_lshl_b32 {sT}, {sCLS}, 6", f"s_add_u32 {sT}, {sT}, {sW1K}", f"s_add_u32 {sT}, {sT}, {LC+8192}",
                   f"v_lshrrev_b32 {vU}, 5, {vLANE}", f"v_lshl_add_u32 {vU}, {vU}, 4, {sT}",
                   f"s_lshl_b32 {sT}, {sROT}, 7", f"v_xor_b32 {vUD}, {sT}, {vL16}"]
    it[4].post += [f"v_mov_b32 v{28+i}, 0x3f803f80" for i in range(4)] + \
                  [f"s_cmp_lt_u32 {sRW}, 2", "s_mov_b32 s5, 0xffff", "s_cselect_b32 s4, s5, 0xffff0000", "s_mov_b32 s5, s4",
                   f"v_add_u32 v26, 1024, {vL16}", f"v_cndmask_b32_e64 v26, v26, {vL16}, {sMK}"]
    def fw(reg, off):
        return lambda: g(f"ds_write_b128 v24, {vr(reg)} offset:{off}", tag="fw")
    vp = []
    for q in range(2):
        vp += [f"v_cvt_pk_bf16_f32 v{ACC1+8*q+i}, v{ACC1+8*q+2*i}, v{ACC1+8*q+2*i+1}" for i in range(4)] + [fw(ACC1 + 8 * q, 16384 + q * 1024)]
    spread(it, OPT["ea0"], OPT["ea1"], PH(ACC0) + [fw(ACC0, 0)] + PH(ACC0 + 8) + [fw(ACC0 + 8, 1024)])
    it[64].post += vp
    def kflag():
        g(f"s_and_b32 {sT2}, {sRW}, 1")
        g(f"s_lshl_b32 {sT2}, {sT2}, 8")
        g(f"s_and_b32 {sT}, {sRB}, 8")
        g(f"s_lshl_b32 {sT}, {sT}, 4")
        g(f"s_add_u32 {sT2}, {sT2}, {sT}")
        g(f"s_lshl_b32 {sT}, {sR8}, 3")
        g(f"s_add_u32 {sT2}, {sT2}, {sT}")
        g(f"s_and_b32 {sT}, {sRW}, 2")
        g(f"s_lshl_b32 {sT}, {sT}, 1")
        g(f"s_add_u32 {sT2}, {sT2}, {sT}")
        g(f"s_add_u32 {sT2}, {sT2}, {sFK}")
        g("s_mov_b64 exec, 1")
        g(f"buffer_store_dword {vNON}, off, {SWS}, {sT2} sc1")
        g("s_mov_b64 exec, -1")
    def job():
        g.wait(lg="fw")
        g("s_barrier")
        g(f"s_cmp_lg_u32 {sCLS}, 0")
        g("s_cbranch_scc1 Q_nojob")
        with g.optional():
            g("s_setprio 3")
            g(f"s_cmp_lt_u32 {sRW}, 2")
            g("s_cbranch_scc1 Q_jobc")
            with g.optional():
                for k in range(8): g(f"ds_read_b128 {vr(96+4*k)}, v25 offset:{k*1024}", tag=f"a{k}")
                if OPT["efk"]: kflag()
                for k in range(8):
                    g.wait(lg=f"a{k}")
                    mfma(ACC3, vr(96 + 4 * k), "v[28:31]", vr(ACC3, 16) if k else 0)
                g("s_branch Q_jobf")
            g.label("Q_jobc")
            for k in range(8):
                g(f"ds_read_b128 {vr(96+4*k)}, v25 offset:{k*1024}", tag=f"a{k}")
                if k < 4: g(f"ds_read_b128 {vr(TMP+4*k)}, v25 offset:{16384+k*1024}", tag=f"a{k}")
            if OPT["efk"]: kflag()
            for k in range(8):
                g.wait(lg=[f"a{k}", f"b{k}"])
                mfma(ACC3, vr(96 + 4 * k), vr(TMP + 4 * k) if k < 4 else vr(96 + 4 * (k - 4)), vr(ACC3, 16) if k else 0)
                if k < 4: g(f"ds_read_b128 {vr(96+4*k)}, v25 offset:{16384+(k+4)*1024}", tag=f"b{k+4}")
            g.label("Q_jobf")
            g(f"s_lshl_b32 {sT}, {sRB}, 12")
            g(f"s_and_b32 {sT2}, {sRW}, 1")
            g(f"s_lshl_b32 {sT2}, {sT2}, 11")
            g(f"s_add_u32 {sT}, {sT}, {sT2}")
            g(f"s_add_u32 {sT}, {sT}, {sKV}")
            for i in range(4): g(f"v_cvt_pk_bf16_f32 v{TMP+i}, v{ACC3+8+2*i}, v{ACC3+8+2*i+1}")
            g(f"s_mov_b64 exec, {sMK}")
            for i in range(4): g(f"v_cvt_pk_bf16_f32 v{TMP+i}, v{ACC3+2*i}, v{ACC3+2*i+1}")
            g("s_mov_b64 exec, -1")
            emit(tstore(TMP, sT, 0)[:2])
            g(f"buffer_store_dwordx4 {vr(TMP)}, v26, {SWS}, {sT} offen sc1")
            if not OPT["efk"]: kflag()
            g("s_setprio 0")
        g.label("Q_nojob")
        g(f"s_lshr_b32 {sT}, {sRW}, 1")
        g(f"s_lshl_b32 {sT}, {sT}, 15")
        g(f"s_add_u32 {sKV}, {sKV}, {sT}")
        g(f"s_and_b32 {sT}, {sRW}, 1")
        g(f"s_lshl_b32 {sT2}, {sCLS}, 1")
        g(f"s_add_u32 {sT}, {sT}, {sT2}")
        g(f"s_lshl_b32 {sT}, {sT}, 10")
        g(f"s_add_u32 {sKV}, {sKV}, {sT}")
        g(f"s_add_u32 {sST}, {sAp}, 7168")
        g(f"s_lshr_b32 {sT}, {sW}, 1")
        g(f"s_lshl_b32 {sT}, {sT}, 7")
        g(f"s_add_u32 {sT}, {sT}, {sFK}")
        g(f"v_lshl_add_u32 {vPA}, {vLANE}, 2, {sT}")
    it[OPT["jb"]].post += [job, st("job")]
    def dgate():
        g(f"s_add_u32 m0, {sW1K}, {LC+8192:#x}")
        g(f"buffer_load_dwordx4 {vUD}, {SB}, 0 offen lds", tag="gate")
    assert OPT["jb"] < 80 - OPT["BL2"]
    it[80].bar["after2"] = [dgate]
    it[96].bar = dict(lead=min(3, OPT["BL2"]), drain=True)
    place(it, OPT["jb"] + 1, OPT["qa"] - 2, D2A("G0") + D2A("G1"))
    place(it, OPT["qa"] + 5, 95, D2A("U"))
    place(it, 96, OPT["qkv"] - 1, D2A("P2"))
    KR = (136, 140, 152, 156, 168, 172, 184, 188)
    Gk = Grp("Qkv", [(KR[r], sKV, r * 4096) for r in range(8)])
    Gp = Grp("Qgp", [(96, sAp, 0), (100, sAp, 1024), (104, sAo, 0), (108, sAo, 1024)])
    Gq = Grp("Qgq", [(112, sAp, 2048), (116, sAp, 3072), (120, sAo, 2048), (124, sAo, 3072)])
    Gc = Grp("Qgc", [(r, sAp, 4096 + i * 1024) for i, r in enumerate((148, 160, 164))] +
             [(r, sAo, 4096 + i * 1024) for i, r in enumerate((176, 180, 168))])
    Go = Grp("Qgo", [(172, sAo, 7168), (184, sAo, 8192)])
    IDENT = 84
    OO, SCQ = 128, 144
    def ksum():
        stamp("kvok")
        if OPT["efo"] == 2: publish(0)()
        for r in range(8): mfma(ACC3, vr(IDENT), vr(KR[r]), vr(ACC3, 16) if r else 0)
        for i in range(4): g(f"v_cvt_pk_bf16_f32 v{TMP+i}, v{ACC3+2*i}, v{ACC3+2*i+1}")
        g(f"ds_write_b128 v24, {vr(TMP)}", tag="kw")
    def kx():
        g.wait(lg="kw")
        g("s_barrier")
        g("ds_read_b32 v29, v27 offset:8192", tag="kl")
        for r in range(4): g(f"ds_read_b128 {vr(KR[r])}, v25 offset:{r*1024}", tag=f"kr{r}")
        if OPT["efo"] == 1: publish(0)()
    def ko():
        g.wait(lg="kl")
        g("v_add_f32 v28, v28, v29")
        g(f"v_mul_f32 v28, {sLOG2E}, v28")
        g("v_min_f32 v28, 0x42640000, v28")
        g("v_exp_f32 v28, v28")
        for r in range(4):
            g.wait(lg=f"kr{r}")
            acc = (TMP, ACC3)[r & 1]
            mfma(acc, vr(KR[r]), vr(ACC2 + 8 * (r & 1)), vr(acc, 16) if r >= 2 else 0)
        g(f"v_add_f32 v{SCQ+2}, 1.0, v28")
        g(f"v_rcp_f32 v{SCQ+2}, v{SCQ+2}")
        g(f"v_mov_b32 v{SCQ}, {TG0}")
        g(f"v_mov_b32 v{SCQ+1}, {TG1}")
        g(f"buffer_store_dwordx4 {vr(SCQ)}, {vL16}, {SWS}, {sST} offen offset:2048{LSC}", tag="st")
        for hd, (num, den) in enumerate(((TMP, TMP + 8), (ACC3 + 8, ACC3))):
            g(f"v_add_f32 v{den}, {sEPS}, v{den}")
            g(f"v_rcp_f32 v{den}, v{den}")
            g(f"v_mul_f32 v{den}, v28, v{den}")
            for i in range(8): g(f"v_mul_f32 v{num+i}, v{den}, v{num+i}")
            for i in range(4): g(f"v_cvt_pk_bf16_f32 v{OO+4*hd+i}, v{num+2*i}, v{num+2*i+1}")
            emit(tstore(OO + 4 * hd, sST, hd * 1024))
        if OPT["efo"] == 0: publish(0)()
        emit(untag(OO) + untag(OO + 4))
        stamp("ost")
    steps = unit((96, 100), aB, 0) + unit((104, 108), aB, 16384) + \
        unit((112, 116), aB, 32768) + unit((120, 124), aB, 32768 + 16384) + \
        unit((OO, OO + 4), aA, 32768) + \
        unit((148, 160), aA, 0) + unit((164,), aC, 0) + unit((176, 180), aA, 16384) + unit((168,), aC, 8192) + \
        unit((172, 184), aA, 32768 + 16384)
    p2, order, nx, first = p2items(steps, [64, 68, 72, 76, 92], None)
    B = len(it); it += p2
    it[96].post += p2addr()
    spread(it, 97, 108, PH(ACC2) + [ident(IDENT)] + PH(ACC2 + 8))
    fetch(it, OPT["qa"], Gp.loads(), None, 107)
    fetch(it, OPT["qkv"], Gk.loads(), 0xffff, B + 40, pl=OPT["qpl"], step=0, post=[st("kvfl")])
    fetch(it, OPT["qb"], Gq.loads(), None, B + first[4] - 5)
    assert OPT["qkv"] >= 96 and OPT["qkv"] - OPT["qpl"] > OPT["jb"] and OPT["qa"] > OPT["jb"]
    spread(it, 108, 112, Gp.check() + [st("gpok")])
    it[B].post += [f"s_add_u32 {sT}, {sW1K}, {LC}", f"v_add_u32 v24, {sT}, {vL16}",
                   f"s_lshl_b32 {sT2}, {sCLS}, 12", f"s_add_u32 {sT2}, {sT2}, {LC}", f"v_add_u32 v25, {sT2}, {vL16}",
                   f"v_lshl_add_u32 v26, {vLANE}, 2, {sT}", "v_xor_b32 v27, 0x1000, v26",
                   f"v_mov_b32 v28, v{ACC3}", lambda: g("ds_write_b32 v26, v28 offset:8192", tag="kw")]
    it[B].bar = dict(vm=["wG0", "wG1"], lead=3, after=[st("P2bar")])
    kp = B + OPT["qks"]
    assert OPT["qks"] >= 1 and kp > OPT["qkv"]
    it[kp].post += Gk.check() + [ksum]
    it[kp + OPT["kd1"]].post += [kx]
    it[kp + OPT["kd1"] + OPT["kd2"]].post += [ko]
    ke = kp + OPT["kd1"] + OPT["kd2"]
    place(it, max(OPT["qb"], OPT["qkv"]) + 5, max(OPT["qb"], OPT["qkv"]) + 13, D2A("O"))
    gq = B + first[4] - 4
    if gq <= kp < gq + 4: it[B + first[4] - 1].post += Gq.check()
    else: spread(it, gq, gq + 4, Gq.check())
    it[B + first[8] + 1].post += [p2misc]
    it[B + first[8]].bar = dict(vm=["wP2", "wU", "wO"], lead=OPT["D2"])
    it[B + first[16]].bar = dict(lead=OPT["D2"])
    assert ke < B + first[8] - 1
    fetch(it, B + OPT["qgc"], Gc.loads(), None, B + first[10] - 5)
    fetch(it, B + OPT["qgo"], Go.loads(), 0x0010, B + first[16] - 3, pl=OPT["wpl"], pre=setFA(), post=[st("gofl")])
    spread(it, B + first[10] - 4, B + first[10], Gc.check() + [st("gcok")])
    spread(it, B + first[16] - 2, B + first[16], Go.check() + [st("gook")])
    assert kp < B + OPT["qgc"] < B + first[10] - 4 and OPT["qkv"] < B + OPT["qgo"] - OPT["wpl"] and kp < B + OPT["qgo"] < B + first[16] - 2
    tail = p2tail("Q", it, B, nx, [96, 104, 32, 40], IDENT, f"v{SCQ+2}")
    run(it)
    tail()


for role, fn in (("WW", WW), ("QQ", QQ)):
    g.start_trace(role)
    ROLE[0] = role
    g.block(ENTRY, prologue)
    g.block(role, fn, align=(3 if role == "QQ" else None))
rt = []
for r in retries:
    g.start_trace("RT_" + r.name)
    g.block("RT_" + r.name, r.retry)
    rt.append("RT_" + r.name)
g.start_trace("end"); g.block("CODE_END", lambda: None)
g.hazards()
order = [ENTRY, "WW", "SPIN", "QQ"] + rt + ["CODE_END"]
assert sorted(order) == sorted(g.order), (g.order)

hdr = open("cdna_kernels/" + KN + ".s.ref").read().split("\n")
top = [l for l in hdr if l.startswith(";") and "@launch" not in l]
print("\n".join(top))
print("; @launch grid=(256,1,1) block=(512,1,1) lds=163840")
if STAMP:
    for r in SN: print("; STAMPS", r, " ".join(SN[r]))
print('.amdgcn_target "amdgcn-amd-amdhsa--gfx950"\n.text')
print(f".globl {ENTRY}\n.p2align 8\n.type {ENTRY},@function")
print(g.text(order))
print("    s_endpgm")
print(f""".section .rodata,"a"
.p2align 6
.amdhsa_kernel {ENTRY}
  .amdhsa_next_free_vgpr 256
  .amdhsa_next_free_sgpr 102
  .amdhsa_accum_offset 256
  .amdhsa_group_segment_fixed_size 0
  .amdhsa_kernarg_size 88
  .amdhsa_user_sgpr_count 2
  .amdhsa_user_sgpr_kernarg_segment_ptr 1
  .amdhsa_system_sgpr_workgroup_id_x 1
.end_amdhsa_kernel""")
print(f"; maxvm={g.maxvm}", file=sys.stderr)
for name, tr in g.traces[:2]:
    print(f"; trace {name}: barriers={sum(1 for o in tr if o.kind=='i' and o.mn=='s_barrier')} instrs={len(tr)}", file=sys.stderr)
```

```python
import sys
from fw import *

OPT = dict(stamp=0, D=6, BL=2, BL2=4, DP=5, D2=4, lim=20000, rotm=7, tw=58, tlb=0, t3=10, sp=0, slp=1,
           dsp=0, pst=0, osc=0, nochk=0, ew=1, pb=1, np1=5, np2=8, ev=1, tlp=31, ft=31, bl=0,
           wc0=33, wc1=49, u0=49, u1=63, g0=66, g1=94,
           ea0=33, ea1=62, eb0=65, eb1=94, ec1=112, eun=10,
           wga=2, wgc=22, wgo=30, wpl=14,
           qa=84, qb=110, qkv=106, qpl=12, qks=12, kd1=1, kd2=1, qgc=24, qgo=34, jb=66, efk=1, efo=1, efp=1,
           prl=0, hd=0, sper=8, sb0=999, sb1=0, s0=0, s1=999)
for a in sys.argv[1:]:
    k, v = a.split("="); assert k in OPT, k; OPT[k] = int(v, 0)
STAMP = OPT["stamp"]
LIM = OPT["lim"] << 16 if STAMP else OPT["lim"]

LSC = " sc1"
LA, LB, LC = 0, 98304, 65536
PARTO, KVP, STP, FA, FK, FP = 640 * 1024, 0x1000000, 0x1100000, 0x10A0000, 0x10B0000, 0x10C0000
WS_SIZE = 0x1180000 if STAMP else 0x1100000
SX, SW, SW2, SWO, SWS, SOUT, SB, SDBG = "s[32:35]", "s[36:39]", "s[40:43]", "s[44:47]", "s[48:51]", "s[52:55]", "s[56:59]", "s[60:63]"
sW, sRW, sRB, sCGI, sISW1, sSTR, sROT, sW1K, sXR, sCLS, sNON, sM = [f"s{64+i}" for i in range(12)]
sP = ["s76", "s77", "s78", "s79"]
sWC = [f"s{80+i}" for i in range(8)]
sT, sT2, sT3, sTB, sCNT, sKQ, sR8, sPAR, sTT, sLOG2E = [f"s{88+i}" for i in range(10)]
sTM = "s[98:99]"; sEPS = "s100"; sST = "s101"
sMK = "s[4:5]"
sAp, sAo, sRs, sRo, sRu, sRm, sRmu, sPART, sOUT, sKV, sFA, sPUB, sFP, sFK, sHAVE, sMASK = [f"s{8+i}" for i in range(16)]
sRET = "s[30:31]"
vWDB, vLANE, vXD, vWDa, vWDb, vW2D = "v0", "v1", "v2", "v3", "v4", "v5"
vX = ["v6", "v7", "v8", "v9"]
vWlo, vWhi, vU, vWOD, TG0, TG1, vL16, vCHK, vSTAMP, vBIAS2, vT0, vUD, vE0, vE1 = [f"v{10+i}" for i in range(14)]
vPR, vNON, vPA = "v0", "v2", "v4"
ACC0, ACC1, ACC2, ACC3, XR, TMP, TACC = 96, 112, 80, 48, 128, 32, 192

g = Gen()
retries = []


def vr(a, n=4):
    return f"v[{a}:{a+n-1}]"


SN = {"WW": ["start"], "QQ": ["start"]}
ROLE = [None]
def stamp(name):
    if not STAMP: return
    names = SN[ROLE[0]]
    g(f"v_writelane_b32 {vSTAMP}, s98, {len(names)-1}")
    g(f"s_memtime {sTM}")
    names.append(str(name))
    assert len(names) < 60


def st(i):
    return lambda: stamp(i)


def mfma(d, a, b, c):
    g(f"v_mfma_f32_32x32x16_bf16 {vr(d,16)}, {a}, {b}, {c}")


def dx(c, i):
    def f():
        g(f"s_add_u32 m0, {sW1K}, {(c % 4) * 16384 + i * 8192:#x}")
        g(f"s_xor_b32 {sT2}, {sXR}, {c << 7 | i << 16:#x}")
        g(f"buffer_load_dwordx4 {vXD}, {SX}, {sT2} offen lds", tag=f"ck{c}")
    return f


def dw(lds, c, va, tag):
    def f():
        g(f"s_add_u32 m0, {sW1K}, {lds:#x}")
        g(f"buffer_load_dwordx4 {va}, {SW}, {sWC[c]} offen lds", tag=tag)
    return f


def CK(c):
    return [dx(c, 0), dx(c, 1), dw(LC + (c % 4) * 8192, c, vWDa, f"ck{c}")]


def WBs():
    if OPT["rotm"] == 7: return [dw(LB + c * 8192, c, vWDb, f"wb{c}") for c in range(8)]
    assert OPT["rotm"] == 3
    def sel(flip):
        def f():
            g(f"s_bitcmp{1 - flip}_b32 {sR8}, 2")
            g(f"s_cselect_b32 {sT2}, {sWC[4]}, {sWC[0]}")
            g(f"s_cselect_b32 {sT3}, {4 * 8192:#x}, 0")
            g(f"s_add_u32 {sT3}, {sT3}, {sW1K}")
            g(f"s_add_u32 m0, {sT3}, {LB:#x}")
            g(f"buffer_load_dwordx4 {vWDb}, {SW}, {sT2} offen lds", tag="wb0")
        return f
    return [sel(0), sel(1)] + [dw(LB + c * 8192, c, vWDb, f"wb{c}") for c in (1, 2, 3, 5, 6, 7)]


def head():
    c1 = CK(1)
    return CK(0) + c1[:2] + (WBs()[:1] if OPT["ew"] == 1 else []) + c1[2:] + CK(2) + CK(3)


def WCs():
    l = [dw(LA + c * 8192, c, vWDa, f"wc{c}") for c in range(8)]
    f0 = l[0]
    l[0] = lambda: (g(f"v_add_u32 {vWDa}, {sP[2]}, {vWDB}"), f0())
    return l


def du(n):
    def f():
        g(f"s_xor_b32 {sT2}, {sROT}, {sCLS}")
        g(f"s_xor_b32 {sT2}, {sT2}, {2*n}")
        g(f"s_add_u32 m0, {sW1K}, {LC + n*8192:#x}")
        g(f"s_mul_i32 {sT2}, {sT2}, {3584*64}")
        g(f"buffer_load_dwordx4 {vUD}, {SW}, {sT2} offen lds", tag="u6")
    return f


def d2(area, n):
    i = 2 * n
    prel, pp = (i >> 2) & 1, (i >> 1) & 1
    if area == "U": prel, pp = n, 0
    def f():
        if area in ("G0", "G1", "P2"):
            base = {"G0": LB, "G1": LB + 32768, "P2": LA}[area]
            gofs = {"G0": 0, "G1": 1 << 16, "P2": 1 << 17}[area]
            g(f"s_xor_b32 m0, {sRm}, {base + (i << 12):#x}")
            g(f"s_xor_b32 {sT2}, {sRs}, {gofs | prel << 18 | pp << 15:#x}")
            g(f"buffer_load_dwordx4 {vW2D}, {SW2}, {sT2} offen lds", tag="w" + area)
        elif area == "O":
            g(f"s_xor_b32 m0, {sRm}, {LA + 32768 + (i << 12):#x}")
            g(f"s_xor_b32 {sT2}, {sRo}, {prel << 16 | pp << 15:#x}")
            g(f"buffer_load_dwordx4 {vWOD}, {SWO}, {sT2} offen lds", tag="wO")
        else:
            g(f"s_xor_b32 m0, {sRmu}, {LC + 16384 + (i << 12):#x}")
            g(f"s_xor_b32 {sT2}, {sRu}, {0x30000 | prel << 15:#x}")
            g(f"buffer_load_dwordx4 {vW2D}, {SW2}, {sT2} offen lds", tag="wU")
    return f


def D2A(area):
    return [d2(area, n) for n in range(2 if area == "U" else 4)]


def touch():
    g(f"s_lshr_b32 {sT}, s2, 3")
    g(f"s_lshl_b32 {sT}, {sT}, 3")
    g(f"s_add_u32 {sT}, {sT}, {sW}")
    g(f"s_mul_i32 {sT2}, {sT}, {14*128}")
    g(f"s_mul_i32 {sT3}, {sKQ}, {448*1024}")
    g(f"s_add_u32 {sT2}, {sT2}, {sT3}")
    g(f"v_lshlrev_b32 {vE0}, 7, {vLANE}")
    g("s_mov_b64 exec, 0x3fff")
    g(f"buffer_load_dword {vE1}, {vE0}, {SW2}, {sT2} offen", tag="tw")
    g(f"s_lshl_b32 {sT2}, {sT}, 9")
    g(f"s_lshl_b32 {sT3}, {sKQ}, 17")
    g(f"s_add_u32 {sT2}, {sT2}, {sT3}")
    g("s_mov_b64 exec, 15")
    g(f"buffer_load_dword {vE1}, {vE0}, {SWO}, {sT2} offen", tag="tw")
    g("s_mov_b64 exec, -1")


def publish(kind):
    def f():
        g("s_mov_b64 exec, 1")
        g(f"buffer_store_dword {vNON}, off, {SWS}, {sPUB} offset:{kind*4}{LSC}", tag="pub")
        g("s_mov_b64 exec, -1")
    return f


def SPIN():
    g("s_mov_b64 exec, 0xffff")
    g.label("SPIN_loop")
    g(f"buffer_load_dword {vPR}, {vPA}, {SWS}, 0 offen sc1")
    g("s_waitcnt vmcnt(0)")
    g(f"v_cmp_eq_u32 vcc, {sNON}, {vPR}")
    g(f"s_add_u32 {sCNT}, {sCNT}, {0x10000 if STAMP else 1}")
    g(f"s_mov_b32 {sHAVE}, vcc_lo")
    g(f"s_and_b32 {sT}, {sHAVE}, {sMASK}")
    g(f"s_cmp_eq_u32 {sT}, {sMASK}")
    g("s_cbranch_scc1 SPIN_done")
    if OPT["slp"]: g(f"s_sleep {OPT['slp']}")
    g(f"s_cmp_lt_u32 {sCNT}, {LIM:#x}")
    g("s_cbranch_scc1 SPIN_loop")
    g.label("SPIN_done")
    g("s_mov_b64 exec, -1")
    g(f"s_setpc_b64 {sRET}")


def poll_issue():
    g("s_mov_b64 exec, 0xffff")
    g(f"buffer_load_dword {vPR}, {vPA}, {SWS}, 0 offen sc1", tag="poll")
    g("s_mov_b64 exec, -1")


nlab = [0]
def take(mask, fresh=True):
    def f():
        nlab[0] += 1
        lab = f"EN{nlab[0]}"
        if fresh:
            g.wait(vm="poll")
            g(f"v_cmp_eq_u32 vcc, {sNON}, {vPR}")
            g(f"s_and_b32 {sHAVE}, vcc_lo, 0xffff")
        g(f"s_and_b32 {sT}, {sHAVE}, {mask:#x}")
        g(f"s_cmp_eq_u32 {sT}, {mask:#x}")
        g(f"s_cbranch_scc1 {lab}")
        with g.optional():
            g(f"s_mov_b32 {sMASK}, {mask:#x}")
            g(f"s_call_b64 {sRET}, SPIN")
            g.block("SPIN", SPIN, align=3)
        g.label(lab)
    return f


def fetch(it, pos, grp, mask, hi, pl=0, step=1, pre=(), post=()):
    if mask is not None:
        it[pos - pl].post += list(pre) + [poll_issue]
        it[pos].post += [take(mask)] + list(post)
    for i, f in enumerate(grp): it[min(pos + step * i, hi)].post.append(f)


GN = ["ga", "gp", "gq", "kv", "gc", "go", "pr"]
class Grp:
    def __init__(s, name, frags):
        s.name = name; s.frags = frags

    def loads(s, tagged=True):
        out = []
        cur = [None]
        def one(i, reg, base, off):
            def f(first=True):
                hi = off & ~4095 if off >= 4096 else 0
                fl = " sc1"
                if hi: g(f"s_add_u32 {sT3}, {base}, {hi:#x}")
                g(f"buffer_load_dwordx4 {vr(reg)}, {vL16}, {SWS}, {sT3 if hi else base} offen offset:{off - hi}{fl}",
                  tag=f"{s.name}{i}" if tagged else None)
            return f
        return [one(i, *fr) for i, fr in enumerate(s.frags)]

    def decode(s, waits=True):
        out = []
        for i, (reg, _, _) in enumerate(s.frags):
            if waits: out.append(lambda i=i: g.wait(vm=f"{s.name}{i}"))
            out.append(f"v_xor_b32 v{reg}, {TG0}, v{reg}")
            out.append(f"v_xor_b32 v{reg+1}, {TG1}, v{reg+1}")
            out.append(f"v_or_b32 {vCHK}, v{reg}, v{reg+1}" if i == 0 else f"v_or3_b32 {vCHK}, v{reg}, v{reg+1}, {vCHK}")
        out.append(f"v_and_b32 {vCHK}, {sTB}, {vCHK}")
        return out

    def check(s):
        def fin():
            if OPT["nochk"]: return
            g(f"v_cmp_ne_u32 vcc, 0, {vCHK}")
            g("s_cmp_lg_u64 vcc, 0")
            g(f"s_cbranch_scc1 RT_{s.name}")
            g.label(f"OK_{s.name}")
            retries.append(s)
        return s.decode() + [fin]

    def retry(s):
        if STAMP: g(f"s_or_b32 s3, s3, {1 << GN.index(s.name[1:])}")
        g(f"s_add_u32 {sCNT}, {sCNT}, 1")
        g(f"s_and_b32 {sT}, {sCNT}, 0xffff")
        g(f"s_cmp_gt_u32 {sT}, {OPT['lim']}")
        g(f"s_cbranch_scc1 OK_{s.name}")
        if OPT["slp"]: g(f"s_sleep {OPT['slp']}")
        for f in s.loads(False): f()
        g("s_waitcnt vmcnt(0)")
        emit(s.decode(False))
        g(f"v_cmp_ne_u32 vcc, 0, {vCHK}")
        g("s_cmp_lg_u64 vcc, 0")
        g(f"s_cbranch_scc1 RT_{s.name}")
        g(f"s_branch OK_{s.name}")


def emit(lst):
    for x in lst:
        if isinstance(x, str): g(x)
        else: x()


def tstore(reg, base, off, keep=True, tag="st"):
    l = [f"v_and_or_b32 v{reg}, v{reg}, {sM}, {TG0}", f"v_and_or_b32 v{reg+1}, v{reg+1}, {sM}, {TG1}",
         lambda: g(f"buffer_store_dwordx4 {vr(reg)}, {vL16}, {SWS}, {base} offen offset:{off}{LSC if tag == 'st' else ' sc1'}", tag=tag)]
    return l


def untag(reg):
    return [f"v_xor_b32 v{reg}, {TG0}, v{reg}", f"v_xor_b32 v{reg+1}, {TG1}, v{reg+1}"]


def EH(b, base, off, prev=None):
    h = [f"v{b+i}" for i in range(8)]
    e = [f"v{TMP+i}" for i in range(8)]
    u = [f"v{TMP+8+i}" for i in range(8)]
    ins = []
    for i in range(8): ins.append(f"v_mul_f32 {e[i]}, {sLOG2E}, {h[i]}")
    if prev is not None: ins += untag(prev)
    for i in range(8): ins.append(f"v_exp_f32 {e[i]}, {e[i]}")
    for i in range(8): ins.append(f"v_fma_f32 {u[i]}, {e[i]}, 0.5, 1.0")
    for i in range(8): ins.append(f"v_fma_f32 {u[i]}, -{e[i]}, {u[i]}, -1.0")
    for i in range(8): ins.append(f"v_rcp_f32 {u[i]}, {u[i]}")
    for i in range(8): ins.append(f"v_fmac_f32 {h[i]}, {h[i]}, {u[i]}")
    for i in range(4): ins.append(f"v_cvt_pk_bf16_f32 {h[i]}, {h[2*i]}, {h[2*i+1]}")
    return ins + tstore(b, base, off)


def PH(b):
    h = [f"v{b+i}" for i in range(8)]
    e = [f"v{TMP+i}" for i in range(8)]
    ins = []
    for i in range(8): ins.append(f"v_mul_f32 {e[i]}, {sLOG2E}, {h[i]}")
    for i in range(8): ins.append(f"v_exp_f32_e64 {e[i]}, {e[i]} clamp")
    for i in range(8): ins.append(f"v_max_f32 {h[i]}, {sEPS}, {h[i]}")
    for i in range(8): ins.append(f"v_add_f32 {h[i]}, {e[i]}, {h[i]}")
    for i in range(4): ins.append(f"v_cvt_pk_bf16_f32 {h[i]}, {h[2*i]}, {h[2*i+1]}")
    return ins


def cost(x):
    if not isinstance(x, str): return 4
    return 8 if x.startswith(("v_exp", "v_rcp")) else 4


def merge(main, side):
    tot = sum(cost(x) for x in main); n = len(side); k = 0; acc = 0; out = []
    for x in main:
        while k < n and acc >= tot * k / n:
            out.append(side[k]); k += 1
        out.append(x); acc += cost(x)
    return out + side[k:]


class Item:
    def __init__(s, addr, imm, second, buf, acc, other, orient="T", zero=False, D=3, lg=(), vm=()):
        s.addr, s.imm, s.second, s.buf, s.acc, s.other, s.orient, s.zero, s.D = addr, imm, second, buf, acc, other, orient, zero, D
        s.lg, s.vm = list(lg), list(vm)
        s.bar = None
        s.rvm = []
        s.post = []
        s.pre = []


def spread(items, lo, hi, fill):
    tot = sum(cost(x) for x in fill); n = hi - lo; acc = 0
    for x in fill:
        k = min(n - 1, int(acc * n / tot)) if tot else 0
        items[lo + k].post.append(x); acc += cost(x)


def run(items):
    N = len(items); nxt = 0
    prev = {}
    for m, it in enumerate(items):
        it.prev = max([p for b, p in prev.items() if b == it.buf], default=-1)
        prev[it.buf] = m
    for n in range(N):
        while nxt < N and nxt <= n + items[nxt].D and items[nxt].prev < n:
            it = items[nxt]
            if it.bar is not None:
                if nxt - n > it.bar.get("lead", 0): break
                emit(it.bar.get("before", []))
                sb = OPT["sb0"] <= nxt <= OPT["sb1"]
                if sb: stamp(f"pre{nxt}"); g("s_waitcnt lgkmcnt(0)")
                lgw = list(it.bar.get("lg") or [])
                if it.bar.get("drain"): lgw += [t for t in g.lg if t]
                g.wait(vm=it.bar.get("vm"), lg=lgw or None)
                emit(it.bar.get("at", []))
                if sb: stamp(f"at{nxt}"); g("s_waitcnt lgkmcnt(0)")
                g("s_barrier")
                if sb: stamp(f"bar{nxt}")
                it.bar_at = n
                emit(it.bar.get("after", []))
                items[n].pre += it.bar.get("after2", [])
                it.bar = None
            if it.rvm: g.wait(vm=it.rvm)
            if it.second is None:
                g(f"ds_read_b128 {vr(it.buf)}, {it.addr} offset:{it.imm}", tag=f"w{nxt}")
            else:
                g(f"ds_read_b64_tr_b16 {vr(it.buf, 2)}, {it.addr} offset:{it.imm}", tag=f"w{nxt}")
                if True:
                    g(f"ds_read_b64_tr_b16 {vr(it.buf+2, 2)}, {it.addr} offset:{it.imm + it.second}", tag=f"w{nxt}")
            nxt += 1
        assert nxt > n
        it = items[n]
        emit(it.pre)
        g.wait(vm=it.vm or None, lg=[f"w{n}"] + it.lg)
        c = 0 if it.zero else vr(it.acc, 16)
        if it.orient == "T": mfma(it.acc, vr(it.buf), vr(it.other), c)
        else: mfma(it.acc, vr(it.other), vr(it.buf), c)
        emit(it.post)
        if OPT["sper"] and n % OPT["sper"] == OPT["sper"] - 1 and OPT["s0"] <= n < OPT["s1"]: stamp(f"i{n}")


ENTRY = KN + "_kernel"
def prologue():
    if STAMP:
        g(f"s_memtime {sTM}")
        g("s_memrealtime s[6:7]")
        g(f"v_mov_b32 {vSTAMP}, 0")
        g("s_mov_b32 s3, 0")
    g(f"""
    s_cmp_ge_u32 s2, 256
    s_cbranch_scc1 END
    s_load_dwordx16 s[8:23], s[0:1], 0
    s_load_dwordx4 s[24:27], s[0:1], 64
    s_load_dwordx2 s[28:29], s[0:1], 80
    s_getpc_b64 s[30:31]
    s_and_b32 {sT}, s2, 0xf8
    v_lshrrev_b32 v64, 6, v0
    v_add_u32 v65, {sT}, v64
    v_lshlrev_b32 v65, 7, v65
    v_min_u32 v65, CODE_END-{ENTRY}-256, v65
    s_mov_b64 exec, 1
    """)
    g("global_load_dword v255, v65, s[30:31]", tag="cp")
    g(f"""
    s_mov_b64 exec, -1
    v_and_b32 {vLANE}, 63, v0
    v_readfirstlane_b32 {sW}, v64
    s_lshr_b32 {sTT}, s2, 6        ; t
    s_bfe_u32 {sR8}, s2, 0x30003
    s_and_b32 {sRB}, s2, 1
    s_lshl_b32 {sRB}, {sRB}, 3
    s_or_b32 {sRB}, {sRB}, {sR8}
    s_bfe_u32 {sKQ}, s2, 0x20001
    s_lshr_b32 {sISW1}, {sTT}, 1
    s_and_b32 {sPAR}, {sTT}, 1
    s_lshl_b32 {sCGI}, {sKQ}, 1
    s_or_b32 {sCGI}, {sCGI}, {sPAR}
    s_lshl_b32 {sROT}, {sTT}, 1
    s_xor_b32 {sROT}, {sROT}, {sR8}
    """)
    if OPT["rotm"] != 7: g(f"s_and_b32 {sROT}, {sROT}, {OPT['rotm']}")
    g(f"""
    s_and_b32 {sRW}, {sW}, 3
    s_lshr_b32 {sCLS}, {sW}, 2
    s_lshl_b32 {sW1K}, {sW}, 10
    s_lshl_b32 {sSTR}, {sISW1}, 9
    s_add_u32 {sSTR}, {sSTR}, 3072
    s_lshl_b32 {sXR}, {sRB}, 17
    s_lshl_b32 {sT}, {sROT}, 7
    s_or_b32 {sXR}, {sXR}, {sT}
    v_lshrrev_b32 v64, 3, v0               ; w*8+l3
    v_and_b32 v65, 7, v0                   ; pos
    v_bfe_u32 v67, v0, 4, 3                ; (row>>1)&7
    v_xor_b32 v67, v67, v65
    v_lshlrev_b32 v67, 4, v67
    v_lshl_add_u32 {vXD}, v64, 10, v67
    v_bfe_u32 v67, v0, 4, 1
    v_lshlrev_b32 v67, 2, v67
    v_xor_b32 v67, v67, v65                ; pw
    v_lshlrev_b32 v68, 4, v67
    v_mul_lo_u32 v69, v64, {sSTR}
    v_add_u32 {vWDB}, v69, v68
    s_mul_i32 {sP[3]}, {sCGI}, 448
    s_lshl_b32 {sT2}, {sPAR}, 6
    s_add_u32 {sP[0]}, {sP[3]}, {sT2}
    s_add_u32 {sP[1]}, {sP[0]}, 128
    s_add_u32 {sP[2]}, {sP[0]}, 256
    s_cmp_eq_u32 {sPAR}, 0
    s_cselect_b32 {sT2}, 384, 0
    s_add_u32 {sP[3]}, {sP[3]}, {sT2}
    s_cmp_eq_u32 {sISW1}, 1
    s_cbranch_scc1 PRO_w1
    s_lshl_b32 {sP[2]}, {sCGI}, 7
    s_add_u32 {sP[0]}, {sP[2]}, 1024
    s_add_u32 {sP[1]}, {sP[2]}, 2048
    """)
    g.label("PRO_w1")
    g(f"s_lshl_b32 {sT}, {sSTR}, 6")
    for c in range(8):
        g(f"s_xor_b32 {sWC[c]}, {sROT}, {c}")
        g(f"s_mul_i32 {sWC[c]}, {sWC[c]}, {sT}")
    g(f"""
    v_add_u32 {vWDa}, {sP[0]}, {vWDB}
    v_add_u32 {vWDb}, {sP[1]}, {vWDB}
    s_mov_b32 s34, 0x200000
    s_mov_b32 s35, 0x20000
    s_mov_b32 s39, 0x20000
    s_lshl_b32 s38, {sSTR}, 9
    s_mul_i32 s58, {sISW1}, 2560
    s_add_u32 s58, s58, 1024
    s_mov_b32 s59, 0x20000
    """)
    if OPT["pst"]:
        g("s_waitcnt lgkmcnt(3)")
        stamp("prek")
    g(f"""
    s_cmp_eq_u32 {sISW1}, 1
    s_waitcnt lgkmcnt(0)
    s_mov_b32 s32, s8
    s_cselect_b32 s36, s16, s10
    s_cselect_b32 s37, s17, s11
    s_cselect_b32 s56, s18, s22
    s_cselect_b32 s57, s19, s23
    s_and_b32 s33, s9, 0xffff
    s_and_b32 s37, s37, 0xffff
    s_and_b32 s57, s57, 0xffff
    """)
    def ps(n):
        if OPT["pst"] and STAMP:
            stamp(n); g("s_waitcnt lgkmcnt(0)")
    ps("karg")
    h = head()
    emit(h[:3])
    ps("ck0")
    if OPT["pb"]: g("s_barrier")
    emit(h[3:OPT["np1"]])
    ps("ck1")
    setup2()
    ps("set2")
    emit(h[OPT["np1"]:OPT["np2"]])
    ps("ck2")
    g(f"s_cmp_eq_u32 {sISW1}, 0")
    g("s_cbranch_scc1 QQ")


def setup2():
    if STAMP:
        g(f"v_writelane_b32 {vSTAMP}, s6, 62")
    g(f"""
    s_mov_b32 s60, s26
    s_and_b32 s61, s27, 0xffff
    s_mov_b32 s62, 256
    s_mov_b32 s63, 0x20000
    s_or_b32 {sT}, s2, {sW}
    s_cbranch_scc1 S2_non
    """)
    with g.optional():
        g(f"""
        s_memrealtime s[4:5]
        s_waitcnt lgkmcnt(0)
        s_mul_i32 {sT}, s4, 0x9e3779b1
        s_or_b32 {sT}, {sT}, 1
        v_mov_b32 v66, {sT}
        s_mov_b64 exec, 1
        buffer_store_dword v66, off, {SDBG}, 0 sc1
        s_mov_b64 exec, -1
        """)
    g.label("S2_non")
    g(f"""
    s_mov_b32 s40, s20
    s_and_b32 s41, s21, 0xffff
    s_mov_b32 s42, 0x1c0000
    s_mov_b32 s43, 0x20000
    s_mov_b32 s44, s12
    s_and_b32 s45, s13, 0xffff
    s_mov_b32 s46, 0x80000
    s_mov_b32 s47, 0x20000
    s_mov_b32 s48, s28
    s_and_b32 s49, s29, 0xffff
    s_mov_b32 s50, {WS_SIZE:#x}
    s_mov_b32 s51, 0x20000
    s_mov_b32 s52, s24
    s_and_b32 s53, s25, 0xffff
    s_mov_b32 s54, 0x200000
    s_mov_b32 s55, 0x20000
    s_mov_b32 {sLOG2E}, 0x3fb8aa3b
    s_mov_b32 {sEPS}, 0x358637bd
    s_mov_b32 {sM}, 0xfffefffe
    s_mov_b32 {sTB}, 0x10001
    s_mov_b32 {sCNT}, 0
    v_and_b32 v64, 31, v64                 ; rw*8+l3
    v_lshl_add_u32 {vW2D}, v64, 10, v68
    v_lshrrev_b32 v69, 2, v67
    v_lshl_add_u32 v69, v69, 5, v64
    v_mul_lo_u32 v69, v69, {sSTR}
    v_and_b32 v70, 3, v67
    v_lshl_add_u32 v69, v70, 4, v69
    v_add_u32 {vUD}, {sP[3]}, v69
    s_lshl_b32 {sT}, {sTT}, 8
    s_lshl_b32 {sT2}, {sKQ}, 17
    s_add_u32 {sT2}, {sT2}, {sT}
    v_add_u32 {vWOD}, {sT2}, {vW2D}
    s_mul_i32 {sT2}, {sKQ}, {448*1024}
    s_add_u32 {sT2}, {sT2}, {sT}
    v_add_u32 {vW2D}, {sT2}, {vW2D}
    v_and_b32 v64, 31, {vLANE}             ; row
    v_lshrrev_b32 v65, 5, {vLANE}          ; h
    v_bfe_u32 v66, {vLANE}, 1, 3           ; m
    v_xor_b32 v66, v66, v65                ; h ^ m
    s_lshl_b32 {sT}, {sCLS}, 2
    v_xor_b32 v66, {sT}, v66
    s_lshl_b32 {sT}, {sRW}, 12
    v_lshl_add_u32 v67, v64, 7, {sT}
    """)
    for sp in range(4):
        g(f"v_xor_b32 v68, {2*sp}, v66")
        g(f"v_lshl_add_u32 {vX[sp]}, v68, 4, v67")
    g(f"""
    v_bfe_u32 v68, {vLANE}, 2, 2           ; r
    v_lshlrev_b32 v69, 7, v68
    v_bfe_u32 v68, {vLANE}, 3, 1
    v_lshl_add_u32 v69, v68, 6, v69
    v_bfe_u32 v68, {vLANE}, 4, 1
    v_lshl_add_u32 {vT0}, v68, 5, v69
    v_and_b32 v68, 3, {vLANE}
    v_lshl_add_u32 v69, v68, 3, {vT0}
    v_lshl_add_u32 v69, v65, 10, v69
    s_mul_i32 {sT}, {sCLS}, {4096+64}
    s_add_u32 {sT}, {sT}, {LC}
    v_xor_b32 {vWlo}, {sT}, v69
    v_xor_b32 {vWhi}, 0x1000, {vWlo}
    s_mul_i32 {sT}, {sCLS}, {64+32}
    s_add_u32 {sT}, {sT}, {LC}
    v_xor_b32 {vU}, {sT}, v69
    v_lshl_add_u32 {vT0}, v65, 9, {vT0}
    v_and_b32 v68, 1, {vLANE}
    v_lshl_add_u32 {vT0}, v68, 4, {vT0}
    v_bfe_u32 v68, {vLANE}, 1, 1
    v_lshl_add_u32 {vT0}, v68, 3, {vT0}
    s_and_b32 {sT}, {sKQ}, 1
    s_lshl_b32 {sT}, {sT}, 6
    s_lshl_b32 {sT2}, {sCLS}, 5
    s_or_b32 {sT}, {sT}, {sT2}
    v_xor_b32 {vT0}, {sT}, {vT0}
    v_lshlrev_b32 {vL16}, 4, {vLANE}
    ; rotation constants (r8' = r8 ^ cls)
    s_xor_b32 {sT3}, {sR8}, {sCLS}
    s_lshr_b32 {sT}, {sKQ}, 1
    s_xor_b32 {sT}, {sT}, {sT3}
    s_xor_b32 {sT}, {sT}, 1
    s_and_b32 {sT}, {sT}, 1
    s_lshl_b32 {sT}, {sT}, 7               ; (b0^ho)<<7
    s_and_b32 {sT2}, {sR8}, 2
    s_lshl_b32 {sT2}, {sT2}, 14            ; b1<<15
    s_or_b32 {sRs}, {sT}, {sT2}
    s_lshl_b32 {sT2}, {sPAR}, 15
    s_xor_b32 {sRu}, {sRs}, {sT2}
    s_lshr_b32 {sT}, {sR8}, 2
    s_xor_b32 {sT}, {sT}, {sPAR}
    s_lshl_b32 {sT2}, {sT}, 16
    s_or_b32 {sRo}, {sRs}, {sT2}
    s_lshl_b32 {sT2}, {sT}, 18
    s_or_b32 {sRs}, {sRs}, {sT2}
    s_lshl_b32 {sT}, {sT3}, 12
    s_lshl_b32 {sT2}, {sRW}, 10
    s_or_b32 {sRm}, {sT}, {sT2}
    s_and_b32 {sRmu}, {sRm}, 0x3fff
    s_lshl_b32 {sT}, {sRW}, 2
    s_add_u32 {sT}, {sT}, {sKQ}
    s_lshl_b32 {sT}, {sT}, 2
    s_add_u32 {sT}, {sT}, {sCLS}
    s_lshl_b32 {sT2}, {sPAR}, 1
    s_add_u32 {sAp}, {sT}, {sT2}
    s_xor_b32 {sAo}, {sAp}, 2
    s_mul_i32 {sAp}, {sAp}, 10240
    s_mul_i32 {sAo}, {sAo}, 10240
    s_lshl_b32 {sT3}, {sRB}, 20
    s_add_u32 {sAp}, {sAp}, {sT3}
    s_add_u32 {sAo}, {sAo}, {sT3}
    s_lshl_b32 {sT}, {sTT}, 3
    s_add_u32 {sT}, {sT}, {sW}
    s_mul_i32 {sT}, {sT}, 12288
    s_lshl_b32 {sT2}, {sKQ}, 10
    s_add_u32 {sT}, {sT}, {sT2}
    s_add_u32 {sT}, {sT}, {sT3}
    s_add_u32 {sPART}, {sT}, {PARTO:#x}
    ; out
    s_lshl_b32 {sT}, {sRB}, 2
    s_add_u32 {sT}, {sT}, {sRW}
    s_lshl_b32 {sOUT}, {sT}, 15
    s_lshl_b32 {sT}, {sTT}, 8
    s_add_u32 {sOUT}, {sOUT}, {sT}
    s_lshl_b32 {sT}, {sKQ}, 6
    s_add_u32 {sOUT}, {sOUT}, {sT}
    s_lshl_b32 {sT}, {sCLS}, 5
    s_add_u32 {sOUT}, {sOUT}, {sT}
    s_lshl_b32 {sT}, {sRB}, 2
    s_add_u32 {sT2}, {sT}, {sRW}
    s_lshl_b32 {sT2}, {sT2}, 2
    s_add_u32 {sT2}, {sT2}, {sKQ}
    s_lshl_b32 {sT2}, {sT2}, 1
    s_add_u32 {sT2}, {sT2}, {sCLS}
    s_lshl_b32 {sT2}, {sT2}, 7
    s_add_u32 {sFA}, {sT2}, {FA:#x}
    s_lshl_b32 {sT2}, {sTT}, 4
    s_add_u32 {sPUB}, {sFA}, {sT2}
    s_add_u32 {sT}, {sT}, {sTT}
    s_lshl_b32 {sT}, {sT}, 3
    s_add_u32 {sT}, {sT}, {sW}
    s_lshl_b32 {sT}, {sT}, 2
    s_add_u32 {sT}, {sT}, {sKQ}
    s_lshl_b32 {sT}, {sT}, 7
    s_add_u32 {sFP}, {sT}, {FP:#x}
    s_lshl_b32 {sFK}, {sCGI}, 9
    s_add_u32 {sFK}, {sFK}, {FK:#x}
    s_lshl_b32 {sKV}, {sCGI}, 16
    s_add_u32 {sKV}, {sKV}, {KVP:#x}
    """)
    if OPT["sp"]:
        g(f"s_cmp_eq_u32 {sCLS}, 0")
        g("s_cbranch_scc1 S2_sp")
        g(f"s_setprio {OPT['sp']}")
        g.label("S2_sp")


def tlbt(lab):
    def f():
        g(f"s_cmp_lg_u32 {sW}, 7")
        g(f"s_cbranch_scc1 TLB_{lab}")
        with g.optional():
            g(f"s_mul_i32 {sT2}, {sKQ}, {448*1024}")
            g("s_mov_b64 exec, 1")
            g(f"buffer_load_dword {vE1}, off, {SWS}, {sPART}")
            g(f"buffer_load_dword {vE1}, off, {SWS}, {sKV}")
            g(f"buffer_load_dword {vE1}, off, {SOUT}, {sOUT}")
            g(f"buffer_load_dword {vE1}, off, {SW2}, {sT2}")
            g(f"buffer_load_dword {vE1}, off, {SWO}, 0")
            g("s_mov_b64 exec, -1")
        g.label(f"TLB_{lab}")
    return f


def ftouch():
    g(f"s_lshr_b32 {sT}, {sW}, 1")
    g(f"s_lshl_b32 {sT}, {sT}, 7")
    g(f"s_add_u32 {sT}, {sT}, {sFK}")
    g(f"v_mov_b32 {vE0}, {sFA}")
    g(f"v_writelane_b32 {vE0}, {sFP}, 1")
    g(f"v_writelane_b32 {vE0}, {sT}, 2")
    g("s_mov_b64 exec, 7")
    g(f"buffer_load_dword {vE1}, {vE0}, {SWS}, 0 offen sc1", tag="tw")
    g("s_mov_b64 exec, -1")


def nonce(lab):
    def f():
        g("s_waitcnt lgkmcnt(0)")
        g(f"s_cmp_eq_u32 {sNON}, 0")
        g(f"s_cbranch_scc1 RT_{lab}")
        g.label(f"OK_{lab}")
        class R:
            name = lab
            @staticmethod
            def retry():
                g(f"s_add_u32 {sCNT}, {sCNT}, 1")
                g(f"s_cmp_gt_u32 {sCNT}, {OPT['lim']}")
                g(f"s_cbranch_scc1 OK_{lab}")
                g(f"buffer_load_dword {TG0}, off, {SDBG}, 0 sc1")
                g("s_waitcnt vmcnt(0)")
                g(f"v_readfirstlane_b32 {sNON}, {TG0}")
                g(f"s_cmp_eq_u32 {sNON}, 0")
                g(f"s_cbranch_scc1 RT_{lab}")
                g(f"s_branch OK_{lab}")
        retries.append(R)
        g(f"v_and_b32 {TG1}, 7, {vLANE}")
        g(f"v_lshrrev_b32_e64 {TG0}, {TG1}, {sNON}")
        g(f"v_lshrrev_b32 {TG1}, 8, {TG0}")
        g(f"v_and_b32 {TG0}, {sTB}, {TG0}")
        g(f"v_and_b32 {TG1}, {sTB}, {TG1}")
        g(f"v_mov_b32 {vNON}, {sNON}")
    return f


def setFA():
    return [f"s_lshl_b32 {sT}, {sPAR}, 2", f"v_xor_b32 {vPA}, {sT}, {vLANE}", f"v_lshl_add_u32 {vPA}, {vPA}, 2, {sFA}"]


def ident(I):
    a, b, c = vE0, vE1, vCHK
    l = [f"v_mov_b32 {b}, 0x3f80",
         f"v_and_b32 {a}, 1, {vLANE}",
         f"v_lshlrev_b32 {a}, 4, {a}",
         f"v_lshlrev_b32 {a}, {a}, {b}",
         f"v_lshrrev_b32 {b}, 3, {vLANE}",
         f"v_xor_b32 {b}, {b}, {vLANE}",
         f"v_and_b32 {b}, 4, {b}",
         f"v_and_b32 {c}, 0x1a, {vLANE}",
         f"v_or_b32 {b}, {b}, {c}"]
    def f():
        emit(l)
        for k, key in enumerate((0, 2, 8, 10)):
            g(f"v_cmp_eq_u32 vcc, {key}, {b}")
            g(f"v_cndmask_b32 v{I+k}, 0, {a}, vcc")
    return f


def wadd(d):
    return [f"v_add_u32 {r}, {d:#x}, {r}" if d > 0 else f"v_subrev_u32 {r}, {-d:#x}, {r}" for r in (vWlo, vWhi)]


def place(it, lo, hi, fs):
    n = len(fs)
    for i, f in enumerate(fs): it[lo + (hi - lo) * i // n].post.append(f)


def phase1(orient, cbufs, lab, ev=[], late=[]):
    it = []
    for s in range(32):
        c = s >> 2; sp = s & 3
        it.append(Item(vWlo if sp < 2 else vWhi, (c & 3) * 8192 + (sp & 1) * 2048, 512,
                       64 + 4 * (s % 8), ACC0, XR + 4 * s, orient, zero=(s == 0), D=OPT["D"], lg=[f"xr{s}"]))
    wb = WBs()
    if OPT["ew"]: wb0, wb = wb[0], wb[1:]
    wc = WCs()
    if OPT["ev"]: wb = wb + wc[:1] + ev; wc = wc[1:]
    extra = {0: head()[OPT["np2"]:], 5: wb[:3], 6: wb[3:6], 7: wb[6:]}
    for c in range(8):
        def xr(c=c):
            for sp in range(4):
                g(f"ds_read_b128 {vr(XR+16*c+4*sp)}, {vX[sp]} offset:{(c & 3) * 16384}", tag=f"xr{4*c+sp}")
        nx = extra[c] if c in extra else CK(c + 3)
        if OPT["ew"] == 2 and c == 1: nx = nx + [wb0]
        if c == 1: nx = nx + late
        k = OPT["dsp"]
        it[4 * c].bar = dict(vm=[f"ck{c}"], lead=OPT["BL"], drain=True, after=[xr], after2=nx[:k])
        b0 = max(0, 4 * c - OPT["BL"]); b1 = 4 * c + 4 - OPT["BL"]
        nx = nx[k:]
        for j, f in enumerate(nx): it[b0 + (j if len(nx) <= b1 - b0 else j * (b1 - b0) // len(nx))].post.append(f)
    for s in range(32):
        c = s >> 2; sp = s & 3
        it.append(Item(vWlo if sp < 2 else vWhi, c * 8192 + (sp & 1) * 2048, 512, 64 + 4 * (s % 8), ACC1, XR + 4 * s, orient,
                       zero=(s == 0), D=OPT["D"]))
    for s in range(32):
        c = s >> 2; sp = s & 3
        it.append(Item(vWlo if sp < 2 else vWhi, c * 8192 + (sp & 1) * 2048, 512, cbufs[s % len(cbufs)], ACC2, XR + 4 * s,
                       zero=(s == 0), D=OPT["DP"]))
    it[32].bar = dict(vm=["wb0", "wb1"], lead=OPT["BL"], drain=True, after=wadd(LB - LC))
    it[40].bar = dict(vm=["wb2", "wb3", "wb4"], lead=OPT["BL2"])
    it[52].bar = dict(vm=["wb5", "wb6", "wb7"], lead=OPT["BL2"])
    it[64].bar = dict(vm=[f"wc{c}" for c in range(4)], lead=OPT["BL2"], drain=True, after=wadd(-LB))
    it[80].bar = dict(vm=[f"wc{c}" for c in range(4, 8)], lead=OPT["BL2"])
    place(it, OPT["wc0"], OPT["wc1"], wc)
    it[10].post.append(f"s_load_dword {sNON}, s[26:27], 0")
    it[27].post.append(nonce(lab))
    if OPT["tw"]: it[OPT["tw"]].post.append(touch)
    if OPT["tlb"]: it[OPT["tlp"]].post.append(tlbt(lab))
    if OPT["ft"]: it[OPT["ft"]].post.append(ftouch)
    return it


def p2items(steps, bufs, nb):
    nt3 = OPT["t3"]
    order = []
    for p in range(18): order += [(p, t) for t in range(4)]
    defer = [(p, 3) for p in range(18 - nt3, 18)]
    order = [o for o in order if o not in defer] + defer
    seen = set(); it = []
    for n, (p, t) in enumerate(order):
        breg, ar, off = steps[p]
        it.append(Item(ar[t & 1], off + (t >> 1) * 4096, 1024, bufs[n % len(bufs)], TACC + 16 * t, breg,
                       zero=(t not in seen), D=OPT["D2"]))
        seen.add(t)
    first = {p: min(i for i, (q, _) in enumerate(order) if q == p) for p in range(18)}
    return it, order, len(order) - nt3, first


aA, aB, aC = ("v6", "v7"), ("v8", "v9"), ("v10", "v11")
vXW, vXRd, vOA, vFA = "v12", "v24", "v25", "v27"


def p2addr():
    return [f"s_lshl_b32 {sT}, {sCLS}, 13",
            f"v_add_u32 v7, {sT}, {vT0}",
            "v_xor_b32 v6, 64, v7",
            f"v_add_u32 v8, {LB}, v6",
            f"v_add_u32 v9, {LB}, v7",
            f"s_lshl_b32 {sT}, {sCLS}, 11",
            f"s_add_u32 {sT}, {sT}, {LC+16384}",
            f"v_add_u32 v11, {sT}, {vT0}",
            "v_xor_b32 v10, 64, v11"]


def p2misc():
    g(f"s_lshl_b32 {sT}, {sW}, 13")
    g(f"v_add_u32 {vXW}, {sT}, {vL16}")
    g(f"v_xor_b32 {vXRd}, 0x8000, {vXW}")
    g(f"v_and_b32 {vOA}, 31, {vLANE}")
    g(f"v_lshlrev_b32 {vOA}, 10, {vOA}")
    g(f"v_lshrrev_b32 v3, 5, {vLANE}")
    g(f"v_lshl_add_u32 {vOA}, v3, 4, {vOA}")
    g(f"s_lshl_b32 {sT}, {sW}, 11")
    g(f"s_add_u32 {sT}, {sT}, {LC}")
    g(f"v_add_u32 v3, {sT}, {vL16}")
    g(f"v_xor_b32 v26, 0x2000, v3")
    g(f"v_sub_u32 {vFA}, 3, {vLANE}")
    g(f"v_lshlrev_b32 {vFA}, 7, {vFA}")
    g(f"v_xor_b32 {vFA}, {sFP}, {vFA}")
    g(f"v_lshl_add_u32 {vFA}, {vLANE}, 2, {vFA}")
    g(f"v_add_u32 v19, {LB}, {vXW}")
    g(f"v_add_u32 v21, {LB}, {vXRd}")


def p2tail(role, it, base, nx, XB, IDENT, vSC):
    PR = 52
    N = len(it) - base
    def xsend012():
        for t, (a, o) in enumerate((("v19", 0), ("v19", 2048), ("v3", 0))):
            for i in range(2):
                g(f"ds_write_b128 {a}, {vr(TACC+16*t+8+4*i)} offset:{o+i*1024}", tag="xw")
    def xrecv012():
        g.wait(lg="xw")
        g("s_barrier")
        for t, (a, o) in enumerate((("v21", 0), ("v21", 2048), ("v26", 0))):
            for i in range(2):
                g(f"ds_read_b128 {vr(XB[t]+4*i)}, {a} offset:{o+i*1024}", tag=f"xr{t}")
    def xfin(t):
        def f():
            g(f"s_xor_b32 {sT}, {sPART}, {(3-t) << 10:#x}")
            if t: g(f"s_add_u32 {sT}, {sT}, {t*4096}")
            g.wait(lg=f"xr{t}")
            for i in range(8): g(f"v_add_f32 v{XB[t]+i}, v{XB[t]+i}, v{TACC+16*t+i}")
            for i in range(4): g(f"v_cvt_pk_bf16_f32 v{XB[t]+i}, v{XB[t]+2*i}, v{XB[t]+2*i+1}")
            emit(tstore(XB[t], sT, 0, tag="pst"))
        return f
    GP = Grp(role + "pr", [(PR + 4 * t, sPART, t * 4096) for t in range(3)])
    it[base + nx - 1].post.append(st("t012"))
    def pflag():
        g("s_mov_b64 exec, 7")
        g(f"buffer_store_dword {vNON}, {vFA}, {SWS}, 0 offen sc1", tag="pub")
        g("s_mov_b64 exec, -1")
        g(f"v_lshl_add_u32 {vPA}, {vLANE}, 2, {sFP}")
    xs = [xsend012, xrecv012, xfin(0), xfin(1), lambda: (xfin(2)(), stamp("pst"))]
    k = {0: 4, 1: 0, 2: 1, 3: 2}[OPT["efp"]]
    xs[k] = (lambda f: lambda: (f(), pflag()))(xs[k])
    for i, f in enumerate(xs): it[base + min(nx + i, N - 1)].post.append(f)
    it[base + max(min(nx + 5, N - 1), N - 1 - OPT["prl"])].post.append(poll_issue)
    def tail():
        T3 = TACC + 48
        for i in range(2):
            g(f"ds_write_b128 {vXW}, {vr(T3+8+4*i)} offset:{i*1024}", tag="xw")
        g.wait(lg="xw")
        g("s_barrier")
        for i in range(2):
            g(f"ds_read_b128 {vr(XB[3]+4*i)}, {vXRd} offset:{i*1024}", tag="xr3")
        stamp("xb1")
        take(7)()
        stamp("pflag")
        emit(GP.loads())
        g.wait(lg="xr3")
        for i in range(8): g(f"v_mul_f32 v{XB[3]+i}, {vSC}, v{XB[3]+i}")
        emit(GP.check())
        stamp("pok")
        for t in range(3):
            mfma(T3, vr(IDENT), vr(PR + 4 * t), vr(T3, 16))
        for i in range(8): g(f"v_fmac_f32 v{XB[3]+i}, {vSC}, v{T3+i}")
        for i in range(4): g(f"v_cvt_pk_bf16_f32 v{XB[3]+i}, v{XB[3]+2*i}, v{XB[3]+2*i+1}")
        g(f"buffer_store_dwordx4 {vr(XB[3])}, {vOA}, {SOUT}, {sOUT} offen{' sc1' if OPT['osc'] else ''}")
        if STAMP:
            stamp("end")
            g("s_waitcnt lgkmcnt(0)")
            g(f"v_writelane_b32 {vSTAMP}, s98, {len(SN[ROLE[0]])-1}")
            g(f"v_writelane_b32 {vSTAMP}, {sCNT}, 63")
            g(f"v_writelane_b32 {vSTAMP}, s3, 61")
            g("s_lshl_b32 s3, s2, 3")
            g(f"s_add_u32 s3, s3, {sW}")
            g("s_lshl_b32 s3, s3, 8")
            g(f"s_add_u32 s3, s3, {STP:#x}")
            g(f"v_lshlrev_b32 v9, 2, {vLANE}")
            g(f"buffer_store_dword {vSTAMP}, v9, {SWS}, s3 offen")
            if OPT["hd"]:
                nm = SN[ROLE[0]]
                sel = ["i31", "i95", "P2bar", "gook", "t012", "end"] if role == "W" else ["i31", "i95", "kvok", "ost", "t012", "end"]
                b0 = 1 if role == "W" else 7
                g(f"s_cmp_lg_u32 {sRW}, 0")
                g(f"s_cbranch_scc1 HD_{role}")
                g("s_memrealtime s[6:7]")
                g("v_mov_b32 v8, 0")
                g(f"v_readlane_b32 s4, {vSTAMP}, 0")
                for k, n_ in enumerate(sel):
                    g(f"v_readlane_b32 s5, {vSTAMP}, {nm.index(n_)}")
                    g("s_nop 1")
                    g("s_sub_u32 s5, s5, s4")
                    g(f"v_writelane_b32 v8, s5, {b0 + k}")
                g(f"v_readlane_b32 s5, {vSTAMP}, 62")
                g("s_nop 1")
                g("v_writelane_b32 v8, s5, 14")
                g("s_not_b32 s5, s5")
                g("v_writelane_b32 v8, s5, 15")
                g("s_waitcnt lgkmcnt(0)")
                g("v_writelane_b32 v8, s6, 13")
                g("s_mov_b64 exec, 0xffff")
                g(f"buffer_atomic_umax v8, v9, {SDBG}, 0 offen sc1")
                g.label(f"HD_{role}")
        if role == "W": g.label("END")
        g("s_endpgm")
    return tail


def unit(regs, ar, off):
    return [(r, ar, off + s * 2048) for s, r in enumerate(regs)]


def WW():
    g(f"""
    v_mov_b32 v24, 0x3f80
    v_mov_b32 v25, 0
    v_mov_b32 v26, 1.0
    v_mov_b32 v27, 0
    v_mov_b32 v28, 0
    v_mov_b32 v29, 0
    v_mov_b32 v30, 0
    v_mov_b32 v31, 0
    v_mov_b32 {vBIAS2}, 0
    v_mov_b32 v62, 0
    v_mov_b32 v63, 0
    s_lshl_b32 {sT}, {sCLS}, 6
    v_lshl_add_u32 v60, {vLANE}, 1, {sT}
    s_lshl_b32 {sT}, {sCLS}, 5
    v_lshl_add_u32 v61, {vLANE}, 1, {sT}
    """)
    def biasld():
        g("s_mov_b32 exec_hi, 0")
        g(f"buffer_load_ushort v28, v60, {SB}, {sP[0]} offen", tag="bias")
        g(f"buffer_load_ushort v62, v60, {SB}, {sP[1]} offen", tag="bias")
        g(f"buffer_load_ushort {vBIAS2}, v60, {SB}, {sP[2]} offen", tag="bias")
        g("s_mov_b32 exec_lo, 0xffff")
        g(f"buffer_load_ushort v63, v61, {SB}, {sP[3]} offen", tag="bias")
        g("s_mov_b64 exec, -1")
    U6 = [du(n) for n in range(4)]
    if not OPT["bl"]: biasld()
    it = phase1("T", [64, 68, 72, 76, 100, 108], "Wn", ev=U6[:1], late=[biasld] if OPT["bl"] else [])
    if OPT["ev"]: U6 = U6[1:]
    for n in range(16):
        c, j = n >> 1, n & 1
        it.append(Item(vU, c * 4096 + j * 2048, 512, (64, 68, 72, 76, 100, 108)[(n + 2) % 6], ACC3, XR + 16 * c + 4 * j, D=OPT["DP"]))
    def bias1():
        g.wait(vm="bias")
        g("v_lshl_or_b32 v28, v62, 16, v28")
        g(f"v_lshl_or_b32 {vBIAS2}, v63, 16, {vBIAS2}")
        mfma(ACC0, "v[28:31]", "v[24:27]", vr(ACC0, 16))
    it[19].post.append(bias1)
    it[21].post.append(lambda: mfma(ACC1, "v[28:31]", "v[26:29]", 0))
    it[32].zero = False
    it[23].post.append(f"v_mov_b32 v28, {vBIAS2}")
    it[25].post.append(lambda: mfma(ACC3, "v[28:31]", "v[26:29]", 0))
    it[64].post.append(lambda: mfma(ACC2, "v[28:31]", "v[24:27]", vr(ACC2, 16)))
    it[28].post.append(f"s_add_u32 {sST}, {sAp}, 0x1000")
    it[96].bar = dict(vm=["u6"], lead=OPT["BL2"], drain=True)
    Ga = Grp("Wga", [(r, sAo, i * 1024) for i, r in enumerate((136, 140, 152, 156))])
    Gc = Grp("Wgc", [(r, sAo, 4096 + i * 1024) for i, r in enumerate((168, 172, 184))])
    Go = Grp("Wgo", [(128, sAp, 7168), (132, sAp, 8192), (188, sAp, 9216), (144, sAo, 7168), (148, sAo, 8192)])
    place(it, OPT["u0"], OPT["u1"], U6)
    place(it, OPT["g0"], OPT["g1"], D2A("G0") + D2A("G1"))
    place(it, 97, 111, D2A("P2"))
    assert OPT["ea1"] <= 62
    spread(it, OPT["ea0"], OPT["ea1"], EH(ACC0, sAp, 0) + EH(ACC0 + 8, sAp, 1024, ACC0))
    spread(it, OPT["eb0"], OPT["eb1"], EH(ACC1, sAp, 2048, ACC0 + 8) + EH(ACC1 + 8, sAp, 3072, ACC1))
    def xw():
        for i in range(2): g(f"ds_write_b128 {vE0}, {vr(ACC3+8+4*i)} offset:{i*1024}", tag="xw")
    def xrd():
        for i in range(2): g(f"ds_read_b128 {vr(ACC3+8+4*i)}, {vE1} offset:{i*1024}", tag="xu")
    steps = unit((ACC0, ACC0 + 8), aB, 0) + unit((ACC1, ACC1 + 8), aB, 32768) + \
        unit((136, 140), aB, 16384) + unit((152, 156), aB, 32768 + 16384) + \
        unit((ACC2, ACC2 + 8), aA, 0) + unit((ACC3,), aC, 0) + unit((168, 172), aA, 16384) + unit((184,), aC, 8192) + \
        unit((128, 132), aA, 32768) + unit((144, 148), aA, 32768 + 16384)
    p2, order, nx, first = p2items(steps, [64, 68, 72, 76, 108, 116, 124], None)
    B = len(it); it += p2
    it[96].post += p2addr()
    it[B].bar = dict(vm=["wG0", "wG1"], lead=OPT["D2"], after=[st("P2bar")])
    spread(it, 97, OPT["ec1"], EH(ACC2, sST, 0, ACC1 + 8) + EH(ACC2 + 8, sST, 1024, ACC2))
    it[110].post += [f"s_lshl_b32 {sT}, {sW}, 11", f"s_add_u32 {sT}, {sT}, {LA+32768}", f"v_add_u32 {vE0}, {sT}, {vL16}",
                     f"v_xor_b32 {vE1}, 0x2000, {vE0}"]
    it[B].post += [xw]
    xb = B + 2
    it[xb].post += [lambda: g.wait(lg="xw"), "s_barrier", xrd] + D2A("U")
    eu = [lambda: g.wait(lg="xu")] + [f"v_add_f32 v{ACC3+i}, v{ACC3+i}, v{ACC3+8+i}" for i in range(8)] + \
        EH(ACC3, sST, 2048, ACC2 + 8) + [publish(3), st("ust")]
    e0 = max(xb + 2, OPT["ec1"])
    spread(it, e0, e0 + OPT["eun"], eu)
    assert e0 + OPT["eun"] <= B + first[8] - 2
    fetch(it, B + OPT["wga"], Ga.loads(), None, B + first[4] - 5)
    spread(it, B + first[4] - 4, B + first[4], Ga.check() + [st("gaok")])
    it[B + first[8] - 2].post += untag(ACC3)
    it[B + first[8] + 1].post += [p2misc, ident(100)]
    it[B + first[8]].bar = dict(vm=["wP2", "wU"], lead=OPT["D2"], after2=D2A("O")[:1])
    place(it, B + first[8] - OPT["D2"], B + first[8] - OPT["D2"] + 6, D2A("O")[1:])
    it[B + first[14]].bar = dict(vm=["wO"], lead=OPT["D2"])
    fetch(it, B + OPT["wgc"], Gc.loads(), None, B + first[11] - 4)
    fetch(it, B + OPT["wgo"], Go.loads(), 0x0011, B + first[14] - 4, pl=OPT["wpl"], pre=setFA(), post=[st("gofl")])
    spread(it, B + first[11] - 3, B + first[11], Gc.check() + [st("gcok")])
    spread(it, B + first[14] - 3, B + first[14], Go.check() + [st("gook")])
    assert OPT["wgc"] < first[11] - 3 and OPT["wgo"] < first[14] - 3
    tail = p2tail("W", it, B, nx, [160, 176, 32, 40], 100, "v190")
    run(it)
    tail()


def QQ():
    it = phase1("N", [64, 68, 72, 76], "Qn")
    for n in range(16):
        c, j = n >> 1, n & 1
        x = Item(vU, c * 128 + j * 32, None, 64 + 4 * (n % 4), ACC3, XR + 16 * c + 4 * j, zero=(n == 0), D=OPT["DP"])
        if n == 0: x.rvm = ["gate"]
        it.append(x)
    it[2].post += [f"s_lshl_b32 {sT}, {sW}, 11", f"s_add_u32 {sT}, {sT}, {LC}", f"v_add_u32 v24, {sT}, {vL16}",
                   f"s_and_b32 {sT}, {sRW}, 1", f"s_lshl_b32 {sT}, {sT}, 13", f"s_add_u32 {sT}, {sT}, {LC}",
                   f"v_add_u32 v25, {sT}, {vL16}",
                   f"s_lshl_b32 {sT}, {sCLS}, 6", f"s_add_u32 {sT}, {sT}, {sW1K}", f"s_add_u32 {sT}, {sT}, {LC+8192}",
                   f"v_lshrrev_b32 {vU}, 5, {vLANE}", f"v_lshl_add_u32 {vU}, {vU}, 4, {sT}",
                   f"s_lshl_b32 {sT}, {sROT}, 7", f"v_xor_b32 {vUD}, {sT}, {vL16}"]
    it[4].post += [f"v_mov_b32 v{28+i}, 0x3f803f80" for i in range(4)] + \
                  [f"s_cmp_lt_u32 {sRW}, 2", "s_mov_b32 s5, 0xffff", "s_cselect_b32 s4, s5, 0xffff0000", "s_mov_b32 s5, s4",
                   f"v_add_u32 v26, 1024, {vL16}", f"v_cndmask_b32_e64 v26, v26, {vL16}, {sMK}"]
    def fw(reg, off):
        return lambda: g(f"ds_write_b128 v24, {vr(reg)} offset:{off}", tag="fw")
    vp = []
    for q in range(2):
        vp += [f"v_cvt_pk_bf16_f32 v{ACC1+8*q+i}, v{ACC1+8*q+2*i}, v{ACC1+8*q+2*i+1}" for i in range(4)] + [fw(ACC1 + 8 * q, 16384 + q * 1024)]
    spread(it, OPT["ea0"], OPT["ea1"], PH(ACC0) + [fw(ACC0, 0)] + PH(ACC0 + 8) + [fw(ACC0 + 8, 1024)])
    it[64].post += vp
    def kflag():
        g(f"s_and_b32 {sT2}, {sRW}, 1")
        g(f"s_lshl_b32 {sT2}, {sT2}, 8")
        g(f"s_and_b32 {sT}, {sRB}, 8")
        g(f"s_lshl_b32 {sT}, {sT}, 4")
        g(f"s_add_u32 {sT2}, {sT2}, {sT}")
        g(f"s_lshl_b32 {sT}, {sR8}, 3")
        g(f"s_add_u32 {sT2}, {sT2}, {sT}")
        g(f"s_and_b32 {sT}, {sRW}, 2")
        g(f"s_lshl_b32 {sT}, {sT}, 1")
        g(f"s_add_u32 {sT2}, {sT2}, {sT}")
        g(f"s_add_u32 {sT2}, {sT2}, {sFK}")
        g("s_mov_b64 exec, 1")
        g(f"buffer_store_dword {vNON}, off, {SWS}, {sT2} sc1")
        g("s_mov_b64 exec, -1")
    def job():
        g.wait(lg="fw")
        g("s_barrier")
        g(f"s_cmp_lg_u32 {sCLS}, 0")
        g("s_cbranch_scc1 Q_nojob")
        with g.optional():
            g("s_setprio 3")
            g(f"s_cmp_lt_u32 {sRW}, 2")
            g("s_cbranch_scc1 Q_jobc")
            with g.optional():
                for k in range(8): g(f"ds_read_b128 {vr(96+4*k)}, v25 offset:{k*1024}", tag=f"a{k}")
                if OPT["efk"]: kflag()
                for k in range(8):
                    g.wait(lg=f"a{k}")
                    mfma(ACC3, vr(96 + 4 * k), "v[28:31]", vr(ACC3, 16) if k else 0)
                g("s_branch Q_jobf")
            g.label("Q_jobc")
            for k in range(8):
                g(f"ds_read_b128 {vr(96+4*k)}, v25 offset:{k*1024}", tag=f"a{k}")
                if k < 4: g(f"ds_read_b128 {vr(TMP+4*k)}, v25 offset:{16384+k*1024}", tag=f"a{k}")
            if OPT["efk"]: kflag()
            for k in range(8):
                g.wait(lg=[f"a{k}", f"b{k}"])
                mfma(ACC3, vr(96 + 4 * k), vr(TMP + 4 * k) if k < 4 else vr(96 + 4 * (k - 4)), vr(ACC3, 16) if k else 0)
                if k < 4: g(f"ds_read_b128 {vr(96+4*k)}, v25 offset:{16384+(k+4)*1024}", tag=f"b{k+4}")
            g.label("Q_jobf")
            g(f"s_lshl_b32 {sT}, {sRB}, 12")
            g(f"s_and_b32 {sT2}, {sRW}, 1")
            g(f"s_lshl_b32 {sT2}, {sT2}, 11")
            g(f"s_add_u32 {sT}, {sT}, {sT2}")
            g(f"s_add_u32 {sT}, {sT}, {sKV}")
            for i in range(4): g(f"v_cvt_pk_bf16_f32 v{TMP+i}, v{ACC3+8+2*i}, v{ACC3+8+2*i+1}")
            g(f"s_mov_b64 exec, {sMK}")
            for i in range(4): g(f"v_cvt_pk_bf16_f32 v{TMP+i}, v{ACC3+2*i}, v{ACC3+2*i+1}")
            g("s_mov_b64 exec, -1")
            emit(tstore(TMP, sT, 0)[:2])
            g(f"buffer_store_dwordx4 {vr(TMP)}, v26, {SWS}, {sT} offen sc1")
            if not OPT["efk"]: kflag()
            g("s_setprio 0")
        g.label("Q_nojob")
        g(f"s_lshr_b32 {sT}, {sRW}, 1")
        g(f"s_lshl_b32 {sT}, {sT}, 15")
        g(f"s_add_u32 {sKV}, {sKV}, {sT}")
        g(f"s_and_b32 {sT}, {sRW}, 1")
        g(f"s_lshl_b32 {sT2}, {sCLS}, 1")
        g(f"s_add_u32 {sT}, {sT}, {sT2}")
        g(f"s_lshl_b32 {sT}, {sT}, 10")
        g(f"s_add_u32 {sKV}, {sKV}, {sT}")
        g(f"s_add_u32 {sST}, {sAp}, 7168")
        g(f"s_lshr_b32 {sT}, {sW}, 1")
        g(f"s_lshl_b32 {sT}, {sT}, 7")
        g(f"s_add_u32 {sT}, {sT}, {sFK}")
        g(f"v_lshl_add_u32 {vPA}, {vLANE}, 2, {sT}")
    it[OPT["jb"]].post += [job, st("job")]
    def dgate():
        g(f"s_add_u32 m0, {sW1K}, {LC+8192:#x}")
        g(f"buffer_load_dwordx4 {vUD}, {SB}, 0 offen lds", tag="gate")
    assert OPT["jb"] < 80 - OPT["BL2"]
    it[80].bar["after2"] = [dgate]
    it[96].bar = dict(lead=min(3, OPT["BL2"]), drain=True)
    place(it, OPT["jb"] + 1, OPT["qa"] - 2, D2A("G0") + D2A("G1"))
    place(it, OPT["qa"] + 5, 95, D2A("U"))
    place(it, 96, OPT["qkv"] - 1, D2A("P2"))
    KR = (136, 140, 152, 156, 168, 172, 184, 188)
    Gk = Grp("Qkv", [(KR[r], sKV, r * 4096) for r in range(8)])
    Gp = Grp("Qgp", [(96, sAp, 0), (100, sAp, 1024), (104, sAo, 0), (108, sAo, 1024)])
    Gq = Grp("Qgq", [(112, sAp, 2048), (116, sAp, 3072), (120, sAo, 2048), (124, sAo, 3072)])
    Gc = Grp("Qgc", [(r, sAp, 4096 + i * 1024) for i, r in enumerate((148, 160, 164))] +
             [(r, sAo, 4096 + i * 1024) for i, r in enumerate((176, 180, 168))])
    Go = Grp("Qgo", [(172, sAo, 7168), (184, sAo, 8192)])
    IDENT = 84
    OO, SCQ = 128, 144
    def ksum():
        stamp("kvok")
        if OPT["efo"] == 2: publish(0)()
        for r in range(8): mfma(ACC3, vr(IDENT), vr(KR[r]), vr(ACC3, 16) if r else 0)
        for i in range(4): g(f"v_cvt_pk_bf16_f32 v{TMP+i}, v{ACC3+2*i}, v{ACC3+2*i+1}")
        g(f"ds_write_b128 v24, {vr(TMP)}", tag="kw")
    def kx():
        g.wait(lg="kw")
        g("s_barrier")
        g("ds_read_b32 v29, v27 offset:8192", tag="kl")
        for r in range(4): g(f"ds_read_b128 {vr(KR[r])}, v25 offset:{r*1024}", tag=f"kr{r}")
        if OPT["efo"] == 1: publish(0)()
    def ko():
        g.wait(lg="kl")
        g("v_add_f32 v28, v28, v29")
        g(f"v_mul_f32 v28, {sLOG2E}, v28")
        g("v_min_f32 v28, 0x42640000, v28")
        g("v_exp_f32 v28, v28")
        for r in range(4):
            g.wait(lg=f"kr{r}")
            acc = (TMP, ACC3)[r & 1]
            mfma(acc, vr(KR[r]), vr(ACC2 + 8 * (r & 1)), vr(acc, 16) if r >= 2 else 0)
        g(f"v_add_f32 v{SCQ+2}, 1.0, v28")
        g(f"v_rcp_f32 v{SCQ+2}, v{SCQ+2}")
        g(f"v_mov_b32 v{SCQ}, {TG0}")
        g(f"v_mov_b32 v{SCQ+1}, {TG1}")
        g(f"buffer_store_dwordx4 {vr(SCQ)}, {vL16}, {SWS}, {sST} offen offset:2048{LSC}", tag="st")
        for hd, (num, den) in enumerate(((TMP, TMP + 8), (ACC3 + 8, ACC3))):
            g(f"v_add_f32 v{den}, {sEPS}, v{den}")
            g(f"v_rcp_f32 v{den}, v{den}")
            g(f"v_mul_f32 v{den}, v28, v{den}")
            for i in range(8): g(f"v_mul_f32 v{num+i}, v{den}, v{num+i}")
            for i in range(4): g(f"v_cvt_pk_bf16_f32 v{OO+4*hd+i}, v{num+2*i}, v{num+2*i+1}")
            emit(tstore(OO + 4 * hd, sST, hd * 1024))
        if OPT["efo"] == 0: publish(0)()
        emit(untag(OO) + untag(OO + 4))
        stamp("ost")
    steps = unit((96, 100), aB, 0) + unit((104, 108), aB, 16384) + \
        unit((112, 116), aB, 32768) + unit((120, 124), aB, 32768 + 16384) + \
        unit((OO, OO + 4), aA, 32768) + \
        unit((148, 160), aA, 0) + unit((164,), aC, 0) + unit((176, 180), aA, 16384) + unit((168,), aC, 8192) + \
        unit((172, 184), aA, 32768 + 16384)
    p2, order, nx, first = p2items(steps, [64, 68, 72, 76, 92], None)
    B = len(it); it += p2
    it[96].post += p2addr()
    spread(it, 97, 108, PH(ACC2) + [ident(IDENT)] + PH(ACC2 + 8))
    fetch(it, OPT["qa"], Gp.loads(), None, 107)
    fetch(it, OPT["qkv"], Gk.loads(), 0xffff, B + 40, pl=OPT["qpl"], step=0, post=[st("kvfl")])
    fetch(it, OPT["qb"], Gq.loads(), None, B + first[4] - 5)
    assert OPT["qkv"] >= 96 and OPT["qkv"] - OPT["qpl"] > OPT["jb"] and OPT["qa"] > OPT["jb"]
    spread(it, 108, 112, Gp.check() + [st("gpok")])
    it[B].post += [f"s_add_u32 {sT}, {sW1K}, {LC}", f"v_add_u32 v24, {sT}, {vL16}",
                   f"s_lshl_b32 {sT2}, {sCLS}, 12", f"s_add_u32 {sT2}, {sT2}, {LC}", f"v_add_u32 v25, {sT2}, {vL16}",
                   f"v_lshl_add_u32 v26, {vLANE}, 2, {sT}", "v_xor_b32 v27, 0x1000, v26",
                   f"v_mov_b32 v28, v{ACC3}", lambda: g("ds_write_b32 v26, v28 offset:8192", tag="kw")]
    it[B].bar = dict(vm=["wG0", "wG1"], lead=3, after=[st("P2bar")])
    kp = B + OPT["qks"]
    assert OPT["qks"] >= 1 and kp > OPT["qkv"]
    it[kp].post += Gk.check() + [ksum]
    it[kp + OPT["kd1"]].post += [kx]
    it[kp + OPT["kd1"] + OPT["kd2"]].post += [ko]
    ke = kp + OPT["kd1"] + OPT["kd2"]
    place(it, max(OPT["qb"], OPT["qkv"]) + 5, max(OPT["qb"], OPT["qkv"]) + 13, D2A("O"))
    gq = B + first[4] - 4
    if gq <= kp < gq + 4: it[B + first[4] - 1].post += Gq.check()
    else: spread(it, gq, gq + 4, Gq.check())
    it[B + first[8] + 1].post += [p2misc]
    it[B + first[8]].bar = dict(vm=["wP2", "wU", "wO"], lead=OPT["D2"])
    it[B + first[16]].bar = dict(lead=OPT["D2"])
    assert ke < B + first[8] - 1
    fetch(it, B + OPT["qgc"], Gc.loads(), None, B + first[10] - 5)
    fetch(it, B + OPT["qgo"], Go.loads(), 0x0010, B + first[16] - 3, pl=OPT["wpl"], pre=setFA(), post=[st("gofl")])
    spread(it, B + first[10] - 4, B + first[10], Gc.check() + [st("gcok")])
    spread(it, B + first[16] - 2, B + first[16], Go.check() + [st("gook")])
    assert kp < B + OPT["qgc"] < B + first[10] - 4 and OPT["qkv"] < B + OPT["qgo"] - OPT["wpl"] and kp < B + OPT["qgo"] < B + first[16] - 2
    tail = p2tail("Q", it, B, nx, [96, 104, 32, 40], IDENT, f"v{SCQ+2}")
    run(it)
    tail()


for role, fn in (("WW", WW), ("QQ", QQ)):
    g.start_trace(role)
    ROLE[0] = role
    g.block(ENTRY, prologue)
    g.block(role, fn, align=(3 if role == "QQ" else None))
rt = []
for r in retries:
    g.start_trace("RT_" + r.name)
    g.block("RT_" + r.name, r.retry)
    rt.append("RT_" + r.name)
g.start_trace("end"); g.block("CODE_END", lambda: None)
g.hazards()
order = [ENTRY, "WW", "SPIN", "QQ"] + rt + ["CODE_END"]
assert sorted(order) == sorted(g.order), (g.order)

hdr = open("cdna_kernels/" + KN + ".s.ref").read().split("\n")
top = [l for l in hdr if l.startswith(";") and "@launch" not in l]
print("\n".join(top))
print("; @launch grid=(256,1,1) block=(512,1,1) lds=163840")
if STAMP:
    for r in SN: print("; STAMPS", r, " ".join(SN[r]))
print('.amdgcn_target "amdgcn-amd-amdhsa--gfx950"\n.text')
print(f".globl {ENTRY}\n.p2align 8\n.type {ENTRY},@function")
print(g.text(order))
print("    s_endpgm")
print(f""".section .rodata,"a"
.p2align 6
.amdhsa_kernel {ENTRY}
  .amdhsa_next_free_vgpr 256
  .amdhsa_next_free_sgpr 102
  .amdhsa_accum_offset 256
  .amdhsa_group_segment_fixed_size 0
  .amdhsa_kernarg_size 88
  .amdhsa_user_sgpr_count 2
  .amdhsa_user_sgpr_kernarg_segment_ptr 1
  .amdhsa_system_sgpr_workgroup_id_x 1
.end_amdhsa_kernel""")
print(f"; maxvm={g.maxvm}", file=sys.stderr)
for name, tr in g.traces[:2]:
    print(f"; trace {name}: barriers={sum(1 for o in tr if o.kind=='i' and o.mn=='s_barrier')} instrs={len(tr)}", file=sys.stderr)
```

```python
import sys
from fw import *

OPT = dict(stamp=0, D=6, BL=2, BL2=4, DP=5, D2=4, lim=20000, rotm=7, tw=61, tlb=0, wt3=18, qt3=14, sp=0, slp=1,
           dsp=0, pst=0, osc=0, nochk=0, ew=1, pb=1, np1=5, np2=8, tlp=31, ft=1, bl=0,
           fl=40, lpl=6, loc=0, at1=0, at2=0, atq=0, pt=0, g0=80, g1=100, pd1=10, wob=0,
           ea0=49, ea1=66, eu0=66, eu1=78, eb0=81, eb1=102, ec0=1, ec1=14, pk1=78,
           wga=92, wgb=2, wgc=24, wgo=31,
           twq=1, qg0=74, qapl=5, qa=92, qb=8, qkv=99, qpl=7, qks=-4, qlb=92, qgc=28, qgo=40, jb=82, pq0=0, pq1=5, efk=0, efo=0, efp=0,
           prl=0, hd=0, rts=1, cal=0, calx=4000, sper=8, sb0=999, sb1=0, s0=0, s1=999)
for a in sys.argv[1:]:
    k, v = a.split("="); assert k in OPT, k; OPT[k] = int(v, 0)
STAMP = OPT["stamp"]
LIM = OPT["lim"] << 16 if STAMP else OPT["lim"]

LSC = "" if OPT["loc"] else " sc1"
LA, LB, LC = 0, 98304, 65536
MAP = {"WW": (LC, 32768, 0, LB + 32768), "QQ": (LB, 0, 32768, LC)}
def GB(): return MAP[ROLE[0]][0]
def XC(): return MAP[ROLE[0]][3]
PARTO, KVP, STP, FA, FK, FP = 640 * 1024, 0x1000000, 0x1100000, 0x10A0000, 0x10B0000, 0x10C0000
WS_SIZE = 0x1180000 if STAMP else 0x1100000
SX, SW, SW2, SWO, SWS, SOUT, SB, SDBG = "s[32:35]", "s[36:39]", "s[40:43]", "s[44:47]", "s[48:51]", "s[52:55]", "s[56:59]", "s[60:63]"
sW, sRW, sRB, sCGI, sISW1, sSTR, sROT, sW1K, sXR, sCLS, sNON, sM = [f"s{64+i}" for i in range(12)]
sP = ["s76", "s77", "s78", "s79"]
sWC = [f"s{80+i}" for i in range(8)]
sT, sT2, sT3, sTB, sCNT, sKQ, sR8, sPAR, sTT, sLOG2E = [f"s{88+i}" for i in range(10)]
sTM = "s[98:99]"; sEPS = "s100"; sST = "s101"
sMK = "s[4:5]"
sAp, sAo, sRs, sRo, sRu, sRm, sRmu, sPART, sOUT, sKV, sFA, sPUB, sFP, sFK, sHAVE, sMASK = [f"s{8+i}" for i in range(16)]
sRET = "s[30:31]"
sDEC, sLC = "s6", "s7"
vWDB, vLANE, vXD, vWDa, vWDb, vW2D = "v0", "v1", "v2", "v3", "v4", "v5"
vX = ["v6", "v7", "v8", "v9"]
vWlo, vWhi, vU, vWOD, TG0, TG1, vL16, vCHK, vSTAMP, vBIAS2, vT0, vUD, vE0, vE1 = [f"v{10+i}" for i in range(14)]
vPR, vNON, vPA = "v0", "v2", "v4"
ACC0, ACC1, ACC2, ACC3, XR, TMP, TACC = 96, 112, 80, 48, 128, 32, 192

g = Gen()
retries = []


def vr(a, n=4):
    return f"v[{a}:{a+n-1}]"


SN = {"WW": ["start"], "QQ": ["start"]}
ROLE = [None]
def stamp(name):
    if not STAMP: return
    names = SN[ROLE[0]]
    g(f"v_writelane_b32 {vSTAMP}, s98, {len(names)-1}")
    g(f"{'s_memrealtime' if OPT['rts'] else 's_memtime'} {sTM}")
    names.append(str(name))
    assert len(names) < 59


def st(i):
    return lambda: stamp(i)


def mfma(d, a, b, c):
    g(f"v_mfma_f32_32x32x16_bf16 {vr(d,16)}, {a}, {b}, {c}")


def dx(c, i):
    def f():
        g(f"s_add_u32 m0, {sW1K}, {(c % 4) * 16384 + i * 8192:#x}")
        g(f"s_xor_b32 {sT2}, {sXR}, {c << 7 | i << 16:#x}")
        g(f"buffer_load_dwordx4 {vXD}, {SX}, {sT2} offen lds", tag=f"ck{c}")
    return f


def dw(lds, c, va, tag):
    def f():
        g(f"s_add_u32 m0, {sW1K}, {lds:#x}")
        g(f"buffer_load_dwordx4 {va}, {SW}, {sWC[c]} offen lds", tag=tag)
    return f


def CK(c):
    return [dx(c, 0), dx(c, 1), dw(LC + (c % 4) * 8192, c, vWDa, f"ck{c}")]


def WBs():
    if OPT["rotm"] == 7: return [dw(LB + c * 8192, c, vWDb, f"wb{c}") for c in range(8)]
    assert OPT["rotm"] == 3
    def sel(flip):
        def f():
            g(f"s_bitcmp{1 - flip}_b32 {sR8}, 2")
            g(f"s_cselect_b32 {sT2}, {sWC[4]}, {sWC[0]}")
            g(f"s_cselect_b32 {sT3}, {4 * 8192:#x}, 0")
            g(f"s_add_u32 {sT3}, {sT3}, {sW1K}")
            g(f"s_add_u32 m0, {sT3}, {LB:#x}")
            g(f"buffer_load_dwordx4 {vWDb}, {SW}, {sT2} offen lds", tag="wb0")
        return f
    return [sel(0), sel(1)] + [dw(LB + c * 8192, c, vWDb, f"wb{c}") for c in (1, 2, 3, 5, 6, 7)]


def head():
    c1 = CK(1)
    return CK(0) + c1[:2] + (WBs()[:1] if OPT["ew"] == 1 else []) + c1[2:] + CK(2) + CK(3)


def WCs():
    l = [dw(LA + c * 8192, c, vWDa, f"wc{c}") for c in range(8)]
    f0 = l[0]
    l[0] = lambda: (g(f"v_add_u32 {vWDa}, {sP[2]}, {vWDB}"), f0())
    return l


def du(n, tag):
    def f():
        g(f"s_xor_b32 {sT2}, {sROT}, {sCLS}")
        g(f"s_xor_b32 {sT2}, {sT2}, {2*n}")
        g(f"s_add_u32 m0, {sW1K}, {LB + 32768 + n*8192:#x}")
        g(f"s_mul_i32 {sT2}, {sT2}, {3584*64}")
        g(f"buffer_load_dwordx4 {vUD}, {SW}, {sT2} offen lds", tag=tag)
    return f


def d2(area, n):
    i = 2 * n
    prel, pp = (i >> 2) & 1, (i >> 1) & 1
    if area == "U": prel, pp = n, 0
    def f():
        if area in ("G0", "G1", "P2"):
            base = {"G0": GB() + MAP[ROLE[0]][1], "G1": GB() + MAP[ROLE[0]][2], "P2": LA}[area]
            gofs = {"G0": 0, "G1": 1 << 16, "P2": 1 << 17}[area]
            g(f"s_xor_b32 m0, {sRm}, {base + (i << 12):#x}")
            g(f"s_xor_b32 {sT2}, {sRs}, {gofs | prel << 18 | pp << 15:#x}")
            g(f"buffer_load_dwordx4 {vW2D}, {SW2}, {sT2} offen lds", tag="w" + area)
        elif area == "O":
            g(f"s_xor_b32 m0, {sRm}, {LA + 32768 + (i << 12):#x}")
            g(f"s_xor_b32 {sT2}, {sRo}, {prel << 16 | pp << 15:#x}")
            g(f"buffer_load_dwordx4 {vWOD}, {SWO}, {sT2} offen lds", tag="wO")
        else:
            g(f"s_xor_b32 m0, {sRmu}, {XC() + 16384 + (i << 12):#x}")
            g(f"s_xor_b32 {sT2}, {sRu}, {0x30000 | prel << 15:#x}")
            g(f"buffer_load_dwordx4 {vW2D}, {SW2}, {sT2} offen lds", tag="wU")
    return f


def D2A(area):
    return [d2(area, n) for n in range(2 if area == "U" else 4)]


def touch():
    q = OPT["twq"]
    g(f"s_and_b32 {sT}, s2, {0x78 if q else 0xf8:#x}")
    g(f"s_add_u32 {sT}, {sT}, {sW}")
    g(f"s_mul_i32 {sT2}, {sT}, {14*128 << q}")
    g(f"s_mul_i32 {sT3}, {sKQ}, {448*1024}")
    g(f"s_add_u32 {sT2}, {sT2}, {sT3}")
    g(f"v_lshlrev_b32 {vE0}, 7, {vLANE}")
    g(f"s_mov_b64 exec, {(1 << (14 << q)) - 1:#x}")
    g(f"buffer_load_dword {vE1}, {vE0}, {SW2}, {sT2} offen", tag="tw")
    g(f"s_lshl_b32 {sT2}, {sT}, {9 + q}")
    g(f"s_lshl_b32 {sT3}, {sKQ}, 17")
    g(f"s_add_u32 {sT2}, {sT2}, {sT3}")
    g(f"s_mov_b64 exec, {(1 << (4 << q)) - 1:#x}")
    g(f"buffer_load_dword {vE1}, {vE0}, {SWO}, {sT2} offen", tag="tw")
    g("s_mov_b64 exec, -1")


def publish(kind):
    def f():
        g("s_mov_b64 exec, 1")
        g(f"buffer_store_dword {vNON}, off, {SWS}, {sPUB} offset:{kind*4}", tag="pub")
        g("s_mov_b64 exec, -1")
    return f


def SPIN():
    g("s_mov_b64 exec, 0xffff")
    g.label("SPIN_loop")
    g(f"buffer_load_dword {vPR}, {vPA}, {SWS}, 0 offen sc1")
    g("s_waitcnt vmcnt(0)")
    g(f"v_cmp_eq_u32 vcc, {sNON}, {vPR}")
    g(f"s_add_u32 {sCNT}, {sCNT}, {0x10000 if STAMP else 1}")
    g(f"s_mov_b32 {sHAVE}, vcc_lo")
    g(f"s_and_b32 {sT}, {sHAVE}, {sMASK}")
    g(f"s_cmp_eq_u32 {sT}, {sMASK}")
    g("s_cbranch_scc1 SPIN_done")
    if OPT["slp"]: g(f"s_sleep {OPT['slp']}")
    g(f"s_sub_u32 {sLC}, {sLC}, {sDEC}")
    g(f"s_cmp_lt_i32 {sLC}, 0")
    g("s_cbranch_scc1 SPIN_done")
    g(f"s_cmp_lt_u32 {sCNT}, {LIM:#x}")
    g("s_cbranch_scc1 SPIN_loop")
    g.label("SPIN_done")
    g("s_mov_b64 exec, -1")
    g(f"s_setpc_b64 {sRET}")


def poll_issue():
    g("s_mov_b64 exec, 0xffff")
    g(f"buffer_load_dword {vPR}, {vPA}, {SWS}, 0 offen sc1", tag="poll")
    g("s_mov_b64 exec, -1")


nlab = [0]
def take(mask, fresh=True):
    def f():
        nlab[0] += 1
        lab = f"EN{nlab[0]}"
        if fresh:
            g.wait(vm="poll")
            g(f"v_cmp_eq_u32 vcc, {sNON}, {vPR}")
            g(f"s_and_b32 {sHAVE}, vcc_lo, 0xffff")
        g(f"s_and_b32 {sT}, {sHAVE}, {mask:#x}")
        g(f"s_cmp_eq_u32 {sT}, {mask:#x}")
        g(f"s_cbranch_scc1 {lab}")
        with g.optional():
            g(f"s_mov_b32 {sMASK}, {mask:#x}")
            g(f"s_call_b64 {sRET}, SPIN")
            g.block("SPIN", SPIN, align=3)
        g.label(lab)
    return f


POLLS = {"WW": [], "QQ": []}
def fetch(it, pos, grp, mask, hi, pl=0, step=1, pre=(), post=(), lp=None):
    if mask is not None:
        for lo, hi_ in POLLS[ROLE[0]]: assert pos <= lo or pos - pl >= hi_, ("polls overlap", lo, hi_, pos - pl, pos)
        assert all(hi_ <= pos - pl for lo, hi_ in POLLS[ROLE[0]]), "fetch order"
        POLLS[ROLE[0]].append((pos - pl, pos))
        it[pos - pl].post += list(pre) + [poll_issue]
        it[pos].post += [take(mask)] + list(post)
    if lp is not None: assert lp >= pos; pos = lp
    for i, f in enumerate(grp): it[min(pos + step * i, hi)].post.append(f)


GN = ["ga", "gp", "gq", "kv", "gc", "go", "pr"]
PA, PB, PC, P2 = 0, 48, 80, 112
class Grp:
    def __init__(s, name, frags):
        s.name = name; s.frags = frags

    def loads(s, tagged=True):
        out = []
        cur = [None]
        def one(i, reg, base, off):
            def f(first=True):
                hi = off & ~4095 if off >= 4096 else 0
                fl = " sc1"
                if hi: g(f"s_add_u32 {sT3}, {base}, {hi:#x}")
                g(f"buffer_load_dwordx4 {vr(reg)}, {vL16}, {SWS}, {sT3 if hi else base} offen offset:{off - hi}{fl}",
                  tag=f"{s.name}{i}" if tagged else None)
            return f
        return [one(i, *fr) for i, fr in enumerate(s.frags)]

    def decode(s, waits=True):
        out = []
        for i, (reg, _, _) in enumerate(s.frags):
            if waits: out.append(lambda i=i: g.wait(vm=f"{s.name}{i}"))
            out.append(f"v_xor_b32 v{reg}, {TG0}, v{reg}")
            out.append(f"v_xor_b32 v{reg+1}, {TG1}, v{reg+1}")
            out.append(f"v_or_b32 {vCHK}, v{reg}, v{reg+1}" if i == 0 else f"v_or3_b32 {vCHK}, v{reg}, v{reg+1}, {vCHK}")
        out.append(f"v_and_b32 {vCHK}, {sTB}, {vCHK}")
        return out

    def check(s):
        def fin():
            if OPT["nochk"]: return
            g(f"v_cmp_ne_u32 vcc, 0, {vCHK}")
            g("s_cmp_lg_u64 vcc, 0")
            g(f"s_cbranch_scc1 RT_{s.name}")
            g.label(f"OK_{s.name}")
            retries.append(s)
        return s.decode() + [fin]

    def retry(s):
        if STAMP: g(f"s_or_b32 s3, s3, {1 << GN.index(s.name[1:])}")
        g(f"s_add_u32 {sCNT}, {sCNT}, 1")
        g(f"s_and_b32 {sT}, {sCNT}, 0xffff")
        g(f"s_cmp_gt_u32 {sT}, {OPT['lim']}")
        g(f"s_cbranch_scc1 OK_{s.name}")
        if OPT["slp"]: g(f"s_sleep {OPT['slp']}")
        for f in s.loads(False): f()
        g("s_waitcnt vmcnt(0)")
        emit(s.decode(False))
        g(f"v_cmp_ne_u32 vcc, 0, {vCHK}")
        g("s_cmp_lg_u64 vcc, 0")
        g(f"s_cbranch_scc1 RT_{s.name}")
        g(f"s_branch OK_{s.name}")


def emit(lst):
    for x in lst:
        if isinstance(x, str): g(x)
        else: x()


def tstore(reg, base, off, keep=True, tag="st"):
    l = [f"v_and_or_b32 v{reg}, v{reg}, {sM}, {TG0}", f"v_and_or_b32 v{reg+1}, v{reg+1}, {sM}, {TG1}",
         lambda: g(f"buffer_store_dwordx4 {vr(reg)}, {vL16}, {SWS}, {base} offen offset:{off}{LSC if tag == 'st' else ' sc1'}", tag=tag)]
    return l


def untag(reg):
    return [f"v_xor_b32 v{reg}, {TG0}, v{reg}", f"v_xor_b32 v{reg+1}, {TG1}, v{reg+1}"]


def EH(b, base, off, prev=None):
    h = [f"v{b+i}" for i in range(8)]
    e = [f"v{TMP+i}" for i in range(8)]
    u = [f"v{TMP+8+i}" for i in range(8)]
    ins = []
    for i in range(8): ins.append(f"v_mul_f32 {e[i]}, {sLOG2E}, {h[i]}")
    if prev is not None: ins += untag(prev)
    for i in range(8): ins.append(f"v_exp_f32 {e[i]}, {e[i]}")
    for i in range(8): ins.append(f"v_fma_f32 {u[i]}, {e[i]}, 0.5, 1.0")
    for i in range(8): ins.append(f"v_fma_f32 {u[i]}, -{e[i]}, {u[i]}, -1.0")
    for i in range(8): ins.append(f"v_rcp_f32 {u[i]}, {u[i]}")
    for i in range(8): ins.append(f"v_fmac_f32 {h[i]}, {h[i]}, {u[i]}")
    for i in range(4): ins.append(f"v_cvt_pk_bf16_f32 {h[i]}, {h[2*i]}, {h[2*i+1]}")
    return ins + tstore(b, base, off)


def PH(b):
    h = [f"v{b+i}" for i in range(8)]
    e = [f"v{TMP+i}" for i in range(8)]
    ins = []
    for i in range(8): ins.append(f"v_mul_f32 {e[i]}, {sLOG2E}, {h[i]}")
    for i in range(8): ins.append(f"v_exp_f32_e64 {e[i]}, {e[i]} clamp")
    for i in range(8): ins.append(f"v_max_f32 {h[i]}, {sEPS}, {h[i]}")
    for i in range(8): ins.append(f"v_add_f32 {h[i]}, {e[i]}, {h[i]}")
    for i in range(4): ins.append(f"v_cvt_pk_bf16_f32 {h[i]}, {h[2*i]}, {h[2*i+1]}")
    return ins


def cost(x):
    if not isinstance(x, str): return 4
    return 8 if x.startswith(("v_exp", "v_rcp")) else 4


def merge(main, side):
    tot = sum(cost(x) for x in main); n = len(side); k = 0; acc = 0; out = []
    for x in main:
        while k < n and acc >= tot * k / n:
            out.append(side[k]); k += 1
        out.append(x); acc += cost(x)
    return out + side[k:]


class Item:
    def __init__(s, addr, imm, second, buf, acc, other, orient="T", zero=False, D=3, lg=(), vm=()):
        s.addr, s.imm, s.second, s.buf, s.acc, s.other, s.orient, s.zero, s.D = addr, imm, second, buf, acc, other, orient, zero, D
        s.lg, s.vm = list(lg), list(vm)
        s.bar = None
        s.rvm = []
        s.post = []
        s.pre = []
        s.rpre = []


def spread(items, lo, hi, fill):
    tot = sum(cost(x) for x in fill); n = hi - lo; acc = 0
    for x in fill:
        k = min(n - 1, int(acc * n / tot)) if tot else 0
        items[lo + k].post.append(x); acc += cost(x)


def run(items):
    N = len(items); nxt = 0
    prev = {}
    for m, it in enumerate(items):
        it.prev = max([p for b, p in prev.items() if b == it.buf], default=-1)
        prev[it.buf] = m
    for n in range(N):
        while nxt < N and nxt <= n + items[nxt].D and items[nxt].prev < n:
            it = items[nxt]
            if it.bar is not None:
                if nxt - n > it.bar.get("lead", 0): break
                emit(it.bar.get("before", []))
                sb = OPT["sb0"] <= nxt <= OPT["sb1"]
                if sb: stamp(f"pre{nxt}"); g("s_waitcnt lgkmcnt(0)")
                lgw = list(it.bar.get("lg") or [])
                if it.bar.get("drain"): lgw += [t for t in g.lg if t]
                g.wait(vm=it.bar.get("vm"), lg=lgw or None)
                emit(it.bar.get("at", []))
                if sb: stamp(f"at{nxt}"); g("s_waitcnt lgkmcnt(0)")
                g("s_barrier")
                if sb: stamp(f"bar{nxt}")
                it.bar_at = n
                emit(it.bar.get("after", []))
                items[n].pre += it.bar.get("after2", [])
                it.bar = None
            emit(it.rpre)
            if it.rvm: g.wait(vm=it.rvm)
            if it.second is None:
                g(f"ds_read_b128 {vr(it.buf)}, {it.addr} offset:{it.imm}", tag=f"w{nxt}")
            else:
                g(f"ds_read_b64_tr_b16 {vr(it.buf, 2)}, {it.addr} offset:{it.imm}", tag=f"w{nxt}")
                if True:
                    g(f"ds_read_b64_tr_b16 {vr(it.buf+2, 2)}, {it.addr} offset:{it.imm + it.second}", tag=f"w{nxt}")
            nxt += 1
        assert nxt > n
        it = items[n]
        emit(it.pre)
        g.wait(vm=it.vm or None, lg=[f"w{n}"] + it.lg)
        c = 0 if it.zero else vr(it.acc, 16)
        if it.orient == "T": mfma(it.acc, vr(it.buf), vr(it.other), c)
        else: mfma(it.acc, vr(it.other), vr(it.buf), c)
        emit(it.post)
        if OPT["sper"] and n % OPT["sper"] == OPT["sper"] - 1 and OPT["s0"] <= n < OPT["s1"]: stamp(f"i{n}")


ENTRY = KN + "_kernel"
def prologue():
    if OPT["cal"]: g(("s_memrealtime" if OPT["cal"] == 1 else "s_memtime") + " s[6:7]")
    if STAMP:
        g(f"{'s_memrealtime' if OPT['rts'] else 's_memtime'} {sTM}")
        g(f"{'s_memtime' if OPT['rts'] else 's_memrealtime'} s[6:7]")
        g(f"v_mov_b32 {vSTAMP}, 0")
        g("s_mov_b32 s3, 0")
    g(f"""
    s_cmp_ge_u32 s2, 256
    s_cbranch_scc1 END
    s_load_dwordx16 s[8:23], s[0:1], 0
    s_load_dwordx4 s[24:27], s[0:1], 64
    s_load_dwordx2 s[28:29], s[0:1], 80
    s_getpc_b64 s[30:31]
    s_and_b32 {sT}, s2, 0xf8
    v_lshrrev_b32 v64, 6, v0
    v_add_u32 v65, {sT}, v64
    v_lshlrev_b32 v65, 7, v65
    v_min_u32 v65, CODE_END-{ENTRY}-256, v65
    s_mov_b64 exec, 1
    """)
    g("global_load_dword v255, v65, s[30:31]", tag="cp")
    g(f"""
    s_mov_b64 exec, -1
    v_and_b32 {vLANE}, 63, v0
    v_readfirstlane_b32 {sW}, v64
    s_lshr_b32 {sTT}, s2, 6        ; t
    s_bfe_u32 {sR8}, s2, 0x30003
    s_and_b32 {sRB}, s2, 1
    s_lshl_b32 {sRB}, {sRB}, 3
    s_or_b32 {sRB}, {sRB}, {sR8}
    s_bfe_u32 {sKQ}, s2, 0x20001
    s_lshr_b32 {sISW1}, {sTT}, 1
    s_and_b32 {sPAR}, {sTT}, 1
    s_lshl_b32 {sCGI}, {sKQ}, 1
    s_or_b32 {sCGI}, {sCGI}, {sPAR}
    s_lshl_b32 {sROT}, {sTT}, 1
    s_xor_b32 {sROT}, {sROT}, {sR8}
    """)
    if OPT["rotm"] != 7: g(f"s_and_b32 {sROT}, {sROT}, {OPT['rotm']}")
    g(f"""
    s_and_b32 {sRW}, {sW}, 3
    s_lshr_b32 {sCLS}, {sW}, 2
    s_lshl_b32 {sW1K}, {sW}, 10
    s_lshl_b32 {sSTR}, {sISW1}, 9
    s_add_u32 {sSTR}, {sSTR}, 3072
    s_lshl_b32 {sXR}, {sRB}, 17
    s_lshl_b32 {sT}, {sROT}, 7
    s_or_b32 {sXR}, {sXR}, {sT}
    v_lshrrev_b32 v64, 3, v0               ; w*8+l3
    v_and_b32 v65, 7, v0                   ; pos
    v_bfe_u32 v67, v0, 4, 3                ; (row>>1)&7
    v_xor_b32 v67, v67, v65
    v_lshlrev_b32 v67, 4, v67
    v_lshl_add_u32 {vXD}, v64, 10, v67
    v_bfe_u32 v67, v0, 4, 1
    v_lshlrev_b32 v67, 2, v67
    v_xor_b32 v67, v67, v65                ; pw
    v_lshlrev_b32 v68, 4, v67
    v_mul_lo_u32 v69, v64, {sSTR}
    v_add_u32 {vWDB}, v69, v68
    s_mul_i32 {sP[3]}, {sCGI}, 448
    s_lshl_b32 {sT2}, {sPAR}, 6
    s_add_u32 {sP[0]}, {sP[3]}, {sT2}
    s_add_u32 {sP[1]}, {sP[0]}, 128
    s_add_u32 {sP[2]}, {sP[0]}, 256
    s_cmp_eq_u32 {sPAR}, 0
    s_cselect_b32 {sT2}, 384, 0
    s_add_u32 {sP[3]}, {sP[3]}, {sT2}
    s_cmp_eq_u32 {sISW1}, 1
    s_cbranch_scc1 PRO_w1
    s_lshl_b32 {sP[2]}, {sCGI}, 7
    s_add_u32 {sP[0]}, {sP[2]}, 1024
    s_add_u32 {sP[1]}, {sP[2]}, 2048
    """)
    g.label("PRO_w1")
    g(f"s_lshl_b32 {sT}, {sSTR}, 6")
    for c in range(8):
        g(f"s_xor_b32 {sWC[c]}, {sROT}, {c}")
        g(f"s_mul_i32 {sWC[c]}, {sWC[c]}, {sT}")
    g(f"""
    v_add_u32 {vWDa}, {sP[0]}, {vWDB}
    v_add_u32 {vWDb}, {sP[1]}, {vWDB}
    s_mov_b32 s34, 0x200000
    s_mov_b32 s35, 0x20000
    s_mov_b32 s39, 0x20000
    s_lshl_b32 s38, {sSTR}, 9
    s_mul_i32 s58, {sISW1}, 2560
    s_add_u32 s58, s58, 1024
    s_mov_b32 s59, 0x20000
    """)
    if OPT["pst"]:
        g("s_waitcnt lgkmcnt(3)")
        stamp("prek")
    g(f"""
    s_cmp_eq_u32 {sISW1}, 1
    s_waitcnt lgkmcnt(0)
    s_mov_b32 s32, s8
    s_cselect_b32 s36, s16, s10
    s_cselect_b32 s37, s17, s11
    s_cselect_b32 s56, s18, s22
    s_cselect_b32 s57, s19, s23
    s_and_b32 s33, s9, 0xffff
    s_and_b32 s37, s37, 0xffff
    s_and_b32 s57, s57, 0xffff
    """)
    def ps(n):
        if OPT["pst"] and STAMP:
            stamp(n); g("s_waitcnt lgkmcnt(0)")
    ps("karg")
    h = head()
    emit(h[:3])
    ps("ck0")
    if OPT["pb"]: g("s_barrier")
    emit(h[3:OPT["np1"]])
    ps("ck1")
    setup2()
    ps("set2")
    emit(h[OPT["np1"]:OPT["np2"]])
    ps("ck2")
    g(f"s_cmp_eq_u32 {sISW1}, 0")
    g("s_cbranch_scc1 QQ")


def setup2():
    if STAMP:
        g(f"v_writelane_b32 {vSTAMP}, s6, 62")
    g(f"""
    s_mov_b32 s60, s26
    s_and_b32 s61, s27, 0xffff
    s_mov_b32 s62, 256
    s_mov_b32 s63, 0x20000
    s_or_b32 {sT}, s2, {sW}
    s_cbranch_scc1 S2_non
    """)
    with g.optional():
        g(f"""
        s_memrealtime s[4:5]
        s_waitcnt lgkmcnt(0)
        s_mul_i32 {sT}, s4, 0x9e3779b1
        s_or_b32 {sT}, {sT}, 1
        v_mov_b32 v66, {sT}
        s_mov_b64 exec, 1
        buffer_store_dword v66, off, {SDBG}, 0 sc1
        s_mov_b64 exec, -1
        """)
    g.label("S2_non")
    g(f"""
    s_mov_b32 s40, s20
    s_and_b32 s41, s21, 0xffff
    s_mov_b32 s42, 0x1c0000
    s_mov_b32 s43, 0x20000
    s_mov_b32 s44, s12
    s_and_b32 s45, s13, 0xffff
    s_mov_b32 s46, 0x80000
    s_mov_b32 s47, 0x20000
    s_mov_b32 s48, s28
    s_and_b32 s49, s29, 0xffff
    s_mov_b32 s50, {WS_SIZE:#x}
    s_mov_b32 s51, 0x20000
    s_mov_b32 s52, s24
    s_and_b32 s53, s25, 0xffff
    s_mov_b32 s54, 0x200000
    s_mov_b32 s55, 0x20000
    s_mov_b32 {sLOG2E}, 0x3fb8aa3b
    s_mov_b32 {sEPS}, 0x358637bd
    s_mov_b32 {sM}, 0xfffefffe
    s_mov_b32 {sTB}, 0x10001
    s_mov_b32 {sCNT}, 0
    s_mov_b32 {sLC}, {OPT['fl']}
    v_and_b32 v64, 31, v64                 ; rw*8+l3
    v_lshl_add_u32 {vW2D}, v64, 10, v68
    v_lshrrev_b32 v69, 2, v67
    v_lshl_add_u32 v69, v69, 5, v64
    v_mul_lo_u32 v69, v69, {sSTR}
    v_and_b32 v70, 3, v67
    v_lshl_add_u32 v69, v70, 4, v69
    v_add_u32 {vUD}, {sP[3]}, v69
    s_lshl_b32 {sT}, {sTT}, 8
    s_lshl_b32 {sT2}, {sKQ}, 17
    s_add_u32 {sT2}, {sT2}, {sT}
    v_add_u32 {vWOD}, {sT2}, {vW2D}
    s_mul_i32 {sT2}, {sKQ}, {448*1024}
    s_add_u32 {sT2}, {sT2}, {sT}
    v_add_u32 {vW2D}, {sT2}, {vW2D}
    v_and_b32 v64, 31, {vLANE}             ; row
    v_lshrrev_b32 v65, 5, {vLANE}          ; h
    v_bfe_u32 v66, {vLANE}, 1, 3           ; m
    v_xor_b32 v66, v66, v65                ; h ^ m
    s_lshl_b32 {sT}, {sCLS}, 2
    v_xor_b32 v66, {sT}, v66
    s_lshl_b32 {sT}, {sRW}, 12
    v_lshl_add_u32 v67, v64, 7, {sT}
    """)
    for sp in range(4):
        g(f"v_xor_b32 v68, {2*sp}, v66")
        g(f"v_lshl_add_u32 {vX[sp]}, v68, 4, v67")
    g(f"""
    v_bfe_u32 v68, {vLANE}, 2, 2           ; r
    v_lshlrev_b32 v69, 7, v68
    v_bfe_u32 v68, {vLANE}, 3, 1
    v_lshl_add_u32 v69, v68, 6, v69
    v_bfe_u32 v68, {vLANE}, 4, 1
    v_lshl_add_u32 {vT0}, v68, 5, v69
    v_and_b32 v68, 3, {vLANE}
    v_lshl_add_u32 v69, v68, 3, {vT0}
    v_lshl_add_u32 v69, v65, 10, v69
    s_mul_i32 {sT}, {sCLS}, {4096+64}
    s_add_u32 {sT}, {sT}, {LC}
    v_xor_b32 {vWlo}, {sT}, v69
    v_xor_b32 {vWhi}, 0x1000, {vWlo}
    s_mul_i32 {sT}, {sCLS}, {64+32}
    s_add_u32 {sT}, {sT}, {LB+32768}
    v_xor_b32 {vU}, {sT}, v69
    v_lshl_add_u32 {vT0}, v65, 9, {vT0}
    v_and_b32 v68, 1, {vLANE}
    v_lshl_add_u32 {vT0}, v68, 4, {vT0}
    v_bfe_u32 v68, {vLANE}, 1, 1
    v_lshl_add_u32 {vT0}, v68, 3, {vT0}
    s_and_b32 {sT}, {sKQ}, 1
    s_lshl_b32 {sT}, {sT}, 6
    s_lshl_b32 {sT2}, {sCLS}, 5
    s_or_b32 {sT}, {sT}, {sT2}
    v_xor_b32 {vT0}, {sT}, {vT0}
    v_lshlrev_b32 {vL16}, 4, {vLANE}
    ; rotation constants (r8' = r8 ^ cls)
    s_xor_b32 {sT3}, {sR8}, {sCLS}
    s_lshr_b32 {sT}, {sKQ}, 1
    s_xor_b32 {sT}, {sT}, {sT3}
    s_xor_b32 {sT}, {sT}, 1
    s_and_b32 {sT}, {sT}, 1
    s_lshl_b32 {sT}, {sT}, 7               ; (b0^ho)<<7
    s_and_b32 {sT2}, {sR8}, 2
    s_lshl_b32 {sT2}, {sT2}, 14            ; b1<<15
    s_or_b32 {sRs}, {sT}, {sT2}
    s_lshl_b32 {sT2}, {sPAR}, 15
    s_xor_b32 {sRu}, {sRs}, {sT2}
    s_lshr_b32 {sT}, {sR8}, 2
    s_xor_b32 {sT}, {sT}, {sPAR}
    s_lshl_b32 {sT2}, {sT}, 16
    s_or_b32 {sRo}, {sRs}, {sT2}
    s_lshl_b32 {sT2}, {sT}, 18
    s_or_b32 {sRs}, {sRs}, {sT2}
    s_lshl_b32 {sT}, {sT3}, 12
    s_lshl_b32 {sT2}, {sRW}, 10
    s_or_b32 {sRm}, {sT}, {sT2}
    s_and_b32 {sRmu}, {sRm}, 0x3fff
    s_lshl_b32 {sT}, {sRW}, 2
    s_add_u32 {sT}, {sT}, {sKQ}
    s_lshl_b32 {sT}, {sT}, 2
    s_add_u32 {sT}, {sT}, {sCLS}
    s_lshl_b32 {sT2}, {sPAR}, 1
    s_add_u32 {sAp}, {sT}, {sT2}
    s_xor_b32 {sAo}, {sAp}, 2
    s_mul_i32 {sAp}, {sAp}, 10240
    s_mul_i32 {sAo}, {sAo}, 10240
    s_lshl_b32 {sT3}, {sRB}, 20
    s_add_u32 {sAp}, {sAp}, {sT3}
    s_add_u32 {sAo}, {sAo}, {sT3}
    s_lshl_b32 {sT}, {sTT}, 3
    s_add_u32 {sT}, {sT}, {sW}
    s_mul_i32 {sT}, {sT}, 12288
    s_lshl_b32 {sT2}, {sKQ}, 10
    s_add_u32 {sT}, {sT}, {sT2}
    s_add_u32 {sT}, {sT}, {sT3}
    s_add_u32 {sPART}, {sT}, {PARTO:#x}
    ; out
    s_lshl_b32 {sT}, {sRB}, 2
    s_add_u32 {sT}, {sT}, {sRW}
    s_lshl_b32 {sOUT}, {sT}, 15
    s_lshl_b32 {sT}, {sTT}, 8
    s_add_u32 {sOUT}, {sOUT}, {sT}
    s_lshl_b32 {sT}, {sKQ}, 6
    s_add_u32 {sOUT}, {sOUT}, {sT}
    s_lshl_b32 {sT}, {sCLS}, 5
    s_add_u32 {sOUT}, {sOUT}, {sT}
    s_lshl_b32 {sT}, {sRB}, 2
    s_add_u32 {sT2}, {sT}, {sRW}
    s_lshl_b32 {sT2}, {sT2}, 2
    s_add_u32 {sT2}, {sT2}, {sKQ}
    s_lshl_b32 {sT2}, {sT2}, 1
    s_add_u32 {sT2}, {sT2}, {sCLS}
    s_lshl_b32 {sT2}, {sT2}, 7
    s_add_u32 {sFA}, {sT2}, {FA:#x}
    s_lshl_b32 {sT2}, {sTT}, 4
    s_add_u32 {sPUB}, {sFA}, {sT2}
    s_add_u32 {sT}, {sT}, {sTT}
    s_lshl_b32 {sT}, {sT}, 3
    s_add_u32 {sT}, {sT}, {sW}
    s_lshl_b32 {sT}, {sT}, 2
    s_add_u32 {sT}, {sT}, {sKQ}
    s_lshl_b32 {sT}, {sT}, 7
    s_add_u32 {sFP}, {sT}, {FP:#x}
    s_lshl_b32 {sFK}, {sCGI}, 10
    s_add_u32 {sFK}, {sFK}, {FK:#x}
    s_lshl_b32 {sKV}, {sCGI}, 16
    s_add_u32 {sKV}, {sKV}, {KVP:#x}
    """)
    if OPT["sp"]:
        g(f"s_cmp_eq_u32 {sCLS}, 0")
        g("s_cbranch_scc1 S2_sp")
        g(f"s_setprio {OPT['sp']}")
        g.label("S2_sp")


def tlbt(lab):
    def f():
        g(f"s_cmp_lg_u32 {sW}, 7")
        g(f"s_cbranch_scc1 TLB_{lab}")
        with g.optional():
            g(f"s_mul_i32 {sT2}, {sKQ}, {448*1024}")
            g("s_mov_b64 exec, 1")
            g(f"buffer_load_dword {vE1}, off, {SWS}, {sPART}")
            g(f"buffer_load_dword {vE1}, off, {SWS}, {sKV}")
            g(f"buffer_load_dword {vE1}, off, {SOUT}, {sOUT}")
            g(f"buffer_load_dword {vE1}, off, {SW2}, {sT2}")
            g(f"buffer_load_dword {vE1}, off, {SWO}, 0")
            g("s_mov_b64 exec, -1")
        g.label(f"TLB_{lab}")
    return f


def atouch(base, off, lo, hi):
    def f():
        g(f"v_lshlrev_b32 {vE0}, 7, {vLANE}")
        if off: g(f"s_add_u32 {sT}, {base}, {off}")
        g(f"s_mov_b32 exec_lo, {lo:#x}")
        g(f"s_mov_b32 exec_hi, {hi:#x}")
        g(f"buffer_load_dword {vE1}, {vE0}, {SWS}, {sT if off else base} offen", tag="tw")
        g("s_mov_b64 exec, -1")
    return f


def ptouch():
    g(f"v_lshrrev_b32 {vE0}, 3, {vLANE}")
    g(f"v_mul_u32_u24 {vE0}, {4096-1024}, {vE0}")
    g(f"v_lshl_add_u32 {vE0}, {vLANE}, 7, {vE0}")
    g("s_mov_b64 exec, 0xffffff")
    g(f"buffer_load_dword {vE1}, {vE0}, {SWS}, {sPART} offen", tag="tw")
    g("s_mov_b64 exec, -1")


def kvline():
    return [f"s_lshr_b32 {sT}, {sRB}, 2", f"s_xor_b32 {sT}, {sT}, {sRW}", f"s_bitcmp0_b32 {sT}, 1",
            f"s_cselect_b32 {sT2}, 1, 0", f"s_lshl_b32 {sT3}, {sT2}, 2", f"s_lshr_b32 {sT}, {sW}, 1", f"s_add_u32 {sT}, {sT}, {sT3}",
            f"s_lshl_b32 {sT}, {sT}, 7", f"s_add_u32 {sT}, {sT}, {sFK}"]


def ftouch():
    emit(kvline())
    g(f"v_mov_b32 {vE0}, {sFA}")
    g(f"v_writelane_b32 {vE0}, {sFP}, 1")
    g(f"v_writelane_b32 {vE0}, {sT}, 2")
    g("s_mov_b64 exec, 7")
    g(f"buffer_load_dword {vE1}, {vE0}, {SWS}, 0 offen sc1", tag="tw")
    g("s_mov_b64 exec, -1")


def nonce(lab):
    def f():
        g("s_waitcnt lgkmcnt(0)")
        g(f"s_cmp_eq_u32 {sNON}, 0")
        g(f"s_cbranch_scc1 RT_{lab}")
        g.label(f"OK_{lab}")
        class R:
            name = lab
            @staticmethod
            def retry():
                g(f"s_add_u32 {sCNT}, {sCNT}, 1")
                g(f"s_cmp_gt_u32 {sCNT}, {OPT['lim']}")
                g(f"s_cbranch_scc1 OK_{lab}")
                g(f"buffer_load_dword {TG0}, off, {SDBG}, 0 sc1")
                g("s_waitcnt vmcnt(0)")
                g(f"v_readfirstlane_b32 {sNON}, {TG0}")
                g(f"s_cmp_eq_u32 {sNON}, 0")
                g(f"s_cbranch_scc1 RT_{lab}")
                g(f"s_branch OK_{lab}")
        retries.append(R)
        g(f"v_and_b32 {TG1}, 7, {vLANE}")
        g(f"v_lshrrev_b32_e64 {TG0}, {TG1}, {sNON}")
        g(f"v_lshrrev_b32 {TG1}, 8, {TG0}")
        g(f"v_and_b32 {TG0}, {sTB}, {TG0}")
        g(f"v_and_b32 {TG1}, {sTB}, {TG1}")
        g(f"v_mov_b32 {vNON}, {sNON}")
    return f


def setFA():
    return [f"s_lshl_b32 {sT}, {sPAR}, 2", f"v_xor_b32 {vPA}, {sT}, {vLANE}", f"v_lshl_add_u32 {vPA}, {vPA}, 2, {sFA}", f"s_mov_b32 {sDEC}, 1"]


def setFK():
    return kvline() + [f"v_lshl_add_u32 {vPA}, {vLANE}, 2, {sT}", f"s_mov_b32 {sDEC}, {sT2}"]


def ident(I):
    a, b, c = f"v{TMP}", f"v{TMP+1}", f"v{TMP+2}"
    l = [f"v_mov_b32 {b}, 0x3f80",
         f"v_and_b32 {a}, 1, {vLANE}",
         f"v_lshlrev_b32 {a}, 4, {a}",
         f"v_lshlrev_b32 {a}, {a}, {b}",
         f"v_lshrrev_b32 {b}, 3, {vLANE}",
         f"v_xor_b32 {b}, {b}, {vLANE}",
         f"v_and_b32 {b}, 4, {b}",
         f"v_and_b32 {c}, 0x1a, {vLANE}",
         f"v_or_b32 {b}, {b}, {c}"]
    def f():
        emit(l)
        for k, key in enumerate((0, 2, 8, 10)):
            g(f"v_cmp_eq_u32 vcc, {key}, {b}")
            g(f"v_cndmask_b32 v{I+k}, 0, {a}, vcc")
    return f


def wadd(d):
    return [f"v_add_u32 {r}, {d:#x}, {r}" if d > 0 else f"v_subrev_u32 {r}, {-d:#x}, {r}" for r in (vWlo, vWhi)]


def need(item):
    def f(): assert item.bar is None
    return f


def place(it, lo, hi, fs, after=None):
    n = len(fs)
    if after is not None: it[lo].post.append(need(after))
    for i, f in enumerate(fs): it[lo + (hi - lo) * i // n].post.append(f)


def phase1(orient, cbufs, lab, xitem, slot_extra, tail_dma, after48):
    it = []; first = []
    for c in range(8):
        first.append(len(it))
        for sp in range(4):
            s = 4 * c + sp
            it.append(Item(vWlo if sp < 2 else vWhi, (c & 3) * 8192 + (sp & 1) * 2048, 512,
                           64 + 4 * (len(it) % 8), ACC0, XR + 4 * s, orient, zero=(s == 0), D=OPT["D"], lg=[f"xr{s}"]))
        for u in ([c - 2] if 2 <= c < 7 else [5, 6, 7] if c == 7 else []):
            for j in range(2): it.append(xitem(u, j, 64 + 4 * (len(it) % 8)))
    assert len(it) == PB
    first.append(PB)
    n3 = (len(tail_dma) + 2) // 3
    extra = {0: head()[OPT["np2"]:], 5: tail_dma[:n3], 6: tail_dma[n3:2 * n3], 7: tail_dma[2 * n3:]}
    for c in range(8):
        def xr(c=c):
            for sp in range(4):
                g(f"ds_read_b128 {vr(XR+16*c+4*sp)}, {vX[sp]} offset:{(c & 3) * 16384}", tag=f"xr{4*c+sp}")
        nx = (extra[c] if c in extra else CK(c + 3)) + slot_extra.get(c, [])
        it[first[c]].bar = dict(vm=[f"ck{c}"], lead=OPT["BL"], drain=True, after=[xr])
        b0 = max(0, first[c] - OPT["BL"]); b1 = min(first[c + 1] - OPT["BL"], b0 + 6)
        it[b0].post.append(need(it[first[c]]))
        for j, f in enumerate(nx): it[b0 + (j if len(nx) <= b1 - b0 else j * (b1 - b0) // len(nx))].post.append(f)
    for s in range(32):
        c = s >> 2; sp = s & 3
        it.append(Item(vWlo if sp < 2 else vWhi, c * 8192 + (sp & 1) * 2048, 512, 64 + 4 * (s % 8), ACC1, XR + 4 * s, orient,
                       zero=(s == 0), D=OPT["D"]))
    for s in range(32):
        c = s >> 2; sp = s & 3
        it.append(Item(vWlo if sp < 2 else vWhi, c * 8192 + (sp & 1) * 2048, 512, cbufs[s % len(cbufs)], ACC2, XR + 4 * s,
                       zero=(s == 0), D=OPT["DP"]))
    it[PB].bar = dict(vm=[f"wb{c}" for c in range(4)], lead=OPT["BL2"], drain=True, after=wadd(LB - LC))
    it[PB + 16].bar = dict(vm=[f"wb{c}" for c in range(4, 8)] + [f"wc{c}" for c in range(8)], lead=OPT["BL2"], drain=True)
    it[PC].rpre += wadd(-LB)
    it[PB - OPT["BL2"]].post.append(need(it[PB]))
    for i, f in enumerate(after48): it[PB - OPT["BL2"] + i].post.append(f)
    it[10].post.append(f"s_load_dword {sNON}, s[26:27], 0")
    it[40].post.append(nonce(lab))
    if OPT["tw"] and (lab == "Qn" or not OPT["twq"]): it[OPT["tw"]].post.append(touch)
    if OPT["tlb"]: it[OPT["tlp"]].post.append(tlbt(lab))
    if OPT["ft"]: it[OPT["ft"]].post.append(ftouch)
    if OPT["pt"]: it[OPT["pt"]].post.append(ptouch)
    if lab == "Wn":
        if OPT["at1"] and OPT["at1"] == OPT["at2"]: it[OPT["at1"]].post.append(atouch(sAp, 0, 0xffffffff, 0xffffff))
        else:
            if OPT["at1"]: it[OPT["at1"]].post.append(atouch(sAp, 0, 0xffff, 0xff0000))
            if OPT["at2"]: it[OPT["at2"]].post.append(atouch(sAp, 0, 0xffff0000, 0xffff))
    elif OPT["atq"]: it[OPT["atq"]].post.append(atouch(sAp, 7168, 0xffffff, 0))
    return it


def p2items(steps, bufs, nt3):
    order = []
    for p in range(18): order += [(p, t) for t in range(4)]
    defer = [(p, 3) for p in range(18 - nt3, 18)]
    order = [o for o in order if o not in defer] + defer
    seen = set(); it = []
    for n, (p, t) in enumerate(order):
        breg, ar, off = steps[p]
        it.append(Item(ar[t & 1], off + (t >> 1) * 4096, 1024, bufs[n % len(bufs)], TACC + 16 * t, breg,
                       zero=(t not in seen), D=OPT["D2"]))
        seen.add(t)
    first = {p: min(i for i, (q, _) in enumerate(order) if q == p) for p in range(18)}
    return it, order, len(order) - nt3, first


aA, aB, aC = ("v6", "v7"), ("v8", "v9"), ("v10", "v11")
vXW, vXRd, vOA, vFA = "v12", "v24", "v25", "v27"


def p2addr():
    return [f"s_lshl_b32 {sT}, {sCLS}, 13",
            f"v_add_u32 v7, {sT}, {vT0}",
            "v_xor_b32 v6, 64, v7",
            f"v_add_u32 v8, {GB()}, v6",
            f"v_add_u32 v9, {GB()}, v7",
            f"s_lshl_b32 {sT}, {sCLS}, 11",
            f"s_add_u32 {sT}, {sT}, {XC()+16384}",
            f"v_add_u32 v11, {sT}, {vT0}",
            "v_xor_b32 v10, 64, v11"]


def p2misc():
    g(f"s_lshl_b32 {sT}, {sW}, 13")
    g(f"v_add_u32 {vXW}, {sT}, {vL16}")
    g(f"v_xor_b32 {vXRd}, 0x8000, {vXW}")
    g(f"v_and_b32 {vOA}, 31, {vLANE}")
    g(f"v_lshlrev_b32 {vOA}, 10, {vOA}")
    g(f"v_lshrrev_b32 v3, 5, {vLANE}")
    g(f"v_lshl_add_u32 {vOA}, v3, 4, {vOA}")
    g(f"s_lshl_b32 {sT}, {sW}, 11")
    g(f"s_add_u32 {sT}, {sT}, {XC()}")
    g(f"v_add_u32 v3, {sT}, {vL16}")
    g(f"v_xor_b32 v26, 0x2000, v3")
    g(f"v_sub_u32 {vFA}, 3, {vLANE}")
    g(f"v_lshlrev_b32 {vFA}, 7, {vFA}")
    g(f"v_xor_b32 {vFA}, {sFP}, {vFA}")
    g(f"v_lshl_add_u32 {vFA}, {vLANE}, 2, {vFA}")
    g(f"v_add_u32 v19, {GB()}, {vXW}")
    g(f"v_add_u32 v21, {GB()}, {vXRd}")


def p2tail(role, it, base, nx, XB, IDENT, vSC):
    PR = 52
    N = len(it) - base
    def xsend012():
        for t, (a, o) in enumerate((("v19", 0), ("v19", 2048), ("v3", 0))):
            for i in range(2):
                g(f"ds_write_b128 {a}, {vr(TACC+16*t+8+4*i)} offset:{o+i*1024}", tag="xw")
    def xrecv012():
        g.wait(lg="xw")
        g("s_barrier")
        for t, (a, o) in enumerate((("v21", 0), ("v21", 2048), ("v26", 0))):
            for i in range(2):
                g(f"ds_read_b128 {vr(XB[t]+4*i)}, {a} offset:{o+i*1024}", tag=f"xr{t}")
    def xfin(t):
        def f():
            g(f"s_xor_b32 {sT}, {sPART}, {(3-t) << 10:#x}")
            if t: g(f"s_add_u32 {sT}, {sT}, {t*4096}")
            g.wait(lg=f"xr{t}")
            for i in range(8): g(f"v_add_f32 v{XB[t]+i}, v{XB[t]+i}, v{TACC+16*t+i}")
            for i in range(4): g(f"v_cvt_pk_bf16_f32 v{XB[t]+i}, v{XB[t]+2*i}, v{XB[t]+2*i+1}")
            emit(tstore(XB[t], sT, 0, tag="pst"))
        return f
    GP = Grp(role + "pr", [(PR + 4 * t, sPART, t * 4096) for t in range(3)])
    it[base + nx - 1].post.append(st("t012"))
    def pflag():
        g("s_mov_b64 exec, 7")
        g(f"buffer_store_dword {vNON}, {vFA}, {SWS}, 0 offen sc1", tag="pub")
        g("s_mov_b64 exec, -1")
        g(f"v_lshl_add_u32 {vPA}, {vLANE}, 2, {sFP}")
        g(f"s_mov_b32 {sDEC}, 0")
    xs = [xsend012, xrecv012, xfin(0), xfin(1), lambda: (xfin(2)(), stamp("pst"))]
    k = {0: 4, 1: 0, 2: 1, 3: 2}[OPT["efp"]]
    xs[k] = (lambda f: lambda: (f(), pflag()))(xs[k])
    for i, f in enumerate(xs): it[base + min(nx + i, N - 1)].post.append(f)
    it[base + max(min(nx + 5, N - 1), N - 1 - OPT["prl"])].post.append(poll_issue)
    def tail():
        T3 = TACC + 48
        for i in range(2):
            g(f"ds_write_b128 {vXW}, {vr(T3+8+4*i)} offset:{i*1024}", tag="xw")
        g.wait(lg="xw")
        g("s_barrier")
        for i in range(2):
            g(f"ds_read_b128 {vr(XB[3]+4*i)}, {vXRd} offset:{i*1024}", tag="xr3")
        stamp("xb1")
        take(7)()
        stamp("pflag")
        emit(GP.loads())
        g.wait(lg="xr3")
        for i in range(8): g(f"v_mul_f32 v{XB[3]+i}, {vSC}, v{XB[3]+i}")
        emit(GP.check())
        stamp("pok")
        for t in range(3):
            mfma(T3, vr(IDENT), vr(PR + 4 * t), vr(T3, 16))
        for i in range(8): g(f"v_fmac_f32 v{XB[3]+i}, {vSC}, v{T3+i}")
        for i in range(4): g(f"v_cvt_pk_bf16_f32 v{XB[3]+i}, v{XB[3]+2*i}, v{XB[3]+2*i+1}")
        g(f"buffer_store_dwordx4 {vr(XB[3])}, {vOA}, {SOUT}, {sOUT} offen{' sc1' if OPT['osc'] else ''}")
        if STAMP:
            stamp("end")
            g(f"{'s_memtime' if OPT['rts'] else 's_memrealtime'} s[6:7]")
            g("s_waitcnt lgkmcnt(0)")
            g(f"v_writelane_b32 {vSTAMP}, s6, 60")
            g(f"v_writelane_b32 {vSTAMP}, s98, {len(SN[ROLE[0]])-1}")
            g(f"v_writelane_b32 {vSTAMP}, {sCNT}, 63")
            g(f"v_writelane_b32 {vSTAMP}, s3, 61")
            g("s_lshl_b32 s3, s2, 3")
            g(f"s_add_u32 s3, s3, {sW}")
            g("s_lshl_b32 s3, s3, 8")
            g(f"s_add_u32 s3, s3, {STP:#x}")
            g(f"v_lshlrev_b32 v9, 2, {vLANE}")
            g(f"buffer_store_dword {vSTAMP}, v9, {SWS}, s3 offen")
            if OPT["hd"]:
                nm = SN[ROLE[0]]
                sel = ["i31", "i95", "P2bar", "gook", "t012", "end"] if role == "W" else ["i31", "i95", "kvok", "ost", "t012", "end"]
                b0 = 1 if role == "W" else 7
                g(f"s_cmp_lg_u32 {sRW}, 0")
                g(f"s_cbranch_scc1 HD_{role}")
                g("s_memrealtime s[6:7]")
                g("v_mov_b32 v8, 0")
                g(f"v_readlane_b32 s4, {vSTAMP}, 0")
                for k, n_ in enumerate(sel):
                    g(f"v_readlane_b32 s5, {vSTAMP}, {nm.index(n_)}")
                    g("s_nop 1")
                    g("s_sub_u32 s5, s5, s4")
                    g(f"v_writelane_b32 v8, s5, {b0 + k}")
                g(f"v_readlane_b32 s5, {vSTAMP}, 62")
                g("s_nop 1")
                g("v_writelane_b32 v8, s5, 14")
                g("s_not_b32 s5, s5")
                g("v_writelane_b32 v8, s5, 15")
                g("s_waitcnt lgkmcnt(0)")
                g("v_writelane_b32 v8, s6, 13")
                g("s_mov_b64 exec, 0xffff")
                g(f"buffer_atomic_umax v8, v9, {SDBG}, 0 offen sc1")
                g.label(f"HD_{role}")
        if OPT["cal"] and role == "Q":
            g("s_cmp_lg_u32 s2, 0")
            g("s_cbranch_scc1 CAL_e")
            g.label("CAL_l")
            g(("s_memrealtime" if OPT["cal"] == 1 else "s_memtime") + " s[98:99]")
            g("s_waitcnt lgkmcnt(0)")
            g("s_sub_u32 s3, s98, s6")
            g(f"s_cmp_lt_u32 s3, {OPT['calx']}")
            g("s_cbranch_scc1 CAL_l")
            g.label("CAL_e")
        if role == "W": g.label("END")
        g("s_endpgm")
    return tail


def unit(regs, ar, off):
    return [(r, ar, off + s * 2048) for s, r in enumerate(regs)]


def WW():
    g(f"""
    v_mov_b32 v24, 0x3f80
    v_mov_b32 v25, 0
    v_mov_b32 v26, 1.0
    v_mov_b32 v27, 0
    v_mov_b32 v28, 0
    v_mov_b32 v29, 0
    v_mov_b32 v30, 0
    v_mov_b32 v31, 0
    v_mov_b32 {vBIAS2}, 0
    v_mov_b32 v62, 0
    v_mov_b32 v63, 0
    s_lshl_b32 {sT}, {sCLS}, 6
    v_lshl_add_u32 v60, {vLANE}, 1, {sT}
    s_lshl_b32 {sT}, {sCLS}, 5
    v_lshl_add_u32 v61, {vLANE}, 1, {sT}
    """)
    def biasld():
        g("s_mov_b32 exec_hi, 0")
        g(f"buffer_load_ushort v28, v60, {SB}, {sP[0]} offen", tag="bias")
        g(f"buffer_load_ushort v62, v60, {SB}, {sP[1]} offen", tag="bias")
        g(f"buffer_load_ushort {vBIAS2}, v60, {SB}, {sP[2]} offen", tag="bias")
        g("s_mov_b32 exec_lo, 0xffff")
        g(f"buffer_load_ushort v63, v61, {SB}, {sP[3]} offen", tag="bias")
        g("s_mov_b64 exec, -1")
    du(0, "ck2")()
    biasld()
    def uitem(c, j, buf):
        return Item(vU, c * 4096 + j * 2048, 512, buf, ACC3, XR + 16 * c + 4 * j, zero=(c == 0 and j == 0), D=OPT["D"])
    wb = WBs(); wc = WCs()
    it = phase1("T", [64, 68, 72, 76, 100, 108], "Wn", uitem,
                {1: [du(1, "ck4")], 3: [du(2, "ck6")], 4: [du(3, "ck7")]},
                wb[1:3] + wc[:1] + wb[3:4] + wc[1:6], wb[4:] + wc[6:])
    def bias1():
        g.wait(vm="bias")
        g("v_lshl_or_b32 v28, v62, 16, v28")
        g(f"v_lshl_or_b32 {vBIAS2}, v63, 16, {vBIAS2}")
    it[7].post.append(bias1)
    it[19].post.append(lambda: mfma(ACC0, "v[28:31]", "v[24:27]", vr(ACC0, 16)))
    it[21].post.append(lambda: mfma(ACC1, "v[28:31]", "v[26:29]", 0))
    it[PB].zero = False
    it[23].post.append(f"v_mov_b32 v28, {vBIAS2}")
    it[27].post.append(lambda: mfma(ACC3, "v[28:31]", "v[26:29]", vr(ACC3, 16)))
    it[PC].post.append(lambda: mfma(ACC2, "v[28:31]", "v[24:27]", vr(ACC2, 16)))
    it[30].post.append(f"s_add_u32 {sST}, {sAp}, 0x1000")
    Ga = Grp("Wga", [(128, sAo, 0), (132, sAo, 1024)])
    Gb = Grp("Wgq", [(140, sAo, 2048), (144, sAo, 3072), (136, sAo, 6144)])
    Gc = Grp("Wgc", [(148, sAo, 4096), (152, sAo, 5120)])
    Go = Grp("Wgo", [(156, sAp, 7168), (160, sAp, 8192), (172, sAp, 9216), (164, sAo, 7168), (168, sAo, 8192)])
    def xw():
        g(f"s_and_b32 {sT}, {sRm}, 0x1fff")
        g(f"s_add_u32 {sT}, {sT}, {LC}")
        g(f"v_add_u32 {vUD}, {sT}, {vL16}")
        g(f"v_xor_b32 {vU}, 0x1000, {vUD}")
        for i in range(2): g(f"ds_write_b128 {vU}, {vr(ACC3+8+4*i)} offset:{i*8192}", tag="xw")
    def xrd():
        for i in range(2): g(f"ds_read_b128 {vr(ACC3+8+4*i)}, {vUD} offset:{i*8192}", tag="xu")
    it[PB + 1].post.append(xw)
    it[PB + 16].bar.update(lg=["xw"], after=[xrd])
    G1 = D2A("G1")
    G1[0] = (lambda f: lambda: (g.wait(lg="xu"), f()))(G1[0])
    place(it, OPT["g0"], OPT["g1"], D2A("G0") + G1, it[PB + 16])
    assert OPT["ea1"] <= PC - 2 and OPT["eu0"] >= PB + 16 - OPT["BL2"] and OPT["eu0"] >= OPT["ea1"] and OPT["eb0"] >= OPT["eu1"]
    spread(it, OPT["ea0"], OPT["ea1"], EH(ACC0, sAp, 0) + EH(ACC0 + 8, sAp, 1024, ACC0) + [publish(0)])
    eu = [lambda: g.wait(lg="xu")] + [f"v_add_f32 v{ACC3+i}, v{ACC3+i}, v{ACC3+8+i}" for i in range(8)] + \
        EH(ACC3, sST, 2048, ACC0 + 8) + [st("ust")]
    it[OPT["eu0"]].post.append(need(it[PB + 16]))
    spread(it, OPT["eu0"], OPT["eu1"], eu)
    spread(it, OPT["eb0"], OPT["eb1"], EH(ACC1, sAp, 2048, ACC3) + EH(ACC1 + 8, sAp, 3072, ACC1) + [publish(2), st("bst")])
    o0, o1 = MAP["WW"][1:3]
    steps = unit((ACC0, ACC0 + 8), aB, o0) + unit((ACC1, ACC1 + 8), aB, o1) + \
        unit((128, 132), aB, o0 + 16384) + unit((140, 144), aB, o1 + 16384) + \
        unit((ACC3,), aC, 0) + unit((136,), aC, 8192) + \
        unit((ACC2, ACC2 + 8), aA, 0) + unit((148, 152), aA, 16384) + \
        unit((156, 160), aA, 32768) + unit((164, 168), aA, 32768 + 16384)
    p2, order, nx, first = p2items(steps, [116, 124, 72, 76, 108, 64, 68], OPT["wt3"])
    B = len(it); it += p2
    assert B == P2
    it[B].bar = dict(vm=["wG0", "wG1"], lead=OPT["D2"], drain=True, after=p2addr() + [st("P2bar")])
    it[B - 2].post += untag(ACC1 + 8)
    assert OPT["eb1"] <= B - OPT["D2"] - 1
    place(it, B - OPT["D2"], B + OPT["pd1"], D2A("U") + D2A("P2") + D2A("O"), it[B])
    spread(it, B + OPT["ec0"], B + OPT["ec1"], EH(ACC2, sST, 0) + EH(ACC2 + 8, sST, 1024, ACC2) + [publish(3), st("cst")])
    assert OPT["ec1"] <= first[10] - 3
    it[B + first[10] - 2].post += untag(ACC2 + 8)
    assert OPT["wga"] >= PC + 3
    fetch(it, OPT["wga"], Ga.loads(), 0x1000, B - 6, pl=OPT["lpl"], pre=setFA(), post=[st("gafl")])
    spread(it, B - 7, B - 5, Ga.check() + [st("gaok")])
    fetch(it, B + OPT["wgb"], Gb.loads(), 0x4000, B + first[6] - 4, pl=OPT["lpl"], post=[st("gbfl")])
    spread(it, B + first[6] - 2, B + first[6], Gb.check() + [st("gbok")])
    it[B + first[10] + 1].post += [p2misc, ident(100)]
    if OPT["wob"]:
        it[B + first[8]].bar = dict(vm=["wU", "wP2"], lead=OPT["D2"])
        it[B + first[14]].bar = dict(vm=["wO"], lead=OPT["D2"])
    else:
        it[B + first[8]].bar = dict(vm=["wU", "wP2", "wO"], lead=OPT["D2"])
    fetch(it, B + OPT["wgc"], Gc.loads(), 0x8000, B + first[12] - 4, pl=OPT["lpl"], post=[st("gcfl")])
    fetch(it, B + OPT["wgo"], Go.loads(), 0x0011, B + first[14] - 4, pl=OPT["lpl"], post=[st("gofl")])
    spread(it, B + first[12] - 2, B + first[12], Gc.check() + [st("gcok")])
    spread(it, B + first[14] - 3, B + first[14], Go.check() + [st("gook")])
    assert OPT["wgc"] < first[12] - 3 and OPT["wgo"] < first[14] - 3 and OPT["wgb"] < first[6] - 3 and OPT["wga"] + 1 < B - 7
    tail = p2tail("W", it, B, nx, [176, 184, 32, 40], 100, "v174")
    run(it)
    tail()


def QQ():
    emit([f"s_lshl_b32 {sT}, {sROT}, 7", f"v_xor_b32 {vUD}, {sT}, {vL16}", f"s_add_u32 m0, {sW1K}, {LB+7*8192:#x}",
          f"s_lshl_b32 {sT}, {sCLS}, 6", f"s_add_u32 {sT}, {sT}, m0"])
    g(f"buffer_load_dwordx4 {vUD}, {SB}, 0 offen lds", tag="gate")
    emit([f"v_lshrrev_b32 {vU}, 5, {vLANE}", f"v_lshl_add_u32 {vU}, {vU}, 4, {sT}"])
    def gitem(c, j, buf):
        x = Item(vU, c * 128 + j * 32, None, buf, ACC3, XR + 16 * c + 4 * j, zero=(c == 0 and j == 0), D=OPT["D"])
        if c == 0 and j == 0: x.rvm = ["gate"]
        return x
    wb = WBs(); wc = WCs()
    it = phase1("N", [64, 68, 72, 76], "Qn", gitem, {}, wb[1:3] + wc[:1] + wb[3:7] + wc[1:3], wb[7:] + wc[3:])
    vLG, vLG2 = "v19", "v21"
    it[PB + 1].post.append(f"v_mov_b32 {vLG}, v{ACC3}")
    it[2].post += [f"s_lshl_b32 {sT}, {sW}, 11", f"s_add_u32 {sT}, {sT}, {LC}", f"v_add_u32 v24, {sT}, {vL16}",
                   f"s_and_b32 {sT}, {sRW}, 1", f"s_lshl_b32 {sT}, {sT}, 13", f"s_add_u32 {sT}, {sT}, {LC}",
                   f"v_add_u32 v25, {sT}, {vL16}"]
    it[4].post += [f"v_mov_b32 v{28+i}, 0x3f803f80" for i in range(4)] + \
                  [f"s_cmp_lt_u32 {sRW}, 2", "s_mov_b32 s5, 0xffff", "s_cselect_b32 s4, s5, 0xffff0000", "s_mov_b32 s5, s4",
                   f"v_add_u32 v26, 1024, {vL16}", f"v_cndmask_b32_e64 v26, v26, {vL16}, {sMK}"]
    def fw(reg, off):
        return lambda: g(f"ds_write_b128 v24, {vr(reg)} offset:{off}", tag="fw")
    vp = []
    for q in range(2):
        vp += [f"v_cvt_pk_bf16_f32 v{ACC1+8*q+i}, v{ACC1+8*q+2*i}, v{ACC1+8*q+2*i+1}" for i in range(4)] + [fw(ACC1 + 8 * q, 16384 + q * 1024)]
    spread(it, OPT["ea0"], OPT["pk1"], PH(ACC0) + [fw(ACC0, 0)] + PH(ACC0 + 8) + [fw(ACC0 + 8, 1024)])
    it[PC].post += vp
    def kflag():
        g(f"s_and_b32 {sT2}, {sRW}, 1")
        g(f"s_lshl_b32 {sT2}, {sT2}, 8")
        g(f"s_and_b32 {sT}, {sRB}, 8")
        g(f"s_lshl_b32 {sT}, {sT}, 4")
        g(f"s_add_u32 {sT2}, {sT2}, {sT}")
        g(f"s_lshl_b32 {sT}, {sR8}, 3")
        g(f"s_add_u32 {sT2}, {sT2}, {sT}")
        g(f"s_and_b32 {sT}, {sRW}, 2")
        g(f"s_lshl_b32 {sT}, {sT}, 1")
        g(f"s_add_u32 {sT2}, {sT2}, {sT}")
        g(f"s_add_u32 {sT2}, {sT2}, {sFK}")
        g("s_mov_b64 exec, 1")
        g(f"buffer_store_dword {vNON}, off, {SWS}, {sT2} sc1")
        g(f"buffer_store_dword {vNON}, off, {SWS}, {sT2} offset:512")
        g("s_mov_b64 exec, -1")
    def job():
        g.wait(lg="fw")
        g("s_barrier")
        g(f"s_cmp_lg_u32 {sCLS}, 0")
        g("s_cbranch_scc1 Q_nojob")
        with g.optional():
            g("s_setprio 3")
            g(f"s_cmp_lt_u32 {sRW}, 2")
            g("s_cbranch_scc1 Q_jobc")
            with g.optional():
                for k in range(8): g(f"ds_read_b128 {vr(96+4*k)}, v25 offset:{k*1024}", tag=f"a{k}")
                if OPT["efk"]: kflag()
                for k in range(8):
                    g.wait(lg=f"a{k}")
                    mfma(ACC3, vr(96 + 4 * k), "v[28:31]", vr(ACC3, 16) if k else 0)
                g("s_branch Q_jobf")
            g.label("Q_jobc")
            for k in range(8):
                g(f"ds_read_b128 {vr(96+4*k)}, v25 offset:{k*1024}", tag=f"a{k}")
                if k < 4: g(f"ds_read_b128 {vr(TMP+4*k)}, v25 offset:{16384+k*1024}", tag=f"a{k}")
            if OPT["efk"]: kflag()
            for k in range(8):
                g.wait(lg=[f"a{k}", f"b{k}"])
                mfma(ACC3, vr(96 + 4 * k), vr(TMP + 4 * k) if k < 4 else vr(96 + 4 * (k - 4)), vr(ACC3, 16) if k else 0)
                if k < 4: g(f"ds_read_b128 {vr(96+4*k)}, v25 offset:{16384+(k+4)*1024}", tag=f"b{k+4}")
            g.label("Q_jobf")
            g(f"s_lshl_b32 {sT}, {sRB}, 12")
            g(f"s_and_b32 {sT2}, {sRW}, 1")
            g(f"s_lshl_b32 {sT2}, {sT2}, 11")
            g(f"s_add_u32 {sT}, {sT}, {sT2}")
            g(f"s_add_u32 {sT}, {sT}, {sKV}")
            for i in range(4): g(f"v_cvt_pk_bf16_f32 v{TMP+i}, v{ACC3+8+2*i}, v{ACC3+8+2*i+1}")
            g(f"s_mov_b64 exec, {sMK}")
            for i in range(4): g(f"v_cvt_pk_bf16_f32 v{TMP+i}, v{ACC3+2*i}, v{ACC3+2*i+1}")
            g("s_mov_b64 exec, -1")
            emit(tstore(TMP, sT, 0)[:2])
            g(f"buffer_store_dwordx4 {vr(TMP)}, v26, {SWS}, {sT} offen sc1")
            if not OPT["efk"]: kflag()
            g("s_setprio 0")
        g.label("Q_nojob")
        g(f"s_lshr_b32 {sT}, {sRW}, 1")
        g(f"s_lshl_b32 {sT}, {sT}, 15")
        g(f"s_add_u32 {sKV}, {sKV}, {sT}")
        g(f"s_and_b32 {sT}, {sRW}, 1")
        g(f"s_lshl_b32 {sT2}, {sCLS}, 1")
        g(f"s_add_u32 {sT}, {sT}, {sT2}")
        g(f"s_lshl_b32 {sT}, {sT}, 10")
        g(f"s_add_u32 {sKV}, {sKV}, {sT}")
        g(f"s_add_u32 {sST}, {sAp}, 7168")
    it[OPT["jb"]].post += [job, st("job")]
    place(it, OPT["qg0"], OPT["qg0"] + 6, D2A("G0"), it[PB + 16])
    place(it, OPT["jb"] + 1, OPT["jb"] + 7, D2A("G1"))
    it[OPT["qlb"]].bar = dict(lead=2)
    assert OPT["qlb"] - 2 > OPT["jb"]
    place(it, OPT["qlb"] - 2, OPT["qlb"], D2A("U"), it[OPT["qlb"]])
    KR = [128 + 4 * r for r in range(8)]
    Gk = Grp("Qkv", [(KR[r], sKV, r * 4096) for r in range(8)])
    Gp = Grp("Qgp", [(96, sAp, 0), (100, sAp, 1024), (104, sAo, 0), (108, sAo, 1024)])
    Gq = Grp("Qgq", [(112, sAp, 6144), (116, sAo, 6144), (160, sAp, 2048), (164, sAp, 3072), (168, sAo, 2048), (172, sAo, 3072)])
    Gc = Grp("Qgc", [(144, sAp, 4096), (148, sAp, 5120), (152, sAo, 4096), (156, sAo, 5120)])
    Go = Grp("Qgo", [(176, sAo, 7168), (180, sAo, 8192)])
    IDENT = 28
    OO, SCQ = 120, 188
    def ksum():
        stamp("kvok")
        if OPT["efo"] == 2: publish(0)()
        for r in range(8): mfma(ACC3, vr(IDENT), vr(KR[r]), vr(ACC3, 16) if r else 0)
        for i in range(4): g(f"v_cvt_pk_bf16_f32 v{TMP+i}, v{ACC3+2*i}, v{ACC3+2*i+1}")
        g(f"ds_write_b128 v24, {vr(TMP)}", tag="kw")
    def kx():
        g(f"ds_read_b32 {vLG2}, v27 offset:8192", tag="kl")
        for r in range(4): g(f"ds_read_b128 {vr(KR[r])}, v25 offset:{r*1024}", tag=f"kr{r}")
        if OPT["efo"] == 1: publish(0)()
    def ko():
        g.wait(lg="kl")
        g(f"v_add_f32 {vLG}, {vLG}, {vLG2}")
        g(f"v_mul_f32 {vLG}, {sLOG2E}, {vLG}")
        g(f"v_min_f32 {vLG}, 0x42640000, {vLG}")
        g(f"v_exp_f32 {vLG}, {vLG}")
        for r in range(4):
            g.wait(lg=f"kr{r}")
            acc = (TMP, ACC3)[r & 1]
            mfma(acc, vr(KR[r]), vr(ACC2 + 8 * (r & 1)), vr(acc, 16) if r >= 2 else 0)
        g(f"v_add_f32 v{SCQ+2}, 1.0, {vLG}")
        g(f"v_rcp_f32 v{SCQ+2}, v{SCQ+2}")
        g(f"v_mov_b32 v{SCQ}, {TG0}")
        g(f"v_mov_b32 v{SCQ+1}, {TG1}")
        g(f"buffer_store_dwordx4 {vr(SCQ)}, {vL16}, {SWS}, {sST} offen offset:2048{LSC}", tag="st")
        for hd, (num, den) in enumerate(((TMP, TMP + 8), (ACC3 + 8, ACC3))):
            g(f"v_add_f32 v{den}, {sEPS}, v{den}")
            g(f"v_rcp_f32 v{den}, v{den}")
            g(f"v_mul_f32 v{den}, {vLG}, v{den}")
            for i in range(8): g(f"v_mul_f32 v{num+i}, v{den}, v{num+i}")
            for i in range(4): g(f"v_cvt_pk_bf16_f32 v{OO+4*hd+i}, v{num+2*i}, v{num+2*i+1}")
            emit(tstore(OO + 4 * hd, sST, hd * 1024))
        if OPT["efo"] == 0: publish(0)()
        emit(untag(OO) + untag(OO + 4))
        stamp("ost")
    steps = unit((96, 100), aB, 0) + unit((104, 108), aB, 16384) + unit((112,), aC, 0) + unit((116,), aC, 8192) + \
        unit((160, 164), aB, 32768) + unit((168, 172), aB, 32768 + 16384) + \
        unit((OO, OO + 4), aA, 32768) + \
        unit((144, 148), aA, 0) + unit((152, 156), aA, 16384) + \
        unit((176, 180), aA, 32768 + 16384)
    p2, order, nx, first = p2items(steps, [64, 68, 72, 76, 184], OPT["qt3"])
    B = len(it); it += p2
    assert B == P2
    it[OPT["jb"] + 2].post.append(ident(IDENT))
    fa = lambda: fetch(it, OPT["qa"], Gp.loads(), 0x1100, B - 4, pl=OPT["qapl"], pre=setFA(), post=[st("gpfl")])
    fk = lambda: fetch(it, OPT["qkv"], Gk.loads(), 0xffff, B + 40, pl=OPT["qpl"], step=0, pre=setFK(), post=[st("kvfl")])
    for f in ((fa, fk) if OPT["qa"] < OPT["qkv"] else (fk, fa)): f()
    fetch(it, B + OPT["qb"], Gq.loads(), 0x4400, B + first[4] - 5, pl=OPT["lpl"], pre=setFA(), post=[st("gqfl")])
    assert OPT["qkv"] >= PC + 8 and OPT["qkv"] - OPT["qpl"] > OPT["jb"] and OPT["qa"] > OPT["jb"] and B + OPT["qb"] >= PC + 12
    kp = B + OPT["qks"]
    spread(it, B - 3, B, Gp.check() + [st("gpok")])
    it[OPT["qlb"]].post += [f"s_add_u32 {sT}, {sW1K}, {LC}", f"v_add_u32 v24, {sT}, {vL16}",
                   f"s_lshl_b32 {sT2}, {sCLS}, 12", f"s_add_u32 {sT2}, {sT2}, {LC}", f"v_add_u32 v25, {sT2}, {vL16}",
                   f"v_lshl_add_u32 v26, {vLANE}, 2, {sT}", "v_xor_b32 v27, 0x1000, v26",
                   lambda: g(f"ds_write_b32 v26, {vLG} offset:8192", tag="kw")]
    assert kp < B - 3 and kp > OPT["qkv"] and kp > OPT["qlb"]
    it[kp].post += Gk.check() + [ksum]
    it[B].bar = dict(vm=["wG0", "wG1", "wU"], lead=3, drain=True, after=[kx] + p2addr() + [st("P2bar")])
    place(it, B - 3, B + OPT["pd1"], D2A("O") + D2A("P2"), it[B])
    spread(it, B + OPT["pq0"], B + OPT["pq1"], PH(ACC2) + PH(ACC2 + 8))
    ke = B + OPT["pq1"]
    it[ke].post += [ko]
    spread(it, B + first[4] - 4, B + first[4], Gq.check() + [st("gqok")])
    assert ke < B + first[10] - 1
    it[B + first[10] + 1].post += [p2misc]
    it[B + first[10]].bar = dict(vm=["wP2", "wO"], lead=OPT["D2"])
    fetch(it, B + OPT["qgc"], Gc.loads(), 0x8800, B + first[12] - 5, pl=OPT["lpl"], post=[st("gcfl")])
    fetch(it, B + OPT["qgo"], Go.loads(), 0x0010, B + first[16] - 3, pl=OPT["lpl"], post=[st("gofl")])
    spread(it, B + first[12] - 4, B + first[12], Gc.check() + [st("gcok")])
    spread(it, B + first[16] - 2, B + first[16], Go.check() + [st("gook")])
    assert OPT["qgc"] < first[12] - 4 and OPT["qgo"] < first[16] - 2
    tail = p2tail("Q", it, B, nx, [128, 136, 32, 40], IDENT, f"v{SCQ+2}")
    run(it)
    tail()


for role, fn in (("WW", WW), ("QQ", QQ)):
    g.start_trace(role)
    ROLE[0] = role
    g.block(ENTRY, prologue)
    g.block(role, fn, align=(3 if role == "QQ" else None))
rt = []
for r in retries:
    g.start_trace("RT_" + r.name)
    g.block("RT_" + r.name, r.retry)
    rt.append("RT_" + r.name)
g.start_trace("end"); g.block("CODE_END", lambda: None)
g.hazards()
order = [ENTRY, "WW", "SPIN", "QQ"] + rt + ["CODE_END"]
assert sorted(order) == sorted(g.order), (g.order)

hdr = open("cdna_kernels/" + KN + ".s.ref").read().split("\n")
top = [l for l in hdr if l.startswith(";") and "@launch" not in l]
print("\n".join(top))
print("; @launch grid=(256,1,1) block=(512,1,1) lds=163840")
if STAMP:
    for r in SN: print("; STAMPS", r, " ".join(SN[r]))
    print("; RTS", OPT["rts"])
print('.amdgcn_target "amdgcn-amd-amdhsa--gfx950"\n.text')
print(f".globl {ENTRY}\n.p2align 8\n.type {ENTRY},@function")
print(g.text(order))
print("    s_endpgm")
print(f""".section .rodata,"a"
.p2align 6
.amdhsa_kernel {ENTRY}
  .amdhsa_next_free_vgpr 256
  .amdhsa_next_free_sgpr 102
  .amdhsa_accum_offset 256
  .amdhsa_group_segment_fixed_size 0
  .amdhsa_kernarg_size 88
  .amdhsa_user_sgpr_count 2
  .amdhsa_user_sgpr_kernarg_segment_ptr 1
  .amdhsa_system_sgpr_workgroup_id_x 1
.end_amdhsa_kernel""")
print(f"; maxvm={g.maxvm}", file=sys.stderr)
for name, tr in g.traces[:2]:
    print(f"; trace {name}: barriers={sum(1 for o in tr if o.kind=='i' and o.mn=='s_barrier')} instrs={len(tr)}", file=sys.stderr)
```

```python
import sys
from fw import *

OPT = dict(wpd=10, qpd=10, qpd0=-3, wpd0=-4, pf=0, pfk=0, pfp=0, ssp=0, q2=0, qu=102, qkw=1, qkn=3, wo2=0, kpi=0, psf=0, plf=0, asf=0, apr=0, sdp=1, asym=0, b1l=1, k0=1, nx=0, wtm=0, qtm=0, tp=0, nxd=1, qg1=0, qgw=6, js=0, xwp=49, sd0=999, sd1=0, tc=0, a48=1, dsh=0, rm0=99, rmax=99, xsp=0, stamp=0, D=6, BL=2, BL2=4, DP=5, D2=4, lim=20000, rotm=7, tw=61, tlb=0, wt3=18, qt3=14, sp=0, slp=1,
           dsp=0, pst=0, osc=0, nochk=0, ew=1, pb=1, np1=5, np2=8, tlp=31, ft=1, bl=0,
           twd=0, stl=0, kq=0, kd1=1, kd2=1, kpr=0, wb3=0, wM=96, wN=10, pd=0, wpt=0, qpt=0, pe=0, wp1=0, qp1=0, fl=40, lpl=6, loc=0, at1=0, at2=0, atq=0, pt=0, g0=80, g1=100, pd1=10, wob=0,
           ea0=49, ea1=66, eu0=66, eu1=78, eb0=81, eb1=102, ec0=1, ec1=14, pk1=78,
           wga=92, wgb=2, wgc=24, wgo=31,
           twq=1, qg0=74, qapl=5, qa=92, qb=8, qkv=99, qpl=7, qks=-4, qlb=92, qgc=28, qgo=40, jb=82, pq0=0, pq1=5, efk=0, efo=0, efp=0,
           prl=0, hd=0, rts=1, cal=0, calx=4000, sper=8, sb0=999, sb1=0, s0=0, s1=999)
for a in sys.argv[1:]:
    k, v = a.split("="); assert k in OPT, k; OPT[k] = int(v, 0)
STAMP = OPT["stamp"]
LIM = OPT["lim"] << 16 if STAMP else OPT["lim"]

FLG = [" sc1", " sc0 sc1", " sc1 nt", " sc0 sc1 nt"]
LSC = "" if OPT["loc"] else FLG[OPT["asf"]]
LA, LB, LC = 0, 98304, 65536
MAP = {"WW": (LC, 32768, 0, LB + 32768), "QQ": (LB, 0, 32768, LC)}
def GB(): return MAP[ROLE[0]][0]
def XC(): return MAP[ROLE[0]][3]
PARTO, KVP, STP, FA, FK, FP = 640 * 1024, 0x1000000, 0x1100000, 0x10A0000, 0x10B0000, 0x10C0000
WS_SIZE = 0x1180000 if STAMP else 0x1100000
OFFB = 0x1200000
if OPT["nx"]: WS_SIZE = 0x2200000
SX, SW, SW2, SWO, SWS, SOUT, SB, SDBG = "s[32:35]", "s[36:39]", "s[40:43]", "s[44:47]", "s[48:51]", "s[52:55]", "s[56:59]", "s[60:63]"
sW, sRW, sRB, sCGI, sISW1, sSTR, sROT, sW1K, sXR, sCLS, sNON, sM = [f"s{64+i}" for i in range(12)]
sP = ["s76", "s77", "s78", "s79"]
sWC = [f"s{80+i}" for i in range(8)]
sT, sT2, sT3, sTB, sCNT, sKQ, sR8, sPAR, sTT, sLOG2E = [f"s{88+i}" for i in range(10)]
sTM = "s[98:99]"; sEPS = "s100"; sST = "s101"
sMK = "s[4:5]"
sAp, sAo, sRs, sRo, sRu, sRm, sRmu, sPART, sOUT, sKV, sFA, sPUB, sFP, sFK, sHAVE, sMASK = [f"s{8+i}" for i in range(16)]
sRET = "s[30:31]"
sDEC, sLC = "s6", "s7"
vWDB, vLANE, vXD, vWDa, vWDb, vW2D = "v0", "v1", "v2", "v3", "v4", "v5"
vX = ["v6", "v7", "v8", "v9"]
vWlo, vWhi, vU, vWOD, TG0, TG1, vL16, vCHK, vSTAMP, vBIAS2, vT0, vUD, vE0, vE1 = [f"v{10+i}" for i in range(14)]
vPR, vNON, vPA = "v0", "v2", "v4"
ACC0, ACC1, ACC2, ACC3, XR, TMP, TACC = 96, 112, 80, 48, 128, 32, 192

g = Gen()
retries = []
SUF = [""]
CLS = [0]
def add_retry(name, fn):
    if name not in [n for n, _ in retries]: retries.append((name, fn))


def vr(a, n=4):
    return f"v[{a}:{a+n-1}]"


SN = {"WW": ["start"], "QQ": ["start"]}
ROLE = [None]
def stamp(name):
    if not STAMP: return
    names = SN[ROLE[0]]
    g(f"v_writelane_b32 {vSTAMP}, s98, {len(names)-1}")
    g(f"{'s_memrealtime' if OPT['rts'] else 's_memtime'} {sTM}")
    names.append(str(name))
    assert len(names) < 59


def st(i):
    return lambda: stamp(i)


def mfma(d, a, b, c):
    g(f"v_mfma_f32_32x32x16_bf16 {vr(d,16)}, {a}, {b}, {c}")


def dx(c, i):
    def f():
        g(f"s_add_u32 m0, {sW1K}, {(c % 4) * 16384 + i * 8192:#x}")
        g(f"s_xor_b32 {sT2}, {sXR}, {c << 7 | i << 16:#x}")
        g(f"buffer_load_dwordx4 {vXD}, {SX}, {sT2} offen lds", tag=f"ck{c}")
    return f


def dw(lds, c, va, tag):
    def f():
        g(f"s_add_u32 m0, {sW1K}, {lds:#x}")
        g(f"buffer_load_dwordx4 {va}, {SW}, {sWC[c]} offen lds", tag=tag)
    return f


def CK(c):
    return [dx(c, 0), dx(c, 1), dw(LC + (c % 4) * 8192, c, vWDa, f"ck{c}")]


def WBs():
    if OPT["rotm"] == 7: return [dw(LB + c * 8192, c, vWDb, f"wb{c}") for c in range(8)]
    assert OPT["rotm"] == 3
    def sel(flip):
        def f():
            g(f"s_bitcmp{1 - flip}_b32 {sR8}, 2")
            g(f"s_cselect_b32 {sT2}, {sWC[4]}, {sWC[0]}")
            g(f"s_cselect_b32 {sT3}, {4 * 8192:#x}, 0")
            g(f"s_add_u32 {sT3}, {sT3}, {sW1K}")
            g(f"s_add_u32 m0, {sT3}, {LB:#x}")
            g(f"buffer_load_dwordx4 {vWDb}, {SW}, {sT2} offen lds", tag="wb0")
        return f
    return [sel(0), sel(1)] + [dw(LB + c * 8192, c, vWDb, f"wb{c}") for c in (1, 2, 3, 5, 6, 7)]


def head():
    c1 = CK(1)
    return CK(0) + c1[:2] + (WBs()[:1] if OPT["ew"] == 1 else []) + c1[2:] + CK(2) + CK(3)


def WCs():
    l = [dw(LA + c * 8192, c, vWDa, f"wc{c}") for c in range(8)]
    f0 = l[0]
    l[0] = lambda: (g(f"v_add_u32 {vWDa}, {sP[2]}, {vWDB}"), f0())
    return l


def du(n, tag):
    def f():
        g(f"s_xor_b32 {sT2}, {sROT}, {sCLS}")
        g(f"s_xor_b32 {sT2}, {sT2}, {2*n}")
        g(f"s_add_u32 m0, {sW1K}, {LB + 32768 + n*8192:#x}")
        g(f"s_mul_i32 {sT2}, {sT2}, {3584*64}")
        g(f"buffer_load_dwordx4 {vUD}, {SW}, {sT2} offen lds", tag=tag)
    return f


def d2(area, n):
    i = 2 * n
    prel, pp = (i >> 2) & 1, (i >> 1) & 1
    if area == "U": prel, pp = n, 0
    def f():
        if area in ("G0", "G1", "P2"):
            base = {"G0": GB() + MAP[ROLE[0]][1], "G1": GB() + MAP[ROLE[0]][2], "P2": LA}[area]
            gofs = {"G0": 0, "G1": 1 << 16, "P2": 1 << 17}[area]
            g(f"s_xor_b32 m0, {sRm}, {base + (i << 12):#x}")
            g(f"s_xor_b32 {sT2}, {sRs}, {gofs | prel << 18 | pp << 15:#x}")
            g(f"buffer_load_dwordx4 {vW2D}, {SW2}, {sT2} offen lds", tag="w" + area)
        elif area == "O":
            g(f"s_xor_b32 m0, {sRm}, {LA + 32768 + (i << 12):#x}")
            g(f"s_xor_b32 {sT2}, {sRo}, {prel << 16 | pp << 15:#x}")
            g(f"buffer_load_dwordx4 {vWOD}, {SWO}, {sT2} offen lds", tag="wO")
        else:
            g(f"s_xor_b32 m0, {sRmu}, {XC() + 16384 + (i << 12):#x}")
            g(f"s_xor_b32 {sT2}, {sRu}, {0x30000 | prel << 15:#x}")
            g(f"buffer_load_dwordx4 {vW2D}, {SW2}, {sT2} offen lds", tag="wU")
    return f


def D2A(area):
    return [d2(area, n) for n in range(2 if area == "U" else 4)]


def touch():
    q = OPT["twq"]
    if OPT["twd"]: stamp("tw0")
    g(f"s_and_b32 {sT}, s2, {0x78 if q else 0xf8:#x}")
    g(f"s_add_u32 {sT}, {sT}, {sW}")
    g(f"s_mul_i32 {sT2}, {sT}, {14*128 << q}")
    g(f"s_mul_i32 {sT3}, {sKQ}, {448*1024}")
    g(f"s_add_u32 {sT2}, {sT2}, {sT3}")
    g(f"v_lshlrev_b32 {vE0}, 7, {vLANE}")
    g(f"s_mov_b64 exec, {(1 << (14 << q)) - 1:#x}")
    g(f"buffer_load_dword {vE1}, {vE0}, {SW2}, {sT2} offen", tag="tw")
    g(f"s_lshl_b32 {sT2}, {sT}, {9 + q}")
    g(f"s_lshl_b32 {sT3}, {sKQ}, 17")
    g(f"s_add_u32 {sT2}, {sT2}, {sT3}")
    g(f"s_mov_b64 exec, {(1 << (4 << q)) - 1:#x}")
    g(f"buffer_load_dword {vE1}, {vE0}, {SWO}, {sT2} offen", tag="tw")
    g("s_mov_b64 exec, -1")
    if OPT["twd"]:
        g("s_waitcnt lgkmcnt(0)"); stamp("tw1"); g("s_waitcnt vmcnt(1) lgkmcnt(0)"); stamp("tw2"); g("s_waitcnt vmcnt(0) lgkmcnt(0)"); stamp("tw3"); g("s_waitcnt lgkmcnt(0)")


def publish(kind):
    def f():
        g("s_mov_b64 exec, 1")
        g(f"buffer_store_dword {vNON}, off, {SWS}, {sPUB} offset:{kind*4}", tag="pub")
        g("s_mov_b64 exec, -1")
    return f


def SPIN():
    g("s_mov_b64 exec, 0xffff")
    g.label("SPIN_loop")
    g(f"buffer_load_dword {vPR}, {vPA}, {SWS}, 0 offen sc1")
    g("s_waitcnt vmcnt(0)")
    g(f"v_cmp_eq_u32 vcc, {sNON}, {vPR}")
    g(f"s_add_u32 {sCNT}, {sCNT}, {0x10000 if STAMP else 1}")
    g(f"s_mov_b32 {sHAVE}, vcc_lo")
    g(f"s_and_b32 {sT}, {sHAVE}, {sMASK}")
    g(f"s_cmp_eq_u32 {sT}, {sMASK}")
    g("s_cbranch_scc1 SPIN_done")
    if OPT["slp"]: g(f"s_sleep {OPT['slp']}")
    g(f"s_sub_u32 {sLC}, {sLC}, {sDEC}")
    g(f"s_cmp_lt_i32 {sLC}, 0")
    g("s_cbranch_scc1 SPIN_done")
    g(f"s_cmp_lt_u32 {sCNT}, {LIM:#x}")
    g("s_cbranch_scc1 SPIN_loop")
    g.label("SPIN_done")
    g("s_mov_b64 exec, -1")
    g(f"s_setpc_b64 {sRET}")


def poll_issue():
    g("s_mov_b64 exec, 0xffff")
    g(f"buffer_load_dword {vPR}, {vPA}, {SWS}, 0 offen sc1", tag="poll")
    g("s_mov_b64 exec, -1")


nlab = [0]
def take(mask, fresh=True):
    def f():
        nlab[0] += 1
        lab = f"EN{ROLE[0]}{nlab[0]}{SUF[0]}"
        if fresh:
            g.wait(vm="poll")
            g(f"v_cmp_eq_u32 vcc, {sNON}, {vPR}")
            g(f"s_and_b32 {sHAVE}, vcc_lo, 0xffff")
        g(f"s_and_b32 {sT}, {sHAVE}, {mask:#x}")
        g(f"s_cmp_eq_u32 {sT}, {mask:#x}")
        g(f"s_cbranch_scc1 {lab}")
        with g.optional():
            g(f"s_mov_b32 {sMASK}, {mask:#x}")
            g(f"s_call_b64 {sRET}, SPIN")
            g.block("SPIN", SPIN, align=3)
        g.label(lab)
    return f


sQ0, sQ1, sQA = "s80", "s81", "s82"
def SSPIN():
    g.label("SSPIN_loop")
    g(f"s_buffer_load_dword {sQ0}, {SWS}, {sQA} glc")
    g(f"s_buffer_load_dword {sQ1}, {SWS}, s83 glc")
    g(f"s_add_u32 {sCNT}, {sCNT}, {0x10000 if STAMP else 1}")
    g("s_waitcnt lgkmcnt(0)")
    g(f"s_xor_b32 {sT}, {sQ0}, {sNON}")
    g(f"s_xor_b32 {sT2}, {sQ1}, {sNON}")
    g(f"s_or_b32 {sT}, {sT}, {sT2}")
    g("s_cbranch_scc0 SSPIN_done")
    if OPT["slp"]: g(f"s_sleep {OPT['slp']}")
    g(f"s_sub_u32 {sLC}, {sLC}, 1")
    g(f"s_cmp_lt_i32 {sLC}, 0")
    g("s_cbranch_scc0 SSPIN_loop")
    g.label("SSPIN_done")
    g(f"s_setpc_b64 {sRET}")


def sfetch(mask):
    bits = [b for b in range(16) if mask >> b & 1]
    GL = " glc" if OPT["ssp"] == 1 else ""
    def issue():
        if len(bits) == 2:
            assert bits[1] == bits[0] + 4
            g(f"s_add_u32 {sQA}, {sFA}, {bits[0]*4}")
            g(f"s_add_u32 s83, {sFA}, {bits[1]*4}")
            g("s_mov_b64 s[80:81], 0")
            g(f"s_buffer_load_dword {sQ0}, {SWS}, {sQA}{GL}")
            g(f"s_buffer_load_dword {sQ1}, {SWS}, s83{GL}")
        else:
            g(f"s_xor_b32 {sQA}, {sPUB}, {16 + (bits[0] & 3) * 4}")
            g(f"s_mov_b32 {sQ0}, 0")
            g(f"s_buffer_load_dword {sQ0}, {SWS}, {sQA}{GL}")
    def tk():
        nlab[0] += 1
        lab = f"EN{ROLE[0]}{nlab[0]}{SUF[0]}"
        if len(bits) == 2:
            g(f"s_xor_b32 {sT}, {sQ0}, {sNON}")
            g(f"s_xor_b32 {sT2}, {sQ1}, {sNON}")
            g(f"s_or_b32 {sT}, {sT}, {sT2}")
        else:
            g(f"s_cmp_lg_u32 {sQ0}, {sNON}")
        g(f"s_cbranch_scc0 {lab}")
        with g.optional():
            if OPT["ssp"] == 1:
                if len(bits) == 1: g(f"s_mov_b32 s83, {sQA}")
                g(f"s_call_b64 {sRET}, SSPIN")
                g.block("SSPIN", SSPIN, align=3)
            else:
                emit(setFA())
                g(f"s_mov_b32 {sMASK}, {mask:#x}")
                g(f"s_call_b64 {sRET}, SPIN")
                g.block("SPIN", SPIN, align=3)
        g.label(lab)
    return issue, tk


POLLS = {"WW": [], "QQ": []}
def fetch(it, pos, grp, mask, hi, pl=0, step=1, pre=(), post=(), lp=None):
    if OPT["ssp"] and mask != 0xffff and (OPT["ssp"] != 3 or mask in (0x1100, 0x1000)):
        P = POLLS.setdefault(ROLE[0] + "s", [])
        assert all(hi_ <= pos - pl for lo, hi_ in P), "fetch order"
        assert pos - pl > 60
        P.append((pos - pl, pos))
        a, b = sfetch(mask)
        it[pos - pl].post.append(a)
        it[pos].post += [b] + list(post)
    elif mask is not None:
        for lo, hi_ in POLLS[ROLE[0]]: assert pos <= lo or pos - pl >= hi_, ("polls overlap", lo, hi_, pos - pl, pos)
        assert all(hi_ <= pos - pl for lo, hi_ in POLLS[ROLE[0]]), "fetch order"
        POLLS[ROLE[0]].append((pos - pl, pos))
        it[pos - pl].post += list(pre) + [poll_issue]
        it[pos].post += [take(mask)] + list(post)
    if lp is not None: assert lp >= pos; pos = lp
    for i, f in enumerate(grp): it[min(pos + step * i, hi)].post.append(f)


GN = ["ga", "gp", "gq", "kv", "gc", "go", "pr"]
PA, PB, PC, P2 = 0, 48, 80, 112
class Grp:
    def __init__(s, name, frags, each=None):
        s.name = name; s.frags = frags; s.each = each

    def loads(s, tagged=True):
        out = []
        cur = [None]
        def one(i, reg, base, off):
            def f(first=True):
                hi = off & ~4095 if off >= 4096 else 0
                fl = FLG[OPT["plf"]] if s.name[1:] == "pr" else " sc1"
                k = OPT[{"pr": "pfp", "kv": "pfk"}.get(s.name[1:], "pf")]
                if tagged and k: fl = ("", "", " sc0", " nt")[k]
                if hi: g(f"s_add_u32 {sT3}, {base}, {hi:#x}")
                g(f"buffer_load_dwordx4 {vr(reg)}, {vL16}, {SWS}, {sT3 if hi else base} offen offset:{off - hi}{fl}",
                  tag=f"{s.name}{i}" if tagged else None)
            return f
        return [one(i, *fr) for i, fr in enumerate(s.frags)]

    def decode(s, waits=True):
        out = []
        for i, (reg, _, _) in enumerate(s.frags):
            if waits: out.append(lambda i=i: g.wait(vm=f"{s.name}{i}"))
            out.append(f"v_xor_b32 v{reg}, {TG0}, v{reg}")
            out.append(f"v_xor_b32 v{reg+1}, {TG1}, v{reg+1}")
            out.append(f"v_or_b32 {vCHK}, v{reg}, v{reg+1}" if i == 0 else f"v_or3_b32 {vCHK}, v{reg}, v{reg+1}, {vCHK}")
            if s.each: out.append(lambda i=i, reg=reg: s.each(i, reg))
        out.append(f"v_and_b32 {vCHK}, {sTB}, {vCHK}")
        return out

    def check(s):
        def fin():
            if OPT["nochk"]: return
            g(f"v_cmp_ne_u32 vcc, 0, {vCHK}")
            g("s_cmp_lg_u64 vcc, 0")
            nm = s.name + SUF[0]
            g(f"s_cbranch_scc1 RT_{nm}")
            g.label(f"OK_{nm}")
            add_retry(nm, lambda: s.retry(nm))
        return s.decode() + [fin]

    def retry(s, nm):
        if STAMP: g(f"s_or_b32 s3, s3, {1 << GN.index(s.name[1:])}")
        g(f"s_add_u32 {sCNT}, {sCNT}, 1")
        g(f"s_and_b32 {sT}, {sCNT}, 0xffff")
        g(f"s_cmp_gt_u32 {sT}, {OPT['lim']}")
        g(f"s_cbranch_scc1 OK_{nm}")
        if OPT["slp"]: g(f"s_sleep {OPT['slp']}")
        for f in s.loads(False): f()
        g("s_waitcnt vmcnt(0)")
        emit(s.decode(False))
        g(f"v_cmp_ne_u32 vcc, 0, {vCHK}")
        g("s_cmp_lg_u64 vcc, 0")
        if s.each: g("s_nop 15")
        g(f"s_cbranch_scc1 RT_{nm}")
        g(f"s_branch OK_{nm}")


def emit(lst):
    for x in lst:
        if isinstance(x, str): g(x)
        else: x()


def tstore(reg, base, off, keep=True, tag="st"):
    l = [f"v_and_or_b32 v{reg}, v{reg}, {sM}, {TG0}", f"v_and_or_b32 v{reg+1}, v{reg+1}, {sM}, {TG1}",
         lambda: g(f"buffer_store_dwordx4 {vr(reg)}, {vL16}, {SWS}, {base} offen offset:{off}{LSC if tag == 'st' else FLG[OPT['psf']]}", tag=tag)]
    return l


def untag(reg):
    return [f"v_xor_b32 v{reg}, {TG0}, v{reg}", f"v_xor_b32 v{reg+1}, {TG1}, v{reg+1}"]


def EH(b, base, off, prev=None):
    h = [f"v{b+i}" for i in range(8)]
    e = [f"v{TMP+i}" for i in range(8)]
    u = [f"v{TMP+8+i}" for i in range(8)]
    ins = []
    for i in range(8): ins.append(f"v_mul_f32 {e[i]}, {sLOG2E}, {h[i]}")
    if prev is not None: ins += untag(prev)
    for i in range(8): ins.append(f"v_exp_f32 {e[i]}, {e[i]}")
    for i in range(8): ins.append(f"v_fma_f32 {u[i]}, {e[i]}, 0.5, 1.0")
    for i in range(8): ins.append(f"v_fma_f32 {u[i]}, -{e[i]}, {u[i]}, -1.0")
    for i in range(8): ins.append(f"v_rcp_f32 {u[i]}, {u[i]}")
    for i in range(8): ins.append(f"v_fmac_f32 {h[i]}, {h[i]}, {u[i]}")
    for i in range(4): ins.append(f"v_cvt_pk_bf16_f32 {h[i]}, {h[2*i]}, {h[2*i+1]}")
    return ins + tstore(b, base, off)


def PH(b):
    h = [f"v{b+i}" for i in range(8)]
    e = [f"v{TMP+i}" for i in range(8)]
    ins = []
    for i in range(8): ins.append(f"v_mul_f32 {e[i]}, {sLOG2E}, {h[i]}")
    for i in range(8): ins.append(f"v_exp_f32_e64 {e[i]}, {e[i]} clamp")
    for i in range(8): ins.append(f"v_max_f32 {h[i]}, {sEPS}, {h[i]}")
    for i in range(8): ins.append(f"v_add_f32 {h[i]}, {e[i]}, {h[i]}")
    for i in range(4): ins.append(f"v_cvt_pk_bf16_f32 {h[i]}, {h[2*i]}, {h[2*i+1]}")
    return ins


def cost(x):
    if not isinstance(x, str): return 4
    return 8 if x.startswith(("v_exp", "v_rcp")) else 4


def merge(main, side):
    tot = sum(cost(x) for x in main); n = len(side); k = 0; acc = 0; out = []
    for x in main:
        while k < n and acc >= tot * k / n:
            out.append(side[k]); k += 1
        out.append(x); acc += cost(x)
    return out + side[k:]


class Item:
    def __init__(s, addr, imm, second, buf, acc, other, orient="T", zero=False, D=3, lg=(), vm=()):
        s.addr, s.imm, s.second, s.buf, s.acc, s.other, s.orient, s.zero, s.D = addr, imm, second, buf, acc, other, orient, zero, D
        s.lg, s.vm = list(lg), list(vm)
        s.bar = None
        s.rvm = []
        s.post = []
        s.pre = []
        s.rpre = []


def spread(items, lo, hi, fill):
    tot = sum(cost(x) for x in fill); n = hi - lo; acc = 0
    for x in fill:
        k = min(n - 1, int(acc * n / tot)) if tot else 0
        items[lo + k].post.append(x); acc += cost(x)


def run(items, tail):
    N = len(items)
    prev = {}
    for m, it in enumerate(items):
        it.prev = max([p for b, p in prev.items() if b == it.buf], default=-1)
        prev[it.buf] = m
    X = getattr(tail, "split", None)
    if X is None:
        seg(items, 0, N, 0); tail(); return
    nxt = seg(items, 0, X, 0)
    g(f"s_cmp_lg_u32 {sCLS}, 0")
    g(f"s_cbranch_scc1 {ROLE[0]}1")
    SUF[0] = f"_{CLS[0]}"
    g.block(f"{ROLE[0]}{CLS[0]}", lambda: (seg(items, X, N, nxt), tail()), align=(3 if CLS[0] else None))


def seg(items, n0, n1, nxt):
    N = len(items)
    for n in range(n0, n1):
        cnt = 0; lim = OPT["rmax"]
        while nxt < N and nxt <= n + items[nxt].D and items[nxt].prev < n:
            it = items[nxt]
            if it.bar is None and cnt >= lim and nxt > n: break
            if it.bar is not None:
                if nxt - n > it.bar.get("lead", 0): break
                emit(it.bar.get("before", []))
                sb = OPT["sb0"] <= nxt <= OPT["sb1"]
                if sb: stamp(f"pre{nxt}"); g("s_waitcnt lgkmcnt(0)")
                lgw = list(it.bar.get("lg") or [])
                if it.bar.get("drain"): lgw += [t for t in g.lg if t]
                g.wait(vm=it.bar.get("vm"), lg=lgw or None)
                emit(it.bar.get("at", []))
                if sb: stamp(f"at{nxt}"); g("s_waitcnt lgkmcnt(0)")
                g("s_barrier")
                if sb: stamp(f"bar{nxt}")
                it.bar_at = n
                emit(it.bar.get("after", []))
                items[n].pre += it.bar.get("after2", [])
                it.bar = None
                cnt = 0; lim = OPT["rm0"]
                if cnt >= lim and nxt > n: break
            cnt += 1
            emit(it.rpre)
            if it.rvm: g.wait(vm=it.rvm)
            if it.second is None:
                g(f"ds_read_b128 {vr(it.buf)}, {it.addr} offset:{it.imm}", tag=f"w{nxt}")
            else:
                g(f"ds_read_b64_tr_b16 {vr(it.buf, 2)}, {it.addr} offset:{it.imm}", tag=f"w{nxt}")
                if True:
                    g(f"ds_read_b64_tr_b16 {vr(it.buf+2, 2)}, {it.addr} offset:{it.imm + it.second}", tag=f"w{nxt}")
            nxt += 1
        assert nxt > n
        it = items[n]
        emit(it.pre)
        g.wait(vm=it.vm or None, lg=[f"w{n}"] + it.lg)
        c = 0 if it.zero else vr(it.acc, 16)
        if it.orient == "T": mfma(it.acc, vr(it.buf), vr(it.other), c)
        else: mfma(it.acc, vr(it.other), vr(it.buf), c)
        if OPT["sd0"] <= n < OPT["sd1"]:
            if OPT["sdp"]: g("s_waitcnt lgkmcnt(0)")
            stamp(f"m{n}")
            for k_, x_ in enumerate(it.post):
                emit([x_])
                if OPT["sdp"] and not isinstance(x_, str) and x_.__name__ != "fneed": g("s_waitcnt lgkmcnt(0)"); stamp(f"p{n}_{k_}")
        else: emit(it.post)
        if OPT["sper"] and n % OPT["sper"] == OPT["sper"] - 1 and OPT["s0"] <= n < OPT["s1"]: stamp(f"i{n}")
    return nxt


ENTRY = KN + "_kernel"
def prologue():
    if OPT["cal"]: g(("s_memrealtime" if OPT["cal"] == 1 else "s_memtime") + " s[6:7]")
    if STAMP:
        g(f"{'s_memrealtime' if OPT['rts'] else 's_memtime'} {sTM}")
        g(f"{'s_memtime' if OPT['rts'] else 's_memrealtime'} s[6:7]")
        g(f"v_mov_b32 {vSTAMP}, 0")
        g("s_mov_b32 s3, 0")
    g(f"""
    s_cmp_ge_u32 s2, 256
    s_cbranch_scc1 END
    s_load_dwordx16 s[8:23], s[0:1], 0
    s_load_dwordx4 s[24:27], s[0:1], 64
    s_load_dwordx2 s[28:29], s[0:1], 80
    s_getpc_b64 s[30:31]
    s_and_b32 {sT}, s2, 0xf8
    v_lshrrev_b32 v64, 6, v0
    v_add_u32 v65, {sT}, v64
    v_lshlrev_b32 v65, 7, v65
    v_min_u32 v65, CODE_END-{ENTRY}-256, v65
    s_mov_b64 exec, 1
    """)
    g("global_load_dword v255, v65, s[30:31]", tag="cp")
    g(f"""
    s_mov_b64 exec, -1
    v_and_b32 {vLANE}, 63, v0
    v_readfirstlane_b32 {sW}, v64
    s_lshr_b32 {sTT}, s2, 6        ; t
    s_bfe_u32 {sR8}, s2, 0x30003
    s_and_b32 {sRB}, s2, 1
    s_lshl_b32 {sRB}, {sRB}, 3
    s_or_b32 {sRB}, {sRB}, {sR8}
    s_bfe_u32 {sKQ}, s2, 0x20001
    s_lshr_b32 {sISW1}, {sTT}, 1
    s_and_b32 {sPAR}, {sTT}, 1
    s_lshl_b32 {sCGI}, {sKQ}, 1
    s_or_b32 {sCGI}, {sCGI}, {sPAR}
    s_lshl_b32 {sROT}, {sTT}, 1
    s_xor_b32 {sROT}, {sROT}, {sR8}
    """)
    if OPT["rotm"] != 7: g(f"s_and_b32 {sROT}, {sROT}, {OPT['rotm']}")
    g(f"""
    s_and_b32 {sRW}, {sW}, 3
    s_lshr_b32 {sCLS}, {sW}, 2
    s_lshl_b32 {sW1K}, {sW}, 10
    s_lshl_b32 {sSTR}, {sISW1}, 9
    s_add_u32 {sSTR}, {sSTR}, 3072
    s_lshl_b32 {sXR}, {sRB}, 17
    s_lshl_b32 {sT}, {sROT}, 7
    s_or_b32 {sXR}, {sXR}, {sT}
    v_lshrrev_b32 v64, 3, v0               ; w*8+l3
    v_and_b32 v65, 7, v0                   ; pos
    v_bfe_u32 v67, v0, 4, 3                ; (row>>1)&7
    v_xor_b32 v67, v67, v65
    v_lshlrev_b32 v67, 4, v67
    v_lshl_add_u32 {vXD}, v64, 10, v67
    v_bfe_u32 v67, v0, 4, 1
    v_lshlrev_b32 v67, 2, v67
    v_xor_b32 v67, v67, v65                ; pw
    v_lshlrev_b32 v68, 4, v67
    v_mul_lo_u32 v69, v64, {sSTR}
    v_add_u32 {vWDB}, v69, v68
    s_mul_i32 {sP[3]}, {sCGI}, 448
    s_lshl_b32 {sT2}, {sPAR}, 6
    s_add_u32 {sP[0]}, {sP[3]}, {sT2}
    s_add_u32 {sP[1]}, {sP[0]}, 128
    s_add_u32 {sP[2]}, {sP[0]}, 256
    s_cmp_eq_u32 {sPAR}, 0
    s_cselect_b32 {sT2}, 384, 0
    s_add_u32 {sP[3]}, {sP[3]}, {sT2}
    s_cmp_eq_u32 {sISW1}, 1
    s_cbranch_scc1 PRO_w1
    s_lshl_b32 {sP[2]}, {sCGI}, 7
    s_add_u32 {sP[0]}, {sP[2]}, 1024
    s_add_u32 {sP[1]}, {sP[2]}, 2048
    """)
    g.label("PRO_w1")
    g(f"s_lshl_b32 {sT}, {sSTR}, 6")
    for c in range(8):
        g(f"s_xor_b32 {sWC[c]}, {sROT}, {c}")
        g(f"s_mul_i32 {sWC[c]}, {sWC[c]}, {sT}")
    g(f"""
    v_add_u32 {vWDa}, {sP[0]}, {vWDB}
    v_add_u32 {vWDb}, {sP[1]}, {vWDB}
    s_mov_b32 s34, 0x200000
    s_mov_b32 s35, 0x20000
    s_mov_b32 s39, 0x20000
    s_lshl_b32 s38, {sSTR}, 9
    s_mul_i32 s58, {sISW1}, 2560
    s_add_u32 s58, s58, 1024
    s_mov_b32 s59, 0x20000
    """)
    if OPT["pst"]:
        g("s_waitcnt lgkmcnt(3)")
        stamp("prek")
    g(f"""
    s_cmp_eq_u32 {sISW1}, 1
    s_waitcnt lgkmcnt(0)
    s_mov_b32 s32, s8
    s_cselect_b32 s36, s16, s10
    s_cselect_b32 s37, s17, s11
    s_cselect_b32 s56, s18, s22
    s_cselect_b32 s57, s19, s23
    s_and_b32 s33, s9, 0xffff
    s_and_b32 s37, s37, 0xffff
    s_and_b32 s57, s57, 0xffff
    """)
    def ps(n):
        if OPT["pst"] and STAMP:
            stamp(n); g("s_waitcnt lgkmcnt(0)")
    ps("karg")
    h = head()
    emit(h[:3])
    ps("ck0")
    if OPT["pb"]: g("s_barrier")
    emit(h[3:OPT["np1"]])
    ps("ck1")
    setup2()
    ps("set2")
    emit(h[OPT["np1"]:OPT["np2"]])
    ps("ck2")
    g(f"s_cmp_eq_u32 {sISW1}, 0")
    g("s_cbranch_scc1 QQ")


def setup2():
    if STAMP:
        g(f"v_writelane_b32 {vSTAMP}, s6, 62")
    g(f"""
    s_mov_b32 s60, s26
    s_and_b32 s61, s27, 0xffff
    s_mov_b32 s62, 256
    s_mov_b32 s63, 0x20000
    s_or_b32 {sT}, s2, {sW}
    s_cbranch_scc1 S2_non
    """)
    with g.optional():
        g(f"""
        s_memrealtime s[4:5]
        s_waitcnt lgkmcnt(0)
        s_mul_i32 {sT}, s4, 0x9e3779b1
        s_or_b32 {sT}, {sT}, 1
        v_mov_b32 v66, {sT}
        s_mov_b64 exec, 1
        buffer_store_dword v66, off, {SDBG}, 0 sc1
        s_mov_b64 exec, -1
        """)
    g.label("S2_non")
    g(f"""
    s_mov_b32 s40, s20
    s_and_b32 s41, s21, 0xffff
    s_mov_b32 s42, 0x1c0000
    s_mov_b32 s43, 0x20000
    s_mov_b32 s44, s12
    s_and_b32 s45, s13, 0xffff
    s_mov_b32 s46, 0x80000
    s_mov_b32 s47, 0x20000
    s_mov_b32 s48, s28
    s_and_b32 s49, s29, 0xffff
    s_mov_b32 s50, {WS_SIZE:#x}
    s_mov_b32 s51, 0x20000
    s_mov_b32 s52, s24
    s_and_b32 s53, s25, 0xffff
    s_mov_b32 s54, 0x200000
    s_mov_b32 s55, 0x20000
    s_mov_b32 {sLOG2E}, 0x3fb8aa3b
    s_mov_b32 {sEPS}, 0x358637bd
    s_mov_b32 {sM}, 0xfffefffe
    s_mov_b32 {sTB}, 0x10001
    s_mov_b32 {sCNT}, 0
    s_mov_b32 {sLC}, {OPT['fl']}
    v_and_b32 v64, 31, v64                 ; rw*8+l3
    v_lshl_add_u32 {vW2D}, v64, 10, v68
    v_lshrrev_b32 v69, 2, v67
    v_lshl_add_u32 v69, v69, 5, v64
    v_mul_lo_u32 v69, v69, {sSTR}
    v_and_b32 v70, 3, v67
    v_lshl_add_u32 v69, v70, 4, v69
    v_add_u32 {vUD}, {sP[3]}, v69
    s_lshl_b32 {sT}, {sTT}, 8
    s_lshl_b32 {sT2}, {sKQ}, 17
    s_add_u32 {sT2}, {sT2}, {sT}
    v_add_u32 {vWOD}, {sT2}, {vW2D}
    s_mul_i32 {sT2}, {sKQ}, {448*1024}
    s_add_u32 {sT2}, {sT2}, {sT}
    v_add_u32 {vW2D}, {sT2}, {vW2D}
    v_and_b32 v64, 31, {vLANE}             ; row
    v_lshrrev_b32 v65, 5, {vLANE}          ; h
    v_bfe_u32 v66, {vLANE}, 1, 3           ; m
    v_xor_b32 v66, v66, v65                ; h ^ m
    s_lshl_b32 {sT}, {sCLS}, 2
    v_xor_b32 v66, {sT}, v66
    s_lshl_b32 {sT}, {sRW}, 12
    v_lshl_add_u32 v67, v64, 7, {sT}
    """)
    for sp in range(4):
        g(f"v_xor_b32 v68, {2*sp}, v66")
        g(f"v_lshl_add_u32 {vX[sp]}, v68, 4, v67")
    g(f"""
    v_bfe_u32 v68, {vLANE}, 2, 2           ; r
    v_lshlrev_b32 v69, 7, v68
    v_bfe_u32 v68, {vLANE}, 3, 1
    v_lshl_add_u32 v69, v68, 6, v69
    v_bfe_u32 v68, {vLANE}, 4, 1
    v_lshl_add_u32 {vT0}, v68, 5, v69
    v_and_b32 v68, 3, {vLANE}
    v_lshl_add_u32 v69, v68, 3, {vT0}
    v_lshl_add_u32 v69, v65, 10, v69
    s_mul_i32 {sT}, {sCLS}, {4096+64}
    s_add_u32 {sT}, {sT}, {LC}
    v_xor_b32 {vWlo}, {sT}, v69
    v_xor_b32 {vWhi}, 0x1000, {vWlo}
    s_mul_i32 {sT}, {sCLS}, {64+32}
    s_add_u32 {sT}, {sT}, {LB+32768}
    v_xor_b32 {vU}, {sT}, v69
    ; phase-2 lane part: + h*512 + swapped col quad, unit kq&1, half cls
    v_lshl_add_u32 {vT0}, v65, 9, {vT0}
    v_and_b32 v68, 1, {vLANE}
    v_lshl_add_u32 {vT0}, v68, 4, {vT0}
    v_bfe_u32 v68, {vLANE}, 1, 1
    v_lshl_add_u32 {vT0}, v68, 3, {vT0}
    s_and_b32 {sT}, {sKQ}, 1
    s_lshl_b32 {sT}, {sT}, 6
    s_lshl_b32 {sT2}, {sCLS}, 5
    s_or_b32 {sT}, {sT}, {sT2}
    v_xor_b32 {vT0}, {sT}, {vT0}
    v_lshlrev_b32 {vL16}, 4, {vLANE}
    ; rotation constants (r8' = r8 ^ cls)
    s_xor_b32 {sT3}, {sR8}, {sCLS}
    s_lshr_b32 {sT}, {sKQ}, 1
    s_xor_b32 {sT}, {sT}, {sT3}
    s_xor_b32 {sT}, {sT}, 1
    s_and_b32 {sT}, {sT}, 1
    s_lshl_b32 {sT}, {sT}, 7               ; (b0^ho)<<7
    s_and_b32 {sT2}, {sR8}, 2
    s_lshl_b32 {sT2}, {sT2}, 14            ; b1<<15
    s_or_b32 {sRs}, {sT}, {sT2}
    s_lshl_b32 {sT2}, {sPAR}, 15
    s_xor_b32 {sRu}, {sRs}, {sT2}
    s_lshr_b32 {sT}, {sR8}, 2
    s_xor_b32 {sT}, {sT}, {sPAR}
    s_lshl_b32 {sT2}, {sT}, 16
    s_or_b32 {sRo}, {sRs}, {sT2}
    s_lshl_b32 {sT2}, {sT}, 18
    s_or_b32 {sRs}, {sRs}, {sT2}
    s_lshl_b32 {sT}, {sT3}, 12
    s_lshl_b32 {sT2}, {sRW}, 10
    s_or_b32 {sRm}, {sT}, {sT2}
    s_and_b32 {sRmu}, {sRm}, 0x3fff
    s_lshl_b32 {sT}, {sRW}, 2
    s_add_u32 {sT}, {sT}, {sKQ}
    s_lshl_b32 {sT}, {sT}, 2
    s_add_u32 {sT}, {sT}, {sCLS}
    s_lshl_b32 {sT2}, {sPAR}, 1
    s_add_u32 {sAp}, {sT}, {sT2}
    s_xor_b32 {sAo}, {sAp}, 2
    s_mul_i32 {sAp}, {sAp}, 10240
    s_mul_i32 {sAo}, {sAo}, 10240
    s_lshl_b32 {sT3}, {sRB}, 20
    s_add_u32 {sAp}, {sAp}, {sT3}
    s_add_u32 {sAo}, {sAo}, {sT3}
    s_lshl_b32 {sT}, {sTT}, 3
    s_add_u32 {sT}, {sT}, {sW}
    s_mul_i32 {sT}, {sT}, 12288
    s_lshl_b32 {sT2}, {sKQ}, 10
    s_add_u32 {sT}, {sT}, {sT2}
    s_add_u32 {sT}, {sT}, {sT3}
    s_add_u32 {sPART}, {sT}, {PARTO:#x}
    ; out
    s_lshl_b32 {sT}, {sRB}, 2
    s_add_u32 {sT}, {sT}, {sRW}
    s_lshl_b32 {sOUT}, {sT}, 15
    s_lshl_b32 {sT}, {sTT}, 8
    s_add_u32 {sOUT}, {sOUT}, {sT}
    s_lshl_b32 {sT}, {sKQ}, 6
    s_add_u32 {sOUT}, {sOUT}, {sT}
    s_lshl_b32 {sT}, {sCLS}, 5
    s_add_u32 {sOUT}, {sOUT}, {sT}
    s_lshl_b32 {sT}, {sRB}, 2
    s_add_u32 {sT2}, {sT}, {sRW}
    s_lshl_b32 {sT2}, {sT2}, 2
    s_add_u32 {sT2}, {sT2}, {sKQ}
    s_lshl_b32 {sT2}, {sT2}, 1
    s_add_u32 {sT2}, {sT2}, {sCLS}
    s_lshl_b32 {sT2}, {sT2}, 7
    s_add_u32 {sFA}, {sT2}, {FA:#x}
    s_lshl_b32 {sT2}, {sTT}, 4
    s_add_u32 {sPUB}, {sFA}, {sT2}
    s_add_u32 {sT}, {sT}, {sTT}
    s_lshl_b32 {sT}, {sT}, 3
    s_add_u32 {sT}, {sT}, {sW}
    s_lshl_b32 {sT}, {sT}, 2
    s_add_u32 {sT}, {sT}, {sKQ}
    s_lshl_b32 {sT}, {sT}, 7
    s_add_u32 {sFP}, {sT}, {FP:#x}
    s_lshl_b32 {sFK}, {sCGI}, 10
    s_add_u32 {sFK}, {sFK}, {FK:#x}
    s_lshl_b32 {sKV}, {sCGI}, 16
    s_add_u32 {sKV}, {sKV}, {KVP:#x}
    """)
    if OPT["stl"]:
        g(f"s_mul_i32 {sT2}, {sKQ}, {448*1024}")
        g(f"s_buffer_load_dword s4, {SW2}, {sT2}")
        g(f"s_buffer_load_dword s4, {SWO}, 0")
        g(f"s_buffer_load_dword s4, {SWS}, {sPART}")
        g(f"s_buffer_load_dword s4, {SWS}, {sFP}")
        g(f"s_buffer_load_dword s4, {SOUT}, {sOUT}")
    if OPT["sp"]:
        g(f"s_cmp_eq_u32 {sCLS}, 0")
        g("s_cbranch_scc1 S2_sp")
        g(f"s_setprio {OPT['sp']}")
        g.label("S2_sp")


def tlbt(lab):
    def f():
        g(f"s_cmp_lg_u32 {sW}, 7")
        g(f"s_cbranch_scc1 TLB_{lab}")
        with g.optional():
            g(f"s_mul_i32 {sT2}, {sKQ}, {448*1024}")
            g("s_mov_b64 exec, 1")
            g(f"buffer_load_dword {vE1}, off, {SWS}, {sPART}")
            g(f"buffer_load_dword {vE1}, off, {SWS}, {sKV}")
            g(f"buffer_load_dword {vE1}, off, {SOUT}, {sOUT}")
            g(f"buffer_load_dword {vE1}, off, {SW2}, {sT2}")
            g(f"buffer_load_dword {vE1}, off, {SWO}, 0")
            g("s_mov_b64 exec, -1")
        g.label(f"TLB_{lab}")
    return f


def atouch(base, off, lo, hi):
    def f():
        g(f"v_lshlrev_b32 {vE0}, 7, {vLANE}")
        if off: g(f"s_add_u32 {sT}, {base}, {off}")
        g(f"s_mov_b32 exec_lo, {lo:#x}")
        g(f"s_mov_b32 exec_hi, {hi:#x}")
        g(f"buffer_load_dword {vE1}, {vE0}, {SWS}, {sT if off else base} offen", tag="tw")
        g("s_mov_b64 exec, -1")
    return f


def ptouch():
    g(f"v_lshrrev_b32 {vE0}, 3, {vLANE}")
    g(f"v_mul_u32_u24 {vE0}, {4096-1024}, {vE0}")
    g(f"v_lshl_add_u32 {vE0}, {vLANE}, 7, {vE0}")
    g("s_mov_b64 exec, 0xffffff")
    g(f"buffer_load_dword {vE1}, {vE0}, {SWS}, {sPART} offen", tag="tw")
    g("s_mov_b64 exec, -1")


def kvline():
    return [f"s_lshr_b32 {sT}, {sRB}, 2", f"s_xor_b32 {sT}, {sT}, {sRW}", f"s_bitcmp0_b32 {sT}, 1",
            f"s_cselect_b32 {sT2}, 1, 0", f"s_lshl_b32 {sT3}, {sT2}, 2", f"s_lshr_b32 {sT}, {sW}, 1", f"s_add_u32 {sT}, {sT}, {sT3}",
            f"s_lshl_b32 {sT}, {sT}, 7", f"s_add_u32 {sT}, {sT}, {sFK}"]


def ftouch():
    emit(kvline())
    g(f"v_mov_b32 {vE0}, {sFA}")
    g(f"v_writelane_b32 {vE0}, {sFP}, 1")
    g(f"v_writelane_b32 {vE0}, {sT}, 2")
    g("s_mov_b64 exec, 7")
    g(f"buffer_load_dword {vE1}, {vE0}, {SWS}, 0 offen sc1", tag="tw")
    g("s_mov_b64 exec, -1")


def nonce(lab):
    def f():
        g("s_waitcnt lgkmcnt(0)")
        g(f"s_cmp_eq_u32 {sNON}, 0")
        g(f"s_cbranch_scc1 RT_{lab}")
        g.label(f"OK_{lab}")
        class R:
            name = lab
            @staticmethod
            def retry():
                g(f"s_add_u32 {sCNT}, {sCNT}, 1")
                g(f"s_cmp_gt_u32 {sCNT}, {OPT['lim']}")
                g(f"s_cbranch_scc1 OK_{lab}")
                g(f"buffer_load_dword {TG0}, off, {SDBG}, 0 sc1")
                g("s_waitcnt vmcnt(0)")
                g(f"v_readfirstlane_b32 {sNON}, {TG0}")
                g(f"s_cmp_eq_u32 {sNON}, 0")
                g(f"s_cbranch_scc1 RT_{lab}")
                g(f"s_branch OK_{lab}")
        add_retry(lab, R.retry)
        g(f"v_and_b32 {TG1}, 7, {vLANE}")
        g(f"v_lshrrev_b32_e64 {TG0}, {TG1}, {sNON}")
        g(f"v_lshrrev_b32 {TG1}, 8, {TG0}")
        g(f"v_and_b32 {TG0}, {sTB}, {TG0}")
        g(f"v_and_b32 {TG1}, {sTB}, {TG1}")
        g(f"v_mov_b32 {vNON}, {sNON}")
    return f


def setFA():
    return [f"s_lshl_b32 {sT}, {sPAR}, 2", f"v_xor_b32 {vPA}, {sT}, {vLANE}", f"v_lshl_add_u32 {vPA}, {vPA}, 2, {sFA}", f"s_mov_b32 {sDEC}, 1"]


def setFK():
    return kvline() + [f"v_lshl_add_u32 {vPA}, {vLANE}, 2, {sT}", f"s_mov_b32 {sDEC}, {sT2}"]


def ident(I):
    a, b, c = f"v{TMP}", f"v{TMP+1}", f"v{TMP+2}"
    l = [f"v_mov_b32 {b}, 0x3f80",
         f"v_and_b32 {a}, 1, {vLANE}",
         f"v_lshlrev_b32 {a}, 4, {a}",
         f"v_lshlrev_b32 {a}, {a}, {b}",
         f"v_lshrrev_b32 {b}, 3, {vLANE}",
         f"v_xor_b32 {b}, {b}, {vLANE}",
         f"v_and_b32 {b}, 4, {b}",
         f"v_and_b32 {c}, 0x1a, {vLANE}",
         f"v_or_b32 {b}, {b}, {c}"]
    def f():
        emit(l)
        for k, key in enumerate((0, 2, 8, 10)):
            g(f"v_cmp_eq_u32 vcc, {key}, {b}")
            g(f"v_cndmask_b32 v{I+k}, 0, {a}, vcc")
    return f


def prio1(p):
    def f():
        nlab[0] += 1
        g(f"s_cmp_eq_u32 {sCLS}, 0")
        g(f"s_cbranch_scc1 PR{ROLE[0]}{nlab[0]}{SUF[0]}")
        g(f"s_setprio {p}")
        g.label(f"PR{ROLE[0]}{nlab[0]}{SUF[0]}")
    return f


def wadd(d):
    return [f"v_add_u32 {r}, {d:#x}, {r}" if d > 0 else f"v_subrev_u32 {r}, {-d:#x}, {r}" for r in (vWlo, vWhi)]


def need(item):
    def fneed(): assert item.bar is None
    return fneed


def place(it, lo, hi, fs, after=None):
    n = len(fs)
    if after is not None: it[lo].post.append(need(after))
    for i, f in enumerate(fs): it[lo + (hi - lo) * i // n].post.append(f)


def phase1(orient, cbufs, lab, xitem, slot_extra, tail_dma, after48):
    it = []; first = []
    for c in range(8):
        first.append(len(it))
        for sp in range(4):
            s = 4 * c + sp
            it.append(Item(vWlo if sp < 2 else vWhi, (c & 3) * 8192 + (sp & 1) * 2048, 512,
                           64 + 4 * (len(it) % 8), ACC0, XR + 4 * s, orient, zero=(s == 0), D=OPT["D"], lg=[f"xr{s}"]))
        for u in ([c - 2] if 2 <= c < 7 else [5, 6, 7] if c == 7 else []):
            for j in range(2): it.append(xitem(u, j, 64 + 4 * (len(it) % 8)))
    assert len(it) == PB
    first.append(PB)
    n3 = (len(tail_dma) + 2) // 3
    extra = {0: head()[OPT["np2"]:], 5: tail_dma[:n3], 6: tail_dma[n3:2 * n3], 7: tail_dma[2 * n3:]}
    for c in range(8):
        def xr(c=c):
            for sp in range(4):
                g(f"ds_read_b128 {vr(XR+16*c+4*sp)}, {vX[sp]} offset:{(c & 3) * 16384}", tag=f"xr{4*c+sp}")
        nx = (extra[c] if c in extra else CK(c + 3)) + slot_extra.get(c, [])
        it[first[c]].bar = dict(vm=[f"ck{c}"], lead=OPT["BL"], drain=True, after=[] if OPT["xsp"] else [xr])
        if OPT["xsp"]:
            for sp in range(4):
                it[first[c] + sp].rpre.append(lambda c=c, sp=sp: g(f"ds_read_b128 {vr(XR+16*c+4*sp)}, {vX[sp]} offset:{(c & 3) * 16384}", tag=f"xr{4*c+sp}"))
        b0 = max(0, first[c] - OPT["BL"]); b1 = min(first[c + 1] - OPT["BL"], b0 + 6)
        it[b0].post.append(need(it[first[c]]))
        if c: b0 += OPT["dsh"]
        for j, f in enumerate(nx): it[b0 + (j if len(nx) <= b1 - b0 else j * (b1 - b0) // len(nx))].post.append(f)
    for s in range(32):
        c = s >> 2; sp = s & 3
        it.append(Item(vWlo if sp < 2 else vWhi, c * 8192 + (sp & 1) * 2048, 512, 64 + 4 * (s % 8), ACC1, XR + 4 * s, orient,
                       zero=(s == 0), D=OPT["D"]))
    for s in range(32):
        c = s >> 2; sp = s & 3
        it.append(Item(vWlo if sp < 2 else vWhi, c * 8192 + (sp & 1) * 2048, 512, cbufs[s % len(cbufs)], ACC2, XR + 4 * s,
                       zero=(s == 0), D=OPT["DP"]))
    it[PB].bar = dict(vm=[f"wb{c}" for c in range(4)], lead=OPT["BL2"], drain=True, after=wadd(LB - LC))
    it[PB + 16].bar = dict(vm=[f"wb{c}" for c in range(4, 8)] + [f"wc{c}" for c in range(8)], lead=OPT["BL2"], drain=True)
    it[PC].rpre += wadd(-LB)
    it[PB - OPT["BL2"]].post.append(need(it[PB]))
    for i, f in enumerate(after48): it[PB - OPT["BL2"] + i * OPT["a48"]].post.append(f)
    def tcw():
        g(f"v_add_u32 {vE0}, {sP[2]}, {vWDB}")
        g(f"buffer_load_dword {vE1}, {vE0}, {SW}, {sWC[0]} offen", tag="tw")
    if OPT["tc"]: it[OPT["tc"]].post.append(tcw)
    it[10].post.append(f"s_load_dword {sNON}, s[26:27], 0")
    it[40].post.append(nonce(lab))
    if OPT["tw"] and (lab == "Qn" or not OPT["twq"]): it[OPT["tw"]].post.append(touch)
    if OPT["tlb"]: it[OPT["tlp"]].post.append(tlbt(lab))
    if OPT["ft"]: it[OPT["ft"]].post.append(ftouch)
    if OPT["pt"]: it[OPT["pt"]].post.append(ptouch)
    if lab == "Wn":
        if OPT["at1"] and OPT["at1"] == OPT["at2"]: it[OPT["at1"]].post.append(atouch(sAp, 0, 0xffffffff, 0xffffff))
        else:
            if OPT["at1"]: it[OPT["at1"]].post.append(atouch(sAp, 0, 0xffff, 0xff0000))
            if OPT["at2"]: it[OPT["at2"]].post.append(atouch(sAp, 0, 0xffff0000, 0xffff))
    elif OPT["atq"]: it[OPT["atq"]].post.append(atouch(sAp, 7168, 0xffffff, 0))
    return it


def p2items(steps, bufs, nt3, tm=0):
    order = []
    for p in range(18): order += [(p, t) for t in range(4)]
    defer = [(p, 3) for p in range(18 - nt3, 18)]
    order = [o for o in order if o not in defer]
    if tm:
        assert tm <= nt3
        order = [o for o in order if o[0] < 18 - tm] + [(p, t) for t in range(3) for p in range(18 - tm, 18)]
    order += defer
    seen = set(); it = []
    for n, (p, t) in enumerate(order):
        breg, ar, off = steps[p]
        it.append(Item(ar[t & 1], off + (t >> 1) * 4096, 1024, bufs[n % len(bufs)], TACC + 16 * t, breg,
                       zero=(t not in seen), D=OPT["D2"]))
        seen.add(t)
    first = {p: min(i for i, (q, _) in enumerate(order) if q == p) for p in range(18)}
    return it, order, len(order) - nt3, first


aA, aB, aC = ("v6", "v7"), ("v8", "v9"), ("v10", "v11")
vXW, vXRd, vOA, vFA = "v12", "v24", "v25", "v27"


def p2addr():
    return [f"s_lshl_b32 {sT}, {sCLS}, 13",
            f"v_add_u32 v7, {sT}, {vT0}",
            "v_xor_b32 v6, 64, v7",
            f"v_add_u32 v8, {GB()}, v6",
            f"v_add_u32 v9, {GB()}, v7",
            f"s_lshl_b32 {sT}, {sCLS}, 11",
            f"s_add_u32 {sT}, {sT}, {XC()+16384}",
            f"v_add_u32 v11, {sT}, {vT0}",
            "v_xor_b32 v10, 64, v11"]


def p2misc():
    if OPT["asym"]: pass
    elif OPT["nx"]:
        g(f"s_lshl_b32 {sT}, {sW}, 11")
        g(f"s_add_u32 {sT}, {sT}, {XC()}")
        g(f"v_add_u32 {vXW}, {sT}, {vL16}")
        g(f"v_xor_b32 {vXRd}, 0x2000, {vXW}")
    else:
        g(f"s_lshl_b32 {sT}, {sW}, 13")
        g(f"v_add_u32 {vXW}, {sT}, {vL16}")
        g(f"v_xor_b32 {vXRd}, 0x8000, {vXW}")
    g(f"v_and_b32 {vOA}, 31, {vLANE}")
    g(f"v_lshlrev_b32 {vOA}, 10, {vOA}")
    g(f"v_lshrrev_b32 v3, 5, {vLANE}")
    g(f"v_lshl_add_u32 {vOA}, v3, 4, {vOA}")
    if OPT["asym"]:
        g(f"s_lshl_b32 {sT}, {sRW}, 12")
        g(f"s_add_u32 {sT2}, {sT}, {XC()}")
        g(f"v_add_u32 v3, {sT2}, {vL16}")
        g(f"s_lshl_b32 {sT}, {sRW}, 13")
        g(f"s_add_u32 {sT}, {sT}, {GB()}")
        g(f"v_add_u32 v19, {sT}, {vL16}")
        g(f"v_sub_u32 {vFA}, 19, {vLANE}")
        g(f"v_lshlrev_b32 {vFA}, 7, {vFA}")
        g(f"v_xor_b32 {vFA}, {sFP}, {vFA}")
        g(f"v_lshl_add_u32 {vFA}, {vLANE}, 2, {vFA}")
        return
    if OPT["nx"]:
        g(f"v_and_b32 v3, 4, {vLANE}")
        g(f"v_lshlrev_b32 v3, 9, v3")
        g(f"v_xor_b32 {vFA}, 3, {vLANE}")
        g(f"v_and_b32 {vFA}, 3, {vFA}")
        g(f"v_lshl_or_b32 {vFA}, {vFA}, 7, v3")
        g(f"v_xor_b32 {vFA}, {sFP}, {vFA}")
        g(f"v_lshl_add_u32 {vFA}, {vLANE}, 2, {vFA}")
        g(f"s_mul_i32 {sT}, {sCLS}, {8*12288}")
        g(f"s_add_u32 {sKV}, {sPART}, {OFFB + 4*12288:#x}")
        g(f"s_sub_u32 {sKV}, {sKV}, {sT}")
        return
    q2 = OPT["q2"] and ROLE[0] == "QQ"
    g(f"s_lshl_b32 {sT}, {sW}, 11")
    g(f"s_add_u32 {sT}, {sT}, {XC() + (16384 if q2 else 0)}")
    g(f"v_add_u32 v3, {sT}, {vL16}")
    g(f"v_xor_b32 v26, 0x2000, v3")
    g(f"v_sub_u32 {vFA}, 3, {vLANE}")
    g(f"v_lshlrev_b32 {vFA}, 7, {vFA}")
    g(f"v_xor_b32 {vFA}, {sFP}, {vFA}")
    g(f"v_lshl_add_u32 {vFA}, {vLANE}, 2, {vFA}")
    if q2:
        g(f"s_lshl_b32 {sT}, {sW}, 12")
        g(f"s_add_u32 {sT}, {sT}, {GB()}")
        g(f"v_add_u32 v19, {sT}, {vL16}")
        g(f"v_xor_b32 v21, 0x4000, v19")
        return
    g(f"v_add_u32 v19, {GB()}, {vXW}")
    g(f"v_add_u32 v21, {GB()}, {vXRd}")


def p2tail_asym(role, it, base, nx, XB, IDENT, vSC, order):
    N = len(it) - base
    cls = CLS[0]
    last = [max(i for i, o in enumerate(order) if o[1] == t) for t in range(3)]
    AR = (("v19", 0), ("v19", 32768), ("v3", 0))
    R = [XB[0], 32, XB[0]]
    X3, T3 = XB[0], TACC + 48
    H = 4 * 12288
    it[base + nx - 1].post.append(st("t012"))
    if OPT["tp"]: it[base + OPT["tp"]].post.append("s_setprio 1")
    if cls == 0:
        for t in range(3):
            a, o = AR[t]
            l = [(lambda i=i, t=t, a=a, o=o: g(f"ds_write_b128 {a}, {vr(TACC+16*t+4*i)} offset:{o+i*1024}", tag="xw")) for i in range(4)]
            w = 1 if t == 2 else max(1, min(2, last[t + 1] - last[t]))
            spread(it, base + last[t] + 1, base + last[t] + 1 + w, l)
        it[base + nx].post += [f"v_lshl_add_u32 {vPA}, {vLANE}, 2, {sFP}", f"s_mov_b32 {sDEC}, 0"] + (["s_setprio 0"] if OPT["tp"] else [])
        it[base + nx - 1 + OPT["k0"]].post += [lambda: g.wait(lg="xw"), "s_barrier", st("pst")]
        if OPT["apr"] not in (4, 5): it[base + N - 1 - OPT["prl"]].post.append(poll_issue)
        FR = [52, 56, 60, 32, 36, 40]
        GP = Grp(role + "pr", [(FR[2 * t + h], sPART, t * 4096 + h * H) for t in range(3) for h in range(2)],
                 each=lambda i, reg: mfma(TACC + 16 * (i & 1), vr(IDENT), vr(reg), vr(TACC + 16 * (i & 1), 16) if i > 1 else 0))
        def tail():
            L = GP.loads()
            def xb1():
                g("s_barrier")
                for i in range(4):
                    g(f"ds_read_b128 {vr(X3+4*i)}, v19 offset:{i*1024}", tag="xr3")
                stamp("xb1")
            def comb():
                g.wait(lg="xr3")
                for i in range(16): g(f"v_add_f32 v{X3+i}, v{T3+(i+8)%16}, v{X3+i}")
                for i in range(16): g(f"v_mul_f32 v{X3+i}, {vSC}, v{X3+i}")
            if OPT["apr"] == 0:
                xb1(); take(7)(); stamp("pflag"); emit(L); comb()
            elif OPT["apr"] == 1:
                take(1)(); emit(L[:2]); take(2, False)(); emit(L[2:4]); xb1(); take(4, False)(); stamp("pflag"); emit(L[4:]); comb()
            elif OPT["apr"] == 2:
                take(1)(); emit(L[:2]); take(2, False)(); emit(L[2:4]); take(4, False)(); emit(L[4:]); xb1(); stamp("pflag"); comb()
            elif OPT["apr"] == 3:
                take(1)(); emit(L[:2]); take(2, False)(); emit(L[2:4]); xb1(); comb(); take(4, False)(); stamp("pflag"); emit(L[4:])
            elif OPT["apr"] == 4:
                emit(L); xb1(); stamp("pflag"); comb()
            elif OPT["apr"] == 5:
                xb1(); emit(L); stamp("pflag"); comb()
            elif OPT["apr"] == 6:
                take(3)(); emit(L); xb1(); stamp("pflag"); comb()
            emit(GP.check())
            stamp("pok")
            for h in range(2):
                b = X3 + 8 * (1 - h)
                for i in range(8): g(f"v_fmac_f32 v{b+i}, {vSC}, v{TACC+16*h+i}")
                for i in range(4): g(f"v_cvt_pk_bf16_f32 v{b+i}, v{b+2*i}, v{b+2*i+1}")
                g(f"buffer_store_dwordx4 {vr(b)}, {vOA}, {SOUT}, {sOUT} offen offset:{32*h}")
            finish(role, None)
    else:
        def rd(t):
            a, o = AR[t]
            def f():
                for i in range(4): g(f"ds_read_b128 {vr(R[t]+4*i)}, {a} offset:{o+i*1024}", tag=f"xr{t}")
            return f
        it[base + last[0] - OPT["b1l"]].post += ["s_barrier", rd(0), rd(1)]
        prev = -1
        for t in range(3):
            T = TACC + 16 * t
            l = [f"s_xor_b32 {sST}, {sPART}, {(3-t) << 10:#x}"]
            if t: l.append(f"s_add_u32 {sST}, {sST}, {t*4096}")
            l.append(lambda t=t: g.wait(lg=f"xr{t}"))
            for h in range(2):
                b = T + 8 * h
                l += [f"v_add_f32 v{b+i}, v{b+i}, v{R[t]+(8*h+8+i)%16}" for i in range(8)]
                if t == 0 and h == 1: l.append(rd(2))
                l += [f"v_cvt_pk_bf16_f32 v{b+i}, v{b+2*i}, v{b+2*i+1}" for i in range(4)]
                l += tstore(b, sST, 0, tag="pst")
                if h == 0: l.append(f"s_sub_u32 {sST}, {sST}, {H}")
            def flag(t=t):
                g(f"s_mov_b64 exec, {1 << t}")
                g(f"buffer_store_dword {vNON}, {vFA}, {SWS}, 0 offen sc1", tag="pub")
                g("s_mov_b64 exec, -1")
            if OPT["apr"] not in (4, 5): l.append(flag)
            pos = max(last[t] + OPT["nxd"], prev + 1)
            w = 1 if t == 2 else max(1, min(4, last[t + 1] + OPT["nxd"] - pos))
            spread(it, base + pos, base + pos + w, l)
            prev = pos + w - 1
        it[base + prev].post.append(st("pst"))
        def tail():
            for i in range(4):
                g(f"ds_write_b128 v19, {vr(T3+4*i)} offset:{i*1024}", tag="xw")
            g.wait(lg="xw")
            g("s_barrier")
            stamp("xb1"); stamp("pflag"); stamp("pok")
            finish(role, None)
    tail.split = base + last[0] - OPT["b1l"]
    return tail


def p2tail_nx(role, it, base, nx, XB, IDENT, vSC, order):
    N = len(it) - base
    S = TACC
    FR = [52, 56, 60, XB[0], XB[0] + 4, XB[1]]
    GP = Grp(role + "pr", [(FR[2 * t + h], (sPART, sKV)[h], t * 4096) for t in range(3) for h in range(2)],
             each=lambda i, reg: mfma(S, vr(IDENT), vr(reg), vr(S, 16) if i else 0))
    def send(t):
        T = TACC + 16 * t
        l = [f"s_xor_b32 {sST}, {sPART}, {(3-t) << 10:#x}"]
        if t: l.append(f"s_add_u32 {sST}, {sST}, {t*4096}")
        for h in range(2):
            b = T + 8 * h
            l += [f"v_cvt_pk_bf16_f32 v{b+i}, v{b+2*i}, v{b+2*i+1}" for i in range(4)]
            l += tstore(b, sST, 0, tag="pst")
            if h == 0: l.append(f"s_add_u32 {sST}, {sST}, {OFFB:#x}")
        def flag():
            g(f"s_mov_b64 exec, {0x11 << t:#x}")
            g(f"buffer_store_dword {vNON}, {vFA}, {SWS}, 0 offen sc1", tag="pub")
            g("s_mov_b64 exec, -1")
        return l + [flag]
    it[base + nx - 1].post.append(st("t012"))
    prev = -1
    for t in range(3):
        last = max(i for i, o in enumerate(order) if o[1] == t)
        pos = max(last + OPT["nxd"], prev + 1)
        w = 1 if t == 2 else max(1, min(3, max(i for i, o in enumerate(order) if o[1] == t + 1) + OPT["nxd"] - pos))
        spread(it, base + pos, base + pos + w, send(t))
        prev = pos + w - 1
    it[base + prev].post += [f"v_lshl_add_u32 {vPA}, {vLANE}, 2, {sFP}", f"s_mov_b32 {sDEC}, 0", st("pst")]
    if OPT["tp"]:
        it[base + OPT["tp"]].post.append("s_setprio 1")
        it[base + prev].post.append("s_setprio 0")
    assert prev < N - 1 - OPT["prl"]
    it[base + N - 1 - OPT["prl"]].post.append(poll_issue)
    def tail():
        T3 = TACC + 48
        for i in range(2):
            g(f"ds_write_b128 {vXW}, {vr(T3+8+4*i)} offset:{i*1024}", tag="xw")
        g.wait(lg="xw")
        g("s_barrier")
        for i in range(2):
            g(f"ds_read_b128 {vr(XB[3]+4*i)}, {vXRd} offset:{i*1024}", tag="xr3")
        stamp("xb1")
        take(0x77)()
        stamp("pflag")
        emit(GP.loads())
        g.wait(lg="xr3")
        for i in range(8): g(f"v_add_f32 v{XB[3]+i}, v{T3+i}, v{XB[3]+i}")
        for i in range(8): g(f"v_mul_f32 v{XB[3]+i}, {vSC}, v{XB[3]+i}")
        emit(GP.check())
        stamp("pok")
        for i in range(8): g(f"v_fmac_f32 v{XB[3]+i}, {vSC}, v{S+i}")
        finish(role, XB)
    return tail


def p2tail(role, it, base, nx, XB, IDENT, vSC, order):
    if OPT["asym"]: return p2tail_asym(role, it, base, nx, XB, IDENT, vSC, order)
    if OPT["nx"]: return p2tail_nx(role, it, base, nx, XB, IDENT, vSC, order)
    PR = 52
    N = len(it) - base
    def xsend012():
        for t, (a, o) in enumerate((("v19", 0), ("v19", 2048), ("v3", 0))):
            for i in range(2):
                g(f"ds_write_b128 {a}, {vr(TACC+16*t+8+4*i)} offset:{o+i*1024}", tag="xw")
    def xrecv012():
        g.wait(lg="xw")
        g("s_barrier")
        for t, (a, o) in enumerate((("v21", 0), ("v21", 2048), ("v26", 0))):
            for i in range(2):
                g(f"ds_read_b128 {vr(XB[t]+4*i)}, {a} offset:{o+i*1024}", tag=f"xr{t}")
    def xfin(t):
        def f():
            g(f"s_xor_b32 {sT}, {sPART}, {(3-t) << 10:#x}")
            if t: g(f"s_add_u32 {sT}, {sT}, {t*4096}")
            g.wait(lg=f"xr{t}")
            for i in range(8): g(f"v_add_f32 v{XB[t]+i}, v{XB[t]+i}, v{TACC+16*t+i}")
            for i in range(4): g(f"v_cvt_pk_bf16_f32 v{XB[t]+i}, v{XB[t]+2*i}, v{XB[t]+2*i+1}")
            emit(tstore(XB[t], sT, 0, tag="pst"))
        return f
    GP = Grp(role + "pr", [(PR + 4 * t, sPART, t * 4096) for t in range(3)])
    it[base + nx - 1].post.append(st("t012"))
    def pflag():
        g("s_mov_b64 exec, 7")
        g(f"buffer_store_dword {vNON}, {vFA}, {SWS}, 0 offen sc1", tag="pub")
        g("s_mov_b64 exec, -1")
        g(f"v_lshl_add_u32 {vPA}, {vLANE}, 2, {sFP}")
        g(f"s_mov_b32 {sDEC}, 0")
    xs = [xsend012, xrecv012, xfin(0), xfin(1), lambda: (xfin(2)(), stamp("pst"))]
    k = {0: 4, 1: 0, 2: 1, 3: 2}[OPT["efp"]]
    if not OPT["pd"]: xs[k] = (lambda f: lambda: (f(), pflag()))(xs[k])
    pt = OPT["wpt" if role == "W" else "qpt"]
    if pt: it[base + pt].post.append(ptouch)
    p1 = OPT["wp1" if role == "W" else "qp1"]
    if p1:
        it[base + p1].post.append(prio1(1))
        it[base + nx + 1].post.append("s_setprio 0")
    def early():
        g.wait(vm="poll")
        g(f"v_cmp_eq_u32 vcc, {sNON}, {vPR}")
        g(f"s_and_b32 {sFA}, vcc_lo, 7")
        g(f"s_cmp_lg_u32 {sFA}, 7")
        g(f"s_cbranch_scc1 PE_{role}")
        with g.optional(): emit(GP.loads(False))
        g.label(f"PE_{role}")
    if OPT["pe"]:
        it[base + nx - OPT["pe"]].post += [f"v_lshl_add_u32 {vPA}, {vLANE}, 2, {sFP}", poll_issue]
        xs[1] = (lambda f: lambda: (f(), early()))(xs[1])
    for i, f in enumerate(xs): it[base + min(nx + i, N - 1)].post.append(f)
    if OPT["pd"]:
        for f in GP.loads(): it[base + N - 1 - OPT["prl"]].post.append(f)
    elif not OPT["pe"]: it[base + max(min(nx + 5, N - 1), N - 1 - OPT["prl"])].post.append(poll_issue)
    def tail():
        T3 = TACC + 48
        for i in range(2):
            g(f"ds_write_b128 {vXW}, {vr(T3+8+4*i)} offset:{i*1024}", tag="xw")
        g.wait(lg="xw")
        g("s_barrier")
        for i in range(2):
            g(f"ds_read_b128 {vr(XB[3]+4*i)}, {vXRd} offset:{i*1024}", tag="xr3")
        stamp("xb1")
        if OPT["pe"]:
            g(f"s_cmp_eq_u32 {sFA}, 7")
            g("s_waitcnt vmcnt(4)")
            g(f"s_cbranch_scc1 PF_{role}")
            with g.optional():
                g(f"s_mov_b32 {sMASK}, 7")
                g(f"s_call_b64 {sRET}, SPIN")
                g.block("SPIN", SPIN, align=3)
                emit(GP.loads(False))
                g("s_waitcnt vmcnt(0)")
            g.label(f"PF_{role}")
            stamp("pflag")
        elif not OPT["pd"]:
            take(7)()
            stamp("pflag")
            emit(GP.loads())
        g.wait(lg="xr3")
        for i in range(8): g(f"v_mul_f32 v{XB[3]+i}, {vSC}, v{XB[3]+i}")
        emit(GP.check())
        stamp("pok")
        for t in range(3):
            mfma(T3, vr(IDENT), vr(PR + 4 * t), vr(T3, 16))
        for i in range(8): g(f"v_fmac_f32 v{XB[3]+i}, {vSC}, v{T3+i}")
        finish(role, XB)
    return tail


def finish(role, XB):
    if True:
        if XB is not None:
            for i in range(4): g(f"v_cvt_pk_bf16_f32 v{XB[3]+i}, v{XB[3]+2*i}, v{XB[3]+2*i+1}")
            g(f"buffer_store_dwordx4 {vr(XB[3])}, {vOA}, {SOUT}, {sOUT} offen{' sc1' if OPT['osc'] else ''}")
        if STAMP:
            stamp("end")
            g(f"{'s_memtime' if OPT['rts'] else 's_memrealtime'} s[6:7]")
            g("s_waitcnt lgkmcnt(0)")
            g(f"v_writelane_b32 {vSTAMP}, s6, 60")
            g(f"v_writelane_b32 {vSTAMP}, s98, {len(SN[ROLE[0]])-1}")
            g(f"v_writelane_b32 {vSTAMP}, {sCNT}, 63")
            g(f"v_writelane_b32 {vSTAMP}, s3, 61")
            g("s_lshl_b32 s3, s2, 3")
            g(f"s_add_u32 s3, s3, {sW}")
            g("s_lshl_b32 s3, s3, 8")
            g(f"s_add_u32 s3, s3, {STP:#x}")
            g(f"v_lshlrev_b32 v9, 2, {vLANE}")
            g(f"buffer_store_dword {vSTAMP}, v9, {SWS}, s3 offen")
            if OPT["hd"]:
                nm = SN[ROLE[0]]
                sel = ["i31", "i95", "P2bar", "gook", "t012", "end"] if role == "W" else ["i31", "i95", "kvok", "ost", "t012", "end"]
                b0 = 1 if role == "W" else 7
                g(f"s_cmp_lg_u32 {sRW}, 0")
                g(f"s_cbranch_scc1 HD_{role}")
                g("s_memrealtime s[6:7]")
                g("v_mov_b32 v8, 0")
                g(f"v_readlane_b32 s4, {vSTAMP}, 0")
                for k, n_ in enumerate(sel):
                    g(f"v_readlane_b32 s5, {vSTAMP}, {nm.index(n_)}")
                    g("s_nop 1")
                    g("s_sub_u32 s5, s5, s4")
                    g(f"v_writelane_b32 v8, s5, {b0 + k}")
                g(f"v_readlane_b32 s5, {vSTAMP}, 62")
                g("s_nop 1")
                g("v_writelane_b32 v8, s5, 14")
                g("s_not_b32 s5, s5")
                g("v_writelane_b32 v8, s5, 15")
                g("s_waitcnt lgkmcnt(0)")
                g("v_writelane_b32 v8, s6, 13")
                g("s_mov_b64 exec, 0xffff")
                g(f"buffer_atomic_umax v8, v9, {SDBG}, 0 offen sc1")
                g.label(f"HD_{role}")
        if OPT["cal"] and role == "Q":
            g("s_cmp_lg_u32 s2, 0")
            g("s_cbranch_scc1 CAL_e")
            g.label("CAL_l")
            g(("s_memrealtime" if OPT["cal"] == 1 else "s_memtime") + " s[98:99]")
            g("s_waitcnt lgkmcnt(0)")
            g("s_sub_u32 s3, s98, s6")
            g(f"s_cmp_lt_u32 s3, {OPT['calx']}")
            g("s_cbranch_scc1 CAL_l")
            g.label("CAL_e")
        if role == "W" and CLS[0] == 0: g.label("END")
        g("s_endpgm")


def unit(regs, ar, off):
    return [(r, ar, off + s * 2048) for s, r in enumerate(regs)]


def WW():
    g(f"""
    v_mov_b32 v24, 0x3f80
    v_mov_b32 v25, 0
    v_mov_b32 v26, 1.0
    v_mov_b32 v27, 0
    v_mov_b32 v28, 0
    v_mov_b32 v29, 0
    v_mov_b32 v30, 0
    v_mov_b32 v31, 0
    v_mov_b32 {vBIAS2}, 0
    v_mov_b32 v62, 0
    v_mov_b32 v63, 0
    s_lshl_b32 {sT}, {sCLS}, 6
    v_lshl_add_u32 v60, {vLANE}, 1, {sT}
    s_lshl_b32 {sT}, {sCLS}, 5
    v_lshl_add_u32 v61, {vLANE}, 1, {sT}
    """)
    def biasld():
        g("s_mov_b32 exec_hi, 0")
        g(f"buffer_load_ushort v28, v60, {SB}, {sP[0]} offen", tag="bias")
        g(f"buffer_load_ushort v62, v60, {SB}, {sP[1]} offen", tag="bias")
        g(f"buffer_load_ushort {vBIAS2}, v60, {SB}, {sP[2]} offen", tag="bias")
        g("s_mov_b32 exec_lo, 0xffff")
        g(f"buffer_load_ushort v63, v61, {SB}, {sP[3]} offen", tag="bias")
        g("s_mov_b64 exec, -1")
    du(0, "ck2")()
    biasld()
    def uitem(c, j, buf):
        return Item(vU, c * 4096 + j * 2048, 512, buf, ACC3, XR + 16 * c + 4 * j, zero=(c == 0 and j == 0), D=OPT["D"])
    wb = WBs(); wc = WCs()
    it = phase1("T", [64, 68, 72, 76, 100, 108], "Wn", uitem,
                {1: [du(1, "ck4")], 3: [du(2, "ck6")], 4: [du(3, "ck7")]},
                wb[1:3] + wc[:1] + wb[3:4] + wc[1:6], wb[4:] + wc[6:])
    def bias1():
        g.wait(vm="bias")
        g("v_lshl_or_b32 v28, v62, 16, v28")
        g(f"v_lshl_or_b32 {vBIAS2}, v63, 16, {vBIAS2}")
    it[7].post.append(bias1)
    it[19].post.append(lambda: mfma(ACC0, "v[28:31]", "v[24:27]", vr(ACC0, 16)))
    it[21].post.append(lambda: mfma(ACC1, "v[28:31]", "v[26:29]", 0))
    it[PB].zero = False
    it[23].post.append(f"v_mov_b32 v28, {vBIAS2}")
    it[27].post.append(lambda: mfma(ACC3, "v[28:31]", "v[26:29]", vr(ACC3, 16)))
    it[PC].post.append(lambda: mfma(ACC2, "v[28:31]", "v[24:27]", vr(ACC2, 16)))
    it[30].post.append(f"s_add_u32 {sST}, {sAp}, 0x1000")
    Ga = Grp("Wga", [(128, sAo, 0), (132, sAo, 1024)])
    Gb = Grp("Wgq", [(140, sAo, 2048), (144, sAo, 3072), (136, sAo, 6144)])
    Gc = Grp("Wgc", [(148, sAo, 4096), (152, sAo, 5120)])
    Go = Grp("Wgo", [(156, sAp, 7168), (160, sAp, 8192), (172, sAp, 9216), (164, sAo, 7168), (168, sAo, 8192)])
    def xw():
        g(f"s_and_b32 {sT}, {sRm}, 0x1fff")
        g(f"s_add_u32 {sT}, {sT}, {LC}")
        g(f"v_add_u32 {vUD}, {sT}, {vL16}")
        g(f"v_xor_b32 {vU}, 0x1000, {vUD}")
        for i in range(2): g(f"ds_write_b128 {vU}, {vr(ACC3+8+4*i)} offset:{i*8192}", tag="xw")
    def xrd():
        for i in range(2): g(f"ds_read_b128 {vr(ACC3+8+4*i)}, {vUD} offset:{i*8192}", tag="xu")
    it[OPT['xwp']].post.append(xw)
    it[PB + 16].bar.update(lg=["xw"], after=[xrd])
    G1 = D2A("G1")
    G1[0] = (lambda f: lambda: (g.wait(lg="xu"), f()))(G1[0])
    place(it, OPT["g0"], OPT["g1"], D2A("G0") + G1, it[PB + 16])
    assert OPT["ea1"] <= PC - 2 and OPT["eu0"] >= PB + 16 - OPT["BL2"] and OPT["eu0"] >= OPT["ea1"] and OPT["eb0"] >= OPT["eu1"]
    spread(it, OPT["ea0"], OPT["ea1"], EH(ACC0, sAp, 0) + EH(ACC0 + 8, sAp, 1024, ACC0) + [publish(0)])
    eu = [lambda: g.wait(lg="xu")] + [f"v_add_f32 v{ACC3+i}, v{ACC3+i}, v{ACC3+8+i}" for i in range(8)] + \
        EH(ACC3, sST, 2048, ACC0 + 8) + ([publish(1)] if OPT["q2"] else []) + [st("ust")]
    it[OPT["eu0"]].post.append(need(it[PB + 16]))
    spread(it, OPT["eu0"], OPT["eu1"], eu)
    spread(it, OPT["eb0"], OPT["eb1"], EH(ACC1, sAp, 2048, ACC3) + EH(ACC1 + 8, sAp, 3072, ACC1) + [publish(2), st("bst")])
    o0, o1 = MAP["WW"][1:3]
    steps = unit((ACC0, ACC0 + 8), aB, o0) + unit((ACC1, ACC1 + 8), aB, o1) + \
        unit((128, 132), aB, o0 + 16384) + unit((140, 144), aB, o1 + 16384) + \
        unit((ACC3,), aC, 0) + unit((136,), aC, 8192) + \
        unit((ACC2, ACC2 + 8), aA, 0)
    sc_ = unit((148, 152), aA, 16384); so_ = unit((156, 160), aA, 32768) + unit((164, 168), aA, 32768 + 16384)
    steps += so_ + sc_ if OPT["wo2"] else sc_ + so_
    fc, fo = (16, 12) if OPT["wo2"] else (12, 14)
    p2, order, nx, first = p2items(steps, [116, 124, 72, 76, 108, 64, 68], OPT["wt3"], OPT["wtm"])
    B = len(it); it += p2
    assert B == P2
    it[B - 2].post += untag(ACC1 + 8)
    assert OPT["eb1"] <= B - OPT["D2"] - 1
    if OPT["wb3"]:
        M, N = OPT["wM"], B + OPT["wN"]
        assert M >= PC + 16 and OPT["g1"] <= M - 6 and B + 3 <= N <= B + first[8]
        it[M].bar = dict(vm=["wG0", "wG1"], lead=3, drain=True, after=[st("Mbar")])
        place(it, M - 3, B - 2, D2A("U") + D2A("P2"), it[M])
        it[B].rpre += p2addr()
        it[N].bar = dict(vm=["wU", "wP2"], lead=3, after=[st("Nbar")])
        place(it, N - 3, N + 5, D2A("O"), it[N])
        it[B + first[14]].bar = dict(vm=["wO"], lead=OPT["D2"])
    else:
        it[B].bar = dict(vm=["wG0", "wG1"], lead=OPT["D2"], drain=True, after=p2addr() + [st("P2bar")])
        place(it, B + OPT["wpd0"], B + OPT["wpd"], D2A("U") + D2A("P2") + D2A("O"), it[B])
    spread(it, B + OPT["ec0"], B + OPT["ec1"], EH(ACC2, sST, 0) + EH(ACC2 + 8, sST, 1024, ACC2) + [publish(3), st("cst")])
    assert OPT["ec1"] <= first[10] - 3
    it[B + first[10] - 2].post += untag(ACC2 + 8)
    assert OPT["wga"] >= PC + 3
    fetch(it, OPT["wga"], Ga.loads(), 0x1000, B - 6, pl=OPT["lpl"], pre=setFA(), post=[st("gafl")])
    spread(it, B - 7, B - 5, Ga.check() + [st("gaok")])
    fetch(it, B + OPT["wgb"], Gb.loads(), 0x4000, B + first[6] - 4, pl=OPT["lpl"], pre=setFA() if OPT["ssp"] == 3 else [], post=[st("gbfl")])
    spread(it, B + first[6] - 2, B + first[6], Gb.check() + [st("gbok")])
    it[B + first[10] + 1].post += [p2misc, ident(100)]
    if OPT["wb3"]: pass
    elif OPT["wob"]:
        it[B + first[8]].bar = dict(vm=["wU", "wP2"], lead=OPT["D2"])
        it[B + first[14]].bar = dict(vm=["wO"], lead=OPT["D2"])
    else:
        it[B + first[8]].bar = dict(vm=["wU", "wP2", "wO"], lead=OPT["D2"])
    f1 = lambda: fetch(it, B + OPT["wgc"], Gc.loads(), 0x8000, B + first[fc] - 4, pl=OPT["lpl"], post=[st("gcfl")])
    f2 = lambda: fetch(it, B + OPT["wgo"], Go.loads(), 0x0011, B + first[fo] - 4, pl=OPT["lpl"], post=[st("gofl")])
    for f in ((f1, f2) if OPT["wgc"] < OPT["wgo"] else (f2, f1)): f()
    spread(it, B + first[fc] - 2, B + first[fc], Gc.check() + [st("gcok")])
    spread(it, B + first[fo] - 3, B + first[fo], Go.check() + [st("gook")])
    assert OPT["wgc"] < first[fc] - 3 and OPT["wgo"] < first[fo] - 3 and OPT["wgb"] < first[6] - 3 and OPT["wga"] + 1 < B - 7
    tail = p2tail("W", it, B, nx, [176, 184, 32, 40], 100, "v174", order)
    run(it, tail)


def QQ():
    emit([f"s_lshl_b32 {sT}, {sROT}, 7", f"v_xor_b32 {vUD}, {sT}, {vL16}", f"s_add_u32 m0, {sW1K}, {LB+7*8192:#x}",
          f"s_lshl_b32 {sT}, {sCLS}, 6", f"s_add_u32 {sT}, {sT}, m0"])
    g(f"buffer_load_dwordx4 {vUD}, {SB}, 0 offen lds", tag="gate")
    emit([f"v_lshrrev_b32 {vU}, 5, {vLANE}", f"v_lshl_add_u32 {vU}, {vU}, 4, {sT}"])
    def gitem(c, j, buf):
        x = Item(vU, c * 128 + j * 32, None, buf, ACC3, XR + 16 * c + 4 * j, zero=(c == 0 and j == 0), D=OPT["D"])
        if c == 0 and j == 0: x.rvm = ["gate"]
        return x
    wb = WBs(); wc = WCs()
    it = phase1("N", [64, 68, 72, 76], "Qn", gitem, {}, wb[1:3] + wc[:1] + wb[3:7] + wc[1:3], wb[7:] + wc[3:])
    vLG, vLG2 = "v19", "v21"
    it[PB + 1].post.append(f"v_mov_b32 {vLG}, v{ACC3}")
    it[2].post += [f"s_lshl_b32 {sT}, {sW}, 11", f"s_add_u32 {sT}, {sT}, {LC}", f"v_add_u32 v24, {sT}, {vL16}",
                   f"s_and_b32 {sT}, {sRW}, 1", f"s_lshl_b32 {sT}, {sT}, 13", f"s_add_u32 {sT}, {sT}, {LC}",
                   f"v_add_u32 v25, {sT}, {vL16}"]
    it[4].post += [f"v_mov_b32 v{28+i}, 0x3f803f80" for i in range(4)] + \
                  [f"s_cmp_lt_u32 {sRW}, 2", "s_mov_b32 s5, 0xffff", "s_cselect_b32 s4, s5, 0xffff0000", "s_mov_b32 s5, s4",
                   f"v_add_u32 v26, 1024, {vL16}", f"v_cndmask_b32_e64 v26, v26, {vL16}, {sMK}"]
    def fw(reg, off):
        return lambda: g(f"ds_write_b128 v24, {vr(reg)} offset:{off}", tag="fw")
    vp = []
    for q in range(2):
        vp += [f"v_cvt_pk_bf16_f32 v{ACC1+8*q+i}, v{ACC1+8*q+2*i}, v{ACC1+8*q+2*i+1}" for i in range(4)] + [fw(ACC1 + 8 * q, 16384 + q * 1024)]
    spread(it, OPT["ea0"], OPT["pk1"], PH(ACC0) + [fw(ACC0, 0)] + PH(ACC0 + 8) + [fw(ACC0 + 8, 1024)])
    it[PC].post += vp
    def kflag():
        g(f"s_and_b32 {sT2}, {sRW}, 1")
        g(f"s_lshl_b32 {sT2}, {sT2}, 8")
        g(f"s_and_b32 {sT}, {sRB}, 8")
        g(f"s_lshl_b32 {sT}, {sT}, 4")
        g(f"s_add_u32 {sT2}, {sT2}, {sT}")
        g(f"s_lshl_b32 {sT}, {sR8}, 3")
        g(f"s_add_u32 {sT2}, {sT2}, {sT}")
        g(f"s_and_b32 {sT}, {sRW}, 2")
        g(f"s_lshl_b32 {sT}, {sT}, 1")
        g(f"s_add_u32 {sT2}, {sT2}, {sT}")
        g(f"s_add_u32 {sT2}, {sT2}, {sFK}")
        g("s_mov_b64 exec, 1")
        g(f"buffer_store_dword {vNON}, off, {SWS}, {sT2} sc1")
        g(f"buffer_store_dword {vNON}, off, {SWS}, {sT2} offset:512")
        g("s_mov_b64 exec, -1")
    def jst(n):
        if OPT["js"]: g("s_waitcnt lgkmcnt(0)"); stamp(n)
    def job():
        g.wait(lg="fw")
        jst("j0")
        g("s_barrier")
        jst("j1")
        g(f"s_cmp_lg_u32 {sCLS}, 0")
        g("s_cbranch_scc1 Q_nojob")
        with g.optional():
            g("s_setprio 3")
            g(f"s_cmp_lt_u32 {sRW}, 2")
            g("s_cbranch_scc1 Q_jobc")
            with g.optional():
                for k in range(8): g(f"ds_read_b128 {vr(96+4*k)}, v25 offset:{k*1024}", tag=f"a{k}")
                if OPT["efk"]: kflag()
                for k in range(8):
                    g.wait(lg=f"a{k}")
                    mfma(ACC3, vr(96 + 4 * k), "v[28:31]", vr(ACC3, 16) if k else 0)
                g("s_branch Q_jobf")
            g.label("Q_jobc")
            for k in range(8):
                g(f"ds_read_b128 {vr(96+4*k)}, v25 offset:{k*1024}", tag=f"a{k}")
                if k < 4: g(f"ds_read_b128 {vr(TMP+4*k)}, v25 offset:{16384+k*1024}", tag=f"a{k}")
            if OPT["efk"]: kflag()
            for k in range(8):
                g.wait(lg=[f"a{k}", f"b{k}"])
                mfma(ACC3, vr(96 + 4 * k), vr(TMP + 4 * k) if k < 4 else vr(96 + 4 * (k - 4)), vr(ACC3, 16) if k else 0)
                if k < 4: g(f"ds_read_b128 {vr(96+4*k)}, v25 offset:{16384+(k+4)*1024}", tag=f"b{k+4}")
            g.label("Q_jobf")
            g(f"s_lshl_b32 {sT}, {sRB}, 12")
            g(f"s_and_b32 {sT2}, {sRW}, 1")
            g(f"s_lshl_b32 {sT2}, {sT2}, 11")
            g(f"s_add_u32 {sT}, {sT}, {sT2}")
            g(f"s_add_u32 {sT}, {sT}, {sKV}")
            for i in range(4): g(f"v_cvt_pk_bf16_f32 v{TMP+i}, v{ACC3+8+2*i}, v{ACC3+8+2*i+1}")
            g(f"s_mov_b64 exec, {sMK}")
            for i in range(4): g(f"v_cvt_pk_bf16_f32 v{TMP+i}, v{ACC3+2*i}, v{ACC3+2*i+1}")
            g("s_mov_b64 exec, -1")
            emit(tstore(TMP, sT, 0)[:2])
            g(f"buffer_store_dwordx4 {vr(TMP)}, v26, {SWS}, {sT} offen sc1")
            if not OPT["efk"]: kflag()
            g("s_setprio 0")
        g.label("Q_nojob")
        g(f"s_lshr_b32 {sT}, {sRW}, 1")
        g(f"s_lshl_b32 {sT}, {sT}, 15")
        g(f"s_add_u32 {sKV}, {sKV}, {sT}")
        g(f"s_and_b32 {sT}, {sRW}, 1")
        g(f"s_lshl_b32 {sT2}, {sCLS}, 1")
        g(f"s_add_u32 {sT}, {sT}, {sT2}")
        g(f"s_lshl_b32 {sT}, {sT}, 10")
        g(f"s_add_u32 {sKV}, {sKV}, {sT}")
        g(f"s_add_u32 {sST}, {sAp}, 7168")
    it[OPT["jb"]].post += [job, st("job")]
    place(it, OPT["qg0"], OPT["qg0"] + OPT["qgw"], D2A("G0"), it[PB + 16])
    qg1 = OPT["qg1"] or OPT["jb"] + 1
    assert qg1 > OPT["jb"]
    place(it, qg1, qg1 + OPT["qgw"], D2A("G1"))
    if not OPT["kq"]:
        it[OPT["qlb"]].bar = dict(lead=2)
        assert OPT["qlb"] - 2 > OPT["jb"]
        place(it, OPT["qlb"] - 2, OPT["qlb"], D2A("U"), it[OPT["qlb"]])
    KR = [128 + 4 * r for r in range(8)]
    Gk = Grp("Qkv", [(KR[r], sKV, r * 4096) for r in range(8)],
             each=(lambda r, reg: mfma(ACC3, vr(28), vr(reg), vr(ACC3, 16) if r else 0)) if OPT["kpi"] else None)
    Gp = Grp("Qgp", [(96, sAp, 0), (100, sAp, 1024), (104, sAo, 0), (108, sAo, 1024)])
    Gq = Grp("Qgq", [(112, sAp, 6144), (116, sAo, 6144), (160, sAp, 2048), (164, sAp, 3072), (168, sAo, 2048), (172, sAo, 3072)])
    Gc = Grp("Qgc", [(144, sAp, 4096), (148, sAp, 5120), (152, sAo, 4096), (156, sAo, 5120)])
    Go = Grp("Qgo", [(176, sAo, 7168), (180, sAo, 8192)])
    IDENT = 28
    OO, SCQ = 120, 188
    def ksum():
        stamp("kvok")
        if OPT["kpr"]: g(f"s_setprio {OPT['kpr']}")
        if OPT["efo"] == 2: publish(0)()
        if not OPT["kpi"]:
            for r in range(8): mfma(ACC3, vr(IDENT), vr(KR[r]), vr(ACC3, 16) if r else 0)
        for i in range(4): g(f"v_cvt_pk_bf16_f32 v{TMP+i}, v{ACC3+2*i}, v{ACC3+2*i+1}")
        g(f"ds_write_b128 v24, {vr(TMP)}", tag="kw")
        if OPT["kpr"]: g("s_setprio 0")
    def kx():
        g(f"ds_read_b32 {vLG2}, v27 offset:8192", tag="kl")
        for r in range(4): g(f"ds_read_b128 {vr(KR[r])}, v25 offset:{r*1024}", tag=f"kr{r}")
        if OPT["efo"] == 1: publish(0)()
    def ko():
        if OPT["kpr"]: g(f"s_setprio {OPT['kpr']}")
        g.wait(lg="kl")
        g(f"v_add_f32 {vLG}, {vLG}, {vLG2}")
        g(f"v_mul_f32 {vLG}, {sLOG2E}, {vLG}")
        g(f"v_min_f32 {vLG}, 0x42640000, {vLG}")
        g(f"v_exp_f32 {vLG}, {vLG}")
        for r in range(4):
            g.wait(lg=f"kr{r}")
            acc = (TMP, ACC3)[r & 1]
            mfma(acc, vr(KR[r]), vr(ACC2 + 8 * (r & 1)), vr(acc, 16) if r >= 2 else 0)
        g(f"v_add_f32 v{SCQ+2}, 1.0, {vLG}")
        g(f"v_rcp_f32 v{SCQ+2}, v{SCQ+2}")
        g(f"v_mov_b32 v{SCQ}, {TG0}")
        g(f"v_mov_b32 v{SCQ+1}, {TG1}")
        g(f"buffer_store_dwordx4 {vr(SCQ)}, {vL16}, {SWS}, {sST} offen offset:2048{LSC}", tag="st")
        for hd, (num, den) in enumerate(((TMP, TMP + 8), (ACC3 + 8, ACC3))):
            g(f"v_add_f32 v{den}, {sEPS}, v{den}")
            g(f"v_rcp_f32 v{den}, v{den}")
            g(f"v_mul_f32 v{den}, {vLG}, v{den}")
            for i in range(8): g(f"v_mul_f32 v{num+i}, v{den}, v{num+i}")
            for i in range(4): g(f"v_cvt_pk_bf16_f32 v{OO+4*hd+i}, v{num+2*i}, v{num+2*i+1}")
            emit(tstore(OO + 4 * hd, sST, hd * 1024))
        if OPT["efo"] == 0: publish(0)()
        if OPT["kpr"]: g("s_setprio 0")
        emit(untag(OO) + untag(OO + 4))
        stamp("ost")
    def kol():
        l = [lambda: g.wait(lg="kl"), f"v_add_f32 {vLG}, {vLG}, {vLG2}", f"v_mul_f32 {vLG}, {sLOG2E}, {vLG}",
             f"v_min_f32 {vLG}, 0x42640000, {vLG}", f"v_exp_f32 {vLG}, {vLG}"]
        def mm(r):
            g.wait(lg=f"kr{r}")
            acc = (TMP, ACC3)[r & 1]
            mfma(acc, vr(KR[r]), vr(ACC2 + 8 * (r & 1)), vr(acc, 16) if r >= 2 else 0)
        l += [(lambda r=r: mm(r)) for r in (0, 2, 1, 3)]
        l2 = [f"v_add_f32 v{SCQ+2}, 1.0, {vLG}", f"v_rcp_f32 v{SCQ+2}, v{SCQ+2}", f"v_mov_b32 v{SCQ}, {TG0}", f"v_mov_b32 v{SCQ+1}, {TG1}"]
        stq = [lambda: g(f"buffer_store_dwordx4 {vr(SCQ)}, {vL16}, {SWS}, {sST} offen offset:2048{LSC}", tag="st")]
        for hd, (num, den) in enumerate(((TMP, TMP + 8), (ACC3 + 8, ACC3))):
            l2 += [f"v_add_f32 v{den}, {sEPS}, v{den}", f"v_rcp_f32 v{den}, v{den}", f"v_mul_f32 v{den}, {vLG}, v{den}"]
            l2 += [f"v_mul_f32 v{num+i}, v{den}, v{num+i}" for i in range(8)]
            l2 += [f"v_cvt_pk_bf16_f32 v{OO+4*hd+i}, v{num+2*i}, v{num+2*i+1}" for i in range(4)]
            t = tstore(OO + 4 * hd, sST, hd * 1024)
            l2 += t[:2]; stq.append(t[2])
        return l, l2, stq + [publish(0)] + untag(OO) + untag(OO + 4) + [st("ost")]
    if OPT["q2"]:
        Gu = Grp("Qga", [(112, sAp, 6144), (116, sAo, 6144)])
        Gq = Grp("Qgq", [(160, sAp, 2048), (164, sAp, 3072), (168, sAo, 2048), (172, sAo, 3072)])
        sb_ = unit((160, 164), aB, 32768) + unit((168, 172), aB, 32768 + 16384)
        so_ = unit((OO, OO + 4), aA, 32768)
        steps = unit((96, 100), aB, 0) + unit((104, 108), aB, 16384) + unit((112,), aC, 0) + unit((116,), aC, 8192) + \
            (so_ + sb_ if OPT["q2"] == 1 else sb_ + so_) + unit((176, 180), aA, 32768 + 16384) + \
            unit((144, 148), aA, 0) + unit((152, 156), aA, 16384)
        fo, fb = (6, 8) if OPT["q2"] == 1 else (10, 6)
        assert OPT["qt3"] <= 12
        p2, order, nx, first = p2items(steps, [64, 68, 72, 76, 184], OPT["qt3"], OPT["qtm"])
        B = len(it); it += p2
        it[OPT["jb"] + 2].post.append(ident(IDENT))
        chk = []
        def check(G, lo, hi, extra):
            for a, b in chk: assert hi <= a or lo >= b, ("checks overlap", a - B, b - B, lo - B, hi - B)
            chk.append((lo, hi))
            spread(it, lo, hi, G.check() + extra)
        it[OPT["qlb"]].post += [need(it[OPT["qlb"]]), f"s_add_u32 {sT}, {sW1K}, {LC}", f"v_add_u32 v24, {sT}, {vL16}",
                       f"s_lshl_b32 {sT2}, {sCLS}, 12", f"s_add_u32 {sT2}, {sT2}, {LC}", f"v_add_u32 v25, {sT2}, {vL16}",
                       f"v_lshl_add_u32 v26, {vLANE}, 2, {sT}", "v_xor_b32 v27, 0x1000, v26",
                       lambda: g(f"ds_write_b32 v26, {vLG} offset:8192", tag="kw")]
        kp = B + OPT["qks"]; L = OPT["D2"] - 1; kb = B + first[fo] - L
        fl = [(OPT["qa"], lambda: fetch(it, OPT["qa"], Gp.loads(), 0x1100, B - 4, pl=OPT["qapl"], pre=setFA(), post=[st("gpfl")])),
              (OPT["qu"], lambda: fetch(it, OPT["qu"], Gu.loads(), 0x2200, B + first[4] - 4, pl=OPT["lpl"], pre=setFA(), post=[st("gufl")])),
              (OPT["qkv"], lambda: fetch(it, OPT["qkv"], Gk.loads(), 0xffff, kp - 1, pl=OPT["qpl"], step=OPT["qkw"], pre=setFK(), post=[st("kvfl")])),
              (B + OPT["qb"], lambda: fetch(it, B + OPT["qb"], Gq.loads(), 0x4400, B + first[fb] - 4, pl=OPT["lpl"], step=0 if OPT["q2"] == 1 else 1, pre=setFA(), post=[st("gqfl")])),
              (B + OPT["qgo"], lambda: fetch(it, B + OPT["qgo"], Go.loads(), 0x0010, B + first[12] - 3, pl=OPT["lpl"], pre=setFA(), post=[st("gofl")])),
              (B + OPT["qgc"], lambda: fetch(it, B + OPT["qgc"], Gc.loads(), 0x8800, B + first[14] - 5, pl=OPT["lpl"], pre=setFA(), post=[st("gcfl")]))]
        k1, k2, k3 = kol()
        it[kb + OPT["kd2"] - 1].post += [need(it[kb + L])] + k1
        spread(it, kb + OPT["kd2"], kb + L, k2)
        for _, f in sorted(fl, key=lambda x: x[0]): f()
        it[kb + L - 1].post += k3
        assert OPT["qkv"] >= PC + 8 and OPT["qkv"] - OPT["qpl"] > OPT["jb"] and OPT["qa"] > OPT["jb"] and OPT["qu"] > OPT["jb"]
        assert B + OPT["qgc"] > kp + OPT["qkn"] and OPT["qgo"] < first[12] - 2 and OPT["qgc"] < first[14] - 4 and OPT["qb"] < first[fb] - 3 and OPT["qu"] < B + first[4] - 3
        check(Gp, B - 3, B, [st("gpok")])
        check(Gu, B + first[4] - 2, B + first[4], [st("guok")])
        spread(it, B + OPT["pq0"], B + OPT["pq1"], PH(ACC2) + PH(ACC2 + 8))
        assert kp + OPT["qkn"] - 1 >= B + OPT["pq1"] and kp > OPT["qkv"] and kp + OPT["qkn"] <= kb
        check(Gk, kp, kp + OPT["qkn"], [ksum])
        it[B].bar = dict(vm=["wG0", "wG1", "wU"], lead=3, drain=True, after=p2addr() + [st("P2bar")])
        place(it, B + OPT["qpd0"], B + OPT["qpd"], D2A("O") + D2A("P2"), it[B])
        it[kb + L].bar = dict(vm=["wP2", "wO"], lg=["kw"], lead=L, after=[kx, st("kxb")])
        it[kb + L + 1].post += [p2misc]
        check(Gq, B + first[fb] - 3, B + first[fb], [st("gqok")])
        check(Go, B + first[12] - 2, B + first[12], [st("gook")])
        check(Gc, B + first[14] - 4, B + first[14], [st("gcok")])
        tail = p2tail("Q", it, B, nx, [128, 136, 32, 40], IDENT, f"v{SCQ+2}", order)
        run(it, tail)
        return
    steps = unit((96, 100), aB, 0) + unit((104, 108), aB, 16384) + unit((112,), aC, 0) + unit((116,), aC, 8192) + \
        unit((160, 164), aB, 32768) + unit((168, 172), aB, 32768 + 16384) + \
        unit((OO, OO + 4), aA, 32768) + \
        unit((144, 148), aA, 0) + unit((152, 156), aA, 16384) + \
        unit((176, 180), aA, 32768 + 16384)
    p2, order, nx, first = p2items(steps, [64, 68, 72, 76, 184], OPT["qt3"], OPT["qtm"])
    B = len(it); it += p2
    assert B == P2
    it[OPT["jb"] + 2].post.append(ident(IDENT))
    fa = lambda: fetch(it, OPT["qa"], Gp.loads(), 0x1100, B - 4, pl=OPT["qapl"], pre=setFA(), post=[st("gpfl")])
    fk = lambda: fetch(it, OPT["qkv"], Gk.loads(), 0xffff, B + 40, pl=OPT["qpl"], step=0, pre=setFK(), post=[st("kvfl")])
    for f in ((fa, fk) if OPT["qa"] < OPT["qkv"] else (fk, fa)): f()
    fetch(it, B + OPT["qb"], Gq.loads(), 0x4400, B + first[4] - 5, pl=OPT["lpl"], pre=setFA(), post=[st("gqfl")])
    assert OPT["qkv"] >= PC + 8 and OPT["qkv"] - OPT["qpl"] > OPT["jb"] and OPT["qa"] > OPT["jb"] and B + OPT["qb"] >= PC + 12
    kp = B + OPT["qks"]
    spread(it, B - 3, B, Gp.check() + [st("gpok")])
    it[B - 2 if OPT["kq"] else OPT["qlb"]].post += [need(it[B] if OPT["kq"] else it[OPT["qlb"]]), f"s_add_u32 {sT}, {sW1K}, {LC}", f"v_add_u32 v24, {sT}, {vL16}",
                   f"s_lshl_b32 {sT2}, {sCLS}, 12", f"s_add_u32 {sT2}, {sT2}, {LC}", f"v_add_u32 v25, {sT2}, {vL16}",
                   f"v_lshl_add_u32 v26, {vLANE}, 2, {sT}", "v_xor_b32 v27, 0x1000, v26",
                   lambda: g(f"ds_write_b32 v26, {vLG} offset:8192", tag="kw")]
    spread(it, B + OPT["pq0"], B + OPT["pq1"], PH(ACC2) + PH(ACC2 + 8))
    it[kp].post += Gk.check() + [ksum]
    if OPT["kq"]:
        assert kp >= B + OPT["pq1"] and kp > OPT["qkv"] and not (B + first[4] - 4 <= kp < B + first[4])
        it[B].bar = dict(vm=["wG0", "wG1"], lead=3, drain=True, after=p2addr() + [st("P2bar")])
        place(it, B - 3, B + OPT["pd1"], D2A("U") + D2A("O") + D2A("P2"), it[B])
        kb = kp + 1 + OPT["kd1"]
        assert kb <= B + first[4]
        L = min(OPT["D2"] - 1, B + first[4] - kb)
        it[kb + L].bar = dict(vm=["wU"], lg=["kw"], lead=L, after=[kx])
        ke = kb + OPT["kd2"] - 1
        it[ke].post += [need(it[kb + L]), ko]
    else:
        assert kp < B - 3 and kp > OPT["qkv"] and kp > OPT["qlb"]
        it[B].bar = dict(vm=["wG0", "wG1", "wU"], lead=3, drain=True, after=[kx] + p2addr() + [st("P2bar")])
        place(it, B + OPT["qpd0"], B + OPT["qpd"], D2A("O") + D2A("P2"), it[B])
        ke = B + OPT["pq1"]
        it[ke].post += [ko]
    spread(it, B + first[4] - 4, B + first[4], Gq.check() + [st("gqok")])
    assert ke < B + first[10] - 1
    it[B + first[10] + 1].post += [p2misc]
    it[B + first[10]].bar = dict(vm=["wP2", "wO"], lead=OPT["D2"])
    fetch(it, B + OPT["qgc"], Gc.loads(), 0x8800, B + first[12] - 5, pl=OPT["lpl"], post=[st("gcfl")])
    fetch(it, B + OPT["qgo"], Go.loads(), 0x0010, B + first[16] - 3, pl=OPT["lpl"], post=[st("gofl")])
    spread(it, B + first[12] - 4, B + first[12], Gc.check() + [st("gcok")])
    spread(it, B + first[16] - 2, B + first[16], Go.check() + [st("gook")])
    assert OPT["qgc"] < first[12] - 4 and OPT["qgo"] < first[16] - 2
    tail = p2tail("Q", it, B, nx, [128, 136, 32, 40], IDENT, f"v{SCQ+2}", order)
    run(it, tail)


NCL = 2 if OPT["asym"] else 1
for role, fn in (("WW", WW), ("QQ", QQ)):
    for cl_ in range(NCL):
        g.start_trace(role + str(cl_))
        ROLE[0] = role; CLS[0] = cl_; SUF[0] = ""; nlab[0] = 0; POLLS[role] = []; POLLS[role + "s"] = []
        old = SN[role]; SN[role] = ["start"]
        g.block(ENTRY, prologue)
        g.block(role, fn, align=(3 if role == "QQ" else None))
        assert cl_ == 0 or old == SN[role], (old, SN[role])
rt = []
for nm_, fn_ in retries:
    g.start_trace("RT_" + nm_)
    g.block("RT_" + nm_, fn_)
    rt.append("RT_" + nm_)
g.start_trace("end"); g.block("CODE_END", lambda: None)
g.hazards()
order = [ENTRY, "WW", "SPIN", "QQ"] + rt + ["CODE_END"]
if NCL == 2: order = [ENTRY, "WW", "WW0", "WW1", "SPIN", "QQ", "QQ0", "QQ1"] + rt + ["CODE_END"]
if OPT["ssp"] == 1: order.insert(order.index("SPIN"), "SSPIN")
assert sorted(order) == sorted(g.order), (g.order)

hdr = open("cdna_kernels/" + KN + ".s.ref").read().split("\n")
top = [l for l in hdr if l.startswith(";") and "@launch" not in l]
print("\n".join(top))
print("; @launch grid=(256,1,1) block=(512,1,1) lds=163840")
if STAMP:
    for r in SN: print("; STAMPS", r, " ".join(SN[r]))
    print("; RTS", OPT["rts"])
print('.amdgcn_target "amdgcn-amd-amdhsa--gfx950"\n.text')
print(f".globl {ENTRY}\n.p2align 8\n.type {ENTRY},@function")
print(g.text(order))
print("    s_endpgm")
print(f""".section .rodata,"a"
.p2align 6
.amdhsa_kernel {ENTRY}
  .amdhsa_next_free_vgpr 256
  .amdhsa_next_free_sgpr 102
  .amdhsa_accum_offset 256
  .amdhsa_group_segment_fixed_size 0
  .amdhsa_kernarg_size 88
  .amdhsa_user_sgpr_count 2
  .amdhsa_user_sgpr_kernarg_segment_ptr 1
  .amdhsa_system_sgpr_workgroup_id_x 1
.end_amdhsa_kernel""")
print(f"; maxvm={g.maxvm}", file=sys.stderr)
for name, tr in g.traces[:2 * NCL]:
    print(f"; trace {name}: barriers={sum(1 for o in tr if o.kind=='i' and o.mn=='s_barrier')} instrs={len(tr)}", file=sys.stderr)
```

```python
import sys
from fw import *

OPT = dict(hx=0, ds=1, nd=0, rp=0, rpt=0, rq=34455444, rqq=34444444, rt=3, ue=0, df0=0, df1=36, r00=99, il=0, BLq=2, iq=0, vq=2233330, vle=0, vlo=1, n5=3, x2=2, x2q=4, BL3=3, pk0=70, vp0=76, qo2=0, ilo=1, ilw=8, sl=2, cb6=0, um=0, wgu=40, qgu=40, gw1=98, p2e=1, qgw1=96, vlb=0, gac=1, qoc=0,
           wpd=10, qpd=10, qpd0=-3, wpd0=-4, pf=0, pfk=0, pfp=0, ssp=0, q2=0, qu=102, qkw=1, qkn=3, wo2=0, kpi=0, psf=0, plf=0, asf=0, apr=0, sdp=1, asym=0, b1l=1, k0=1, nx=0, wtm=0, qtm=0, tp=0, nxd=1, qg1=91, qgw=8, js=0, xwp=58, sd0=999, sd1=0, tc=0, a48=1, dsh=2, rm0=1, rmax=2, xsp=1, stamp=0, D=6, BL=2, BL2=4, DP=5, D2=4, lim=20000, rotm=7, tw=61, tlb=0, wt3=18, qt3=18, sp=0, slp=1,
           dsp=0, pst=0, osc=0, nochk=0, ew=1, pb=1, np1=5, np2=8, tlp=31, ft=1, bl=0,
           twd=0, stl=0, kq=0, kd1=1, kd2=1, kpr=0, wb3=0, wM=96, wN=10, pd=0, wpt=0, qpt=0, pe=0, wp1=0, qp1=0, fl=40, lpl=6, loc=0, at1=0, at2=0, atq=0, pt=0, g0=80, g1=100, pd1=10, wob=0,
           ea0=49, ea1=66, eu0=66, eu1=78, eb0=81, eb1=102, ec0=1, ec1=14, pk1=78,
           wga=92, wgb=2, wgc=24, wgo=31,
           twq=1, qg0=83, qapl=5, qa=92, qb=0, qkv=99, qpl=7, qks=-4, qlb=92, qgc=22, qgo=34, jb=82, pq0=0, pq1=5, efk=0, efo=0, efp=0,
           prl=0, hd=0, rts=1, cal=0, calx=4000, sper=8, sb0=999, sb1=0, s0=0, s1=999)
for a in sys.argv[1:]:
    k, v = a.split("="); assert k in OPT, k; OPT[k] = int(v, 0)
STAMP = OPT["stamp"]
LIM = OPT["lim"] << 16 if STAMP else OPT["lim"]

FLG = [" sc1", " sc0 sc1", " sc1 nt", " sc0 sc1 nt"]
LSC = "" if OPT["loc"] else FLG[OPT["asf"]]
LA, LB, LC = 0, 98304, 65536
MAP = {"WW": (LC, 32768, 0, LB + 32768), "QQ": (LB, 0, 32768, LC)}
if OPT["vlb"]: MAP["QQ"] = (LB, 32768, 0, LC)
def GB(): return MAP[ROLE[0]][0]
def XC(): return MAP[ROLE[0]][3]
PARTO, KVP, STP, FA, FK, FP = 640 * 1024, 0x1000000, 0x1100000, 0x10A0000, 0x10B0000, 0x10C0000
WS_SIZE = 0x1180000 if STAMP else 0x1100000
OFFB = 0x1200000
if OPT["nx"]: WS_SIZE = 0x2200000
SX, SW, SW2, SWO, SWS, SOUT, SB, SDBG = "s[32:35]", "s[36:39]", "s[40:43]", "s[44:47]", "s[48:51]", "s[52:55]", "s[56:59]", "s[60:63]"
sW, sRW, sRB, sCGI, sISW1, sSTR, sROT, sW1K, sXR, sCLS, sNON, sM = [f"s{64+i}" for i in range(12)]
sP = ["s76", "s77", "s78", "s79"]
sWC = [f"s{80+i}" for i in range(8)]
sT, sT2, sT3, sTB, sCNT, sKQ, sR8, sPAR, sTT, sLOG2E = [f"s{88+i}" for i in range(10)]
sTM = "s[98:99]"; sEPS = "s100"; sST = "s101"
sMK = "s[4:5]"
sAp, sAo, sRs, sRo, sRu, sRm, sRmu, sPART, sOUT, sKV, sFA, sPUB, sFP, sFK, sHAVE, sMASK = [f"s{8+i}" for i in range(16)]
sRET = "s[30:31]"
sDEC, sLC = "s6", "s7"
vWDB, vLANE, vXD, vWDa, vWDb, vW2D = "v0", "v1", "v2", "v3", "v4", "v5"
vX = ["v6", "v7", "v8", "v9"]
vWlo, vWhi, vU, vWOD, TG0, TG1, vL16, vCHK, vSTAMP, vBIAS2, vT0, vUD, vE0, vE1 = [f"v{10+i}" for i in range(14)]
vPR, vNON, vPA = "v0", "v2", "v4"
ACC0, ACC1, ACC2, ACC3, XR, TMP, TACC = 96, 112, 80, 48, 128, 32, 192

g = Gen()
retries = []
SUF = [""]
CLS = [0]
def add_retry(name, fn):
    if name not in [n for n, _ in retries]: retries.append((name, fn))


def vr(a, n=4):
    return f"v[{a}:{a+n-1}]"


SN = {"WW": ["start"], "QQ": ["start"]}
ROLE = [None]
def stamp(name):
    if not STAMP: return
    names = SN[ROLE[0]]
    g(f"v_writelane_b32 {vSTAMP}, s98, {len(names)-1}")
    g(f"{'s_memrealtime' if OPT['rts'] else 's_memtime'} {sTM}")
    names.append(str(name))
    assert len(names) < 59


def st(i):
    return lambda: stamp(i)


def mfma(d, a, b, c):
    g(f"v_mfma_f32_32x32x16_bf16 {vr(d,16)}, {a}, {b}, {c}")


def dx(c, i):
    def f():
        g(f"s_add_u32 m0, {sW1K}, {(c % 4) * 16384 + i * 8192:#x}")
        g(f"s_xor_b32 {sT2}, {sXR}, {c << 7 | i << 16:#x}")
        g(f"buffer_load_dwordx4 {vXD}, {SX}, {sT2} offen lds", tag=f"ck{c}")
    return f


def dw(lds, c, va, tag):
    def f():
        g(f"s_add_u32 m0, {sW1K}, {lds:#x}")
        g(f"buffer_load_dwordx4 {va}, {SW}, {sWC[c]} offen lds", tag=tag)
    return f


def CK(c):
    return [dx(c, 0), dx(c, 1), dw(LC + (c % 4) * 8192, c, vWDa, f"ck{c}")] + \
        ([dw(LB + (c % 4) * 8192, c, vWDb, f"ck{c}")] if OPT["il"] else [])


def WBs():
    if OPT["rotm"] != 3 or OPT["ds"]: return [dw(LB + c * 8192, c, vWDb, f"wb{c}") for c in range(8)]
    assert OPT["rotm"] == 3
    def sel(flip):
        def f():
            g(f"s_bitcmp{1 - flip}_b32 {sR8}, 2")
            g(f"s_cselect_b32 {sT2}, {sWC[4]}, {sWC[0]}")
            g(f"s_cselect_b32 {sT3}, {4 * 8192:#x}, 0")
            g(f"s_add_u32 {sT3}, {sT3}, {sW1K}")
            g(f"s_add_u32 m0, {sT3}, {LB:#x}")
            g(f"buffer_load_dwordx4 {vWDb}, {SW}, {sT2} offen lds", tag="wb0")
        return f
    return [sel(0), sel(1)] + [dw(LB + c * 8192, c, vWDb, f"wb{c}") for c in (1, 2, 3, 5, 6, 7)]


def head():
    if OPT["il"]: return CK(0) + CK(1) + CK(2) + CK(3)
    if OPT["rp"]: return CK(0) + CK(1) + WBs()[:1]
    c1 = CK(1)
    return CK(0) + c1[:2] + (WBs()[:1] if OPT["ew"] == 1 else []) + c1[2:] + CK(2) + CK(3)


WCL = []
def WCs():
    l = [dw(LA + c * 8192, c, vWDa, f"wc{c}") for c in range(8)]
    f0 = l[0]
    l[0] = lambda: (g(f"v_add_u32 {vWDa}, {sP[2]}, {vWDB}"), f0())
    WCL[:] = l
    return l


def du(n, tag):
    def f():
        g(f"s_xor_b32 {sT2}, {sROT}, {sCLS}")
        g(f"s_xor_b32 {sT2}, {sT2}, {2*n}")
        g(f"s_add_u32 m0, {sW1K}, {LB + 32768 + n*8192:#x}")
        g(f"s_mul_i32 {sT2}, {sT2}, {3584*64}")
        g(f"buffer_load_dwordx4 {vUD}, {SW}, {sT2} offen lds", tag=tag)
    return f


def d2(area, n):
    i = 2 * n
    prel, pp = (i >> 2) & 1, (i >> 1) & 1
    if area == "U": prel, pp = n, 0
    def f():
        if area in ("G0", "G1", "P2"):
            base = {"G0": GB() + MAP[ROLE[0]][1], "G1": GB() + MAP[ROLE[0]][2], "P2": LA + (32768 if ROLE[0] == "QQ" and OPT["qoc"] else 0)}[area]
            gofs = {"G0": 0, "G1": 1 << 16, "P2": 1 << 17}[area]
            g(f"s_xor_b32 m0, {sRm}, {base + (i << 12):#x}")
            g(f"s_xor_b32 {sT2}, {sRs}, {gofs | prel << 18 | pp << 15:#x}")
            g(f"buffer_load_dwordx4 {vW2D}, {SW2}, {sT2} offen lds", tag="w" + area)
        elif area == "O":
            g(f"s_xor_b32 m0, {sRm}, {LA + (0 if ROLE[0] == 'QQ' and OPT['qoc'] else 32768) + (i << 12):#x}")
            g(f"s_xor_b32 {sT2}, {sRo}, {prel << 16 | pp << 15:#x}")
            g(f"buffer_load_dwordx4 {vWOD}, {SWO}, {sT2} offen lds", tag="wO")
        else:
            g(f"s_xor_b32 m0, {sRmu}, {XC() + 16384 + (i << 12):#x}")
            g(f"s_xor_b32 {sT2}, {sRu}, {0x30000 | prel << 15:#x}")
            g(f"buffer_load_dwordx4 {vW2D}, {SW2}, {sT2} offen lds", tag="wU")
    return f


def D2A(area):
    return [d2(area, n) for n in range(2 if area == "U" else 4)]


def touch():
    q = OPT["twq"]
    if OPT["twd"]: stamp("tw0")
    g(f"s_and_b32 {sT}, s2, {0x78 if q else 0xf8:#x}")
    g(f"s_add_u32 {sT}, {sT}, {sW}")
    g(f"s_mul_i32 {sT2}, {sT}, {14*128 << q}")
    g(f"s_mul_i32 {sT3}, {sKQ}, {448*1024}")
    g(f"s_add_u32 {sT2}, {sT2}, {sT3}")
    g(f"v_lshlrev_b32 {vE0}, 7, {vLANE}")
    g(f"s_mov_b64 exec, {(1 << (14 << q)) - 1:#x}")
    g(f"buffer_load_dword {vE1}, {vE0}, {SW2}, {sT2} offen", tag="tw")
    g(f"s_lshl_b32 {sT2}, {sT}, {9 + q}")
    g(f"s_lshl_b32 {sT3}, {sKQ}, 17")
    g(f"s_add_u32 {sT2}, {sT2}, {sT3}")
    g(f"s_mov_b64 exec, {(1 << (4 << q)) - 1:#x}")
    g(f"buffer_load_dword {vE1}, {vE0}, {SWO}, {sT2} offen", tag="tw")
    g("s_mov_b64 exec, -1")
    if OPT["twd"]:
        g("s_waitcnt lgkmcnt(0)"); stamp("tw1"); g("s_waitcnt vmcnt(1) lgkmcnt(0)"); stamp("tw2"); g("s_waitcnt vmcnt(0) lgkmcnt(0)"); stamp("tw3"); g("s_waitcnt lgkmcnt(0)")


def publish(kind):
    def f():
        g("s_mov_b64 exec, 1")
        g(f"buffer_store_dword {vNON}, off, {SWS}, {sPUB} offset:{kind*4}", tag="pub")
        g("s_mov_b64 exec, -1")
    return f


def SPIN():
    g("s_mov_b64 exec, 0xffff")
    g.label("SPIN_loop")
    g(f"buffer_load_dword {vPR}, {vPA}, {SWS}, 0 offen sc1")
    g("s_waitcnt vmcnt(0)")
    g(f"v_cmp_eq_u32 vcc, {sNON}, {vPR}")
    g(f"s_add_u32 {sCNT}, {sCNT}, {0x10000 if STAMP else 1}")
    g(f"s_mov_b32 {sHAVE}, vcc_lo")
    g(f"s_and_b32 {sT}, {sHAVE}, {sMASK}")
    g(f"s_cmp_eq_u32 {sT}, {sMASK}")
    g("s_cbranch_scc1 SPIN_done")
    if OPT["slp"]: g(f"s_sleep {OPT['slp']}")
    g(f"s_sub_u32 {sLC}, {sLC}, {sDEC}")
    g(f"s_cmp_lt_i32 {sLC}, 0")
    g("s_cbranch_scc1 SPIN_done")
    g(f"s_cmp_lt_u32 {sCNT}, {LIM:#x}")
    g("s_cbranch_scc1 SPIN_loop")
    g.label("SPIN_done")
    g("s_mov_b64 exec, -1")
    g(f"s_setpc_b64 {sRET}")


def poll_issue():
    g("s_mov_b64 exec, 0xffff")
    g(f"buffer_load_dword {vPR}, {vPA}, {SWS}, 0 offen sc1", tag="poll")
    g("s_mov_b64 exec, -1")


nlab = [0]
def take(mask, fresh=True):
    def f():
        nlab[0] += 1
        lab = f"EN{ROLE[0]}{nlab[0]}{SUF[0]}"
        if fresh:
            g.wait(vm="poll")
            g(f"v_cmp_eq_u32 vcc, {sNON}, {vPR}")
            g(f"s_and_b32 {sHAVE}, vcc_lo, 0xffff")
        g(f"s_and_b32 {sT}, {sHAVE}, {mask:#x}")
        g(f"s_cmp_eq_u32 {sT}, {mask:#x}")
        g(f"s_cbranch_scc1 {lab}")
        with g.optional():
            g(f"s_mov_b32 {sMASK}, {mask:#x}")
            g(f"s_call_b64 {sRET}, SPIN")
            g.block("SPIN", SPIN, align=3)
        g.label(lab)
    return f


sQ0, sQ1, sQA = "s80", "s81", "s82"
def SSPIN():
    g.label("SSPIN_loop")
    g(f"s_buffer_load_dword {sQ0}, {SWS}, {sQA} glc")
    g(f"s_buffer_load_dword {sQ1}, {SWS}, s83 glc")
    g(f"s_add_u32 {sCNT}, {sCNT}, {0x10000 if STAMP else 1}")
    g("s_waitcnt lgkmcnt(0)")
    g(f"s_xor_b32 {sT}, {sQ0}, {sNON}")
    g(f"s_xor_b32 {sT2}, {sQ1}, {sNON}")
    g(f"s_or_b32 {sT}, {sT}, {sT2}")
    g("s_cbranch_scc0 SSPIN_done")
    if OPT["slp"]: g(f"s_sleep {OPT['slp']}")
    g(f"s_sub_u32 {sLC}, {sLC}, 1")
    g(f"s_cmp_lt_i32 {sLC}, 0")
    g("s_cbranch_scc0 SSPIN_loop")
    g.label("SSPIN_done")
    g(f"s_setpc_b64 {sRET}")


def sfetch(mask):
    bits = [b for b in range(16) if mask >> b & 1]
    GL = " glc" if OPT["ssp"] == 1 else ""
    def issue():
        if len(bits) == 2:
            assert bits[1] == bits[0] + 4
            g(f"s_add_u32 {sQA}, {sFA}, {bits[0]*4}")
            g(f"s_add_u32 s83, {sFA}, {bits[1]*4}")
            g("s_mov_b64 s[80:81], 0")
            g(f"s_buffer_load_dword {sQ0}, {SWS}, {sQA}{GL}")
            g(f"s_buffer_load_dword {sQ1}, {SWS}, s83{GL}")
        else:
            g(f"s_xor_b32 {sQA}, {sPUB}, {16 + (bits[0] & 3) * 4}")
            g(f"s_mov_b32 {sQ0}, 0")
            g(f"s_buffer_load_dword {sQ0}, {SWS}, {sQA}{GL}")
    def tk():
        nlab[0] += 1
        lab = f"EN{ROLE[0]}{nlab[0]}{SUF[0]}"
        if len(bits) == 2:
            g(f"s_xor_b32 {sT}, {sQ0}, {sNON}")
            g(f"s_xor_b32 {sT2}, {sQ1}, {sNON}")
            g(f"s_or_b32 {sT}, {sT}, {sT2}")
        else:
            g(f"s_cmp_lg_u32 {sQ0}, {sNON}")
        g(f"s_cbranch_scc0 {lab}")
        with g.optional():
            if OPT["ssp"] == 1:
                if len(bits) == 1: g(f"s_mov_b32 s83, {sQA}")
                g(f"s_call_b64 {sRET}, SSPIN")
                g.block("SSPIN", SSPIN, align=3)
            else:
                emit(setFA())
                g(f"s_mov_b32 {sMASK}, {mask:#x}")
                g(f"s_call_b64 {sRET}, SPIN")
                g.block("SPIN", SPIN, align=3)
        g.label(lab)
    return issue, tk


POLLS = {"WW": [], "QQ": []}
def fetch(it, pos, grp, mask, hi, pl=0, step=1, pre=(), post=(), lp=None):
    if OPT["ssp"] and mask != 0xffff and (OPT["ssp"] != 3 or mask in (0x1100, 0x1000)):
        P = POLLS.setdefault(ROLE[0] + "s", [])
        assert all(hi_ <= pos - pl for lo, hi_ in P), "fetch order"
        assert pos - pl > 60
        P.append((pos - pl, pos))
        a, b = sfetch(mask)
        it[pos - pl].post.append(a)
        it[pos].post += [b] + list(post)
    elif mask is not None:
        for lo, hi_ in POLLS[ROLE[0]]: assert pos <= lo or pos - pl >= hi_, ("polls overlap", lo, hi_, pos - pl, pos)
        assert all(hi_ <= pos - pl for lo, hi_ in POLLS[ROLE[0]]), "fetch order"
        POLLS[ROLE[0]].append((pos - pl, pos))
        it[pos - pl].post += list(pre) + [poll_issue]
        it[pos].post += [take(mask)] + list(post)
    if lp is not None: assert lp >= pos; pos = lp
    for i, f in enumerate(grp): it[min(pos + step * i, hi)].post.append(f)


GN = ["ga", "gp", "gq", "kv", "gc", "go", "pr"]
PA, PB, PC, P2 = 0, 48, 80, 112
class Grp:
    def __init__(s, name, frags, each=None):
        s.name = name; s.frags = frags; s.each = each

    def loads(s, tagged=True):
        out = []
        cur = [None]
        def one(i, reg, base, off):
            def f(first=True):
                hi = off & ~4095 if off >= 4096 else 0
                fl = FLG[OPT["plf"]] if s.name[1:] == "pr" else " sc1"
                k = OPT[{"pr": "pfp", "kv": "pfk"}.get(s.name[1:], "pf")]
                if tagged and k: fl = ("", "", " sc0", " nt")[k]
                if hi: g(f"s_add_u32 {sT3}, {base}, {hi:#x}")
                g(f"buffer_load_dwordx4 {vr(reg)}, {vL16}, {SWS}, {sT3 if hi else base} offen offset:{off - hi}{fl}",
                  tag=f"{s.name}{i}" if tagged else None)
            return f
        return [one(i, *fr) for i, fr in enumerate(s.frags)]

    def decode(s, waits=True):
        out = []
        for i, (reg, _, _) in enumerate(s.frags):
            if waits: out.append(lambda i=i: g.wait(vm=f"{s.name}{i}"))
            out.append(f"v_xor_b32 v{reg}, {TG0}, v{reg}")
            out.append(f"v_xor_b32 v{reg+1}, {TG1}, v{reg+1}")
            out.append(f"v_or_b32 {vCHK}, v{reg}, v{reg+1}" if i == 0 else f"v_or3_b32 {vCHK}, v{reg}, v{reg+1}, {vCHK}")
            if s.each: out.append(lambda i=i, reg=reg: s.each(i, reg))
        out.append(f"v_and_b32 {vCHK}, {sTB}, {vCHK}")
        return out

    def check(s):
        def fin():
            if OPT["nochk"]: return
            g(f"v_cmp_ne_u32 vcc, 0, {vCHK}")
            g("s_cmp_lg_u64 vcc, 0")
            nm = s.name + SUF[0]
            g(f"s_cbranch_scc1 RT_{nm}")
            g.label(f"OK_{nm}")
            add_retry(nm, lambda: s.retry(nm))
        return s.decode() + [fin]

    def retry(s, nm):
        if STAMP: g(f"s_or_b32 s3, s3, {1 << GN.index(s.name[1:])}")
        g(f"s_add_u32 {sCNT}, {sCNT}, 1")
        g(f"s_and_b32 {sT}, {sCNT}, 0xffff")
        g(f"s_cmp_gt_u32 {sT}, {OPT['lim']}")
        g(f"s_cbranch_scc1 OK_{nm}")
        if OPT["slp"]: g(f"s_sleep {OPT['slp']}")
        for f in s.loads(False): f()
        g("s_waitcnt vmcnt(0)")
        emit(s.decode(False))
        g(f"v_cmp_ne_u32 vcc, 0, {vCHK}")
        g("s_cmp_lg_u64 vcc, 0")
        if s.each: g("s_nop 15")
        g(f"s_cbranch_scc1 RT_{nm}")
        g(f"s_branch OK_{nm}")


def emit(lst):
    for x in lst:
        if isinstance(x, str): g(x)
        else: x()


def tstore(reg, base, off, keep=True, tag="st"):
    l = [f"v_and_or_b32 v{reg}, v{reg}, {sM}, {TG0}", f"v_and_or_b32 v{reg+1}, v{reg+1}, {sM}, {TG1}",
         lambda: g(f"buffer_store_dwordx4 {vr(reg)}, {vL16}, {SWS}, {base} offen offset:{off}{LSC if tag == 'st' else FLG[OPT['psf']]}", tag=tag)]
    return l


def untag(reg):
    return [f"v_xor_b32 v{reg}, {TG0}, v{reg}", f"v_xor_b32 v{reg+1}, {TG1}, v{reg+1}"]


def EH(b, base, off, prev=None):
    h = [f"v{b+i}" for i in range(8)]
    e = [f"v{TMP+i}" for i in range(8)]
    u = [f"v{TMP+8+i}" for i in range(8)]
    ins = []
    for i in range(8): ins.append(f"v_mul_f32 {e[i]}, {sLOG2E}, {h[i]}")
    if prev is not None: ins += untag(prev)
    for i in range(8): ins.append(f"v_exp_f32 {e[i]}, {e[i]}")
    for i in range(8): ins.append(f"v_fma_f32 {u[i]}, {e[i]}, 0.5, 1.0")
    for i in range(8): ins.append(f"v_fma_f32 {u[i]}, -{e[i]}, {u[i]}, -1.0")
    for i in range(8): ins.append(f"v_rcp_f32 {u[i]}, {u[i]}")
    for i in range(8): ins.append(f"v_fmac_f32 {h[i]}, {h[i]}, {u[i]}")
    for i in range(4): ins.append(f"v_cvt_pk_bf16_f32 {h[i]}, {h[2*i]}, {h[2*i+1]}")
    return ins + tstore(b, base, off)


def PH(b):
    h = [f"v{b+i}" for i in range(8)]
    e = [f"v{TMP+i}" for i in range(8)]
    ins = []
    for i in range(8): ins.append(f"v_mul_f32 {e[i]}, {sLOG2E}, {h[i]}")
    for i in range(8): ins.append(f"v_exp_f32_e64 {e[i]}, {e[i]} clamp")
    for i in range(8): ins.append(f"v_max_f32 {h[i]}, {sEPS}, {h[i]}")
    for i in range(8): ins.append(f"v_add_f32 {h[i]}, {e[i]}, {h[i]}")
    for i in range(4): ins.append(f"v_cvt_pk_bf16_f32 {h[i]}, {h[2*i]}, {h[2*i+1]}")
    return ins


def cost(x):
    if not isinstance(x, str): return 4
    return 8 if x.startswith(("v_exp", "v_rcp")) else 4


def merge(main, side):
    tot = sum(cost(x) for x in main); n = len(side); k = 0; acc = 0; out = []
    for x in main:
        while k < n and acc >= tot * k / n:
            out.append(side[k]); k += 1
        out.append(x); acc += cost(x)
    return out + side[k:]


class Item:
    def __init__(s, addr, imm, second, buf, acc, other, orient="T", zero=False, D=3, lg=(), vm=()):
        s.addr, s.imm, s.second, s.buf, s.acc, s.other, s.orient, s.zero, s.D = addr, imm, second, buf, acc, other, orient, zero, D
        s.lg, s.vm = list(lg), list(vm)
        s.bar = None
        s.rvm = []
        s.post = []
        s.pre = []
        s.rpre = []


def spread(items, lo, hi, fill):
    tot = sum(cost(x) for x in fill); n = hi - lo; acc = 0
    for x in fill:
        k = min(n - 1, int(acc * n / tot)) if tot else 0
        items[lo + k].post.append(x); acc += cost(x)


def run(items, tail):
    N = len(items)
    prev = {}
    for m, it in enumerate(items):
        it.prev = max([p for b, p in prev.items() if b == it.buf], default=-1)
        prev[it.buf] = m
    X = getattr(tail, "split", None)
    if X is None:
        seg(items, 0, N, 0); tail(); return
    nxt = seg(items, 0, X, 0)
    g(f"s_cmp_lg_u32 {sCLS}, 0")
    g(f"s_cbranch_scc1 {ROLE[0]}1")
    SUF[0] = f"_{CLS[0]}"
    g.block(f"{ROLE[0]}{CLS[0]}", lambda: (seg(items, X, N, nxt), tail()), align=(3 if CLS[0] else None))


def seg(items, n0, n1, nxt):
    N = len(items)
    for n in range(n0, n1):
        cnt = 0; lim = OPT["rmax"]
        while nxt < N and nxt <= n + items[nxt].D and items[nxt].prev < n:
            it = items[nxt]
            if it.bar is None and cnt >= lim and nxt > n: break
            if it.bar is not None:
                if nxt - n > it.bar.get("lead", 0): break
                emit(it.bar.get("before", []))
                sb = OPT["sb0"] <= nxt <= OPT["sb1"]
                if sb: stamp(f"pre{nxt}"); g("s_waitcnt lgkmcnt(0)")
                lgw = list(it.bar.get("lg") or [])
                if it.bar.get("drain"): lgw += [t for t in g.lg if t]
                g.wait(vm=it.bar.get("vm"), lg=lgw or None)
                emit(it.bar.get("at", []))
                if sb: stamp(f"at{nxt}"); g("s_waitcnt lgkmcnt(0)")
                g("s_barrier")
                if sb: stamp(f"bar{nxt}")
                it.bar_at = n
                emit(it.bar.get("after", []))
                items[n].pre += it.bar.get("after2", [])
                it.bar = None
                cnt = 0; lim = OPT["rm0"] if nxt else OPT["r00"]
                if cnt >= lim and nxt > n: break
            cnt += 1
            emit(it.rpre)
            if it.rvm: g.wait(vm=it.rvm)
            if it.second is None:
                g(f"ds_read_b128 {vr(it.buf)}, {it.addr} offset:{it.imm}", tag=f"w{nxt}")
            else:
                g(f"ds_read_b64_tr_b16 {vr(it.buf, 2)}, {it.addr} offset:{it.imm}", tag=f"w{nxt}")
                if True:
                    g(f"ds_read_b64_tr_b16 {vr(it.buf+2, 2)}, {it.addr} offset:{it.imm + it.second}", tag=f"w{nxt}")
            nxt += 1
        assert nxt > n
        it = items[n]
        emit(it.pre)
        g.wait(vm=it.vm or None, lg=[f"w{n}"] + it.lg)
        c = 0 if it.zero else vr(it.acc, 16)
        if it.orient == "T": mfma(it.acc, vr(it.buf), vr(it.other), c)
        else: mfma(it.acc, vr(it.other), vr(it.buf), c)
        if OPT["sd0"] <= n < OPT["sd1"]:
            if OPT["sdp"]: g("s_waitcnt lgkmcnt(0)")
            stamp(f"m{n}")
            for k_, x_ in enumerate(it.post):
                emit([x_])
                if OPT["sdp"] and not isinstance(x_, str) and x_.__name__ != "fneed": g("s_waitcnt lgkmcnt(0)"); stamp(f"p{n}_{k_}")
        else: emit(it.post)
        if OPT["sper"] and n % OPT["sper"] == OPT["sper"] - 1 and OPT["s0"] <= n < OPT["s1"]: stamp(f"i{n}")
    return nxt


ENTRY = KN + "_kernel"
def wcs(a, b):
    l = []
    for c in range(a, b): l += [f"s_xor_b32 {sWC[c]}, {sROT}, {c}", f"s_mul_i32 {sWC[c]}, {sWC[c]}, {sST}"]
    return l


def prologue():
    k0, k1, k2 = ("v32", "v33", "v34") if OPT["ds"] else ("v64", "v67", "v68")
    if OPT["cal"]: g(("s_memrealtime" if OPT["cal"] == 1 else "s_memtime") + " s[6:7]")
    if OPT["hx"]: g("s_memrealtime s[98:99]")
    if STAMP:
        g(f"{'s_memrealtime' if OPT['rts'] else 's_memtime'} {sTM}")
        g(f"{'s_memtime' if OPT['rts'] else 's_memrealtime'} s[6:7]")
        g(f"v_mov_b32 {vSTAMP}, 0")
        g("s_mov_b32 s3, 0")
    g(f"""
    s_cmp_ge_u32 s2, 256
    s_cbranch_scc1 END
    s_load_dwordx16 s[8:23], s[0:1], 0
    s_load_dwordx4 s[24:27], s[0:1], 64
    s_load_dwordx2 s[28:29], s[0:1], 80
    s_getpc_b64 s[30:31]
    s_and_b32 {sT}, s2, 0xf8
    v_lshrrev_b32 v64, 6, v0
    v_add_u32 v65, {sT}, v64
    v_lshlrev_b32 v65, 7, v65
    v_min_u32 v65, CODE_END-{ENTRY}-256, v65
    s_mov_b64 exec, 1
    """)
    g("global_load_dword v255, v65, s[30:31]", tag="cp")
    g(f"""
    s_mov_b64 exec, -1
    v_and_b32 {vLANE}, 63, v0
    v_readfirstlane_b32 {sW}, v64
    s_lshr_b32 {sTT}, s2, 6        ; t
    s_bfe_u32 {sR8}, s2, 0x30003
    s_and_b32 {sRB}, s2, 1
    s_lshl_b32 {sRB}, {sRB}, 3
    s_or_b32 {sRB}, {sRB}, {sR8}
    s_bfe_u32 {sKQ}, s2, 0x20001
    s_lshr_b32 {sISW1}, {sTT}, 1
    s_and_b32 {sPAR}, {sTT}, 1
    s_lshl_b32 {sCGI}, {sKQ}, 1
    s_or_b32 {sCGI}, {sCGI}, {sPAR}
    """)
    rt = OPT["rt"]
    if rt == 0: g(f"s_mov_b32 {sROT}, {sR8}")
    else:
        g(f"s_lshl_b32 {sROT}, {(sPAR, sISW1, sTT, sPAR)[rt - 1]}, {(2, 2, 1, 1)[rt - 1]}")
        g(f"s_xor_b32 {sROT}, {sROT}, {sR8}")
    if OPT["rotm"] != 7: g(f"s_and_b32 {sROT}, {sROT}, {OPT['rotm']}")
    g(f"""
    s_and_b32 {sRW}, {sW}, 3
    s_lshr_b32 {sCLS}, {sW}, 2
    s_lshl_b32 {sW1K}, {sW}, 10
    s_lshl_b32 {sSTR}, {sISW1}, 9
    s_add_u32 {sSTR}, {sSTR}, 3072
    s_lshl_b32 {sXR}, {sRB}, 17
    s_lshl_b32 {sT}, {sROT}, 7
    s_or_b32 {sXR}, {sXR}, {sT}
    v_lshrrev_b32 {k0}, 3, v0               ; w*8+l3
    v_and_b32 v65, 7, v0                   ; pos
    v_bfe_u32 {k1}, v0, 4, 3                ; (row>>1)&7
    v_xor_b32 {k1}, {k1}, v65
    v_lshlrev_b32 {k1}, 4, {k1}
    v_lshl_add_u32 {vXD}, {k0}, 10, {k1}
    v_bfe_u32 {k1}, v0, 4, 1
    v_lshlrev_b32 {k1}, 2, {k1}
    v_xor_b32 {k1}, {k1}, v65                ; pw
    v_lshlrev_b32 {k2}, 4, {k1}
    v_mul_lo_u32 v69, {k0}, {sSTR}
    v_add_u32 {vWDB}, v69, {k2}
    s_mul_i32 {sP[3]}, {sCGI}, 448
    s_lshl_b32 {sT2}, {sPAR}, 6
    s_add_u32 {sP[0]}, {sP[3]}, {sT2}
    s_add_u32 {sP[1]}, {sP[0]}, 128
    s_add_u32 {sP[2]}, {sP[0]}, 256
    s_cmp_eq_u32 {sPAR}, 0
    s_cselect_b32 {sT2}, 384, 0
    s_add_u32 {sP[3]}, {sP[3]}, {sT2}
    s_cmp_eq_u32 {sISW1}, 1
    s_cbranch_scc1 PRO_w1
    s_lshl_b32 {sP[2]}, {sCGI}, 7
    s_add_u32 {sP[0]}, {sP[2]}, 1024
    s_add_u32 {sP[1]}, {sP[2]}, 2048
    """)
    g.label("PRO_w1")
    if OPT["ds"]:
        g(f"s_lshl_b32 {sST}, {sSTR}, 6")
        g(f"s_mul_i32 {sWC[0]}, {sROT}, {sST}")
    else:
        g(f"s_lshl_b32 {sT}, {sSTR}, 6")
        for c in range(8):
            g(f"s_xor_b32 {sWC[c]}, {sROT}, {c}")
            g(f"s_mul_i32 {sWC[c]}, {sWC[c]}, {sT}")
    g(f"""
    v_add_u32 {vWDa}, {sP[0]}, {vWDB}
    v_add_u32 {vWDb}, {sP[1]}, {vWDB}
    s_mov_b32 s34, 0x200000
    s_mov_b32 s35, 0x20000
    s_mov_b32 s39, 0x20000
    s_lshl_b32 s38, {sSTR}, 9
    s_mul_i32 s58, {sISW1}, 2560
    s_add_u32 s58, s58, 1024
    s_mov_b32 s59, 0x20000
    """)
    if OPT["pst"]:
        g("s_waitcnt lgkmcnt(3)")
        stamp("prek")
    g(f"""
    s_cmp_eq_u32 {sISW1}, 1
    s_waitcnt lgkmcnt(0)
    s_mov_b32 s32, s8
    s_cselect_b32 s36, s16, s10
    s_cselect_b32 s37, s17, s11
    s_cselect_b32 s56, s18, s22
    s_cselect_b32 s57, s19, s23
    s_and_b32 s33, s9, 0xffff
    s_and_b32 s37, s37, 0xffff
    s_and_b32 s57, s57, 0xffff
    """)
    def ps(n):
        if OPT["pst"] and STAMP:
            stamp(n); g("s_waitcnt lgkmcnt(0)")
    ps("karg")
    h = head()
    n0 = 4 if OPT["il"] else 3
    emit(h[:n0])
    ps("ck0")
    if OPT["pb"]: g("s_barrier")
    if OPT["ds"]: emit(wcs(1, 4))
    emit(h[n0:OPT["np1"]])
    ps("ck1")
    setupA() if OPT["ds"] else setup2()
    if OPT["ds"]: emit(deferred("A")[:OPT["nd"]])
    ps("set2")
    emit(h[OPT["np1"]:OPT["np2"]])
    ps("ck2")
    g(f"s_cmp_eq_u32 {sISW1}, 0")
    g("s_cbranch_scc1 QQ")


def setupA():
    if STAMP:
        g(f"v_writelane_b32 {vSTAMP}, s6, 62")
    g(f"""
    v_and_b32 v64, 31, {vLANE}             ; row
    v_lshrrev_b32 v35, 5, {vLANE}          ; h
    v_bfe_u32 v66, {vLANE}, 1, 3           ; m
    v_xor_b32 v66, v66, v35                ; h ^ m
    s_lshl_b32 {sT}, {sCLS}, 2
    v_xor_b32 v66, {sT}, v66
    s_lshl_b32 {sT}, {sRW}, 12
    v_lshl_add_u32 v67, v64, 7, {sT}
    v_lshl_add_u32 {vX[0]}, v66, 4, v67
    v_xor_b32 {vX[1]}, 32, {vX[0]}
    v_xor_b32 {vX[2]}, 64, {vX[0]}
    v_xor_b32 {vX[3]}, 0x60, {vX[0]}
    v_bfe_u32 v68, {vLANE}, 2, 2           ; r
    v_lshlrev_b32 v69, 7, v68
    v_bfe_u32 v68, {vLANE}, 3, 1
    v_lshl_add_u32 v69, v68, 6, v69
    v_bfe_u32 v68, {vLANE}, 4, 1
    v_lshl_add_u32 {vT0}, v68, 5, v69
    v_and_b32 v68, 3, {vLANE}
    v_lshl_add_u32 v36, v68, 3, {vT0}
    v_lshl_add_u32 v36, v35, 10, v36
    s_mul_i32 {sT}, {sCLS}, {4096+64}
    s_add_u32 {sT}, {sT}, {LC}
    v_xor_b32 {vWlo}, {sT}, v36
    v_xor_b32 {vWhi}, 0x1000, {vWlo}
    """)


def deferred(role):
    G = []
    def grp(t): G.append(lambda t=t: g(t))
    def non():
        g(f"""
        s_mov_b32 s60, s26
        s_and_b32 s61, s27, 0xffff
        s_mov_b32 s62, 256
        s_mov_b32 s63, 0x20000
        """)
        if role == "W" or (role == "Q" and OPT["nd"]): return
        g(f"s_or_b32 {sT}, s2, {sW}")
        g("s_cbranch_scc1 S2_non")
        with g.optional():
            g(f"""
            s_memrealtime s[4:5]
            s_waitcnt lgkmcnt(0)
            s_mul_i32 {sT}, s4, 0x9e3779b1
            s_or_b32 {sT}, {sT}, 1
            v_mov_b32 v37, {sT}
            s_mov_b64 exec, 1
            buffer_store_dword v37, off, {SDBG}, 0 sc1
            s_mov_b64 exec, -1
            """)
        g.label("S2_non")
    G.append(non)
    grp("\n".join(wcs(4, 6)))
    if True:
        grp(f"""
        s_mul_i32 {sT}, {sCLS}, {64+32}
        s_add_u32 {sT}, {sT}, {LB+32768}
        v_xor_b32 {vU}, {sT}, v36
        v_lshlrev_b32 {vL16}, 4, {vLANE}
        """)
    grp("\n".join(wcs(6, 8)))
    grp(f"""
    s_mov_b32 s40, s20
    s_and_b32 s41, s21, 0xffff
    s_mov_b32 s42, 0x1c0000
    s_mov_b32 s43, 0x20000
    """)
    grp(f"""
    s_mov_b32 s44, s12
    s_and_b32 s45, s13, 0xffff
    s_mov_b32 s46, 0x80000
    s_mov_b32 s47, 0x20000
    """)
    grp(f"""
    s_mov_b32 s48, s28
    s_and_b32 s49, s29, 0xffff
    s_mov_b32 s50, {WS_SIZE:#x}
    s_mov_b32 s51, 0x20000
    """)
    grp(f"""
    s_mov_b32 s52, s24
    s_and_b32 s53, s25, 0xffff
    s_mov_b32 s54, 0x200000
    s_mov_b32 s55, 0x20000
    """)
    grp(f"""
    s_lshl_b32 {sT}, {sRB}, 2
    s_add_u32 {sT2}, {sT}, {sRW}
    s_lshl_b32 {sT2}, {sT2}, 2
    s_add_u32 {sT2}, {sT2}, {sKQ}
    s_lshl_b32 {sT2}, {sT2}, 1
    s_add_u32 {sFA}, {sT2}, {sCLS}
    """)
    grp(f"""
    s_lshl_b32 {sFA}, {sFA}, 7
    s_add_u32 {sFA}, {sFA}, {FA:#x}
    s_lshl_b32 {sT2}, {sTT}, 4
    s_add_u32 {sPUB}, {sFA}, {sT2}
    """)
    grp(f"""
    s_lshl_b32 {sT}, {sRB}, 2
    s_add_u32 {sT}, {sT}, {sTT}
    s_lshl_b32 {sT}, {sT}, 3
    s_add_u32 {sT}, {sT}, {sW}
    s_lshl_b32 {sFP}, {sT}, 2
    """)
    grp(f"""
    s_add_u32 {sFP}, {sFP}, {sKQ}
    s_lshl_b32 {sFP}, {sFP}, 7
    s_add_u32 {sFP}, {sFP}, {FP:#x}
    s_lshl_b32 {sFK}, {sCGI}, 10
    s_add_u32 {sFK}, {sFK}, {FK:#x}
    """)
    grp(f"""
    s_mov_b32 {sLOG2E}, 0x3fb8aa3b
    s_mov_b32 {sEPS}, 0x358637bd
    s_mov_b32 {sM}, 0xfffefffe
    s_mov_b32 {sTB}, 0x10001
    s_mov_b32 {sCNT}, 0
    s_mov_b32 {sLC}, {OPT['fl']}
    """)
    grp(f"""
    v_and_b32 v32, 31, v32
    v_lshl_add_u32 {vW2D}, v32, 10, v34
    s_lshl_b32 {sT}, {sTT}, 8
    s_lshl_b32 {sT2}, {sKQ}, 17
    s_add_u32 {sT2}, {sT2}, {sT}
    v_add_u32 {vWOD}, {sT2}, {vW2D}
    """)
    grp(f"""
    s_lshl_b32 {sT}, {sTT}, 8
    s_mul_i32 {sT2}, {sKQ}, {448*1024}
    s_add_u32 {sT2}, {sT2}, {sT}
    v_add_u32 {vW2D}, {sT2}, {vW2D}
    """)
    grp(f"""
    v_lshl_add_u32 {vT0}, v35, 9, {vT0}
    v_and_b32 v37, 1, {vLANE}
    v_lshl_add_u32 {vT0}, v37, 4, {vT0}
    v_bfe_u32 v37, {vLANE}, 1, 1
    v_lshl_add_u32 {vT0}, v37, 3, {vT0}
    """)
    grp(f"""
    s_and_b32 {sT}, {sKQ}, 1
    s_lshl_b32 {sT}, {sT}, 6
    s_lshl_b32 {sT2}, {sCLS}, 5
    s_or_b32 {sT}, {sT}, {sT2}
    v_xor_b32 {vT0}, {sT}, {vT0}
    """)
    grp(f"""
    s_xor_b32 {sRm}, {sR8}, {sCLS}
    s_lshr_b32 {sT}, {sKQ}, 1
    s_xor_b32 {sT}, {sT}, {sRm}
    s_xor_b32 {sT}, {sT}, 1
    s_and_b32 {sT}, {sT}, 1
    s_lshl_b32 {sRs}, {sT}, 7
    """)
    grp(f"""
    s_and_b32 {sT2}, {sR8}, 2
    s_lshl_b32 {sT2}, {sT2}, 14
    s_or_b32 {sRs}, {sRs}, {sT2}
    s_lshl_b32 {sT2}, {sPAR}, 15
    s_xor_b32 {sRu}, {sRs}, {sT2}
    """)
    grp(f"""
    s_lshr_b32 {sT}, {sR8}, 2
    s_xor_b32 {sT}, {sT}, {sPAR}
    s_lshl_b32 {sT2}, {sT}, 16
    s_or_b32 {sRo}, {sRs}, {sT2}
    s_lshl_b32 {sT2}, {sT}, 18
    s_or_b32 {sRs}, {sRs}, {sT2}
    """)
    grp(f"""
    s_lshl_b32 {sT}, {sRm}, 12
    s_lshl_b32 {sT2}, {sRW}, 10
    s_or_b32 {sRm}, {sT}, {sT2}
    s_and_b32 {sRmu}, {sRm}, 0x3fff
    """)
    grp(f"""
    s_lshl_b32 {sT}, {sRW}, 2
    s_add_u32 {sT}, {sT}, {sKQ}
    s_lshl_b32 {sT}, {sT}, 2
    s_add_u32 {sT}, {sT}, {sCLS}
    s_lshl_b32 {sT2}, {sPAR}, 1
    s_add_u32 {sAp}, {sT}, {sT2}
    """)
    grp(f"""
    s_xor_b32 {sAo}, {sAp}, 2
    s_mul_i32 {sAp}, {sAp}, 10240
    s_mul_i32 {sAo}, {sAo}, 10240
    s_lshl_b32 {sT3}, {sRB}, 20
    s_add_u32 {sAp}, {sAp}, {sT3}
    s_add_u32 {sAo}, {sAo}, {sT3}
    """)
    grp(f"""
    s_lshl_b32 {sT}, {sTT}, 3
    s_add_u32 {sT}, {sT}, {sW}
    s_mul_i32 {sT}, {sT}, 12288
    s_lshl_b32 {sT2}, {sKQ}, 10
    s_add_u32 {sPART}, {sT}, {sT2}
    """)
    grp(f"""
    s_lshl_b32 {sT3}, {sRB}, 20
    s_add_u32 {sPART}, {sPART}, {sT3}
    s_add_u32 {sPART}, {sPART}, {PARTO:#x}
    s_lshl_b32 {sKV}, {sCGI}, 16
    s_add_u32 {sKV}, {sKV}, {KVP:#x}
    """)
    grp(f"""
    s_lshl_b32 {sT}, {sRB}, 2
    s_add_u32 {sT}, {sT}, {sRW}
    s_lshl_b32 {sOUT}, {sT}, 15
    s_lshl_b32 {sT}, {sTT}, 8
    s_add_u32 {sOUT}, {sOUT}, {sT}
    """)
    grp(f"""
    s_lshl_b32 {sT}, {sKQ}, 6
    s_add_u32 {sOUT}, {sOUT}, {sT}
    s_lshl_b32 {sT}, {sCLS}, 5
    s_add_u32 {sOUT}, {sOUT}, {sT}
    """)
    return G


def setup2():
    if STAMP:
        g(f"v_writelane_b32 {vSTAMP}, s6, 62")
    g(f"""
    s_mov_b32 s60, s26
    s_and_b32 s61, s27, 0xffff
    s_mov_b32 s62, 256
    s_mov_b32 s63, 0x20000
    s_or_b32 {sT}, s2, {sW}
    s_cbranch_scc1 S2_non
    """)
    with g.optional():
        g(f"""
        s_memrealtime s[4:5]
        s_waitcnt lgkmcnt(0)
        s_mul_i32 {sT}, s4, 0x9e3779b1
        s_or_b32 {sT}, {sT}, 1
        v_mov_b32 v66, {sT}
        s_mov_b64 exec, 1
        buffer_store_dword v66, off, {SDBG}, 0 sc1
        s_mov_b64 exec, -1
        """)
    g.label("S2_non")
    g(f"""
    s_mov_b32 s40, s20
    s_and_b32 s41, s21, 0xffff
    s_mov_b32 s42, 0x1c0000
    s_mov_b32 s43, 0x20000
    s_mov_b32 s44, s12
    s_and_b32 s45, s13, 0xffff
    s_mov_b32 s46, 0x80000
    s_mov_b32 s47, 0x20000
    s_mov_b32 s48, s28
    s_and_b32 s49, s29, 0xffff
    s_mov_b32 s50, {WS_SIZE:#x}
    s_mov_b32 s51, 0x20000
    s_mov_b32 s52, s24
    s_and_b32 s53, s25, 0xffff
    s_mov_b32 s54, 0x200000
    s_mov_b32 s55, 0x20000
    s_mov_b32 {sLOG2E}, 0x3fb8aa3b
    s_mov_b32 {sEPS}, 0x358637bd
    s_mov_b32 {sM}, 0xfffefffe
    s_mov_b32 {sTB}, 0x10001
    s_mov_b32 {sCNT}, 0
    s_mov_b32 {sLC}, {OPT['fl']}
    v_and_b32 v64, 31, v64                 ; rw*8+l3
    v_lshl_add_u32 {vW2D}, v64, 10, v68
    v_lshrrev_b32 v69, 2, v67
    v_lshl_add_u32 v69, v69, 5, v64
    v_mul_lo_u32 v69, v69, {sSTR}
    v_and_b32 v70, 3, v67
    v_lshl_add_u32 v69, v70, 4, v69
    v_add_u32 {vUD}, {sP[3]}, v69
    s_lshl_b32 {sT}, {sTT}, 8
    s_lshl_b32 {sT2}, {sKQ}, 17
    s_add_u32 {sT2}, {sT2}, {sT}
    v_add_u32 {vWOD}, {sT2}, {vW2D}
    s_mul_i32 {sT2}, {sKQ}, {448*1024}
    s_add_u32 {sT2}, {sT2}, {sT}
    v_add_u32 {vW2D}, {sT2}, {vW2D}
    v_and_b32 v64, 31, {vLANE}             ; row
    v_lshrrev_b32 v65, 5, {vLANE}          ; h
    v_bfe_u32 v66, {vLANE}, 1, 3           ; m
    v_xor_b32 v66, v66, v65                ; h ^ m
    s_lshl_b32 {sT}, {sCLS}, 2
    v_xor_b32 v66, {sT}, v66
    s_lshl_b32 {sT}, {sRW}, 12
    v_lshl_add_u32 v67, v64, 7, {sT}
    """)
    for sp in range(4):
        g(f"v_xor_b32 v68, {2*sp}, v66")
        g(f"v_lshl_add_u32 {vX[sp]}, v68, 4, v67")
    g(f"""
    v_bfe_u32 v68, {vLANE}, 2, 2           ; r
    v_lshlrev_b32 v69, 7, v68
    v_bfe_u32 v68, {vLANE}, 3, 1
    v_lshl_add_u32 v69, v68, 6, v69
    v_bfe_u32 v68, {vLANE}, 4, 1
    v_lshl_add_u32 {vT0}, v68, 5, v69
    v_and_b32 v68, 3, {vLANE}
    v_lshl_add_u32 v69, v68, 3, {vT0}
    v_lshl_add_u32 v69, v65, 10, v69
    s_mul_i32 {sT}, {sCLS}, {4096+64}
    s_add_u32 {sT}, {sT}, {LC}
    v_xor_b32 {vWlo}, {sT}, v69
    v_xor_b32 {vWhi}, 0x1000, {vWlo}
    s_mul_i32 {sT}, {sCLS}, {64+32}
    s_add_u32 {sT}, {sT}, {LB+32768}
    v_xor_b32 {vU}, {sT}, v69
    ; phase-2 lane part: + h*512 + swapped col quad, unit kq&1, half cls
    v_lshl_add_u32 {vT0}, v65, 9, {vT0}
    v_and_b32 v68, 1, {vLANE}
    v_lshl_add_u32 {vT0}, v68, 4, {vT0}
    v_bfe_u32 v68, {vLANE}, 1, 1
    v_lshl_add_u32 {vT0}, v68, 3, {vT0}
    s_and_b32 {sT}, {sKQ}, 1
    s_lshl_b32 {sT}, {sT}, 6
    s_lshl_b32 {sT2}, {sCLS}, 5
    s_or_b32 {sT}, {sT}, {sT2}
    v_xor_b32 {vT0}, {sT}, {vT0}
    v_lshlrev_b32 {vL16}, 4, {vLANE}
    ; rotation constants (r8' = r8 ^ cls)
    s_xor_b32 {sT3}, {sR8}, {sCLS}
    s_lshr_b32 {sT}, {sKQ}, 1
    s_xor_b32 {sT}, {sT}, {sT3}
    s_xor_b32 {sT}, {sT}, 1
    s_and_b32 {sT}, {sT}, 1
    s_lshl_b32 {sT}, {sT}, 7               ; (b0^ho)<<7
    s_and_b32 {sT2}, {sR8}, 2
    s_lshl_b32 {sT2}, {sT2}, 14            ; b1<<15
    s_or_b32 {sRs}, {sT}, {sT2}
    s_lshl_b32 {sT2}, {sPAR}, 15
    s_xor_b32 {sRu}, {sRs}, {sT2}
    s_lshr_b32 {sT}, {sR8}, 2
    s_xor_b32 {sT}, {sT}, {sPAR}
    s_lshl_b32 {sT2}, {sT}, 16
    s_or_b32 {sRo}, {sRs}, {sT2}
    s_lshl_b32 {sT2}, {sT}, 18
    s_or_b32 {sRs}, {sRs}, {sT2}
    s_lshl_b32 {sT}, {sT3}, 12
    s_lshl_b32 {sT2}, {sRW}, 10
    s_or_b32 {sRm}, {sT}, {sT2}
    s_and_b32 {sRmu}, {sRm}, 0x3fff
    s_lshl_b32 {sT}, {sRW}, 2
    s_add_u32 {sT}, {sT}, {sKQ}
    s_lshl_b32 {sT}, {sT}, 2
    s_add_u32 {sT}, {sT}, {sCLS}
    s_lshl_b32 {sT2}, {sPAR}, 1
    s_add_u32 {sAp}, {sT}, {sT2}
    s_xor_b32 {sAo}, {sAp}, 2
    s_mul_i32 {sAp}, {sAp}, 10240
    s_mul_i32 {sAo}, {sAo}, 10240
    s_lshl_b32 {sT3}, {sRB}, 20
    s_add_u32 {sAp}, {sAp}, {sT3}
    s_add_u32 {sAo}, {sAo}, {sT3}
    s_lshl_b32 {sT}, {sTT}, 3
    s_add_u32 {sT}, {sT}, {sW}
    s_mul_i32 {sT}, {sT}, 12288
    s_lshl_b32 {sT2}, {sKQ}, 10
    s_add_u32 {sT}, {sT}, {sT2}
    s_add_u32 {sT}, {sT}, {sT3}
    s_add_u32 {sPART}, {sT}, {PARTO:#x}
    ; out
    s_lshl_b32 {sT}, {sRB}, 2
    s_add_u32 {sT}, {sT}, {sRW}
    s_lshl_b32 {sOUT}, {sT}, 15
    s_lshl_b32 {sT}, {sTT}, 8
    s_add_u32 {sOUT}, {sOUT}, {sT}
    s_lshl_b32 {sT}, {sKQ}, 6
    s_add_u32 {sOUT}, {sOUT}, {sT}
    s_lshl_b32 {sT}, {sCLS}, 5
    s_add_u32 {sOUT}, {sOUT}, {sT}
    s_lshl_b32 {sT}, {sRB}, 2
    s_add_u32 {sT2}, {sT}, {sRW}
    s_lshl_b32 {sT2}, {sT2}, 2
    s_add_u32 {sT2}, {sT2}, {sKQ}
    s_lshl_b32 {sT2}, {sT2}, 1
    s_add_u32 {sT2}, {sT2}, {sCLS}
    s_lshl_b32 {sT2}, {sT2}, 7
    s_add_u32 {sFA}, {sT2}, {FA:#x}
    s_lshl_b32 {sT2}, {sTT}, 4
    s_add_u32 {sPUB}, {sFA}, {sT2}
    s_add_u32 {sT}, {sT}, {sTT}
    s_lshl_b32 {sT}, {sT}, 3
    s_add_u32 {sT}, {sT}, {sW}
    s_lshl_b32 {sT}, {sT}, 2
    s_add_u32 {sT}, {sT}, {sKQ}
    s_lshl_b32 {sT}, {sT}, 7
    s_add_u32 {sFP}, {sT}, {FP:#x}
    s_lshl_b32 {sFK}, {sCGI}, 10
    s_add_u32 {sFK}, {sFK}, {FK:#x}
    ; kvp base of this cgi
    s_lshl_b32 {sKV}, {sCGI}, 16
    s_add_u32 {sKV}, {sKV}, {KVP:#x}
    """)
    if OPT["stl"]:
        g(f"s_mul_i32 {sT2}, {sKQ}, {448*1024}")
        g(f"s_buffer_load_dword s4, {SW2}, {sT2}")
        g(f"s_buffer_load_dword s4, {SWO}, 0")
        g(f"s_buffer_load_dword s4, {SWS}, {sPART}")
        g(f"s_buffer_load_dword s4, {SWS}, {sFP}")
        g(f"s_buffer_load_dword s4, {SOUT}, {sOUT}")
    if OPT["sp"]:
        g(f"s_cmp_eq_u32 {sCLS}, 0")
        g("s_cbranch_scc1 S2_sp")
        g(f"s_setprio {OPT['sp']}")
        g.label("S2_sp")


def tlbt(lab):
    def f():
        g(f"s_cmp_lg_u32 {sW}, 7")
        g(f"s_cbranch_scc1 TLB_{lab}")
        with g.optional():
            g(f"s_mul_i32 {sT2}, {sKQ}, {448*1024}")
            g("s_mov_b64 exec, 1")
            g(f"buffer_load_dword {vE1}, off, {SWS}, {sPART}")
            g(f"buffer_load_dword {vE1}, off, {SWS}, {sKV}")
            g(f"buffer_load_dword {vE1}, off, {SOUT}, {sOUT}")
            g(f"buffer_load_dword {vE1}, off, {SW2}, {sT2}")
            g(f"buffer_load_dword {vE1}, off, {SWO}, 0")
            g("s_mov_b64 exec, -1")
        g.label(f"TLB_{lab}")
    return f


def atouch(base, off, lo, hi):
    def f():
        g(f"v_lshlrev_b32 {vE0}, 7, {vLANE}")
        if off: g(f"s_add_u32 {sT}, {base}, {off}")
        g(f"s_mov_b32 exec_lo, {lo:#x}")
        g(f"s_mov_b32 exec_hi, {hi:#x}")
        g(f"buffer_load_dword {vE1}, {vE0}, {SWS}, {sT if off else base} offen", tag="tw")
        g("s_mov_b64 exec, -1")
    return f


def ptouch():
    g(f"v_lshrrev_b32 {vE0}, 3, {vLANE}")
    g(f"v_mul_u32_u24 {vE0}, {4096-1024}, {vE0}")
    g(f"v_lshl_add_u32 {vE0}, {vLANE}, 7, {vE0}")
    g("s_mov_b64 exec, 0xffffff")
    g(f"buffer_load_dword {vE1}, {vE0}, {SWS}, {sPART} offen", tag="tw")
    g("s_mov_b64 exec, -1")


def kvline():
    return [f"s_lshr_b32 {sT}, {sRB}, 2", f"s_xor_b32 {sT}, {sT}, {sRW}", f"s_bitcmp0_b32 {sT}, 1",
            f"s_cselect_b32 {sT2}, 1, 0", f"s_lshl_b32 {sT3}, {sT2}, 2", f"s_lshr_b32 {sT}, {sW}, 1", f"s_add_u32 {sT}, {sT}, {sT3}",
            f"s_lshl_b32 {sT}, {sT}, 7", f"s_add_u32 {sT}, {sT}, {sFK}"]


def ftouch():
    emit(kvline())
    g(f"v_mov_b32 {vE0}, {sFA}")
    g(f"v_writelane_b32 {vE0}, {sFP}, 1")
    g(f"v_writelane_b32 {vE0}, {sT}, 2")
    g("s_mov_b64 exec, 7")
    g(f"buffer_load_dword {vE1}, {vE0}, {SWS}, 0 offen sc1", tag="tw")
    g("s_mov_b64 exec, -1")


def nonce(lab):
    def f():
        g("s_waitcnt lgkmcnt(0)")
        g(f"s_cmp_eq_u32 {sNON}, 0")
        g(f"s_cbranch_scc1 RT_{lab}")
        g.label(f"OK_{lab}")
        class R:
            name = lab
            @staticmethod
            def retry():
                g(f"s_add_u32 {sCNT}, {sCNT}, 1")
                g(f"s_cmp_gt_u32 {sCNT}, {OPT['lim']}")
                g(f"s_cbranch_scc1 OK_{lab}")
                g(f"buffer_load_dword {TG0}, off, {SDBG}, 0 sc1")
                g("s_waitcnt vmcnt(0)")
                g(f"v_readfirstlane_b32 {sNON}, {TG0}")
                g(f"s_cmp_eq_u32 {sNON}, 0")
                g(f"s_cbranch_scc1 RT_{lab}")
                g(f"s_branch OK_{lab}")
        add_retry(lab, R.retry)
        g(f"v_and_b32 {TG1}, 7, {vLANE}")
        g(f"v_lshrrev_b32_e64 {TG0}, {TG1}, {sNON}")
        g(f"v_lshrrev_b32 {TG1}, 8, {TG0}")
        g(f"v_and_b32 {TG0}, {sTB}, {TG0}")
        g(f"v_and_b32 {TG1}, {sTB}, {TG1}")
        g(f"v_mov_b32 {vNON}, {sNON}")
    return f


def setFA():
    return [f"s_lshl_b32 {sT}, {sPAR}, 2", f"v_xor_b32 {vPA}, {sT}, {vLANE}", f"v_lshl_add_u32 {vPA}, {vPA}, 2, {sFA}", f"s_mov_b32 {sDEC}, 1"]


def setFK():
    return kvline() + [f"v_lshl_add_u32 {vPA}, {vLANE}, 2, {sT}", f"s_mov_b32 {sDEC}, {sT2}"]


def ident(I):
    a, b, c = f"v{TMP}", f"v{TMP+1}", f"v{TMP+2}"
    l = [f"v_mov_b32 {b}, 0x3f80",
         f"v_and_b32 {a}, 1, {vLANE}",
         f"v_lshlrev_b32 {a}, 4, {a}",
         f"v_lshlrev_b32 {a}, {a}, {b}",
         f"v_lshrrev_b32 {b}, 3, {vLANE}",
         f"v_xor_b32 {b}, {b}, {vLANE}",
         f"v_and_b32 {b}, 4, {b}",
         f"v_and_b32 {c}, 0x1a, {vLANE}",
         f"v_or_b32 {b}, {b}, {c}"]
    def f():
        emit(l)
        for k, key in enumerate((0, 2, 8, 10)):
            g(f"v_cmp_eq_u32 vcc, {key}, {b}")
            g(f"v_cndmask_b32 v{I+k}, 0, {a}, vcc")
    return f


def prio1(p):
    def f():
        nlab[0] += 1
        g(f"s_cmp_eq_u32 {sCLS}, 0")
        g(f"s_cbranch_scc1 PR{ROLE[0]}{nlab[0]}{SUF[0]}")
        g(f"s_setprio {p}")
        g.label(f"PR{ROLE[0]}{nlab[0]}{SUF[0]}")
    return f


def wadd(d):
    return [f"v_add_u32 {r}, {d:#x}, {r}" if d > 0 else f"v_subrev_u32 {r}, {-d:#x}, {r}" for r in (vWlo, vWhi)]


def need(item):
    def fneed(): assert item.bar is None
    return fneed


def place(it, lo, hi, fs, after=None):
    n = len(fs)
    if after is not None: it[lo].post.append(need(after))
    for i, f in enumerate(fs): it[lo + (hi - lo) * i // n].post.append(f)


def phase1(orient, cbufs, lab, xitem, slot_extra, tail_dma, after48, pre0=()):
    it = []; first = []
    for c in range(8):
        first.append(len(it))
        for sp in range(4):
            s = 4 * c + sp
            it.append(Item(vWlo if sp < 2 else vWhi, (c & 3) * 8192 + (sp & 1) * 2048, 512,
                           64 + 4 * (len(it) % 8), ACC0, XR + 4 * s, orient, zero=(s == 0), D=OPT["D"], lg=[f"xr{s}"]))
        for u in ([c - 2] if 2 <= c < 7 else [5, 6, 7] if c == 7 else []):
            for j in range(2): it.append(xitem(u, j, 64 + 4 * (len(it) % 8)))
    assert len(it) == PB
    first.append(PB)
    n3 = (len(tail_dma) + 2) // 3
    extra = {0: list(pre0) + head()[OPT["np2"]:], 5: tail_dma[:n3], 6: tail_dma[n3:2 * n3], 7: tail_dma[2 * n3:]}
    if OPT["rp"]:
        assert OPT["np2"] == 7
        L = [(f, 0, 0) for f in pre0]
        for c in range(2, 8):
            L += [(f, c - 3, c - 2) for f in CK(c)]
            for k, v in slot_extra.items():
                if {1: 4, 3: 6, 4: 7}[k] == c: L += [(f, 0, c - 2) for f in v]
        for j, f in enumerate(tail_dma): L.append((f, 5 + j // n3 if not OPT["rpt"] or f in WCL else 0, 7))
        rq = [int(ch) for ch in f"{OPT['rq' if lab == 'Wn' else 'rqq']:08d}"]
        extra = {}; slot_extra = {}
        for c in range(8):
            n = rq[c] if c < 7 else len(L)
            extra[c] = []
            while L and len(extra[c]) < n and L[0][1] <= c: extra[c].append(L.pop(0))
            assert all(l >= c for _, _, l in extra[c]) and all(l > c for _, _, l in L), ("late", c)
            extra[c] = [f for f, _, _ in extra[c]]
        print(";", lab, [len(extra[c]) for c in range(8)], file=sys.stderr)
    for c in range(8):
        def xr(c=c):
            for sp in range(4):
                g(f"ds_read_b128 {vr(XR+16*c+4*sp)}, {vX[sp]} offset:{(c & 3) * 16384}", tag=f"xr{4*c+sp}")
        nx = (extra[c] if c in extra else CK(c + 3)) + slot_extra.get(c, [])
        it[first[c]].bar = dict(vm=[f"ck{c}"], lead=OPT["BL"], drain=True, after=[] if OPT["xsp"] else [xr])
        if OPT["xsp"]:
            for sp in range(4):
                it[first[c] + sp].rpre.append(lambda c=c, sp=sp: g(f"ds_read_b128 {vr(XR+16*c+4*sp)}, {vX[sp]} offset:{(c & 3) * 16384}", tag=f"xr{4*c+sp}"))
        b0 = max(0, first[c] - OPT["BL"]); b1 = min(first[c + 1] - OPT["BL"], b0 + 6)
        it[b0].post.append(need(it[first[c]]))
        if c: b0 += OPT["dsh"]
        for j, f in enumerate(nx): it[b0 + (j if len(nx) <= b1 - b0 else j * (b1 - b0) // len(nx))].post.append(f)
    for s in range(32):
        c = s >> 2; sp = s & 3
        it.append(Item(vWlo if sp < 2 else vWhi, c * 8192 + (sp & 1) * 2048, 512, 64 + 4 * (s % 8), ACC1, XR + 4 * s, orient,
                       zero=(s == 0), D=OPT["D"]))
    for s in range(32):
        c = s >> 2; sp = s & 3
        it.append(Item(vWlo if sp < 2 else vWhi, c * 8192 + (sp & 1) * 2048, 512, cbufs[s % len(cbufs)], ACC2, XR + 4 * s,
                       zero=(s == 0), D=OPT["DP"]))
    it[PB].bar = dict(vm=[f"wb{c}" for c in range(4)], lead=OPT["BL2"], drain=True, after=wadd(LB - LC))
    it[PB + 16].bar = dict(vm=[f"wb{c}" for c in range(4, 8)] + [f"wc{c}" for c in range(8)], lead=OPT["BL2"], drain=True)
    it[PC].rpre += wadd(-LB)
    it[PB - OPT["BL2"]].post.append(need(it[PB]))
    for i, f in enumerate(after48): it[PB - OPT["BL2"] + i * OPT["a48"]].post.append(f)
    def tcw():
        g(f"v_add_u32 {vE0}, {sP[2]}, {vWDB}")
        g(f"buffer_load_dword {vE1}, {vE0}, {SW}, {sWC[0]} offen", tag="tw")
    if OPT["tc"]: it[OPT["tc"]].post.append(tcw)
    it[10].post.append(f"s_load_dword {sNON}, s[26:27], 0")
    it[40].post.append(nonce(lab))
    if OPT["tw"] and (lab == "Qn" or not OPT["twq"]): it[OPT["tw"]].post.append(touch)
    if OPT["tlb"]: it[OPT["tlp"]].post.append(tlbt(lab))
    if OPT["ds"]:
        df = deferred(lab[0])
        if lab == "Qn" and OPT["nd"] <= 2: df[2] = lambda: None
        df = df[OPT["nd"]:]
        if df: place(it, OPT["df0"], OPT["df1"], df)
        assert OPT["nd"] >= 12 or OPT["ft"] >= OPT["df0"] + (OPT["df1"] - OPT["df0"]) * (12 - OPT["nd"]) // len(df)
    if OPT["ft"]: it[OPT["ft"]].post.append(ftouch)
    if OPT["pt"]: it[OPT["pt"]].post.append(ptouch)
    if lab == "Wn":
        if OPT["at1"] and OPT["at1"] == OPT["at2"]: it[OPT["at1"]].post.append(atouch(sAp, 0, 0xffffffff, 0xffffff))
        else:
            if OPT["at1"]: it[OPT["at1"]].post.append(atouch(sAp, 0, 0xffff, 0xff0000))
            if OPT["at2"]: it[OPT["at2"]].post.append(atouch(sAp, 0, 0xffff0000, 0xffff))
    elif OPT["atq"]: it[OPT["atq"]].post.append(atouch(sAp, 7168, 0xffffff, 0))
    return it


def phase1i(orient, cbufs, lab, xitem, slot_extra, segx):
    it = []; first = []; xfirst = {}
    for c in range(8):
        first.append(len(it))
        seq = [(p, sp) for sp in range(4) for p in range(2)]
        if c == 7 and OPT["ilo"]: seq = [(p, sp) for p in range(2) for sp in range(4)]
        for p, sp in seq:
            s = 4 * c + sp
            xfirst.setdefault(s, len(it))
            it.append(Item(vWlo if sp < 2 else vWhi, p * (LB - LC) + (c & 3) * 8192 + (sp & 1) * 2048, 512,
                           64 + 4 * (len(it) % 8), (ACC0, ACC1)[p], XR + 4 * s, orient, zero=(s == 0), D=OPT["D"], lg=[f"xr{s}"]))
        L = OPT["sl"] if lab == "Qn" else 2
        for u in ([c - L] if L <= c < 7 else list(range(7 - L, 8)) if c == 7 else []):
            for j in range(2): it.append(xitem(u, j, 64 + 4 * (len(it) % 8)))
    assert len(it) == PC
    first.append(PC)
    extra = dict(segx); extra[0] = head()[OPT["np2"]:]
    for c in range(8):
        nx = (extra[c] if c in extra else CK(c + 3)) + slot_extra.get(c, [])
        it[first[c]].bar = dict(vm=[f"ck{c}"], lead=OPT["BL"], drain=True)
        for sp in range(4):
            it[xfirst[4 * c + sp]].rpre.append(lambda c=c, sp=sp: g(f"ds_read_b128 {vr(XR+16*c+4*sp)}, {vX[sp]} offset:{(c & 3) * 16384}", tag=f"xr{4*c+sp}"))
        b0 = max(0, first[c] - OPT["BL"]); b1 = min(first[c + 1] - OPT["BL"], b0 + OPT["ilw"])
        it[b0].post.append(need(it[first[c]]))
        if c: b0 += OPT["dsh"]
        for j, f in enumerate(nx): it[b0 + j * (b1 - b0) // len(nx)].post.append(f)
    for s in range(32):
        c = s >> 2; sp = s & 3
        it.append(Item(vWlo if sp < 2 else vWhi, c * 8192 + (sp & 1) * 2048, 512, cbufs[s], ACC2, XR + 4 * s,
                       zero=(s == 0), D=OPT["DP"]))
    it[PC].bar = dict(vm=[f"wc{c}" for c in range(4)], lead=OPT["BL2"], drain=True, after=wadd(LA - LC))
    it[PC + 16].bar = dict(vm=[f"wc{c}" for c in range(4, 8)], lead=OPT["BL3"], drain=True, after=[])
    it[12].post.append(f"s_load_dword {sNON}, s[26:27], 0")
    it[first[7] - OPT["BL"] - 1].post.append(nonce(lab))
    if OPT["tw"] and (lab == "Qn" or not OPT["twq"]): it[OPT["tw"]].post.append(touch)
    if OPT["ft"]: it[OPT["ft"]].post.append(ftouch)
    return it, first


def phase1q(orient, cbufs, lab, xitem):
    vq = [int(ch) for ch in f"{OPT['vq']:08d}"]
    L = OPT["sl"]
    slot = lambda j: LB + (0 if j == 7 else j) * 8192
    it = []; first = []; xfirst = {}; vfirst = {}; nb = [0]; kend = 0
    def bitem():
        s = nb[0]; nb[0] += 1
        c = s >> 2; sp = s & 3
        vfirst.setdefault(c, (len(it), len(first) - 1))
        a = vWlo if sp < 2 else vWhi
        o = slot(c) - (LC if vfirst[c][1] < 8 else LB)
        assert o < 65536 - 4096
        it.append(Item(a, o + (sp & 1) * 2048, 512, 64 + 4 * (len(it) % 8), ACC1, XR + 4 * s, orient, zero=(s == 0), D=OPT["D"]))
    for c in range(8):
        first.append(len(it))
        n = vq[c]
        for sp in range(4):
            s = 4 * c + sp
            xfirst[s] = len(it)
            it.append(Item(vWlo if sp < 2 else vWhi, (c & 3) * 8192 + (sp & 1) * 2048, 512,
                           64 + 4 * (len(it) % 8), ACC0, XR + 4 * s, orient, zero=(s == 0), D=OPT["D"], lg=[f"xr{s}"]))
        kend = len(it)
        for _ in range(n):
            assert nb[0] < 4 * c + 4
            bitem()
        for u in ([c - L] if L <= c < 7 else list(range(7 - L, 8)) if c == 7 else []):
            for j in range(2): it.append(xitem(u, j, 64 + 4 * (len(it) % 8)))
    gend = len(it)
    first.append(gend)
    while nb[0] < 32: bitem()
    assert len(it) == PC
    wc = WCs()
    early = [j for j in range(8) if vfirst[j][1] < 8]
    late = [j for j in range(8) if vfirst[j][1] == 8]
    wv = {j: dw(slot(j), j, vWDb, f"ck{vfirst[j][1]}" if j in early else f"wb{j}") for j in range(8)}
    assert 7 in late and vfirst[1][1] <= 5 and OPT["ew"] == 1 and vfirst[0][1] >= 1
    hd = head()
    extra = {0: hd[OPT["np2"]:]}
    for c in range(1, 5): extra[c] = CK(c + 3)
    for j in early:
        if j == 0: continue
        c = max(0, vfirst[j][1] - 3 - OPT["vle"])
        extra[c] = extra[c] + [wv[j]] if OPT["vlo"] else [wv[j]] + extra[c]
    tl = [wv[j] for j in late]
    n5 = OPT["n5"]
    use = 0
    for c in (5, 6, 7):
        extra[c] = tl[:n5]; tl = tl[n5:]
        while len(extra[c]) < n5 and use < 2 * (c - 4): extra[c].append(wc[use]); use += 1
    assert not tl
    for c in range(8):
        nx = extra[c]
        vm = [f"ck{c}"] + (["wb0"] if vfirst[0][1] == c else [])
        ld = lambda c: min(OPT["BLq"], 2) if c == 1 else OPT["BLq"]
        it[first[c]].bar = dict(vm=vm, lead=ld(c), drain=True)
        for sp in range(4):
            it[xfirst[4 * c + sp]].rpre.append(lambda c=c, sp=sp: g(f"ds_read_b128 {vr(XR+16*c+4*sp)}, {vX[sp]} offset:{(c & 3) * 16384}", tag=f"xr{4*c+sp}"))
        b0 = max(0, first[c] - ld(c)); b1 = min(first[c + 1] - ld(c + 1), b0 + OPT["ilw"])
        it[b0].post.append(need(it[first[c]]))
        if c: b0 += OPT["dsh"]
        for j, f in enumerate(nx): it[b0 + (j * (b1 - b0) // len(nx))].post.append(f)
    for s in range(32):
        c = s >> 2; sp = s & 3
        it.append(Item(vWlo if sp < 2 else vWhi, c * 8192 + (sp & 1) * 2048, 512, cbufs[s % len(cbufs)], ACC2, XR + 4 * s,
                       zero=(s == 0), D=OPT["DP"]))
    X1 = vfirst[late[0]][0]
    h2 = late[OPT["x2"]:]
    X2 = vfirst[h2[0]][0]
    nq = OPT["x2q"]
    it[X1].bar = dict(vm=[f"wb{j}" for j in late[:OPT["x2"]]], lead=OPT["BL2"], drain=True)
    it[X2].bar = dict(vm=[f"wb{j}" for j in h2] + [f"wc{c}" for c in range(nq)], lead=OPT["BL2"], drain=True)
    assert X1 - OPT["BL2"] >= kend - 1 or True
    place(it, X1 - OPT["BL2"], min(X2 - OPT["BL2"], X1 - OPT["BL2"] + (8 - use) * OPT["a48"]), wc[use:], it[X1])
    it[X1].bar["after"] = wadd(LB - LC)
    it[PC].rpre += wadd(LA - LB)
    if OPT["tw"]: it[OPT["tw"]].post.append(touch)
    it[10].post.append(f"s_load_dword {sNON}, s[26:27], 0")
    it[first[7] - OPT["BLq"] - 1].post.append(nonce(lab))
    if OPT["ft"]: it[OPT["ft"]].post.append(ftouch)
    print(f"; Q first={first} kend={kend} gend={gend} X1={X1} X2={X2} late={late} use={use}", file=sys.stderr)
    return it, kend, gend, X1, X2, nq


def p2items(steps, bufs, nt3, tm=0):
    order = []
    for p in range(18): order += [(p, t) for t in range(4)]
    defer = [(p, 3) for p in range(18 - nt3, 18)]
    order = [o for o in order if o not in defer]
    if tm:
        assert tm <= nt3
        order = [o for o in order if o[0] < 18 - tm] + [(p, t) for t in range(3) for p in range(18 - tm, 18)]
    order += defer
    seen = set(); it = []
    for n, (p, t) in enumerate(order):
        breg, ar, off = steps[p]
        it.append(Item(ar[t & 1], off + (t >> 1) * 4096, 1024, bufs[n % len(bufs)], TACC + 16 * t, breg,
                       zero=(t not in seen), D=OPT["D2"]))
        seen.add(t)
    first = {p: min(i for i, (q, _) in enumerate(order) if q == p) for p in range(18)}
    return it, order, len(order) - nt3, first


aA, aB, aC = ("v6", "v7"), ("v8", "v9"), ("v10", "v11")
vXW, vXRd, vOA, vFA = "v12", "v24", "v25", "v27"


def p2addr():
    return [f"s_lshl_b32 {sT}, {sCLS}, 13",
            f"v_add_u32 v7, {sT}, {vT0}",
            "v_xor_b32 v6, 64, v7",
            f"v_add_u32 v8, {GB()}, v6",
            f"v_add_u32 v9, {GB()}, v7",
            f"s_lshl_b32 {sT}, {sCLS}, 11",
            f"s_add_u32 {sT}, {sT}, {XC()+16384}",
            f"v_add_u32 v11, {sT}, {vT0}",
            "v_xor_b32 v10, 64, v11"]


def p2misc():
    if OPT["asym"]: pass
    elif OPT["nx"]:
        g(f"s_lshl_b32 {sT}, {sW}, 11")
        g(f"s_add_u32 {sT}, {sT}, {XC()}")
        g(f"v_add_u32 {vXW}, {sT}, {vL16}")
        g(f"v_xor_b32 {vXRd}, 0x2000, {vXW}")
    else:
        g(f"s_lshl_b32 {sT}, {sW}, 13")
        g(f"v_add_u32 {vXW}, {sT}, {vL16}")
        g(f"v_xor_b32 {vXRd}, 0x8000, {vXW}")
    g(f"v_and_b32 {vOA}, 31, {vLANE}")
    g(f"v_lshlrev_b32 {vOA}, 10, {vOA}")
    g(f"v_lshrrev_b32 v3, 5, {vLANE}")
    g(f"v_lshl_add_u32 {vOA}, v3, 4, {vOA}")
    if OPT["asym"]:
        g(f"s_lshl_b32 {sT}, {sRW}, 12")
        g(f"s_add_u32 {sT2}, {sT}, {XC()}")
        g(f"v_add_u32 v3, {sT2}, {vL16}")
        g(f"s_lshl_b32 {sT}, {sRW}, 13")
        g(f"s_add_u32 {sT}, {sT}, {GB()}")
        g(f"v_add_u32 v19, {sT}, {vL16}")
        g(f"v_sub_u32 {vFA}, 19, {vLANE}")
        g(f"v_lshlrev_b32 {vFA}, 7, {vFA}")
        g(f"v_xor_b32 {vFA}, {sFP}, {vFA}")
        g(f"v_lshl_add_u32 {vFA}, {vLANE}, 2, {vFA}")
        return
    if OPT["nx"]:
        g(f"v_and_b32 v3, 4, {vLANE}")
        g(f"v_lshlrev_b32 v3, 9, v3")
        g(f"v_xor_b32 {vFA}, 3, {vLANE}")
        g(f"v_and_b32 {vFA}, 3, {vFA}")
        g(f"v_lshl_or_b32 {vFA}, {vFA}, 7, v3")
        g(f"v_xor_b32 {vFA}, {sFP}, {vFA}")
        g(f"v_lshl_add_u32 {vFA}, {vLANE}, 2, {vFA}")
        g(f"s_mul_i32 {sT}, {sCLS}, {8*12288}")
        g(f"s_add_u32 {sKV}, {sPART}, {OFFB + 4*12288:#x}")
        g(f"s_sub_u32 {sKV}, {sKV}, {sT}")
        return
    q2 = OPT["q2"] and ROLE[0] == "QQ"
    g(f"s_lshl_b32 {sT}, {sW}, 11")
    g(f"s_add_u32 {sT}, {sT}, {XC() + (16384 if q2 else 0)}")
    g(f"v_add_u32 v3, {sT}, {vL16}")
    g(f"v_xor_b32 v26, 0x2000, v3")
    g(f"v_sub_u32 {vFA}, 3, {vLANE}")
    g(f"v_lshlrev_b32 {vFA}, 7, {vFA}")
    g(f"v_xor_b32 {vFA}, {sFP}, {vFA}")
    g(f"v_lshl_add_u32 {vFA}, {vLANE}, 2, {vFA}")
    if q2:
        g(f"s_lshl_b32 {sT}, {sW}, 12")
        g(f"s_add_u32 {sT}, {sT}, {GB()}")
        g(f"v_add_u32 v19, {sT}, {vL16}")
        g(f"v_xor_b32 v21, 0x4000, v19")
        return
    g(f"v_add_u32 v19, {GB()}, {vXW}")
    g(f"v_add_u32 v21, {GB()}, {vXRd}")


def p2tail_asym(role, it, base, nx, XB, IDENT, vSC, order):
    N = len(it) - base
    cls = CLS[0]
    last = [max(i for i, o in enumerate(order) if o[1] == t) for t in range(3)]
    AR = (("v19", 0), ("v19", 32768), ("v3", 0))
    R = [XB[0], 32, XB[0]]
    X3, T3 = XB[0], TACC + 48
    H = 4 * 12288
    it[base + nx - 1].post.append(st("t012"))
    if OPT["tp"]: it[base + OPT["tp"]].post.append("s_setprio 1")
    if cls == 0:
        for t in range(3):
            a, o = AR[t]
            l = [(lambda i=i, t=t, a=a, o=o: g(f"ds_write_b128 {a}, {vr(TACC+16*t+4*i)} offset:{o+i*1024}", tag="xw")) for i in range(4)]
            w = 1 if t == 2 else max(1, min(2, last[t + 1] - last[t]))
            spread(it, base + last[t] + 1, base + last[t] + 1 + w, l)
        it[base + nx].post += [f"v_lshl_add_u32 {vPA}, {vLANE}, 2, {sFP}", f"s_mov_b32 {sDEC}, 0"] + (["s_setprio 0"] if OPT["tp"] else [])
        it[base + nx - 1 + OPT["k0"]].post += [lambda: g.wait(lg="xw"), "s_barrier", st("pst")]
        if OPT["apr"] not in (4, 5): it[base + N - 1 - OPT["prl"]].post.append(poll_issue)
        FR = [52, 56, 60, 32, 36, 40]
        GP = Grp(role + "pr", [(FR[2 * t + h], sPART, t * 4096 + h * H) for t in range(3) for h in range(2)],
                 each=lambda i, reg: mfma(TACC + 16 * (i & 1), vr(IDENT), vr(reg), vr(TACC + 16 * (i & 1), 16) if i > 1 else 0))
        def tail():
            L = GP.loads()
            def xb1():
                g("s_barrier")
                for i in range(4):
                    g(f"ds_read_b128 {vr(X3+4*i)}, v19 offset:{i*1024}", tag="xr3")
                stamp("xb1")
            def comb():
                g.wait(lg="xr3")
                for i in range(16): g(f"v_add_f32 v{X3+i}, v{T3+(i+8)%16}, v{X3+i}")
                for i in range(16): g(f"v_mul_f32 v{X3+i}, {vSC}, v{X3+i}")
            if OPT["apr"] == 0:
                xb1(); take(7)(); stamp("pflag"); emit(L); comb()
            elif OPT["apr"] == 1:
                take(1)(); emit(L[:2]); take(2, False)(); emit(L[2:4]); xb1(); take(4, False)(); stamp("pflag"); emit(L[4:]); comb()
            elif OPT["apr"] == 2:
                take(1)(); emit(L[:2]); take(2, False)(); emit(L[2:4]); take(4, False)(); emit(L[4:]); xb1(); stamp("pflag"); comb()
            elif OPT["apr"] == 3:
                take(1)(); emit(L[:2]); take(2, False)(); emit(L[2:4]); xb1(); comb(); take(4, False)(); stamp("pflag"); emit(L[4:])
            elif OPT["apr"] == 4:
                emit(L); xb1(); stamp("pflag"); comb()
            elif OPT["apr"] == 5:
                xb1(); emit(L); stamp("pflag"); comb()
            elif OPT["apr"] == 6:
                take(3)(); emit(L); xb1(); stamp("pflag"); comb()
            emit(GP.check())
            stamp("pok")
            for h in range(2):
                b = X3 + 8 * (1 - h)
                for i in range(8): g(f"v_fmac_f32 v{b+i}, {vSC}, v{TACC+16*h+i}")
                for i in range(4): g(f"v_cvt_pk_bf16_f32 v{b+i}, v{b+2*i}, v{b+2*i+1}")
                g(f"buffer_store_dwordx4 {vr(b)}, {vOA}, {SOUT}, {sOUT} offen offset:{32*h}")
            finish(role, None)
    else:
        def rd(t):
            a, o = AR[t]
            def f():
                for i in range(4): g(f"ds_read_b128 {vr(R[t]+4*i)}, {a} offset:{o+i*1024}", tag=f"xr{t}")
            return f
        it[base + last[0] - OPT["b1l"]].post += ["s_barrier", rd(0), rd(1)]
        prev = -1
        for t in range(3):
            T = TACC + 16 * t
            l = [f"s_xor_b32 {sST}, {sPART}, {(3-t) << 10:#x}"]
            if t: l.append(f"s_add_u32 {sST}, {sST}, {t*4096}")
            l.append(lambda t=t: g.wait(lg=f"xr{t}"))
            for h in range(2):
                b = T + 8 * h
                l += [f"v_add_f32 v{b+i}, v{b+i}, v{R[t]+(8*h+8+i)%16}" for i in range(8)]
                if t == 0 and h == 1: l.append(rd(2))
                l += [f"v_cvt_pk_bf16_f32 v{b+i}, v{b+2*i}, v{b+2*i+1}" for i in range(4)]
                l += tstore(b, sST, 0, tag="pst")
                if h == 0: l.append(f"s_sub_u32 {sST}, {sST}, {H}")
            def flag(t=t):
                g(f"s_mov_b64 exec, {1 << t}")
                g(f"buffer_store_dword {vNON}, {vFA}, {SWS}, 0 offen sc1", tag="pub")
                g("s_mov_b64 exec, -1")
            if OPT["apr"] not in (4, 5): l.append(flag)
            pos = max(last[t] + OPT["nxd"], prev + 1)
            w = 1 if t == 2 else max(1, min(4, last[t + 1] + OPT["nxd"] - pos))
            spread(it, base + pos, base + pos + w, l)
            prev = pos + w - 1
        it[base + prev].post.append(st("pst"))
        def tail():
            for i in range(4):
                g(f"ds_write_b128 v19, {vr(T3+4*i)} offset:{i*1024}", tag="xw")
            g.wait(lg="xw")
            g("s_barrier")
            stamp("xb1"); stamp("pflag"); stamp("pok")
            finish(role, None)
    tail.split = base + last[0] - OPT["b1l"]
    return tail


def p2tail_nx(role, it, base, nx, XB, IDENT, vSC, order):
    N = len(it) - base
    S = TACC
    FR = [52, 56, 60, XB[0], XB[0] + 4, XB[1]]
    GP = Grp(role + "pr", [(FR[2 * t + h], (sPART, sKV)[h], t * 4096) for t in range(3) for h in range(2)],
             each=lambda i, reg: mfma(S, vr(IDENT), vr(reg), vr(S, 16) if i else 0))
    def send(t):
        T = TACC + 16 * t
        l = [f"s_xor_b32 {sST}, {sPART}, {(3-t) << 10:#x}"]
        if t: l.append(f"s_add_u32 {sST}, {sST}, {t*4096}")
        for h in range(2):
            b = T + 8 * h
            l += [f"v_cvt_pk_bf16_f32 v{b+i}, v{b+2*i}, v{b+2*i+1}" for i in range(4)]
            l += tstore(b, sST, 0, tag="pst")
            if h == 0: l.append(f"s_add_u32 {sST}, {sST}, {OFFB:#x}")
        def flag():
            g(f"s_mov_b64 exec, {0x11 << t:#x}")
            g(f"buffer_store_dword {vNON}, {vFA}, {SWS}, 0 offen sc1", tag="pub")
            g("s_mov_b64 exec, -1")
        return l + [flag]
    it[base + nx - 1].post.append(st("t012"))
    prev = -1
    for t in range(3):
        last = max(i for i, o in enumerate(order) if o[1] == t)
        pos = max(last + OPT["nxd"], prev + 1)
        w = 1 if t == 2 else max(1, min(3, max(i for i, o in enumerate(order) if o[1] == t + 1) + OPT["nxd"] - pos))
        spread(it, base + pos, base + pos + w, send(t))
        prev = pos + w - 1
    it[base + prev].post += [f"v_lshl_add_u32 {vPA}, {vLANE}, 2, {sFP}", f"s_mov_b32 {sDEC}, 0", st("pst")]
    if OPT["tp"]:
        it[base + OPT["tp"]].post.append("s_setprio 1")
        it[base + prev].post.append("s_setprio 0")
    assert prev < N - 1 - OPT["prl"]
    it[base + N - 1 - OPT["prl"]].post.append(poll_issue)
    def tail():
        T3 = TACC + 48
        for i in range(2):
            g(f"ds_write_b128 {vXW}, {vr(T3+8+4*i)} offset:{i*1024}", tag="xw")
        g.wait(lg="xw")
        g("s_barrier")
        for i in range(2):
            g(f"ds_read_b128 {vr(XB[3]+4*i)}, {vXRd} offset:{i*1024}", tag="xr3")
        stamp("xb1")
        take(0x77)()
        stamp("pflag")
        emit(GP.loads())
        g.wait(lg="xr3")
        for i in range(8): g(f"v_add_f32 v{XB[3]+i}, v{T3+i}, v{XB[3]+i}")
        for i in range(8): g(f"v_mul_f32 v{XB[3]+i}, {vSC}, v{XB[3]+i}")
        emit(GP.check())
        stamp("pok")
        for i in range(8): g(f"v_fmac_f32 v{XB[3]+i}, {vSC}, v{S+i}")
        finish(role, XB)
    return tail


def p2tail(role, it, base, nx, XB, IDENT, vSC, order):
    if OPT["asym"]: return p2tail_asym(role, it, base, nx, XB, IDENT, vSC, order)
    if OPT["nx"]: return p2tail_nx(role, it, base, nx, XB, IDENT, vSC, order)
    PR = 52
    N = len(it) - base
    def xsend012():
        for t, (a, o) in enumerate((("v19", 0), ("v19", 2048), ("v3", 0))):
            for i in range(2):
                g(f"ds_write_b128 {a}, {vr(TACC+16*t+8+4*i)} offset:{o+i*1024}", tag="xw")
    def xrecv012():
        g.wait(lg="xw")
        g("s_barrier")
        for t, (a, o) in enumerate((("v21", 0), ("v21", 2048), ("v26", 0))):
            for i in range(2):
                g(f"ds_read_b128 {vr(XB[t]+4*i)}, {a} offset:{o+i*1024}", tag=f"xr{t}")
    def xfin(t):
        def f():
            g(f"s_xor_b32 {sT}, {sPART}, {(3-t) << 10:#x}")
            if t: g(f"s_add_u32 {sT}, {sT}, {t*4096}")
            g.wait(lg=f"xr{t}")
            for i in range(8): g(f"v_add_f32 v{XB[t]+i}, v{XB[t]+i}, v{TACC+16*t+i}")
            for i in range(4): g(f"v_cvt_pk_bf16_f32 v{XB[t]+i}, v{XB[t]+2*i}, v{XB[t]+2*i+1}")
            emit(tstore(XB[t], sT, 0, tag="pst"))
        return f
    GP = Grp(role + "pr", [(PR + 4 * t, sPART, t * 4096) for t in range(3)])
    it[base + nx - 1].post.append(st("t012"))
    def pflag():
        g("s_mov_b64 exec, 7")
        g(f"buffer_store_dword {vNON}, {vFA}, {SWS}, 0 offen sc1", tag="pub")
        g("s_mov_b64 exec, -1")
        g(f"v_lshl_add_u32 {vPA}, {vLANE}, 2, {sFP}")
        g(f"s_mov_b32 {sDEC}, 0")
    xs = [xsend012, xrecv012, xfin(0), xfin(1), lambda: (xfin(2)(), stamp("pst"))]
    k = {0: 4, 1: 0, 2: 1, 3: 2}[OPT["efp"]]
    if not OPT["pd"]: xs[k] = (lambda f: lambda: (f(), pflag()))(xs[k])
    pt = OPT["wpt" if role == "W" else "qpt"]
    if pt: it[base + pt].post.append(ptouch)
    p1 = OPT["wp1" if role == "W" else "qp1"]
    if p1:
        it[base + p1].post.append(prio1(1))
        it[base + nx + 1].post.append("s_setprio 0")
    def early():
        g.wait(vm="poll")
        g(f"v_cmp_eq_u32 vcc, {sNON}, {vPR}")
        g(f"s_and_b32 {sFA}, vcc_lo, 7")
        g(f"s_cmp_lg_u32 {sFA}, 7")
        g(f"s_cbranch_scc1 PE_{role}")
        with g.optional(): emit(GP.loads(False))
        g.label(f"PE_{role}")
    if OPT["pe"]:
        it[base + nx - OPT["pe"]].post += [f"v_lshl_add_u32 {vPA}, {vLANE}, 2, {sFP}", poll_issue]
        xs[1] = (lambda f: lambda: (f(), early()))(xs[1])
    for i, f in enumerate(xs): it[base + min(nx + i, N - 1)].post.append(f)
    if OPT["pd"]:
        for f in GP.loads(): it[base + N - 1 - OPT["prl"]].post.append(f)
    elif not OPT["pe"]: it[base + max(min(nx + 5, N - 1), N - 1 - OPT["prl"])].post.append(poll_issue)
    def tail():
        T3 = TACC + 48
        for i in range(2):
            g(f"ds_write_b128 {vXW}, {vr(T3+8+4*i)} offset:{i*1024}", tag="xw")
        g.wait(lg="xw")
        g("s_barrier")
        for i in range(2):
            g(f"ds_read_b128 {vr(XB[3]+4*i)}, {vXRd} offset:{i*1024}", tag="xr3")
        stamp("xb1")
        if OPT["pe"]:
            g(f"s_cmp_eq_u32 {sFA}, 7")
            g("s_waitcnt vmcnt(4)")
            g(f"s_cbranch_scc1 PF_{role}")
            with g.optional():
                g(f"s_mov_b32 {sMASK}, 7")
                g(f"s_call_b64 {sRET}, SPIN")
                g.block("SPIN", SPIN, align=3)
                emit(GP.loads(False))
                g("s_waitcnt vmcnt(0)")
            g.label(f"PF_{role}")
            stamp("pflag")
        elif not OPT["pd"]:
            take(7)()
            stamp("pflag")
            emit(GP.loads())
        g.wait(lg="xr3")
        for i in range(8): g(f"v_mul_f32 v{XB[3]+i}, {vSC}, v{XB[3]+i}")
        emit(GP.check())
        stamp("pok")
        for t in range(3):
            mfma(T3, vr(IDENT), vr(PR + 4 * t), vr(T3, 16))
        for i in range(8): g(f"v_fmac_f32 v{XB[3]+i}, {vSC}, v{T3+i}")
        finish(role, XB)
    return tail


def finish(role, XB):
    if True:
        if XB is not None:
            for i in range(4): g(f"v_cvt_pk_bf16_f32 v{XB[3]+i}, v{XB[3]+2*i}, v{XB[3]+2*i+1}")
            g(f"buffer_store_dwordx4 {vr(XB[3])}, {vOA}, {SOUT}, {sOUT} offen{' sc1' if OPT['osc'] else ''}")
        if STAMP:
            stamp("end")
            g(f"{'s_memtime' if OPT['rts'] else 's_memrealtime'} s[6:7]")
            g("s_waitcnt lgkmcnt(0)")
            g(f"v_writelane_b32 {vSTAMP}, s6, 60")
            g(f"v_writelane_b32 {vSTAMP}, s98, {len(SN[ROLE[0]])-1}")
            g(f"v_writelane_b32 {vSTAMP}, {sCNT}, 63")
            g(f"v_writelane_b32 {vSTAMP}, s3, 61")
            g("s_lshl_b32 s3, s2, 3")
            g(f"s_add_u32 s3, s3, {sW}")
            g("s_lshl_b32 s3, s3, 8")
            g(f"s_add_u32 s3, s3, {STP:#x}")
            g(f"v_lshlrev_b32 v9, 2, {vLANE}")
            g(f"buffer_store_dword {vSTAMP}, v9, {SWS}, s3 offen")
            if OPT["hd"]:
                nm = SN[ROLE[0]]
                sel = ["i31", "i95", "P2bar", "gook", "t012", "end"] if role == "W" else ["i31", "i95", "kvok", "ost", "t012", "end"]
                b0 = 1 if role == "W" else 7
                g(f"s_cmp_lg_u32 {sRW}, 0")
                g(f"s_cbranch_scc1 HD_{role}")
                g("s_memrealtime s[6:7]")
                g("v_mov_b32 v8, 0")
                g(f"v_readlane_b32 s4, {vSTAMP}, 0")
                for k, n_ in enumerate(sel):
                    g(f"v_readlane_b32 s5, {vSTAMP}, {nm.index(n_)}")
                    g("s_nop 1")
                    g("s_sub_u32 s5, s5, s4")
                    g(f"v_writelane_b32 v8, s5, {b0 + k}")
                g(f"v_readlane_b32 s5, {vSTAMP}, 62")
                g("s_nop 1")
                g("v_writelane_b32 v8, s5, 14")
                g("s_not_b32 s5, s5")
                g("v_writelane_b32 v8, s5, 15")
                g("s_waitcnt lgkmcnt(0)")
                g("v_writelane_b32 v8, s6, 13")
                g("s_mov_b64 exec, 0xffff")
                g(f"buffer_atomic_umax v8, v9, {SDBG}, 0 offen sc1")
                g.label(f"HD_{role}")
        if OPT["cal"] and role == "Q":
            g("s_cmp_lg_u32 s2, 0")
            g("s_cbranch_scc1 CAL_e")
            g.label("CAL_l")
            g(("s_memrealtime" if OPT["cal"] == 1 else "s_memtime") + " s[98:99]")
            g("s_waitcnt lgkmcnt(0)")
            g("s_sub_u32 s3, s98, s6")
            g(f"s_cmp_lt_u32 s3, {OPT['calx']}")
            g("s_cbranch_scc1 CAL_l")
            g.label("CAL_e")
        if OPT["hx"]:
            g("s_memrealtime s[6:7]")
            g("s_and_b32 s3, s2, 7")
            g("s_lshl_b32 s3, s3, 2")
            g("s_add_u32 s3, s3, 4")
            g("v_mov_b32 v8, s98")
            g("s_mov_b64 exec, 1")
            g(f"buffer_atomic_umax v8, off, {SDBG}, s3 sc1")
            g("s_waitcnt lgkmcnt(0)")
            g("s_bfe_u32 s3, s2, 0x20001")
            g("s_lshl_b32 s3, s3, 2")
            g("v_mov_b32 v9, s6")
            g(f"buffer_atomic_umax v9, off, {SDBG}, s3 offset:36 sc1")
            g("s_getreg_b32 s4, hwreg(HW_REG_XCC_ID)")
            g("s_and_b32 s4, s4, 15")
            g("s_and_b32 s3, s2, 7")
            g("s_lshl_b32 s3, s3, 2")
            g("s_lshl_b32 s4, s4, s3")
            g("v_mov_b32 v10, s4")
            g(f"buffer_atomic_or v10, off, {SDBG}, 0 offset:52 sc1")
        if role == "W" and CLS[0] == 0: g.label("END")
        g("s_endpgm")


def unit(regs, ar, off):
    return [(r, ar, off + s * 2048) for s, r in enumerate(regs)]


def WW():
    DS = OPT["ds"]
    b0, b1, b2, b3 = ("v38", "v39", "v40", "v41") if DS else ("v60", "v61", "v62", "v63")
    def bias0():
        g(f"""
        v_mov_b32 v24, 0x3f80
        v_mov_b32 v25, 0
        v_mov_b32 v26, 1.0
        v_mov_b32 v27, 0
        v_mov_b32 v28, 0
        v_mov_b32 v29, 0
        v_mov_b32 v30, 0
        v_mov_b32 v31, 0
        v_mov_b32 {vBIAS2}, 0
        v_mov_b32 {b2}, 0
        v_mov_b32 {b3}, 0
        s_lshl_b32 {sT}, {sCLS}, 6
        v_lshl_add_u32 {b0}, {vLANE}, 1, {sT}
        s_lshl_b32 {sT}, {sCLS}, 5
        v_lshl_add_u32 {b1}, {vLANE}, 1, {sT}
        """)
    def biasld():
        g("s_mov_b32 exec_hi, 0")
        g(f"buffer_load_ushort v28, {b0}, {SB}, {sP[0]} offen", tag="bias")
        g(f"buffer_load_ushort {b2}, {b0}, {SB}, {sP[1]} offen", tag="bias")
        g(f"buffer_load_ushort {vBIAS2}, {b0}, {SB}, {sP[2]} offen", tag="bias")
        g("s_mov_b32 exec_lo, 0xffff")
        g(f"buffer_load_ushort {b3}, {b1}, {SB}, {sP[3]} offen", tag="bias")
        g("s_mov_b64 exec, -1")
    def u0():
        g(f"""
        v_and_b32 v37, 31, v32
        v_lshrrev_b32 v38, 2, v33
        v_lshl_add_u32 v38, v38, 5, v37
        v_mul_lo_u32 v38, v38, {sSTR}
        v_and_b32 v37, 3, v33
        v_lshl_add_u32 v38, v37, 4, v38
        v_add_u32 {vUD}, {sP[3]}, v38
        """)
        du(0, "ck2")()
    if DS:
        if OPT["ue"]: u0()
    else:
        bias0()
        du(0, "ck2")()
        biasld()
    def uitem(c, j, buf):
        return Item(vU, c * 4096 + j * 2048, 512, buf, ACC3, XR + 16 * c + 4 * j, zero=(c == 0 and j == 0), D=OPT["D"])
    if OPT["il"]: return WWi(uitem)
    wb = WBs(); wc = WCs()
    it = phase1("T", [64, 68, 72, 76, 100, 108], "Wn", uitem,
                {1: [du(1, "ck4")], 3: [du(2, "ck6")], 4: [du(3, "ck7")]},
                wb[1:3] + wc[:1] + wb[3:4] + wc[1:6], wb[4:] + wc[6:], [u0] if DS and not OPT["ue"] else [])
    def bias1():
        g.wait(vm="bias")
        g(f"v_lshl_or_b32 v28, {b2}, 16, v28")
        g(f"v_lshl_or_b32 {vBIAS2}, {b3}, 16, {vBIAS2}")
    o = 12 if DS else 0
    if DS:
        it[6].post.append(bias0); it[7].post.append(biasld)
    it[26 if DS else 7].post.append(bias1)
    it[19 + o].post.append(lambda: mfma(ACC0, "v[28:31]", "v[24:27]", vr(ACC0, 16)))
    it[21 + o].post.append(lambda: mfma(ACC1, "v[28:31]", "v[26:29]", 0))
    it[PB].zero = False
    it[23 + o].post.append(f"v_mov_b32 v28, {vBIAS2}")
    it[27 + o].post.append(lambda: mfma(ACC3, "v[28:31]", "v[26:29]", vr(ACC3, 16)))
    it[PC].post.append(lambda: mfma(ACC2, "v[28:31]", "v[24:27]", vr(ACC2, 16)))
    it[30 + o].post.append(f"s_add_u32 {sST}, {sAp}, 0x1000")
    Ga = Grp("Wga", [(128, sAo, 0), (132, sAo, 1024)])
    Gb = Grp("Wgq", [(140, sAo, 2048), (144, sAo, 3072), (136, sAo, 6144)])
    Gc = Grp("Wgc", [(148, sAo, 4096), (152, sAo, 5120)])
    Go = Grp("Wgo", [(156, sAp, 7168), (160, sAp, 8192), (172, sAp, 9216), (164, sAo, 7168), (168, sAo, 8192)])
    def xw():
        g(f"s_and_b32 {sT}, {sRm}, 0x1fff")
        g(f"s_add_u32 {sT}, {sT}, {LC}")
        g(f"v_add_u32 {vUD}, {sT}, {vL16}")
        g(f"v_xor_b32 {vU}, 0x1000, {vUD}")
        for i in range(2): g(f"ds_write_b128 {vU}, {vr(ACC3+8+4*i)} offset:{i*8192}", tag="xw")
    def xrd():
        for i in range(2): g(f"ds_read_b128 {vr(ACC3+8+4*i)}, {vUD} offset:{i*8192}", tag="xu")
    it[OPT['xwp']].post.append(xw)
    it[PB + 16].bar.update(lg=["xw"], after=[xrd])
    G1 = D2A("G1")
    G1[0] = (lambda f: lambda: (g.wait(lg="xu"), f()))(G1[0])
    place(it, OPT["g0"], OPT["g1"], D2A("G0") + G1, it[PB + 16])
    assert OPT["ea1"] <= PC - 2 and OPT["eu0"] >= PB + 16 - OPT["BL2"] and OPT["eu0"] >= OPT["ea1"] and OPT["eb0"] >= OPT["eu1"]
    spread(it, OPT["ea0"], OPT["ea1"], EH(ACC0, sAp, 0) + EH(ACC0 + 8, sAp, 1024, ACC0) + [publish(0)])
    eu = [lambda: g.wait(lg="xu")] + [f"v_add_f32 v{ACC3+i}, v{ACC3+i}, v{ACC3+8+i}" for i in range(8)] + \
        EH(ACC3, sST, 2048, ACC0 + 8) + ([publish(1)] if OPT["q2"] else []) + [st("ust")]
    it[OPT["eu0"]].post.append(need(it[PB + 16]))
    spread(it, OPT["eu0"], OPT["eu1"], eu)
    spread(it, OPT["eb0"], OPT["eb1"], EH(ACC1, sAp, 2048, ACC3) + EH(ACC1 + 8, sAp, 3072, ACC1) + [publish(2), st("bst")])
    o0, o1 = MAP["WW"][1:3]
    steps = unit((ACC0, ACC0 + 8), aB, o0) + unit((ACC1, ACC1 + 8), aB, o1) + \
        unit((128, 132), aB, o0 + 16384) + unit((140, 144), aB, o1 + 16384) + \
        unit((ACC3,), aC, 0) + unit((136,), aC, 8192) + \
        unit((ACC2, ACC2 + 8), aA, 0)
    sc_ = unit((148, 152), aA, 16384); so_ = unit((156, 160), aA, 32768) + unit((164, 168), aA, 32768 + 16384)
    steps += so_ + sc_ if OPT["wo2"] else sc_ + so_
    fc, fo = (16, 12) if OPT["wo2"] else (12, 14)
    p2, order, nx, first = p2items(steps, [116, 124, 72, 76, 108, 64, 68], OPT["wt3"], OPT["wtm"])
    B = len(it); it += p2
    assert B == P2
    it[B - 2].post += untag(ACC1 + 8)
    assert OPT["eb1"] <= B - OPT["D2"] - 1
    if OPT["wb3"]:
        M, N = OPT["wM"], B + OPT["wN"]
        assert M >= PC + 16 and OPT["g1"] <= M - 6 and B + 3 <= N <= B + first[8]
        it[M].bar = dict(vm=["wG0", "wG1"], lead=3, drain=True, after=[st("Mbar")])
        place(it, M - 3, B - 2, D2A("U") + D2A("P2"), it[M])
        it[B].rpre += p2addr()
        it[N].bar = dict(vm=["wU", "wP2"], lead=3, after=[st("Nbar")])
        place(it, N - 3, N + 5, D2A("O"), it[N])
        it[B + first[14]].bar = dict(vm=["wO"], lead=OPT["D2"])
    else:
        it[B].bar = dict(vm=["wG0", "wG1"], lead=OPT["D2"], drain=True, after=p2addr() + [st("P2bar")])
        place(it, B + OPT["wpd0"], B + OPT["wpd"], D2A("U") + D2A("P2") + D2A("O"), it[B])
    spread(it, B + OPT["ec0"], B + OPT["ec1"], EH(ACC2, sST, 0) + EH(ACC2 + 8, sST, 1024, ACC2) + [publish(3), st("cst")])
    assert OPT["ec1"] <= first[10] - 3
    it[B + first[10] - 2].post += untag(ACC2 + 8)
    assert OPT["wga"] >= PC + 3
    fetch(it, OPT["wga"], Ga.loads(), 0x1000, B - 6, pl=OPT["lpl"], pre=setFA(), post=[st("gafl")])
    spread(it, B - 7, B - 5, Ga.check() + [st("gaok")])
    fetch(it, B + OPT["wgb"], Gb.loads(), 0x4000, B + first[6] - 4, pl=OPT["lpl"], pre=setFA() if OPT["ssp"] == 3 else [], post=[st("gbfl")])
    spread(it, B + first[6] - 2, B + first[6], Gb.check() + [st("gbok")])
    it[B + first[10] + 1].post += [p2misc, ident(100)]
    if OPT["wb3"]: pass
    elif OPT["wob"]:
        it[B + first[8]].bar = dict(vm=["wU", "wP2"], lead=OPT["D2"])
        it[B + first[14]].bar = dict(vm=["wO"], lead=OPT["D2"])
    else:
        it[B + first[8]].bar = dict(vm=["wU", "wP2", "wO"], lead=OPT["D2"])
    f1 = lambda: fetch(it, B + OPT["wgc"], Gc.loads(), 0x8000, B + first[fc] - 4, pl=OPT["lpl"], post=[st("gcfl")])
    f2 = lambda: fetch(it, B + OPT["wgo"], Go.loads(), 0x0011, B + first[fo] - 4, pl=OPT["lpl"], post=[st("gofl")])
    for f in ((f1, f2) if OPT["wgc"] < OPT["wgo"] else (f2, f1)): f()
    spread(it, B + first[fc] - 2, B + first[fc], Gc.check() + [st("gcok")])
    spread(it, B + first[fo] - 3, B + first[fo], Go.check() + [st("gook")])
    assert OPT["wgc"] < first[fc] - 3 and OPT["wgo"] < first[fo] - 3 and OPT["wgb"] < first[6] - 3 and OPT["wga"] + 1 < B - 7
    tail = p2tail("W", it, B, nx, [176, 184, 32, 40], 100, "v174", order)
    run(it, tail)


def WWi(uitem):
    wc = WCs()
    k6 = OPT["cb6"] or OPT["ea1"] + OPT["DP"] + 1
    cb = []; n4 = 0
    for s in range(32):
        ring = [64, 68, 72, 76] if PC + s < k6 else [64, 68, 72, 76, 100, 108]
        rec = cb[-(len(ring) - 1):]
        cand = [r for r in ring if r not in rec]
        cb.append(min(cand, key=lambda r: max([i for i, x in enumerate(cb) if x == r], default=-1)))
    it, fs = phase1i("T", cb, "Wn", uitem, {1: [du(1, "ck4")], 3: [du(2, "ck6")], 4: [du(3, "ck7")]},
                     {5: wc[0:2], 6: wc[2:4], 7: wc[4:6]})
    def bias1():
        g.wait(vm="bias")
        g("v_lshl_or_b32 v28, v62, 16, v28")
        g(f"v_lshl_or_b32 {vBIAS2}, v63, 16, {vBIAS2}")
    it[17].post.append(bias1)
    it[28].post.append(lambda: mfma(ACC0, "v[28:31]", "v[24:27]", vr(ACC0, 16)))
    it[31].post.append(lambda: mfma(ACC1, "v[28:31]", "v[26:29]", vr(ACC1, 16)))
    it[38].post.append(f"v_mov_b32 v28, {vBIAS2}")
    it[44].post.append(lambda: mfma(ACC3, "v[28:31]", "v[26:29]", vr(ACC3, 16)))
    it[PC].post.append(lambda: mfma(ACC2, "v[28:31]", "v[24:27]", vr(ACC2, 16)))
    it[30].post.append(f"s_add_u32 {sST}, {sAp}, 0x1000")
    um = OPT["um"]
    Ga = Grp("Wga", [(128, sAo, 0), (132, sAo, 1024)])
    Gb = Grp("Wgq", [(140, sAo, 2048), (144, sAo, 3072)])
    Gc = Grp("Wgc", [(148, sAo, 4096), (152, sAo, 5120)] + ([(136, sAo, 6144)] if um else []))
    Gu = Grp("Wgp", [(136, sAo, 6144)])
    Go = Grp("Wgo", [(156, sAp, 7168), (160, sAp, 8192), (172, sAp, 9216), (164, sAo, 7168), (168, sAo, 8192)])
    def xw():
        g(f"s_lshl_b32 {sT}, {sW}, 11")
        g(f"s_add_u32 {sT}, {sT}, {XC()}")
        g(f"v_add_u32 {vU}, {sT}, {vL16}")
        g(f"v_xor_b32 {vUD}, 0x2000, {vU}")
        for i in range(2): g(f"ds_write_b128 {vU}, {vr(ACC3+8+4*i)} offset:{i*1024}", tag="xw")
    def xrd():
        for i in range(2): g(f"ds_read_b128 {vr(ACC3+8+4*i)}, {vUD} offset:{i*1024}", tag="xu")
    assert OPT["xwp"] >= PC
    it[OPT['xwp']].post.append(xw)
    M = PC + 16
    a0 = PC - OPT["BL2"]
    place(it, a0, OPT["gw1"], wc[6:] + D2A("G0") + D2A("G1") + D2A("U"), it[PC])
    assert OPT["ea0"] >= fs[7] + 3 and OPT["eb0"] >= OPT["ea1"] and OPT["eb0"] >= fs[7] + 7
    spread(it, OPT["ea0"], OPT["ea1"], EH(ACC0, sAp, 0) + EH(ACC0 + 8, sAp, 1024, ACC0) + [publish(0), st("ast")])
    spread(it, OPT["eb0"], OPT["eb1"], EH(ACC1, sAp, 2048, ACC0 + 8) + EH(ACC1 + 8, sAp, 3072, ACC1) + [publish(2), st("bst")])
    o0, o1 = MAP["WW"][1:3]
    U = dict(a=unit((ACC0, ACC0 + 8), aB, o0), b=unit((ACC1, ACC1 + 8), aB, o1), A=unit((128, 132), aB, o0 + 16384),
             B=unit((140, 144), aB, o1 + 16384), u=unit((ACC3,), aC, 0), U=unit((136,), aC, 8192), c=unit((ACC2, ACC2 + 8), aA, 0),
             C=unit((148, 152), aA, 16384), O=unit((156, 160), aA, 32768) + unit((164, 168), aA, 32768 + 16384))
    so = ["abABcuCOU", "abABcuCUO", "abABcuOCU", "abAcBuCOU"][OPT["wo2"]]
    steps = []; fp = {}
    for k in so: fp[k] = len(steps); steps += U[k]
    p2, order, nx, first = p2items(steps, [116, 124, 72, 76, 108, 64, 68], OPT["wt3"], OPT["wtm"])
    F = {k: P2 + first[v] for k, v in fp.items()}
    B = len(it); it += p2
    assert B == P2
    it[B - 2].post += untag(ACC1 + 8)
    assert OPT["eb1"] <= B - OPT["D2"] - 1
    xb = it[M] if OPT["xwp"] < M - OPT["BL3"] else it[B]
    assert OPT["xwp"] < B - OPT["D2"]
    if OPT["p2e"]:
        place(it, max(M - OPT["BL3"], OPT["gw1"]), B - OPT["D2"] - OPT["p2e"], D2A("P2"), it[M])
        it[B].bar = dict(vm=["wG0", "wG1", "wU", "wP2"], lead=OPT["D2"], drain=True, after=p2addr() + [st("P2bar")])
        place(it, B + OPT["wpd0"], B + OPT["wpd"], D2A("O"), it[B])
        it[F["O"]].bar = dict(vm=["wO"], lead=OPT["D2"])
    else:
        it[B].bar = dict(vm=["wG0", "wG1", "wU"], lead=OPT["D2"], drain=True, after=p2addr() + [st("P2bar")])
        place(it, B + OPT["wpd0"], B + OPT["wpd"], D2A("P2") + D2A("O"), it[B])
        it[F["c"]].bar = dict(vm=["wP2", "wO"], lead=OPT["D2"])
    xb.bar["lg"] = ["xw"]; xb.bar["after"] = [xrd] + xb.bar["after"]
    spread(it, B + OPT["ec0"], B + OPT["ec1"], EH(ACC2, sST, 0) + EH(ACC2 + 8, sST, 1024, ACC2) + ([] if um else [publish(3)]) + [st("cst")])
    assert B + OPT["ec1"] <= F["c"] - 1 and OPT["eu0"] >= OPT["ec1"] and B + OPT["eu0"] <= F["c"] + 1 and B + OPT["eu1"] <= F["u"] - 2
    eu = [lambda: g.wait(lg="xu")] + [f"v_add_f32 v{ACC3+i}, v{ACC3+i}, v{ACC3+8+i}" for i in range(8)]
    eu = untag(ACC2 + 8) + eu + EH(ACC3, sST, 2048) + [publish(3 if um else 1), st("ust")]
    spread(it, B + OPT["eu0"], B + OPT["eu1"], eu)
    it[F["u"] - 2].post += untag(ACC3)
    assert OPT["wga"] >= PC + 3
    ca = F["A"] - 2 if OPT["gac"] else B - 7
    fl = [(OPT["wga"], Ga, 0x1000, ca, 2, "ga"), (B + OPT["wgb"], Gb, 0x4000, F["B"] - 2, 2, "gb"),
          (B + OPT["wgc"], Gc, 0x8000, F["C"] - 2, 2, "gc"), (B + OPT["wgo"], Go, 0x0011, F["O"] - 3, 3, "go")]
    if not um: fl.append((B + OPT["wgu"], Gu, 0x2000, F["U"] - 1, 1, "gu"))
    else: assert F["U"] > F["C"]
    for n_, (pos, G, mask, cp, w, nm) in enumerate(sorted(fl, key=lambda x: x[0])):
        assert pos < cp - 1, (nm, pos - B, cp - B)
        fetch(it, pos, G.loads(), mask, cp - 2, pl=OPT["lpl"], pre=setFA() if n_ == 0 else [], post=[st(nm + "fl")])
    for pos, G, mask, cp, w, nm in fl: spread(it, cp, cp + w, G.check() + [st(nm + "ok")])
    it[F["u"] + 1].post += [p2misc, ident(100)]
    tail = p2tail("W", it, B, nx, [176, 184, 32, 40], 100, "v174", order)
    run(it, tail)


def QQ():
    def g0():
        if OPT["ds"]: g(f"v_lshlrev_b32 {vL16}, 4, {vLANE}")
        emit([f"s_lshl_b32 {sT}, {sROT}, 7", f"v_xor_b32 {vUD}, {sT}, {vL16}", f"s_add_u32 m0, {sW1K}, {LB+7*8192:#x}",
              f"s_lshl_b32 {sT}, {sCLS}, 6", f"s_add_u32 {sT}, {sT}, m0"])
        g(f"buffer_load_dwordx4 {vUD}, {SB}, 0 offen lds", tag="gate")
        emit([f"v_lshl_add_u32 {vU}, v35, 4, {sT}"] if OPT["ds"] else [f"v_lshrrev_b32 {vU}, 5, {vLANE}", f"v_lshl_add_u32 {vU}, {vU}, 4, {sT}"])
    late0 = OPT["ds"] and not OPT["ue"]
    if not late0: g0()
    def gitem(c, j, buf):
        x = Item(vU, c * 128 + j * 32, None, buf, ACC3, XR + 16 * c + 4 * j, zero=(c == 0 and j == 0), D=OPT["D"])
        if c == 0 and j == 0: x.rvm = ["gate"]
        return x
    wb = WBs(); wc = WCs()
    IL = OPT["il"]
    vLG, vLG2 = "v19", "v21"
    if IL:
        it, fs = phase1i("N", [64, 68, 72, 76] * 8, "Qn", gitem, {}, {5: wc[0:2], 6: wc[2:4], 7: wc[4:6]})
        it[PC].post.append(f"v_mov_b32 {vLG}, v{ACC3}")
        OPT["qlb"] = PC + 16
    elif OPT["iq"]:
        it, kend, gend, X1, X2, nq = phase1q("N", [64, 68, 72, 76], "Qn", gitem)
        it[gend + 1].post.append(f"v_mov_b32 {vLG}, v{ACC3}")
    else:
        it = phase1("N", [64, 68, 72, 76], "Qn", gitem, {}, wb[1:3] + wc[:1] + wb[3:7] + wc[1:3], wb[7:] + wc[3:], [g0] if late0 else [])
        it[PB + 1].post.append(f"v_mov_b32 {vLG}, v{ACC3}")
    VO = 32768 if OPT["vlb"] else 16384
    it[2].post += [f"s_lshl_b32 {sT}, {sW}, 11", f"s_add_u32 {sT}, {sT}, {LC}", f"v_add_u32 v24, {sT}, {vL16}",
                   f"s_and_b32 {sT}, {sRW}, 1", f"s_lshl_b32 {sT}, {sT}, 13", f"s_add_u32 {sT}, {sT}, {LC}",
                   f"v_add_u32 v25, {sT}, {vL16}"]
    it[4].post += [f"v_mov_b32 v{28+i}, 0x3f803f80" for i in range(4)] + \
                  [f"s_cmp_lt_u32 {sRW}, 2", "s_mov_b32 s5, 0xffff", "s_cselect_b32 s4, s5, 0xffff0000", "s_mov_b32 s5, s4",
                   f"v_add_u32 v26, 1024, {vL16}", f"v_cndmask_b32_e64 v26, v26, {vL16}, {sMK}"]
    def fw(reg, off):
        return lambda: g(f"ds_write_b128 v24, {vr(reg)} offset:{off}", tag="fw")
    vp = []
    for q in range(2):
        vp += [f"v_cvt_pk_bf16_f32 v{ACC1+8*q+i}, v{ACC1+8*q+2*i}, v{ACC1+8*q+2*i+1}" for i in range(4)] + [fw(ACC1 + 8 * q, VO + q * 1024)]
    if IL:
        assert OPT["pk0"] >= fs[7] + 3 and OPT["vp0"] >= fs[7] + 7 and OPT["jb"] >= max(OPT["pk1"] - 1, OPT["vp0"], PC)
        if not OPT["vlb"]: it[OPT["vp0"]].post.append(need(it[PC]))
        it[OPT["vp0"]].post += vp
        spread(it, OPT["pk0"], OPT["pk1"], PH(ACC0) + [fw(ACC0, 0)] + PH(ACC0 + 8) + [fw(ACC0 + 8, 1024)])
    elif OPT["iq"]:
        spread(it, kend, OPT["pk1"], PH(ACC0) + [fw(ACC0, 0)] + PH(ACC0 + 8) + [fw(ACC0 + 8, 1024)])
        it[PC].post += vp
    else:
        spread(it, OPT["ea0"], OPT["pk1"], PH(ACC0) + [fw(ACC0, 0)] + PH(ACC0 + 8) + [fw(ACC0 + 8, 1024)])
        it[PC].post += vp
    def kflag():
        g(f"s_and_b32 {sT2}, {sRW}, 1")
        g(f"s_lshl_b32 {sT2}, {sT2}, 8")
        g(f"s_and_b32 {sT}, {sRB}, 8")
        g(f"s_lshl_b32 {sT}, {sT}, 4")
        g(f"s_add_u32 {sT2}, {sT2}, {sT}")
        g(f"s_lshl_b32 {sT}, {sR8}, 3")
        g(f"s_add_u32 {sT2}, {sT2}, {sT}")
        g(f"s_and_b32 {sT}, {sRW}, 2")
        g(f"s_lshl_b32 {sT}, {sT}, 1")
        g(f"s_add_u32 {sT2}, {sT2}, {sT}")
        g(f"s_add_u32 {sT2}, {sT2}, {sFK}")
        g("s_mov_b64 exec, 1")
        g(f"buffer_store_dword {vNON}, off, {SWS}, {sT2} sc1")
        g(f"buffer_store_dword {vNON}, off, {SWS}, {sT2} offset:512")
        g("s_mov_b64 exec, -1")
    def jst(n):
        if OPT["js"]: g("s_waitcnt lgkmcnt(0)"); stamp(n)
    def job():
        g.wait(lg="fw", vm=[f"wc{c}" for c in range(8)] if OPT["iq"] else None)
        jst("j0")
        g("s_barrier")
        jst("j1")
        g(f"s_cmp_lg_u32 {sCLS}, 0")
        g("s_cbranch_scc1 Q_nojob")
        with g.optional():
            g("s_setprio 3")
            g(f"s_cmp_lt_u32 {sRW}, 2")
            g("s_cbranch_scc1 Q_jobc")
            with g.optional():
                for k in range(8): g(f"ds_read_b128 {vr(96+4*k)}, v25 offset:{k*1024}", tag=f"a{k}")
                if OPT["efk"]: kflag()
                for k in range(8):
                    g.wait(lg=f"a{k}")
                    mfma(ACC3, vr(96 + 4 * k), "v[28:31]", vr(ACC3, 16) if k else 0)
                g("s_branch Q_jobf")
            g.label("Q_jobc")
            for k in range(8):
                g(f"ds_read_b128 {vr(96+4*k)}, v25 offset:{k*1024}", tag=f"a{k}")
                if k < 4: g(f"ds_read_b128 {vr(TMP+4*k)}, v25 offset:{VO+k*1024}", tag=f"a{k}")
            if OPT["efk"]: kflag()
            for k in range(8):
                g.wait(lg=[f"a{k}", f"b{k}"])
                mfma(ACC3, vr(96 + 4 * k), vr(TMP + 4 * k) if k < 4 else vr(96 + 4 * (k - 4)), vr(ACC3, 16) if k else 0)
                if k < 4: g(f"ds_read_b128 {vr(96+4*k)}, v25 offset:{VO+(k+4)*1024}", tag=f"b{k+4}")
            g.label("Q_jobf")
            g(f"s_lshl_b32 {sT}, {sRB}, 12")
            g(f"s_and_b32 {sT2}, {sRW}, 1")
            g(f"s_lshl_b32 {sT2}, {sT2}, 11")
            g(f"s_add_u32 {sT}, {sT}, {sT2}")
            g(f"s_add_u32 {sT}, {sT}, {sKV}")
            for i in range(4): g(f"v_cvt_pk_bf16_f32 v{TMP+i}, v{ACC3+8+2*i}, v{ACC3+8+2*i+1}")
            g(f"s_mov_b64 exec, {sMK}")
            for i in range(4): g(f"v_cvt_pk_bf16_f32 v{TMP+i}, v{ACC3+2*i}, v{ACC3+2*i+1}")
            g("s_mov_b64 exec, -1")
            emit(tstore(TMP, sT, 0)[:2])
            g(f"buffer_store_dwordx4 {vr(TMP)}, v26, {SWS}, {sT} offen sc1")
            if not OPT["efk"]: kflag()
            g("s_setprio 0")
        g.label("Q_nojob")
        g(f"s_lshr_b32 {sT}, {sRW}, 1")
        g(f"s_lshl_b32 {sT}, {sT}, 15")
        g(f"s_add_u32 {sKV}, {sKV}, {sT}")
        g(f"s_and_b32 {sT}, {sRW}, 1")
        g(f"s_lshl_b32 {sT2}, {sCLS}, 1")
        g(f"s_add_u32 {sT}, {sT}, {sT2}")
        g(f"s_lshl_b32 {sT}, {sT}, 10")
        g(f"s_add_u32 {sKV}, {sKV}, {sT}")
        g(f"s_add_u32 {sST}, {sAp}, 7168")
    it[OPT["jb"]].post += [job, st("job")]
    if IL:
        M = PC + 16; M0 = M - OPT["BL3"]
        assert M0 > OPT["jb"]
        place(it, PC - OPT["BL2"], PC - OPT["BL2"] + 2, wc[6:], it[PC])
        if OPT["vlb"]:
            place(it, OPT["qg0"], OPT["qgw1"], D2A("G0") + D2A("U"), it[PC])
            late = D2A("G1")
        else:
            place(it, OPT["qg0"], OPT["qgw1"], D2A("G0") + D2A("G1"), it[PC])
            late = D2A("U")
        if OPT["p2e"]: late += D2A("O" if OPT["qoc"] else "P2")
        place(it, max(M0, OPT["qg1"]), max(M0, OPT["qg1"]) + OPT["qgw"], late, it[M])
    else:
        if OPT["iq"]: assert OPT["qg0"] > OPT["jb"] and OPT["jb"] + 4 < PC + 4 * nq
        place(it, OPT["qg0"], OPT["qg0"] + OPT["qgw"], D2A("G0"), None if OPT["iq"] else it[PB + 16])
        qg1 = OPT["qg1"] or OPT["jb"] + 1
        assert qg1 > OPT["jb"]
        place(it, qg1, qg1 + OPT["qgw"], D2A("G1"))
    if IL: pass
    elif not OPT["kq"]:
        it[OPT["qlb"]].bar = dict(lead=2)
        assert OPT["qlb"] - 2 > OPT["jb"]
        place(it, OPT["qlb"] - 2, OPT["qlb"], D2A("U"), it[OPT["qlb"]])
    KR = [128 + 4 * r for r in range(8)]
    Gk = Grp("Qkv", [(KR[r], sKV, r * 4096) for r in range(8)],
             each=(lambda r, reg: mfma(ACC3, vr(28), vr(reg), vr(ACC3, 16) if r else 0)) if OPT["kpi"] else None)
    Gp = Grp("Qgp", [(96, sAp, 0), (100, sAp, 1024), (104, sAo, 0), (108, sAo, 1024)])
    Gq = Grp("Qgq", [(112, sAp, 6144), (116, sAo, 6144), (160, sAp, 2048), (164, sAp, 3072), (168, sAo, 2048), (172, sAo, 3072)])
    Gc = Grp("Qgc", [(144, sAp, 4096), (148, sAp, 5120), (152, sAo, 4096), (156, sAo, 5120)])
    Go = Grp("Qgo", [(176, sAo, 7168), (180, sAo, 8192)])
    IDENT = 28
    OO, SCQ = 120, 188
    def ksum():
        stamp("kvok")
        if OPT["kpr"]: g(f"s_setprio {OPT['kpr']}")
        if OPT["efo"] == 2: publish(0)()
        if not OPT["kpi"]:
            for r in range(8): mfma(ACC3, vr(IDENT), vr(KR[r]), vr(ACC3, 16) if r else 0)
        for i in range(4): g(f"v_cvt_pk_bf16_f32 v{TMP+i}, v{ACC3+2*i}, v{ACC3+2*i+1}")
        g(f"ds_write_b128 v24, {vr(TMP)}", tag="kw")
        if OPT["kpr"]: g("s_setprio 0")
    def kx():
        g(f"ds_read_b32 {vLG2}, v27 offset:8192", tag="kl")
        for r in range(4): g(f"ds_read_b128 {vr(KR[r])}, v25 offset:{r*1024}", tag=f"kr{r}")
        if OPT["efo"] == 1: publish(0)()
    def ko():
        if OPT["kpr"]: g(f"s_setprio {OPT['kpr']}")
        g.wait(lg="kl")
        g(f"v_add_f32 {vLG}, {vLG}, {vLG2}")
        g(f"v_mul_f32 {vLG}, {sLOG2E}, {vLG}")
        g(f"v_min_f32 {vLG}, 0x42640000, {vLG}")
        g(f"v_exp_f32 {vLG}, {vLG}")
        for r in range(4):
            g.wait(lg=f"kr{r}")
            acc = (TMP, ACC3)[r & 1]
            mfma(acc, vr(KR[r]), vr(ACC2 + 8 * (r & 1)), vr(acc, 16) if r >= 2 else 0)
        g(f"v_add_f32 v{SCQ+2}, 1.0, {vLG}")
        g(f"v_rcp_f32 v{SCQ+2}, v{SCQ+2}")
        g(f"v_mov_b32 v{SCQ}, {TG0}")
        g(f"v_mov_b32 v{SCQ+1}, {TG1}")
        g(f"buffer_store_dwordx4 {vr(SCQ)}, {vL16}, {SWS}, {sST} offen offset:2048{LSC}", tag="st")
        for hd, (num, den) in enumerate(((TMP, TMP + 8), (ACC3 + 8, ACC3))):
            g(f"v_add_f32 v{den}, {sEPS}, v{den}")
            g(f"v_rcp_f32 v{den}, v{den}")
            g(f"v_mul_f32 v{den}, {vLG}, v{den}")
            for i in range(8): g(f"v_mul_f32 v{num+i}, v{den}, v{num+i}")
            for i in range(4): g(f"v_cvt_pk_bf16_f32 v{OO+4*hd+i}, v{num+2*i}, v{num+2*i+1}")
            emit(tstore(OO + 4 * hd, sST, hd * 1024))
        if OPT["efo"] == 0: publish(0)()
        if OPT["kpr"]: g("s_setprio 0")
        emit(untag(OO) + untag(OO + 4))
        stamp("ost")
    def kol():
        l = [lambda: g.wait(lg="kl"), f"v_add_f32 {vLG}, {vLG}, {vLG2}", f"v_mul_f32 {vLG}, {sLOG2E}, {vLG}",
             f"v_min_f32 {vLG}, 0x42640000, {vLG}", f"v_exp_f32 {vLG}, {vLG}"]
        def mm(r):
            g.wait(lg=f"kr{r}")
            acc = (TMP, ACC3)[r & 1]
            mfma(acc, vr(KR[r]), vr(ACC2 + 8 * (r & 1)), vr(acc, 16) if r >= 2 else 0)
        l += [(lambda r=r: mm(r)) for r in (0, 2, 1, 3)]
        l2 = [f"v_add_f32 v{SCQ+2}, 1.0, {vLG}", f"v_rcp_f32 v{SCQ+2}, v{SCQ+2}", f"v_mov_b32 v{SCQ}, {TG0}", f"v_mov_b32 v{SCQ+1}, {TG1}"]
        stq = [lambda: g(f"buffer_store_dwordx4 {vr(SCQ)}, {vL16}, {SWS}, {sST} offen offset:2048{LSC}", tag="st")]
        for hd, (num, den) in enumerate(((TMP, TMP + 8), (ACC3 + 8, ACC3))):
            l2 += [f"v_add_f32 v{den}, {sEPS}, v{den}", f"v_rcp_f32 v{den}, v{den}", f"v_mul_f32 v{den}, {vLG}, v{den}"]
            l2 += [f"v_mul_f32 v{num+i}, v{den}, v{num+i}" for i in range(8)]
            l2 += [f"v_cvt_pk_bf16_f32 v{OO+4*hd+i}, v{num+2*i}, v{num+2*i+1}" for i in range(4)]
            t = tstore(OO + 4 * hd, sST, hd * 1024)
            l2 += t[:2]; stq.append(t[2])
        return l, l2, stq + [publish(0)] + untag(OO) + untag(OO + 4) + [st("ost")]
    if IL:
        um = OPT["um"]
        Gq = Grp("Qgq", [(160, sAp, 2048), (164, sAp, 3072), (168, sAo, 2048), (172, sAo, 3072)])
        fu = [(112, sAp, 6144), (116, sAo, 6144)]
        Gu = Grp("Qga", fu)
        if um: Gc = Grp("Qgc", Gc.frags + fu)
        o0, o1 = MAP["QQ"][1:3]
        oc, oo = (32768, 0) if OPT["qoc"] else (0, 32768)
        U = dict(a=unit((96, 100), aB, o0) + unit((104, 108), aB, o0 + 16384), b=unit((160, 164), aB, o1) + unit((168, 172), aB, o1 + 16384),
                 u=unit((112,), aC, 0) + unit((116,), aC, 8192), o=unit((OO, OO + 4), aA, oo), O=unit((176, 180), aA, oo + 16384),
                 c=unit((144, 148), aA, oc) + unit((152, 156), aA, oc + 16384))
        so = ["abocOu", "abocuO", "aboOcu", "aobcOu"][OPT["qo2"]]
        steps = []; fp = {}
        for k in so: fp[k] = len(steps); steps += U[k]
        p2, order, nx, first = p2items(steps, [64, 68, 72, 76, 184], OPT["qt3"], OPT["qtm"])
        F = {k: P2 + first[v] for k, v in fp.items()}
        B = len(it); it += p2
        it[OPT["jb"] + 2].post.append(ident(IDENT))
        kp = B + OPT["qks"]
        fl = [(OPT["qa"], Gp, 0x1100, B - 3, 3, "gp", OPT["qapl"]), (OPT["qkv"], Gk, 0xffff, kp, 0, "kv", OPT["qpl"]),
              (B + OPT["qb"], Gq, 0x4400, F["b"] - 4, 4, "gq", OPT["lpl"]), (B + OPT["qgc"], Gc, 0x8800, F["c"] - 4, 4, "gc", OPT["lpl"]),
              (B + OPT["qgo"], Go, 0x0010, F["O"] - 2, 2, "go", OPT["lpl"])]
        if not um: fl.append((B + OPT["qgu"], Gu, 0x2200, F["u"] - 2, 2, "gu", OPT["lpl"]))
        else: assert F["u"] > F["c"]
        cur = None
        for pos, G, mask, cp, w, nm, pl in sorted(fl, key=lambda x: x[0]):
            assert pos < cp, (nm, pos - B, cp - B)
            kind = "k" if nm == "kv" else "a"
            fetch(it, pos, G.loads(), mask, cp - 1, pl=pl, step=0 if nm == "kv" else 1,
                  pre=[] if kind == cur else setFK() if kind == "k" else setFA(), post=[st(nm + "fl")])
            cur = kind
        assert OPT["qkv"] >= PC + 8 and OPT["qkv"] - OPT["qpl"] > OPT["jb"] and OPT["qa"] > OPT["jb"] and B + OPT["qb"] >= PC + 12
        assert B + OPT["qgc"] > kp
        it[M].post += [need(it[M]), f"s_add_u32 {sT}, {sW1K}, {LC}", f"v_add_u32 v24, {sT}, {vL16}",
                       f"s_lshl_b32 {sT2}, {sCLS}, 12", f"s_add_u32 {sT2}, {sT2}, {LC}", f"v_add_u32 v25, {sT2}, {vL16}",
                       f"v_lshl_add_u32 v26, {vLANE}, 2, {sT}", "v_xor_b32 v27, 0x1000, v26",
                       lambda: g(f"ds_write_b32 v26, {vLG} offset:8192", tag="kw")]
        spread(it, B + OPT["pq0"], B + OPT["pq1"], PH(ACC2) + PH(ACC2 + 8))
        it[kp].post += Gk.check() + [ksum]
        assert kp < B - 3 and kp > M
        e1, e2 = ("wO", "wP2") if OPT["qoc"] else ("wP2", "wO")
        if OPT["p2e"]:
            it[B].bar = dict(vm=["wG0", "wG1", "wU", e1], lead=3, drain=True, after=[kx] + p2addr() + [st("P2bar")])
            place(it, B + OPT["qpd0"], B + OPT["qpd"], D2A(e2[1:]), it[B])
            it[F["c" if OPT["qoc"] else "o"]].bar = dict(vm=[e2], lead=OPT["D2"])
        else:
            it[B].bar = dict(vm=["wG0", "wG1", "wU"], lead=3, drain=True, after=[kx] + p2addr() + [st("P2bar")])
            place(it, B + OPT["qpd0"], B + OPT["qpd"], D2A("O") + D2A("P2"), it[B])
            it[F["o"]].bar = dict(vm=["wP2", "wO"], lead=OPT["D2"])
        ke = B + OPT["pq1"]
        it[ke].post += [ko]
        assert ke < F["o"] - 1
        chk = []
        for pos, G, mask, cp, w, nm, pl in fl:
            if nm == "kv": continue
            for a_, b_ in chk: assert cp + w <= a_ or cp >= b_, ("checks overlap", nm)
            chk.append((cp, cp + w))
            spread(it, cp, cp + w, G.check() + [st(nm + "ok")])
        it[F["o"] + 1].post += [p2misc]
        tail = p2tail("Q", it, B, nx, [128, 136, 32, 40], IDENT, f"v{SCQ+2}", order)
        run(it, tail)
        return
    if OPT["q2"]:
        Gu = Grp("Qga", [(112, sAp, 6144), (116, sAo, 6144)])
        Gq = Grp("Qgq", [(160, sAp, 2048), (164, sAp, 3072), (168, sAo, 2048), (172, sAo, 3072)])
        sb_ = unit((160, 164), aB, 32768) + unit((168, 172), aB, 32768 + 16384)
        so_ = unit((OO, OO + 4), aA, 32768)
        steps = unit((96, 100), aB, 0) + unit((104, 108), aB, 16384) + unit((112,), aC, 0) + unit((116,), aC, 8192) + \
            (so_ + sb_ if OPT["q2"] == 1 else sb_ + so_) + unit((176, 180), aA, 32768 + 16384) + \
            unit((144, 148), aA, 0) + unit((152, 156), aA, 16384)
        fo, fb = (6, 8) if OPT["q2"] == 1 else (10, 6)
        assert OPT["qt3"] <= 12
        p2, order, nx, first = p2items(steps, [64, 68, 72, 76, 184], OPT["qt3"], OPT["qtm"])
        B = len(it); it += p2
        it[OPT["jb"] + 2].post.append(ident(IDENT))
        chk = []
        def check(G, lo, hi, extra):
            for a, b in chk: assert hi <= a or lo >= b, ("checks overlap", a - B, b - B, lo - B, hi - B)
            chk.append((lo, hi))
            spread(it, lo, hi, G.check() + extra)
        it[OPT["qlb"]].post += [need(it[OPT["qlb"]]), f"s_add_u32 {sT}, {sW1K}, {LC}", f"v_add_u32 v24, {sT}, {vL16}",
                       f"s_lshl_b32 {sT2}, {sCLS}, 12", f"s_add_u32 {sT2}, {sT2}, {LC}", f"v_add_u32 v25, {sT2}, {vL16}",
                       f"v_lshl_add_u32 v26, {vLANE}, 2, {sT}", "v_xor_b32 v27, 0x1000, v26",
                       lambda: g(f"ds_write_b32 v26, {vLG} offset:8192", tag="kw")]
        kp = B + OPT["qks"]; L = OPT["D2"] - 1; kb = B + first[fo] - L
        fl = [(OPT["qa"], lambda: fetch(it, OPT["qa"], Gp.loads(), 0x1100, B - 4, pl=OPT["qapl"], pre=setFA(), post=[st("gpfl")])),
              (OPT["qu"], lambda: fetch(it, OPT["qu"], Gu.loads(), 0x2200, B + first[4] - 4, pl=OPT["lpl"], pre=setFA(), post=[st("gufl")])),
              (OPT["qkv"], lambda: fetch(it, OPT["qkv"], Gk.loads(), 0xffff, kp - 1, pl=OPT["qpl"], step=OPT["qkw"], pre=setFK(), post=[st("kvfl")])),
              (B + OPT["qb"], lambda: fetch(it, B + OPT["qb"], Gq.loads(), 0x4400, B + first[fb] - 4, pl=OPT["lpl"], step=0 if OPT["q2"] == 1 else 1, pre=setFA(), post=[st("gqfl")])),
              (B + OPT["qgo"], lambda: fetch(it, B + OPT["qgo"], Go.loads(), 0x0010, B + first[12] - 3, pl=OPT["lpl"], pre=setFA(), post=[st("gofl")])),
              (B + OPT["qgc"], lambda: fetch(it, B + OPT["qgc"], Gc.loads(), 0x8800, B + first[14] - 5, pl=OPT["lpl"], pre=setFA(), post=[st("gcfl")]))]
        k1, k2, k3 = kol()
        it[kb + OPT["kd2"] - 1].post += [need(it[kb + L])] + k1
        spread(it, kb + OPT["kd2"], kb + L, k2)
        for _, f in sorted(fl, key=lambda x: x[0]): f()
        it[kb + L - 1].post += k3
        assert OPT["qkv"] >= PC + 8 and OPT["qkv"] - OPT["qpl"] > OPT["jb"] and OPT["qa"] > OPT["jb"] and OPT["qu"] > OPT["jb"]
        assert B + OPT["qgc"] > kp + OPT["qkn"] and OPT["qgo"] < first[12] - 2 and OPT["qgc"] < first[14] - 4 and OPT["qb"] < first[fb] - 3 and OPT["qu"] < B + first[4] - 3
        check(Gp, B - 3, B, [st("gpok")])
        check(Gu, B + first[4] - 2, B + first[4], [st("guok")])
        spread(it, B + OPT["pq0"], B + OPT["pq1"], PH(ACC2) + PH(ACC2 + 8))
        assert kp + OPT["qkn"] - 1 >= B + OPT["pq1"] and kp > OPT["qkv"] and kp + OPT["qkn"] <= kb
        check(Gk, kp, kp + OPT["qkn"], [ksum])
        it[B].bar = dict(vm=["wG0", "wG1", "wU"], lead=3, drain=True, after=p2addr() + [st("P2bar")])
        place(it, B + OPT["qpd0"], B + OPT["qpd"], D2A("O") + D2A("P2"), it[B])
        it[kb + L].bar = dict(vm=["wP2", "wO"], lg=["kw"], lead=L, after=[kx, st("kxb")])
        it[kb + L + 1].post += [p2misc]
        check(Gq, B + first[fb] - 3, B + first[fb], [st("gqok")])
        check(Go, B + first[12] - 2, B + first[12], [st("gook")])
        check(Gc, B + first[14] - 4, B + first[14], [st("gcok")])
        tail = p2tail("Q", it, B, nx, [128, 136, 32, 40], IDENT, f"v{SCQ+2}", order)
        run(it, tail)
        return
    steps = unit((96, 100), aB, 0) + unit((104, 108), aB, 16384) + unit((112,), aC, 0) + unit((116,), aC, 8192) + \
        unit((160, 164), aB, 32768) + unit((168, 172), aB, 32768 + 16384) + \
        unit((OO, OO + 4), aA, 32768) + \
        unit((144, 148), aA, 0) + unit((152, 156), aA, 16384) + \
        unit((176, 180), aA, 32768 + 16384)
    p2, order, nx, first = p2items(steps, [64, 68, 72, 76, 184], OPT["qt3"], OPT["qtm"])
    B = len(it); it += p2
    assert B == P2
    it[OPT["jb"] + 2].post.append(ident(IDENT))
    fa = lambda: fetch(it, OPT["qa"], Gp.loads(), 0x1100, B - 4, pl=OPT["qapl"], pre=setFA(), post=[st("gpfl")])
    fk = lambda: fetch(it, OPT["qkv"], Gk.loads(), 0xffff, B + 40, pl=OPT["qpl"], step=0, pre=setFK(), post=[st("kvfl")])
    for f in ((fa, fk) if OPT["qa"] < OPT["qkv"] else (fk, fa)): f()
    fetch(it, B + OPT["qb"], Gq.loads(), 0x4400, B + first[4] - 5, pl=OPT["lpl"], pre=setFA(), post=[st("gqfl")])
    assert OPT["qkv"] >= PC + 8 and OPT["qkv"] - OPT["qpl"] > OPT["jb"] and OPT["qa"] > OPT["jb"] and B + OPT["qb"] >= PC + 12
    kp = B + OPT["qks"]
    spread(it, B - 3, B, Gp.check() + [st("gpok")])
    it[B - 2 if OPT["kq"] else OPT["qlb"]].post += [need(it[B] if OPT["kq"] else it[OPT["qlb"]]), f"s_add_u32 {sT}, {sW1K}, {LC}", f"v_add_u32 v24, {sT}, {vL16}",
                   f"s_lshl_b32 {sT2}, {sCLS}, 12", f"s_add_u32 {sT2}, {sT2}, {LC}", f"v_add_u32 v25, {sT2}, {vL16}",
                   f"v_lshl_add_u32 v26, {vLANE}, 2, {sT}", "v_xor_b32 v27, 0x1000, v26",
                   lambda: g(f"ds_write_b32 v26, {vLG} offset:8192", tag="kw")]
    spread(it, B + OPT["pq0"], B + OPT["pq1"], PH(ACC2) + PH(ACC2 + 8))
    it[kp].post += Gk.check() + [ksum]
    if OPT["kq"]:
        assert kp >= B + OPT["pq1"] and kp > OPT["qkv"] and not (B + first[4] - 4 <= kp < B + first[4])
        it[B].bar = dict(vm=["wG0", "wG1"], lead=3, drain=True, after=p2addr() + [st("P2bar")])
        place(it, B - 3, B + OPT["pd1"], D2A("U") + D2A("O") + D2A("P2"), it[B])
        kb = kp + 1 + OPT["kd1"]
        assert kb <= B + first[4]
        L = min(OPT["D2"] - 1, B + first[4] - kb)
        it[kb + L].bar = dict(vm=["wU"], lg=["kw"], lead=L, after=[kx])
        ke = kb + OPT["kd2"] - 1
        it[ke].post += [need(it[kb + L]), ko]
    else:
        assert kp < B - 3 and kp > OPT["qkv"] and kp > OPT["qlb"]
        it[B].bar = dict(vm=["wG0", "wG1", "wU"], lead=3, drain=True, after=[kx] + p2addr() + [st("P2bar")])
        place(it, B + OPT["qpd0"], B + OPT["qpd"], D2A("O") + D2A("P2"), it[B])
        ke = B + OPT["pq1"]
        it[ke].post += [ko]
    spread(it, B + first[4] - 4, B + first[4], Gq.check() + [st("gqok")])
    assert ke < B + first[10] - 1
    it[B + first[10] + 1].post += [p2misc]
    it[B + first[10]].bar = dict(vm=["wP2", "wO"], lead=OPT["D2"])
    fetch(it, B + OPT["qgc"], Gc.loads(), 0x8800, B + first[12] - 5, pl=OPT["lpl"], post=[st("gcfl")])
    fetch(it, B + OPT["qgo"], Go.loads(), 0x0010, B + first[16] - 3, pl=OPT["lpl"], post=[st("gofl")])
    spread(it, B + first[12] - 4, B + first[12], Gc.check() + [st("gcok")])
    spread(it, B + first[16] - 2, B + first[16], Go.check() + [st("gook")])
    assert OPT["qgc"] < first[12] - 4 and OPT["qgo"] < first[16] - 2
    tail = p2tail("Q", it, B, nx, [128, 136, 32, 40], IDENT, f"v{SCQ+2}", order)
    run(it, tail)


NCL = 2 if OPT["asym"] else 1
for role, fn in (("WW", WW), ("QQ", QQ)):
    for cl_ in range(NCL):
        g.start_trace(role + str(cl_))
        ROLE[0] = role; CLS[0] = cl_; SUF[0] = ""; nlab[0] = 0; POLLS[role] = []; POLLS[role + "s"] = []
        old = SN[role]; SN[role] = ["start"]
        g.block(ENTRY, prologue)
        g.block(role, fn, align=(3 if role == "QQ" else None))
        assert cl_ == 0 or old == SN[role], (old, SN[role])
rt = []
for nm_, fn_ in retries:
    g.start_trace("RT_" + nm_)
    g.block("RT_" + nm_, fn_)
    rt.append("RT_" + nm_)
g.start_trace("end"); g.block("CODE_END", lambda: None)
g.hazards()
order = [ENTRY, "WW", "SPIN", "QQ"] + rt + ["CODE_END"]
if NCL == 2: order = [ENTRY, "WW", "WW0", "WW1", "SPIN", "QQ", "QQ0", "QQ1"] + rt + ["CODE_END"]
if OPT["ssp"] == 1: order.insert(order.index("SPIN"), "SSPIN")
assert sorted(order) == sorted(g.order), (g.order)

hdr = open("cdna_kernels/" + KN + ".s.ref").read().split("\n")
top = [l for l in hdr if l.startswith(";") and "@launch" not in l]
print("\n".join(top))
print("; @launch grid=(256,1,1) block=(512,1,1) lds=163840")
if STAMP:
    for r in SN: print("; STAMPS", r, " ".join(SN[r]))
    print("; RTS", OPT["rts"])
print('.amdgcn_target "amdgcn-amd-amdhsa--gfx950"\n.text')
print(f".globl {ENTRY}\n.p2align 8\n.type {ENTRY},@function")
print(g.text(order))
print("    s_endpgm")
print(f""".section .rodata,"a"
.p2align 6
.amdhsa_kernel {ENTRY}
  .amdhsa_next_free_vgpr 256
  .amdhsa_next_free_sgpr 102
  .amdhsa_accum_offset 256
  .amdhsa_group_segment_fixed_size 0
  .amdhsa_kernarg_size 88
  .amdhsa_user_sgpr_count 2
  .amdhsa_user_sgpr_kernarg_segment_ptr 1
  .amdhsa_system_sgpr_workgroup_id_x 1
.end_amdhsa_kernel""")
print(f"; maxvm={g.maxvm}", file=sys.stderr)
for name, tr in g.traces[:2 * NCL]:
    print(f"; trace {name}: barriers={sum(1 for o in tr if o.kind=='i' and o.mn=='s_barrier')} instrs={len(tr)}", file=sys.stderr)
```

```python
import sys
from fw import *

OPT = dict(hx=0, wct=6, wcl=0, wch=72, wcb=4, qbt=7, qct=3, ds=1, nd=0, rp=0, rpt=0, rq=34455444, rqq=34444444, rt=3, ue=0, df0=0, df1=36, r00=99, il=0, BLq=2, iq=0, vq=2233330, vle=0, vlo=1, n5=3, x2=2, x2q=4, BL3=3, pk0=70, vp0=76, qo2=0, ilo=1, ilw=8, sl=2, cb6=0, um=0, wgu=40, qgu=40, gw1=98, p2e=1, qgw1=96, vlb=0, gac=1, qoc=0,
           wpd=10, qpd=10, qpd0=-3, wpd0=-4, pf=0, pfk=0, pfp=0, ssp=0, q2=0, qu=102, qkw=1, qkn=3, wo2=0, kpi=0, psf=0, plf=0, asf=0, apr=0, sdp=1, asym=0, b1l=1, k0=1, nx=0, wtm=0, qtm=0, tp=0, nxd=1, qg1=91, qgw=8, js=0, xwp=58, sd0=999, sd1=0, tc=0, a48=1, dsh=2, rm0=1, rmax=2, xsp=1, stamp=0, D=6, BL=2, BL2=4, DP=5, D2=4, lim=20000, rotm=7, tw=61, tlb=0, wt3=18, qt3=18, sp=0, slp=1,
           dsp=0, pst=0, osc=0, nochk=0, ew=1, pb=1, np1=5, np2=8, tlp=31, ft=1, bl=0,
           twd=0, stl=0, kq=0, kd1=1, kd2=1, kpr=0, wb3=0, wM=96, wN=10, pd=0, wpt=0, qpt=0, pe=0, wp1=0, qp1=0, fl=40, lpl=6, loc=0, at1=0, at2=0, atq=0, pt=0, g0=80, g1=100, pd1=10, wob=0,
           ea0=49, ea1=66, eu0=66, eu1=78, eb0=81, eb1=102, ec0=1, ec1=14, pk1=78,
           wga=92, wgb=2, wgc=24, wgo=31,
           twq=1, qg0=83, qapl=5, qa=92, qb=0, qkv=99, qpl=7, qks=-4, qlb=92, qgc=22, qgo=34, jb=82, pq0=0, pq1=5, efk=0, efo=0, efp=0,
           prl=0, hd=0, rts=1, cal=0, calx=4000, sper=8, sb0=999, sb1=0, s0=0, s1=999)
for a in sys.argv[1:]:
    k, v = a.split("="); assert k in OPT, k; OPT[k] = int(v, 0)
STAMP = OPT["stamp"]
LIM = OPT["lim"] << 16 if STAMP else OPT["lim"]

FLG = [" sc1", " sc0 sc1", " sc1 nt", " sc0 sc1 nt"]
LSC = "" if OPT["loc"] else FLG[OPT["asf"]]
LA, LB, LC = 0, 98304, 65536
MAP = {"WW": (LC, 32768, 0, LB + 32768), "QQ": (LB, 0, 32768, LC)}
if OPT["vlb"]: MAP["QQ"] = (LB, 32768, 0, LC)
def GB(): return MAP[ROLE[0]][0]
def XC(): return MAP[ROLE[0]][3]
PARTO, KVP, STP, FA, FK, FP = 640 * 1024, 0x1000000, 0x1100000, 0x10A0000, 0x10B0000, 0x10C0000
WS_SIZE = 0x1180000 if STAMP else 0x1100000
OFFB = 0x1200000
if OPT["nx"]: WS_SIZE = 0x2200000
SX, SW, SW2, SWO, SWS, SOUT, SB, SDBG = "s[32:35]", "s[36:39]", "s[40:43]", "s[44:47]", "s[48:51]", "s[52:55]", "s[56:59]", "s[60:63]"
sW, sRW, sRB, sCGI, sISW1, sSTR, sROT, sW1K, sXR, sCLS, sNON, sM = [f"s{64+i}" for i in range(12)]
sP = ["s76", "s77", "s78", "s79"]
sWC = [f"s{80+i}" for i in range(8)]
sT, sT2, sT3, sTB, sCNT, sKQ, sR8, sPAR, sTT, sLOG2E = [f"s{88+i}" for i in range(10)]
sTM = "s[98:99]"; sEPS = "s100"; sST = "s101"
sMK = "s[4:5]"
sAp, sAo, sRs, sRo, sRu, sRm, sRmu, sPART, sOUT, sKV, sFA, sPUB, sFP, sFK, sHAVE, sMASK = [f"s{8+i}" for i in range(16)]
sRET = "s[30:31]"
sDEC, sLC = "s6", "s7"
vWDB, vLANE, vXD, vWDa, vWDb, vW2D = "v0", "v1", "v2", "v3", "v4", "v5"
vX = ["v6", "v7", "v8", "v9"]
vWlo, vWhi, vU, vWOD, TG0, TG1, vL16, vCHK, vSTAMP, vBIAS2, vT0, vUD, vE0, vE1 = [f"v{10+i}" for i in range(14)]
vPR, vNON, vPA = "v0", "v2", "v4"
ACC0, ACC1, ACC2, ACC3, XR, TMP, TACC = 96, 112, 80, 48, 128, 32, 192

g = Gen()
retries = []
SUF = [""]
CLS = [0]
def add_retry(name, fn):
    if name not in [n for n, _ in retries]: retries.append((name, fn))


def vr(a, n=4):
    return f"v[{a}:{a+n-1}]"


SN = {"WW": ["start"], "QQ": ["start"]}
ROLE = [None]
def stamp(name):
    if not STAMP: return
    names = SN[ROLE[0]]
    g(f"v_writelane_b32 {vSTAMP}, s98, {len(names)-1}")
    g(f"{'s_memrealtime' if OPT['rts'] else 's_memtime'} {sTM}")
    names.append(str(name))
    assert len(names) < 59


def st(i):
    return lambda: stamp(i)


def mfma(d, a, b, c):
    g(f"v_mfma_f32_32x32x16_bf16 {vr(d,16)}, {a}, {b}, {c}")


def dx(c, i):
    def f():
        g(f"s_add_u32 m0, {sW1K}, {(c % 4) * 16384 + i * 8192:#x}")
        g(f"s_xor_b32 {sT2}, {sXR}, {c << 7 | i << 16:#x}")
        g(f"buffer_load_dwordx4 {vXD}, {SX}, {sT2} offen lds", tag=f"ck{c}")
    return f


def dw(lds, c, va, tag):
    def f():
        g(f"s_add_u32 m0, {sW1K}, {lds:#x}")
        g(f"buffer_load_dwordx4 {va}, {SW}, {sWC[c]} offen lds", tag=tag)
    return f


def CK(c):
    return [dx(c, 0), dx(c, 1), dw(LC + (c % 4) * 8192, c, vWDa, f"ck{c}")] + \
        ([dw(LB + (c % 4) * 8192, c, vWDb, f"ck{c}")] if OPT["il"] else [])


def WBs():
    if OPT["rotm"] != 3 or OPT["ds"]: return [dw(LB + c * 8192, c, vWDb, f"wb{c}") for c in range(8)]
    assert OPT["rotm"] == 3
    def sel(flip):
        def f():
            g(f"s_bitcmp{1 - flip}_b32 {sR8}, 2")
            g(f"s_cselect_b32 {sT2}, {sWC[4]}, {sWC[0]}")
            g(f"s_cselect_b32 {sT3}, {4 * 8192:#x}, 0")
            g(f"s_add_u32 {sT3}, {sT3}, {sW1K}")
            g(f"s_add_u32 m0, {sT3}, {LB:#x}")
            g(f"buffer_load_dwordx4 {vWDb}, {SW}, {sT2} offen lds", tag="wb0")
        return f
    return [sel(0), sel(1)] + [dw(LB + c * 8192, c, vWDb, f"wb{c}") for c in (1, 2, 3, 5, 6, 7)]


def head():
    if OPT["il"]: return CK(0) + CK(1) + CK(2) + CK(3)
    if OPT["rp"]: return CK(0) + CK(1) + WBs()[:1]
    c1 = CK(1)
    return CK(0) + c1[:2] + (WBs()[:1] if OPT["ew"] == 1 else []) + c1[2:] + CK(2) + CK(3)


WCL = []
def WCs():
    l = [dw(LA + c * 8192, c, vWDa, f"wc{c}") for c in range(8)]
    f0 = l[0]
    l[0] = lambda: (g(f"v_add_u32 {vWDa}, {sP[2]}, {vWDB}"), f0())
    WCL[:] = l
    return l


def du(n, tag):
    def f():
        g(f"s_xor_b32 {sT2}, {sROT}, {sCLS}")
        g(f"s_xor_b32 {sT2}, {sT2}, {2*n}")
        g(f"s_add_u32 m0, {sW1K}, {LB + 32768 + n*8192:#x}")
        g(f"s_mul_i32 {sT2}, {sT2}, {3584*64}")
        g(f"buffer_load_dwordx4 {vUD}, {SW}, {sT2} offen lds", tag=tag)
    return f


def d2(area, n):
    i = 2 * n
    prel, pp = (i >> 2) & 1, (i >> 1) & 1
    if area == "U": prel, pp = n, 0
    def f():
        if area in ("G0", "G1", "P2"):
            base = {"G0": GB() + MAP[ROLE[0]][1], "G1": GB() + MAP[ROLE[0]][2], "P2": LA + (32768 if ROLE[0] == "QQ" and OPT["qoc"] else 0)}[area]
            gofs = {"G0": 0, "G1": 1 << 16, "P2": 1 << 17}[area]
            g(f"s_xor_b32 m0, {sRm}, {base + (i << 12):#x}")
            g(f"s_xor_b32 {sT2}, {sRs}, {gofs | prel << 18 | pp << 15:#x}")
            g(f"buffer_load_dwordx4 {vW2D}, {SW2}, {sT2} offen lds", tag="w" + area)
        elif area == "O":
            g(f"s_xor_b32 m0, {sRm}, {LA + (0 if ROLE[0] == 'QQ' and OPT['qoc'] else 32768) + (i << 12):#x}")
            g(f"s_xor_b32 {sT2}, {sRo}, {prel << 16 | pp << 15:#x}")
            g(f"buffer_load_dwordx4 {vWOD}, {SWO}, {sT2} offen lds", tag="wO")
        else:
            g(f"s_xor_b32 m0, {sRmu}, {XC() + 16384 + (i << 12):#x}")
            g(f"s_xor_b32 {sT2}, {sRu}, {0x30000 | prel << 15:#x}")
            g(f"buffer_load_dwordx4 {vW2D}, {SW2}, {sT2} offen lds", tag="wU")
    return f


def D2A(area):
    return [d2(area, n) for n in range(2 if area == "U" else 4)]


def touch():
    q = OPT["twq"]
    if OPT["twd"]: stamp("tw0")
    g(f"s_and_b32 {sT}, s2, {0x78 if q else 0xf8:#x}")
    g(f"s_add_u32 {sT}, {sT}, {sW}")
    g(f"s_mul_i32 {sT2}, {sT}, {14*128 << q}")
    g(f"s_mul_i32 {sT3}, {sKQ}, {448*1024}")
    g(f"s_add_u32 {sT2}, {sT2}, {sT3}")
    g(f"v_lshlrev_b32 {vE0}, 7, {vLANE}")
    g(f"s_mov_b64 exec, {(1 << (14 << q)) - 1:#x}")
    g(f"buffer_load_dword {vE1}, {vE0}, {SW2}, {sT2} offen", tag="tw")
    g(f"s_lshl_b32 {sT2}, {sT}, {9 + q}")
    g(f"s_lshl_b32 {sT3}, {sKQ}, 17")
    g(f"s_add_u32 {sT2}, {sT2}, {sT3}")
    g(f"s_mov_b64 exec, {(1 << (4 << q)) - 1:#x}")
    g(f"buffer_load_dword {vE1}, {vE0}, {SWO}, {sT2} offen", tag="tw")
    g("s_mov_b64 exec, -1")
    if OPT["twd"]:
        g("s_waitcnt lgkmcnt(0)"); stamp("tw1"); g("s_waitcnt vmcnt(1) lgkmcnt(0)"); stamp("tw2"); g("s_waitcnt vmcnt(0) lgkmcnt(0)"); stamp("tw3"); g("s_waitcnt lgkmcnt(0)")


def publish(kind):
    def f():
        g("s_mov_b64 exec, 1")
        g(f"buffer_store_dword {vNON}, off, {SWS}, {sPUB} offset:{kind*4}", tag="pub")
        g("s_mov_b64 exec, -1")
    return f


def SPIN():
    g("s_mov_b64 exec, 0xffff")
    g.label("SPIN_loop")
    g(f"buffer_load_dword {vPR}, {vPA}, {SWS}, 0 offen sc1")
    g("s_waitcnt vmcnt(0)")
    g(f"v_cmp_eq_u32 vcc, {sNON}, {vPR}")
    g(f"s_add_u32 {sCNT}, {sCNT}, {0x10000 if STAMP else 1}")
    g(f"s_mov_b32 {sHAVE}, vcc_lo")
    g(f"s_and_b32 {sT}, {sHAVE}, {sMASK}")
    g(f"s_cmp_eq_u32 {sT}, {sMASK}")
    g("s_cbranch_scc1 SPIN_done")
    if OPT["slp"]: g(f"s_sleep {OPT['slp']}")
    g(f"s_sub_u32 {sLC}, {sLC}, {sDEC}")
    g(f"s_cmp_lt_i32 {sLC}, 0")
    g("s_cbranch_scc1 SPIN_done")
    g(f"s_cmp_lt_u32 {sCNT}, {LIM:#x}")
    g("s_cbranch_scc1 SPIN_loop")
    g.label("SPIN_done")
    g("s_mov_b64 exec, -1")
    g(f"s_setpc_b64 {sRET}")


def poll_issue():
    g("s_mov_b64 exec, 0xffff")
    g(f"buffer_load_dword {vPR}, {vPA}, {SWS}, 0 offen sc1", tag="poll")
    g("s_mov_b64 exec, -1")


nlab = [0]
def take(mask, fresh=True):
    def f():
        nlab[0] += 1
        lab = f"EN{ROLE[0]}{nlab[0]}{SUF[0]}"
        if fresh:
            g.wait(vm="poll")
            g(f"v_cmp_eq_u32 vcc, {sNON}, {vPR}")
            g(f"s_and_b32 {sHAVE}, vcc_lo, 0xffff")
        g(f"s_and_b32 {sT}, {sHAVE}, {mask:#x}")
        g(f"s_cmp_eq_u32 {sT}, {mask:#x}")
        g(f"s_cbranch_scc1 {lab}")
        with g.optional():
            g(f"s_mov_b32 {sMASK}, {mask:#x}")
            g(f"s_call_b64 {sRET}, SPIN")
            g.block("SPIN", SPIN, align=3)
        g.label(lab)
    return f


sQ0, sQ1, sQA = "s80", "s81", "s82"
def SSPIN():
    g.label("SSPIN_loop")
    g(f"s_buffer_load_dword {sQ0}, {SWS}, {sQA} glc")
    g(f"s_buffer_load_dword {sQ1}, {SWS}, s83 glc")
    g(f"s_add_u32 {sCNT}, {sCNT}, {0x10000 if STAMP else 1}")
    g("s_waitcnt lgkmcnt(0)")
    g(f"s_xor_b32 {sT}, {sQ0}, {sNON}")
    g(f"s_xor_b32 {sT2}, {sQ1}, {sNON}")
    g(f"s_or_b32 {sT}, {sT}, {sT2}")
    g("s_cbranch_scc0 SSPIN_done")
    if OPT["slp"]: g(f"s_sleep {OPT['slp']}")
    g(f"s_sub_u32 {sLC}, {sLC}, 1")
    g(f"s_cmp_lt_i32 {sLC}, 0")
    g("s_cbranch_scc0 SSPIN_loop")
    g.label("SSPIN_done")
    g(f"s_setpc_b64 {sRET}")


def sfetch(mask):
    bits = [b for b in range(16) if mask >> b & 1]
    GL = " glc" if OPT["ssp"] == 1 else ""
    def issue():
        if len(bits) == 2:
            assert bits[1] == bits[0] + 4
            g(f"s_add_u32 {sQA}, {sFA}, {bits[0]*4}")
            g(f"s_add_u32 s83, {sFA}, {bits[1]*4}")
            g("s_mov_b64 s[80:81], 0")
            g(f"s_buffer_load_dword {sQ0}, {SWS}, {sQA}{GL}")
            g(f"s_buffer_load_dword {sQ1}, {SWS}, s83{GL}")
        else:
            g(f"s_xor_b32 {sQA}, {sPUB}, {16 + (bits[0] & 3) * 4}")
            g(f"s_mov_b32 {sQ0}, 0")
            g(f"s_buffer_load_dword {sQ0}, {SWS}, {sQA}{GL}")
    def tk():
        nlab[0] += 1
        lab = f"EN{ROLE[0]}{nlab[0]}{SUF[0]}"
        if len(bits) == 2:
            g(f"s_xor_b32 {sT}, {sQ0}, {sNON}")
            g(f"s_xor_b32 {sT2}, {sQ1}, {sNON}")
            g(f"s_or_b32 {sT}, {sT}, {sT2}")
        else:
            g(f"s_cmp_lg_u32 {sQ0}, {sNON}")
        g(f"s_cbranch_scc0 {lab}")
        with g.optional():
            if OPT["ssp"] == 1:
                if len(bits) == 1: g(f"s_mov_b32 s83, {sQA}")
                g(f"s_call_b64 {sRET}, SSPIN")
                g.block("SSPIN", SSPIN, align=3)
            else:
                emit(setFA())
                g(f"s_mov_b32 {sMASK}, {mask:#x}")
                g(f"s_call_b64 {sRET}, SPIN")
                g.block("SPIN", SPIN, align=3)
        g.label(lab)
    return issue, tk


POLLS = {"WW": [], "QQ": []}
def fetch(it, pos, grp, mask, hi, pl=0, step=1, pre=(), post=(), lp=None):
    if OPT["ssp"] and mask != 0xffff and (OPT["ssp"] != 3 or mask in (0x1100, 0x1000)):
        P = POLLS.setdefault(ROLE[0] + "s", [])
        assert all(hi_ <= pos - pl for lo, hi_ in P), "fetch order"
        assert pos - pl > 60
        P.append((pos - pl, pos))
        a, b = sfetch(mask)
        it[pos - pl].post.append(a)
        it[pos].post += [b] + list(post)
    elif mask is not None:
        for lo, hi_ in POLLS[ROLE[0]]: assert pos <= lo or pos - pl >= hi_, ("polls overlap", lo, hi_, pos - pl, pos)
        assert all(hi_ <= pos - pl for lo, hi_ in POLLS[ROLE[0]]), "fetch order"
        POLLS[ROLE[0]].append((pos - pl, pos))
        it[pos - pl].post += list(pre) + [poll_issue]
        it[pos].post += [take(mask)] + list(post)
    if lp is not None: assert lp >= pos; pos = lp
    for i, f in enumerate(grp): it[min(pos + step * i, hi)].post.append(f)


GN = ["ga", "gp", "gq", "kv", "gc", "go", "pr"]
PA, PB, PC, P2 = 0, 48, 80, 112
class Grp:
    def __init__(s, name, frags, each=None):
        s.name = name; s.frags = frags; s.each = each

    def loads(s, tagged=True):
        out = []
        cur = [None]
        def one(i, reg, base, off):
            def f(first=True):
                hi = off & ~4095 if off >= 4096 else 0
                fl = FLG[OPT["plf"]] if s.name[1:] == "pr" else " sc1"
                k = OPT[{"pr": "pfp", "kv": "pfk"}.get(s.name[1:], "pf")]
                if tagged and k: fl = ("", "", " sc0", " nt")[k]
                if hi: g(f"s_add_u32 {sT3}, {base}, {hi:#x}")
                g(f"buffer_load_dwordx4 {vr(reg)}, {vL16}, {SWS}, {sT3 if hi else base} offen offset:{off - hi}{fl}",
                  tag=f"{s.name}{i}" if tagged else None)
            return f
        return [one(i, *fr) for i, fr in enumerate(s.frags)]

    def decode(s, waits=True):
        out = []
        for i, (reg, _, _) in enumerate(s.frags):
            if waits: out.append(lambda i=i: g.wait(vm=f"{s.name}{i}"))
            out.append(f"v_xor_b32 v{reg}, {TG0}, v{reg}")
            out.append(f"v_xor_b32 v{reg+1}, {TG1}, v{reg+1}")
            out.append(f"v_or_b32 {vCHK}, v{reg}, v{reg+1}" if i == 0 else f"v_or3_b32 {vCHK}, v{reg}, v{reg+1}, {vCHK}")
            if s.each: out.append(lambda i=i, reg=reg: s.each(i, reg))
        out.append(f"v_and_b32 {vCHK}, {sTB}, {vCHK}")
        return out

    def check(s):
        def fin():
            if OPT["nochk"]: return
            g(f"v_cmp_ne_u32 vcc, 0, {vCHK}")
            g("s_cmp_lg_u64 vcc, 0")
            nm = s.name + SUF[0]
            g(f"s_cbranch_scc1 RT_{nm}")
            g.label(f"OK_{nm}")
            add_retry(nm, lambda: s.retry(nm))
        return s.decode() + [fin]

    def retry(s, nm):
        if STAMP: g(f"s_or_b32 s3, s3, {1 << GN.index(s.name[1:])}")
        g(f"s_add_u32 {sCNT}, {sCNT}, 1")
        g(f"s_and_b32 {sT}, {sCNT}, 0xffff")
        g(f"s_cmp_gt_u32 {sT}, {OPT['lim']}")
        g(f"s_cbranch_scc1 OK_{nm}")
        if OPT["slp"]: g(f"s_sleep {OPT['slp']}")
        for f in s.loads(False): f()
        g("s_waitcnt vmcnt(0)")
        emit(s.decode(False))
        g(f"v_cmp_ne_u32 vcc, 0, {vCHK}")
        g("s_cmp_lg_u64 vcc, 0")
        if s.each: g("s_nop 15")
        g(f"s_cbranch_scc1 RT_{nm}")
        g(f"s_branch OK_{nm}")


def emit(lst):
    for x in lst:
        if isinstance(x, str): g(x)
        else: x()


def tstore(reg, base, off, keep=True, tag="st"):
    l = [f"v_and_or_b32 v{reg}, v{reg}, {sM}, {TG0}", f"v_and_or_b32 v{reg+1}, v{reg+1}, {sM}, {TG1}",
         lambda: g(f"buffer_store_dwordx4 {vr(reg)}, {vL16}, {SWS}, {base} offen offset:{off}{LSC if tag == 'st' else FLG[OPT['psf']]}", tag=tag)]
    return l


def untag(reg):
    return [f"v_xor_b32 v{reg}, {TG0}, v{reg}", f"v_xor_b32 v{reg+1}, {TG1}, v{reg+1}"]


def EH(b, base, off, prev=None):
    h = [f"v{b+i}" for i in range(8)]
    e = [f"v{TMP+i}" for i in range(8)]
    u = [f"v{TMP+8+i}" for i in range(8)]
    ins = []
    for i in range(8): ins.append(f"v_mul_f32 {e[i]}, {sLOG2E}, {h[i]}")
    if prev is not None: ins += untag(prev)
    for i in range(8): ins.append(f"v_exp_f32 {e[i]}, {e[i]}")
    for i in range(8): ins.append(f"v_fma_f32 {u[i]}, {e[i]}, 0.5, 1.0")
    for i in range(8): ins.append(f"v_fma_f32 {u[i]}, -{e[i]}, {u[i]}, -1.0")
    for i in range(8): ins.append(f"v_rcp_f32 {u[i]}, {u[i]}")
    for i in range(8): ins.append(f"v_fmac_f32 {h[i]}, {h[i]}, {u[i]}")
    for i in range(4): ins.append(f"v_cvt_pk_bf16_f32 {h[i]}, {h[2*i]}, {h[2*i+1]}")
    return ins + tstore(b, base, off)


def PH(b):
    h = [f"v{b+i}" for i in range(8)]
    e = [f"v{TMP+i}" for i in range(8)]
    ins = []
    for i in range(8): ins.append(f"v_mul_f32 {e[i]}, {sLOG2E}, {h[i]}")
    for i in range(8): ins.append(f"v_exp_f32_e64 {e[i]}, {e[i]} clamp")
    for i in range(8): ins.append(f"v_max_f32 {h[i]}, {sEPS}, {h[i]}")
    for i in range(8): ins.append(f"v_add_f32 {h[i]}, {e[i]}, {h[i]}")
    for i in range(4): ins.append(f"v_cvt_pk_bf16_f32 {h[i]}, {h[2*i]}, {h[2*i+1]}")
    return ins


def cost(x):
    if not isinstance(x, str): return 4
    return 8 if x.startswith(("v_exp", "v_rcp")) else 4


def merge(main, side):
    tot = sum(cost(x) for x in main); n = len(side); k = 0; acc = 0; out = []
    for x in main:
        while k < n and acc >= tot * k / n:
            out.append(side[k]); k += 1
        out.append(x); acc += cost(x)
    return out + side[k:]


class Item:
    def __init__(s, addr, imm, second, buf, acc, other, orient="T", zero=False, D=3, lg=(), vm=()):
        s.addr, s.imm, s.second, s.buf, s.acc, s.other, s.orient, s.zero, s.D = addr, imm, second, buf, acc, other, orient, zero, D
        s.lg, s.vm = list(lg), list(vm)
        s.bar = None
        s.rvm = []
        s.post = []
        s.pre = []
        s.rpre = []


def spread(items, lo, hi, fill):
    tot = sum(cost(x) for x in fill); n = hi - lo; acc = 0
    for x in fill:
        k = min(n - 1, int(acc * n / tot)) if tot else 0
        items[lo + k].post.append(x); acc += cost(x)


def run(items, tail):
    N = len(items)
    prev = {}
    for m, it in enumerate(items):
        it.prev = max([p for b, p in prev.items() if b == it.buf], default=-1)
        prev[it.buf] = m
    X = getattr(tail, "split", None)
    if X is None:
        seg(items, 0, N, 0); tail(); return
    nxt = seg(items, 0, X, 0)
    g(f"s_cmp_lg_u32 {sCLS}, 0")
    g(f"s_cbranch_scc1 {ROLE[0]}1")
    SUF[0] = f"_{CLS[0]}"
    g.block(f"{ROLE[0]}{CLS[0]}", lambda: (seg(items, X, N, nxt), tail()), align=(3 if CLS[0] else None))


def seg(items, n0, n1, nxt):
    N = len(items)
    for n in range(n0, n1):
        cnt = 0; lim = OPT["rmax"]
        while nxt < N and nxt <= n + items[nxt].D and items[nxt].prev < n:
            it = items[nxt]
            if it.bar is None and cnt >= lim and nxt > n: break
            if it.bar is not None:
                if nxt - n > it.bar.get("lead", 0): break
                emit(it.bar.get("before", []))
                sb = OPT["sb0"] <= nxt <= OPT["sb1"]
                if sb: stamp(f"pre{nxt}"); g("s_waitcnt lgkmcnt(0)")
                lgw = list(it.bar.get("lg") or [])
                if it.bar.get("drain"): lgw += [t for t in g.lg if t]
                g.wait(vm=it.bar.get("vm"), lg=lgw or None)
                emit(it.bar.get("at", []))
                if sb: stamp(f"at{nxt}"); g("s_waitcnt lgkmcnt(0)")
                g("s_barrier")
                if sb: stamp(f"bar{nxt}")
                it.bar_at = n
                emit(it.bar.get("after", []))
                items[n].pre += it.bar.get("after2", [])
                it.bar = None
                cnt = 0; lim = OPT["rm0"] if nxt else OPT["r00"]
                if cnt >= lim and nxt > n: break
            cnt += 1
            emit(it.rpre)
            if it.rvm: g.wait(vm=it.rvm)
            if it.second is None:
                g(f"ds_read_b128 {vr(it.buf)}, {it.addr} offset:{it.imm}", tag=f"w{nxt}")
            else:
                g(f"ds_read_b64_tr_b16 {vr(it.buf, 2)}, {it.addr} offset:{it.imm}", tag=f"w{nxt}")
                if True:
                    g(f"ds_read_b64_tr_b16 {vr(it.buf+2, 2)}, {it.addr} offset:{it.imm + it.second}", tag=f"w{nxt}")
            nxt += 1
        assert nxt > n
        it = items[n]
        emit(it.pre)
        g.wait(vm=it.vm or None, lg=[f"w{n}"] + it.lg)
        c = 0 if it.zero else vr(it.acc, 16)
        if it.orient == "T": mfma(it.acc, vr(it.buf), vr(it.other), c)
        else: mfma(it.acc, vr(it.other), vr(it.buf), c)
        if OPT["sd0"] <= n < OPT["sd1"]:
            if OPT["sdp"]: g("s_waitcnt lgkmcnt(0)")
            stamp(f"m{n}")
            for k_, x_ in enumerate(it.post):
                emit([x_])
                if OPT["sdp"] and not isinstance(x_, str) and x_.__name__ != "fneed": g("s_waitcnt lgkmcnt(0)"); stamp(f"p{n}_{k_}")
        else: emit(it.post)
        if OPT["sper"] and n % OPT["sper"] == OPT["sper"] - 1 and OPT["s0"] <= n < OPT["s1"]: stamp(f"i{n}")
    return nxt


ENTRY = KN + "_kernel"
def wcs(a, b):
    l = []
    for c in range(a, b): l += [f"s_xor_b32 {sWC[c]}, {sROT}, {c}", f"s_mul_i32 {sWC[c]}, {sWC[c]}, {sST}"]
    return l


def prologue():
    k0, k1, k2 = ("v32", "v33", "v34") if OPT["ds"] else ("v64", "v67", "v68")
    if OPT["cal"]: g(("s_memrealtime" if OPT["cal"] == 1 else "s_memtime") + " s[6:7]")
    if OPT["hx"]: g("s_memrealtime s[98:99]")
    if STAMP:
        g(f"{'s_memrealtime' if OPT['rts'] else 's_memtime'} {sTM}")
        g(f"{'s_memtime' if OPT['rts'] else 's_memrealtime'} s[6:7]")
        g(f"v_mov_b32 {vSTAMP}, 0")
        g("s_mov_b32 s3, 0")
    g(f"""
    s_cmp_ge_u32 s2, 256
    s_cbranch_scc1 END
    s_load_dwordx16 s[8:23], s[0:1], 0
    s_load_dwordx4 s[24:27], s[0:1], 64
    s_load_dwordx2 s[28:29], s[0:1], 80
    s_getpc_b64 s[30:31]
    s_and_b32 {sT}, s2, 0xf8
    v_lshrrev_b32 v64, 6, v0
    v_add_u32 v65, {sT}, v64
    v_lshlrev_b32 v65, 7, v65
    v_min_u32 v65, CODE_END-{ENTRY}-256, v65
    s_mov_b64 exec, 1
    """)
    g("global_load_dword v255, v65, s[30:31]", tag="cp")
    g(f"""
    s_mov_b64 exec, -1
    v_and_b32 {vLANE}, 63, v0
    v_readfirstlane_b32 {sW}, v64
    s_lshr_b32 {sTT}, s2, 6        ; t
    s_bfe_u32 {sR8}, s2, 0x30003
    s_and_b32 {sRB}, s2, 1
    s_lshl_b32 {sRB}, {sRB}, 3
    s_or_b32 {sRB}, {sRB}, {sR8}
    s_bfe_u32 {sKQ}, s2, 0x20001
    s_lshr_b32 {sISW1}, {sTT}, 1
    s_and_b32 {sPAR}, {sTT}, 1
    s_lshl_b32 {sCGI}, {sKQ}, 1
    s_or_b32 {sCGI}, {sCGI}, {sPAR}
    """)
    rt = OPT["rt"]
    if rt == 0: g(f"s_mov_b32 {sROT}, {sR8}")
    else:
        g(f"s_lshl_b32 {sROT}, {(sPAR, sISW1, sTT, sPAR)[rt - 1]}, {(2, 2, 1, 1)[rt - 1]}")
        g(f"s_xor_b32 {sROT}, {sROT}, {sR8}")
    if OPT["rotm"] != 7: g(f"s_and_b32 {sROT}, {sROT}, {OPT['rotm']}")
    g(f"""
    s_and_b32 {sRW}, {sW}, 3
    s_lshr_b32 {sCLS}, {sW}, 2
    s_lshl_b32 {sW1K}, {sW}, 10
    s_lshl_b32 {sSTR}, {sISW1}, 9
    s_add_u32 {sSTR}, {sSTR}, 3072
    s_lshl_b32 {sXR}, {sRB}, 17
    s_lshl_b32 {sT}, {sROT}, 7
    s_or_b32 {sXR}, {sXR}, {sT}
    v_lshrrev_b32 {k0}, 3, v0               ; w*8+l3
    v_and_b32 v65, 7, v0                   ; pos
    v_bfe_u32 {k1}, v0, 4, 3                ; (row>>1)&7
    v_xor_b32 {k1}, {k1}, v65
    v_lshlrev_b32 {k1}, 4, {k1}
    v_lshl_add_u32 {vXD}, {k0}, 10, {k1}
    v_bfe_u32 {k1}, v0, 4, 1
    v_lshlrev_b32 {k1}, 2, {k1}
    v_xor_b32 {k1}, {k1}, v65                ; pw
    v_lshlrev_b32 {k2}, 4, {k1}
    v_mul_lo_u32 v69, {k0}, {sSTR}
    v_add_u32 {vWDB}, v69, {k2}
    s_mul_i32 {sP[3]}, {sCGI}, 448
    s_lshl_b32 {sT2}, {sPAR}, 6
    s_add_u32 {sP[0]}, {sP[3]}, {sT2}
    s_add_u32 {sP[1]}, {sP[0]}, 128
    s_add_u32 {sP[2]}, {sP[0]}, 256
    s_cmp_eq_u32 {sPAR}, 0
    s_cselect_b32 {sT2}, 384, 0
    s_add_u32 {sP[3]}, {sP[3]}, {sT2}
    s_cmp_eq_u32 {sISW1}, 1
    s_cbranch_scc1 PRO_w1
    s_lshl_b32 {sP[2]}, {sCGI}, 7
    s_add_u32 {sP[0]}, {sP[2]}, 1024
    s_add_u32 {sP[1]}, {sP[2]}, 2048
    """)
    g.label("PRO_w1")
    if OPT["ds"]:
        g(f"s_lshl_b32 {sST}, {sSTR}, 6")
        g(f"s_mul_i32 {sWC[0]}, {sROT}, {sST}")
    else:
        g(f"s_lshl_b32 {sT}, {sSTR}, 6")
        for c in range(8):
            g(f"s_xor_b32 {sWC[c]}, {sROT}, {c}")
            g(f"s_mul_i32 {sWC[c]}, {sWC[c]}, {sT}")
    g(f"""
    v_add_u32 {vWDa}, {sP[0]}, {vWDB}
    v_add_u32 {vWDb}, {sP[1]}, {vWDB}
    s_mov_b32 s34, 0x200000
    s_mov_b32 s35, 0x20000
    s_mov_b32 s39, 0x20000
    s_lshl_b32 s38, {sSTR}, 9
    s_mul_i32 s58, {sISW1}, 2560
    s_add_u32 s58, s58, 1024
    s_mov_b32 s59, 0x20000
    """)
    if OPT["pst"]:
        g("s_waitcnt lgkmcnt(3)")
        stamp("prek")
    g(f"""
    s_cmp_eq_u32 {sISW1}, 1
    s_waitcnt lgkmcnt(0)
    s_mov_b32 s32, s8
    s_cselect_b32 s36, s16, s10
    s_cselect_b32 s37, s17, s11
    s_cselect_b32 s56, s18, s22
    s_cselect_b32 s57, s19, s23
    s_and_b32 s33, s9, 0xffff
    s_and_b32 s37, s37, 0xffff
    s_and_b32 s57, s57, 0xffff
    """)
    def ps(n):
        if OPT["pst"] and STAMP:
            stamp(n); g("s_waitcnt lgkmcnt(0)")
    ps("karg")
    h = head()
    n0 = 4 if OPT["il"] else 3
    emit(h[:n0])
    ps("ck0")
    if OPT["pb"]: g("s_barrier")
    if OPT["ds"]: emit(wcs(1, 4))
    emit(h[n0:OPT["np1"]])
    ps("ck1")
    setupA() if OPT["ds"] else setup2()
    if OPT["ds"]: emit(deferred("A")[:OPT["nd"]])
    ps("set2")
    emit(h[OPT["np1"]:OPT["np2"]])
    ps("ck2")
    g(f"s_cmp_eq_u32 {sISW1}, 0")
    g("s_cbranch_scc1 QQ")


def setupA():
    if STAMP:
        g(f"v_writelane_b32 {vSTAMP}, s6, 62")
    g(f"""
    v_and_b32 v64, 31, {vLANE}             ; row
    v_lshrrev_b32 v35, 5, {vLANE}          ; h
    v_bfe_u32 v66, {vLANE}, 1, 3           ; m
    v_xor_b32 v66, v66, v35                ; h ^ m
    s_lshl_b32 {sT}, {sCLS}, 2
    v_xor_b32 v66, {sT}, v66
    s_lshl_b32 {sT}, {sRW}, 12
    v_lshl_add_u32 v67, v64, 7, {sT}
    v_lshl_add_u32 {vX[0]}, v66, 4, v67
    v_xor_b32 {vX[1]}, 32, {vX[0]}
    v_xor_b32 {vX[2]}, 64, {vX[0]}
    v_xor_b32 {vX[3]}, 0x60, {vX[0]}
    v_bfe_u32 v68, {vLANE}, 2, 2           ; r
    v_lshlrev_b32 v69, 7, v68
    v_bfe_u32 v68, {vLANE}, 3, 1
    v_lshl_add_u32 v69, v68, 6, v69
    v_bfe_u32 v68, {vLANE}, 4, 1
    v_lshl_add_u32 {vT0}, v68, 5, v69
    v_and_b32 v68, 3, {vLANE}
    v_lshl_add_u32 v36, v68, 3, {vT0}
    v_lshl_add_u32 v36, v35, 10, v36
    s_mul_i32 {sT}, {sCLS}, {4096+64}
    s_add_u32 {sT}, {sT}, {LC}
    v_xor_b32 {vWlo}, {sT}, v36
    v_xor_b32 {vWhi}, 0x1000, {vWlo}
    """)


def deferred(role):
    G = []
    def grp(t): G.append(lambda t=t: g(t))
    def non():
        g(f"""
        s_mov_b32 s60, s26
        s_and_b32 s61, s27, 0xffff
        s_mov_b32 s62, 256
        s_mov_b32 s63, 0x20000
        """)
        if role == "W" or (role == "Q" and OPT["nd"]): return
        g(f"s_or_b32 {sT}, s2, {sW}")
        g("s_cbranch_scc1 S2_non")
        with g.optional():
            g(f"""
            s_memrealtime s[4:5]
            s_waitcnt lgkmcnt(0)
            s_mul_i32 {sT}, s4, 0x9e3779b1
            s_or_b32 {sT}, {sT}, 1
            v_mov_b32 v37, {sT}
            s_mov_b64 exec, 1
            buffer_store_dword v37, off, {SDBG}, 0 sc1
            s_mov_b64 exec, -1
            """)
        g.label("S2_non")
    G.append(non)
    grp("\n".join(wcs(4, 6)))
    if True:
        grp(f"""
        s_mul_i32 {sT}, {sCLS}, {64+32}
        s_add_u32 {sT}, {sT}, {LB+32768}
        v_xor_b32 {vU}, {sT}, v36
        v_lshlrev_b32 {vL16}, 4, {vLANE}
        """)
    grp("\n".join(wcs(6, 8)))
    grp(f"""
    s_mov_b32 s40, s20
    s_and_b32 s41, s21, 0xffff
    s_mov_b32 s42, 0x1c0000
    s_mov_b32 s43, 0x20000
    """)
    grp(f"""
    s_mov_b32 s44, s12
    s_and_b32 s45, s13, 0xffff
    s_mov_b32 s46, 0x80000
    s_mov_b32 s47, 0x20000
    """)
    grp(f"""
    s_mov_b32 s48, s28
    s_and_b32 s49, s29, 0xffff
    s_mov_b32 s50, {WS_SIZE:#x}
    s_mov_b32 s51, 0x20000
    """)
    grp(f"""
    s_mov_b32 s52, s24
    s_and_b32 s53, s25, 0xffff
    s_mov_b32 s54, 0x200000
    s_mov_b32 s55, 0x20000
    """)
    grp(f"""
    s_lshl_b32 {sT}, {sRB}, 2
    s_add_u32 {sT2}, {sT}, {sRW}
    s_lshl_b32 {sT2}, {sT2}, 2
    s_add_u32 {sT2}, {sT2}, {sKQ}
    s_lshl_b32 {sT2}, {sT2}, 1
    s_add_u32 {sFA}, {sT2}, {sCLS}
    """)
    grp(f"""
    s_lshl_b32 {sFA}, {sFA}, 7
    s_add_u32 {sFA}, {sFA}, {FA:#x}
    s_lshl_b32 {sT2}, {sTT}, 4
    s_add_u32 {sPUB}, {sFA}, {sT2}
    """)
    grp(f"""
    s_lshl_b32 {sT}, {sRB}, 2
    s_add_u32 {sT}, {sT}, {sTT}
    s_lshl_b32 {sT}, {sT}, 3
    s_add_u32 {sT}, {sT}, {sW}
    s_lshl_b32 {sFP}, {sT}, 2
    """)
    grp(f"""
    s_add_u32 {sFP}, {sFP}, {sKQ}
    s_lshl_b32 {sFP}, {sFP}, 7
    s_add_u32 {sFP}, {sFP}, {FP:#x}
    s_lshl_b32 {sFK}, {sCGI}, 10
    s_add_u32 {sFK}, {sFK}, {FK:#x}
    """)
    grp(f"""
    s_mov_b32 {sLOG2E}, 0x3fb8aa3b
    s_mov_b32 {sEPS}, 0x358637bd
    s_mov_b32 {sM}, 0xfffefffe
    s_mov_b32 {sTB}, 0x10001
    s_mov_b32 {sCNT}, 0
    s_mov_b32 {sLC}, {OPT['fl']}
    """)
    grp(f"""
    v_and_b32 v32, 31, v32
    v_lshl_add_u32 {vW2D}, v32, 10, v34
    s_lshl_b32 {sT}, {sTT}, 8
    s_lshl_b32 {sT2}, {sKQ}, 17
    s_add_u32 {sT2}, {sT2}, {sT}
    v_add_u32 {vWOD}, {sT2}, {vW2D}
    """)
    grp(f"""
    s_lshl_b32 {sT}, {sTT}, 8
    s_mul_i32 {sT2}, {sKQ}, {448*1024}
    s_add_u32 {sT2}, {sT2}, {sT}
    v_add_u32 {vW2D}, {sT2}, {vW2D}
    """)
    grp(f"""
    v_lshl_add_u32 {vT0}, v35, 9, {vT0}
    v_and_b32 v37, 1, {vLANE}
    v_lshl_add_u32 {vT0}, v37, 4, {vT0}
    v_bfe_u32 v37, {vLANE}, 1, 1
    v_lshl_add_u32 {vT0}, v37, 3, {vT0}
    """)
    grp(f"""
    s_and_b32 {sT}, {sKQ}, 1
    s_lshl_b32 {sT}, {sT}, 6
    s_lshl_b32 {sT2}, {sCLS}, 5
    s_or_b32 {sT}, {sT}, {sT2}
    v_xor_b32 {vT0}, {sT}, {vT0}
    """)
    grp(f"""
    s_xor_b32 {sRm}, {sR8}, {sCLS}
    s_lshr_b32 {sT}, {sKQ}, 1
    s_xor_b32 {sT}, {sT}, {sRm}
    s_xor_b32 {sT}, {sT}, 1
    s_and_b32 {sT}, {sT}, 1
    s_lshl_b32 {sRs}, {sT}, 7
    """)
    grp(f"""
    s_and_b32 {sT2}, {sR8}, 2
    s_lshl_b32 {sT2}, {sT2}, 14
    s_or_b32 {sRs}, {sRs}, {sT2}
    s_lshl_b32 {sT2}, {sPAR}, 15
    s_xor_b32 {sRu}, {sRs}, {sT2}
    """)
    grp(f"""
    s_lshr_b32 {sT}, {sR8}, 2
    s_xor_b32 {sT}, {sT}, {sPAR}
    s_lshl_b32 {sT2}, {sT}, 16
    s_or_b32 {sRo}, {sRs}, {sT2}
    s_lshl_b32 {sT2}, {sT}, 18
    s_or_b32 {sRs}, {sRs}, {sT2}
    """)
    grp(f"""
    s_lshl_b32 {sT}, {sRm}, 12
    s_lshl_b32 {sT2}, {sRW}, 10
    s_or_b32 {sRm}, {sT}, {sT2}
    s_and_b32 {sRmu}, {sRm}, 0x3fff
    """)
    grp(f"""
    s_lshl_b32 {sT}, {sRW}, 2
    s_add_u32 {sT}, {sT}, {sKQ}
    s_lshl_b32 {sT}, {sT}, 2
    s_add_u32 {sT}, {sT}, {sCLS}
    s_lshl_b32 {sT2}, {sPAR}, 1
    s_add_u32 {sAp}, {sT}, {sT2}
    """)
    grp(f"""
    s_xor_b32 {sAo}, {sAp}, 2
    s_mul_i32 {sAp}, {sAp}, 10240
    s_mul_i32 {sAo}, {sAo}, 10240
    s_lshl_b32 {sT3}, {sRB}, 20
    s_add_u32 {sAp}, {sAp}, {sT3}
    s_add_u32 {sAo}, {sAo}, {sT3}
    """)
    grp(f"""
    s_lshl_b32 {sT}, {sTT}, 3
    s_add_u32 {sT}, {sT}, {sW}
    s_mul_i32 {sT}, {sT}, 12288
    s_lshl_b32 {sT2}, {sKQ}, 10
    s_add_u32 {sPART}, {sT}, {sT2}
    """)
    grp(f"""
    s_lshl_b32 {sT3}, {sRB}, 20
    s_add_u32 {sPART}, {sPART}, {sT3}
    s_add_u32 {sPART}, {sPART}, {PARTO:#x}
    s_lshl_b32 {sKV}, {sCGI}, 16
    s_add_u32 {sKV}, {sKV}, {KVP:#x}
    """)
    grp(f"""
    s_lshl_b32 {sT}, {sRB}, 2
    s_add_u32 {sT}, {sT}, {sRW}
    s_lshl_b32 {sOUT}, {sT}, 15
    s_lshl_b32 {sT}, {sTT}, 8
    s_add_u32 {sOUT}, {sOUT}, {sT}
    """)
    grp(f"""
    s_lshl_b32 {sT}, {sKQ}, 6
    s_add_u32 {sOUT}, {sOUT}, {sT}
    s_lshl_b32 {sT}, {sCLS}, 5
    s_add_u32 {sOUT}, {sOUT}, {sT}
    """)
    return G


def setup2():
    if STAMP:
        g(f"v_writelane_b32 {vSTAMP}, s6, 62")
    g(f"""
    s_mov_b32 s60, s26
    s_and_b32 s61, s27, 0xffff
    s_mov_b32 s62, 256
    s_mov_b32 s63, 0x20000
    s_or_b32 {sT}, s2, {sW}
    s_cbranch_scc1 S2_non
    """)
    with g.optional():
        g(f"""
        s_memrealtime s[4:5]
        s_waitcnt lgkmcnt(0)
        s_mul_i32 {sT}, s4, 0x9e3779b1
        s_or_b32 {sT}, {sT}, 1
        v_mov_b32 v66, {sT}
        s_mov_b64 exec, 1
        buffer_store_dword v66, off, {SDBG}, 0 sc1
        s_mov_b64 exec, -1
        """)
    g.label("S2_non")
    g(f"""
    s_mov_b32 s40, s20
    s_and_b32 s41, s21, 0xffff
    s_mov_b32 s42, 0x1c0000
    s_mov_b32 s43, 0x20000
    s_mov_b32 s44, s12
    s_and_b32 s45, s13, 0xffff
    s_mov_b32 s46, 0x80000
    s_mov_b32 s47, 0x20000
    s_mov_b32 s48, s28
    s_and_b32 s49, s29, 0xffff
    s_mov_b32 s50, {WS_SIZE:#x}
    s_mov_b32 s51, 0x20000
    s_mov_b32 s52, s24
    s_and_b32 s53, s25, 0xffff
    s_mov_b32 s54, 0x200000
    s_mov_b32 s55, 0x20000
    s_mov_b32 {sLOG2E}, 0x3fb8aa3b
    s_mov_b32 {sEPS}, 0x358637bd
    s_mov_b32 {sM}, 0xfffefffe
    s_mov_b32 {sTB}, 0x10001
    s_mov_b32 {sCNT}, 0
    s_mov_b32 {sLC}, {OPT['fl']}
    v_and_b32 v64, 31, v64                 ; rw*8+l3
    v_lshl_add_u32 {vW2D}, v64, 10, v68
    v_lshrrev_b32 v69, 2, v67
    v_lshl_add_u32 v69, v69, 5, v64
    v_mul_lo_u32 v69, v69, {sSTR}
    v_and_b32 v70, 3, v67
    v_lshl_add_u32 v69, v70, 4, v69
    v_add_u32 {vUD}, {sP[3]}, v69
    s_lshl_b32 {sT}, {sTT}, 8
    s_lshl_b32 {sT2}, {sKQ}, 17
    s_add_u32 {sT2}, {sT2}, {sT}
    v_add_u32 {vWOD}, {sT2}, {vW2D}
    s_mul_i32 {sT2}, {sKQ}, {448*1024}
    s_add_u32 {sT2}, {sT2}, {sT}
    v_add_u32 {vW2D}, {sT2}, {vW2D}
    v_and_b32 v64, 31, {vLANE}             ; row
    v_lshrrev_b32 v65, 5, {vLANE}          ; h
    v_bfe_u32 v66, {vLANE}, 1, 3           ; m
    v_xor_b32 v66, v66, v65                ; h ^ m
    s_lshl_b32 {sT}, {sCLS}, 2
    v_xor_b32 v66, {sT}, v66
    s_lshl_b32 {sT}, {sRW}, 12
    v_lshl_add_u32 v67, v64, 7, {sT}
    """)
    for sp in range(4):
        g(f"v_xor_b32 v68, {2*sp}, v66")
        g(f"v_lshl_add_u32 {vX[sp]}, v68, 4, v67")
    g(f"""
    v_bfe_u32 v68, {vLANE}, 2, 2           ; r
    v_lshlrev_b32 v69, 7, v68
    v_bfe_u32 v68, {vLANE}, 3, 1
    v_lshl_add_u32 v69, v68, 6, v69
    v_bfe_u32 v68, {vLANE}, 4, 1
    v_lshl_add_u32 {vT0}, v68, 5, v69
    v_and_b32 v68, 3, {vLANE}
    v_lshl_add_u32 v69, v68, 3, {vT0}
    v_lshl_add_u32 v69, v65, 10, v69
    s_mul_i32 {sT}, {sCLS}, {4096+64}
    s_add_u32 {sT}, {sT}, {LC}
    v_xor_b32 {vWlo}, {sT}, v69
    v_xor_b32 {vWhi}, 0x1000, {vWlo}
    s_mul_i32 {sT}, {sCLS}, {64+32}
    s_add_u32 {sT}, {sT}, {LB+32768}
    v_xor_b32 {vU}, {sT}, v69
    ; phase-2 lane part: + h*512 + swapped col quad, unit kq&1, half cls
    v_lshl_add_u32 {vT0}, v65, 9, {vT0}
    v_and_b32 v68, 1, {vLANE}
    v_lshl_add_u32 {vT0}, v68, 4, {vT0}
    v_bfe_u32 v68, {vLANE}, 1, 1
    v_lshl_add_u32 {vT0}, v68, 3, {vT0}
    s_and_b32 {sT}, {sKQ}, 1
    s_lshl_b32 {sT}, {sT}, 6
    s_lshl_b32 {sT2}, {sCLS}, 5
    s_or_b32 {sT}, {sT}, {sT2}
    v_xor_b32 {vT0}, {sT}, {vT0}
    v_lshlrev_b32 {vL16}, 4, {vLANE}
    ; rotation constants (r8' = r8 ^ cls)
    s_xor_b32 {sT3}, {sR8}, {sCLS}
    s_lshr_b32 {sT}, {sKQ}, 1
    s_xor_b32 {sT}, {sT}, {sT3}
    s_xor_b32 {sT}, {sT}, 1
    s_and_b32 {sT}, {sT}, 1
    s_lshl_b32 {sT}, {sT}, 7               ; (b0^ho)<<7
    s_and_b32 {sT2}, {sR8}, 2
    s_lshl_b32 {sT2}, {sT2}, 14            ; b1<<15
    s_or_b32 {sRs}, {sT}, {sT2}
    s_lshl_b32 {sT2}, {sPAR}, 15
    s_xor_b32 {sRu}, {sRs}, {sT2}
    s_lshr_b32 {sT}, {sR8}, 2
    s_xor_b32 {sT}, {sT}, {sPAR}
    s_lshl_b32 {sT2}, {sT}, 16
    s_or_b32 {sRo}, {sRs}, {sT2}
    s_lshl_b32 {sT2}, {sT}, 18
    s_or_b32 {sRs}, {sRs}, {sT2}
    s_lshl_b32 {sT}, {sT3}, 12
    s_lshl_b32 {sT2}, {sRW}, 10
    s_or_b32 {sRm}, {sT}, {sT2}
    s_and_b32 {sRmu}, {sRm}, 0x3fff
    s_lshl_b32 {sT}, {sRW}, 2
    s_add_u32 {sT}, {sT}, {sKQ}
    s_lshl_b32 {sT}, {sT}, 2
    s_add_u32 {sT}, {sT}, {sCLS}
    s_lshl_b32 {sT2}, {sPAR}, 1
    s_add_u32 {sAp}, {sT}, {sT2}
    s_xor_b32 {sAo}, {sAp}, 2
    s_mul_i32 {sAp}, {sAp}, 10240
    s_mul_i32 {sAo}, {sAo}, 10240
    s_lshl_b32 {sT3}, {sRB}, 20
    s_add_u32 {sAp}, {sAp}, {sT3}
    s_add_u32 {sAo}, {sAo}, {sT3}
    s_lshl_b32 {sT}, {sTT}, 3
    s_add_u32 {sT}, {sT}, {sW}
    s_mul_i32 {sT}, {sT}, 12288
    s_lshl_b32 {sT2}, {sKQ}, 10
    s_add_u32 {sT}, {sT}, {sT2}
    s_add_u32 {sT}, {sT}, {sT3}
    s_add_u32 {sPART}, {sT}, {PARTO:#x}
    ; out
    s_lshl_b32 {sT}, {sRB}, 2
    s_add_u32 {sT}, {sT}, {sRW}
    s_lshl_b32 {sOUT}, {sT}, 15
    s_lshl_b32 {sT}, {sTT}, 8
    s_add_u32 {sOUT}, {sOUT}, {sT}
    s_lshl_b32 {sT}, {sKQ}, 6
    s_add_u32 {sOUT}, {sOUT}, {sT}
    s_lshl_b32 {sT}, {sCLS}, 5
    s_add_u32 {sOUT}, {sOUT}, {sT}
    s_lshl_b32 {sT}, {sRB}, 2
    s_add_u32 {sT2}, {sT}, {sRW}
    s_lshl_b32 {sT2}, {sT2}, 2
    s_add_u32 {sT2}, {sT2}, {sKQ}
    s_lshl_b32 {sT2}, {sT2}, 1
    s_add_u32 {sT2}, {sT2}, {sCLS}
    s_lshl_b32 {sT2}, {sT2}, 7
    s_add_u32 {sFA}, {sT2}, {FA:#x}
    s_lshl_b32 {sT2}, {sTT}, 4
    s_add_u32 {sPUB}, {sFA}, {sT2}
    s_add_u32 {sT}, {sT}, {sTT}
    s_lshl_b32 {sT}, {sT}, 3
    s_add_u32 {sT}, {sT}, {sW}
    s_lshl_b32 {sT}, {sT}, 2
    s_add_u32 {sT}, {sT}, {sKQ}
    s_lshl_b32 {sT}, {sT}, 7
    s_add_u32 {sFP}, {sT}, {FP:#x}
    s_lshl_b32 {sFK}, {sCGI}, 10
    s_add_u32 {sFK}, {sFK}, {FK:#x}
    ; kvp base of this cgi
    s_lshl_b32 {sKV}, {sCGI}, 16
    s_add_u32 {sKV}, {sKV}, {KVP:#x}
    """)
    if OPT["stl"]:
        g(f"s_mul_i32 {sT2}, {sKQ}, {448*1024}")
        g(f"s_buffer_load_dword s4, {SW2}, {sT2}")
        g(f"s_buffer_load_dword s4, {SWO}, 0")
        g(f"s_buffer_load_dword s4, {SWS}, {sPART}")
        g(f"s_buffer_load_dword s4, {SWS}, {sFP}")
        g(f"s_buffer_load_dword s4, {SOUT}, {sOUT}")
    if OPT["sp"]:
        g(f"s_cmp_eq_u32 {sCLS}, 0")
        g("s_cbranch_scc1 S2_sp")
        g(f"s_setprio {OPT['sp']}")
        g.label("S2_sp")


def tlbt(lab):
    def f():
        g(f"s_cmp_lg_u32 {sW}, 7")
        g(f"s_cbranch_scc1 TLB_{lab}")
        with g.optional():
            g(f"s_mul_i32 {sT2}, {sKQ}, {448*1024}")
            g("s_mov_b64 exec, 1")
            g(f"buffer_load_dword {vE1}, off, {SWS}, {sPART}")
            g(f"buffer_load_dword {vE1}, off, {SWS}, {sKV}")
            g(f"buffer_load_dword {vE1}, off, {SOUT}, {sOUT}")
            g(f"buffer_load_dword {vE1}, off, {SW2}, {sT2}")
            g(f"buffer_load_dword {vE1}, off, {SWO}, 0")
            g("s_mov_b64 exec, -1")
        g.label(f"TLB_{lab}")
    return f


def atouch(base, off, lo, hi):
    def f():
        g(f"v_lshlrev_b32 {vE0}, 7, {vLANE}")
        if off: g(f"s_add_u32 {sT}, {base}, {off}")
        g(f"s_mov_b32 exec_lo, {lo:#x}")
        g(f"s_mov_b32 exec_hi, {hi:#x}")
        g(f"buffer_load_dword {vE1}, {vE0}, {SWS}, {sT if off else base} offen", tag="tw")
        g("s_mov_b64 exec, -1")
    return f


def ptouch():
    g(f"v_lshrrev_b32 {vE0}, 3, {vLANE}")
    g(f"v_mul_u32_u24 {vE0}, {4096-1024}, {vE0}")
    g(f"v_lshl_add_u32 {vE0}, {vLANE}, 7, {vE0}")
    g("s_mov_b64 exec, 0xffffff")
    g(f"buffer_load_dword {vE1}, {vE0}, {SWS}, {sPART} offen", tag="tw")
    g("s_mov_b64 exec, -1")


def kvline():
    return [f"s_lshr_b32 {sT}, {sRB}, 2", f"s_xor_b32 {sT}, {sT}, {sRW}", f"s_bitcmp0_b32 {sT}, 1",
            f"s_cselect_b32 {sT2}, 1, 0", f"s_lshl_b32 {sT3}, {sT2}, 2", f"s_lshr_b32 {sT}, {sW}, 1", f"s_add_u32 {sT}, {sT}, {sT3}",
            f"s_lshl_b32 {sT}, {sT}, 7", f"s_add_u32 {sT}, {sT}, {sFK}"]


def ftouch():
    emit(kvline())
    g(f"v_mov_b32 {vE0}, {sFA}")
    g(f"v_writelane_b32 {vE0}, {sFP}, 1")
    g(f"v_writelane_b32 {vE0}, {sT}, 2")
    g("s_mov_b64 exec, 7")
    g(f"buffer_load_dword {vE1}, {vE0}, {SWS}, 0 offen sc1", tag="tw")
    g("s_mov_b64 exec, -1")


def nonce(lab):
    def f():
        g("s_waitcnt lgkmcnt(0)")
        g(f"s_cmp_eq_u32 {sNON}, 0")
        g(f"s_cbranch_scc1 RT_{lab}")
        g.label(f"OK_{lab}")
        class R:
            name = lab
            @staticmethod
            def retry():
                g(f"s_add_u32 {sCNT}, {sCNT}, 1")
                g(f"s_cmp_gt_u32 {sCNT}, {OPT['lim']}")
                g(f"s_cbranch_scc1 OK_{lab}")
                g(f"buffer_load_dword {TG0}, off, {SDBG}, 0 sc1")
                g("s_waitcnt vmcnt(0)")
                g(f"v_readfirstlane_b32 {sNON}, {TG0}")
                g(f"s_cmp_eq_u32 {sNON}, 0")
                g(f"s_cbranch_scc1 RT_{lab}")
                g(f"s_branch OK_{lab}")
        add_retry(lab, R.retry)
        g(f"v_and_b32 {TG1}, 7, {vLANE}")
        g(f"v_lshrrev_b32_e64 {TG0}, {TG1}, {sNON}")
        g(f"v_lshrrev_b32 {TG1}, 8, {TG0}")
        g(f"v_and_b32 {TG0}, {sTB}, {TG0}")
        g(f"v_and_b32 {TG1}, {sTB}, {TG1}")
        g(f"v_mov_b32 {vNON}, {sNON}")
    return f


def setFA():
    return [f"s_lshl_b32 {sT}, {sPAR}, 2", f"v_xor_b32 {vPA}, {sT}, {vLANE}", f"v_lshl_add_u32 {vPA}, {vPA}, 2, {sFA}", f"s_mov_b32 {sDEC}, 1"]


def setFK():
    return kvline() + [f"v_lshl_add_u32 {vPA}, {vLANE}, 2, {sT}", f"s_mov_b32 {sDEC}, {sT2}"]


def ident(I):
    a, b, c = f"v{TMP}", f"v{TMP+1}", f"v{TMP+2}"
    l = [f"v_mov_b32 {b}, 0x3f80",
         f"v_and_b32 {a}, 1, {vLANE}",
         f"v_lshlrev_b32 {a}, 4, {a}",
         f"v_lshlrev_b32 {a}, {a}, {b}",
         f"v_lshrrev_b32 {b}, 3, {vLANE}",
         f"v_xor_b32 {b}, {b}, {vLANE}",
         f"v_and_b32 {b}, 4, {b}",
         f"v_and_b32 {c}, 0x1a, {vLANE}",
         f"v_or_b32 {b}, {b}, {c}"]
    def f():
        emit(l)
        for k, key in enumerate((0, 2, 8, 10)):
            g(f"v_cmp_eq_u32 vcc, {key}, {b}")
            g(f"v_cndmask_b32 v{I+k}, 0, {a}, vcc")
    return f


def prio1(p):
    def f():
        nlab[0] += 1
        g(f"s_cmp_eq_u32 {sCLS}, 0")
        g(f"s_cbranch_scc1 PR{ROLE[0]}{nlab[0]}{SUF[0]}")
        g(f"s_setprio {p}")
        g.label(f"PR{ROLE[0]}{nlab[0]}{SUF[0]}")
    return f


def wadd(d):
    return [f"v_add_u32 {r}, {d:#x}, {r}" if d > 0 else f"v_subrev_u32 {r}, {-d:#x}, {r}" for r in (vWlo, vWhi)]


def need(item):
    def fneed(): assert item.bar is None
    return fneed


def place(it, lo, hi, fs, after=None):
    n = len(fs)
    if after is not None: it[lo].post.append(need(after))
    for i, f in enumerate(fs): it[lo + (hi - lo) * i // n].post.append(f)


def phase1(orient, cbufs, lab, xitem, slot_extra, tail_dma, after48, pre0=()):
    it = []; first = []
    for c in range(8):
        first.append(len(it))
        for sp in range(4):
            s = 4 * c + sp
            it.append(Item(vWlo if sp < 2 else vWhi, (c & 3) * 8192 + (sp & 1) * 2048, 512,
                           64 + 4 * (len(it) % 8), ACC0, XR + 4 * s, orient, zero=(s == 0), D=OPT["D"], lg=[f"xr{s}"]))
        for u in ([c - 2] if 2 <= c < 7 else [5, 6, 7] if c == 7 else []):
            for j in range(2): it.append(xitem(u, j, 64 + 4 * (len(it) % 8)))
    assert len(it) == PB
    first.append(PB)
    n3 = (len(tail_dma) + 2) // 3
    extra = {0: list(pre0) + head()[OPT["np2"]:], 5: tail_dma[:n3], 6: tail_dma[n3:2 * n3], 7: tail_dma[2 * n3:]}
    if OPT["rp"]:
        assert OPT["np2"] == 7
        L = [(f, 0, 0) for f in pre0]
        for c in range(2, 8):
            L += [(f, c - 3, c - 2) for f in CK(c)]
            for k, v in slot_extra.items():
                if {1: 4, 3: 6, 4: 7}[k] == c: L += [(f, 0, c - 2) for f in v]
        for j, f in enumerate(tail_dma): L.append((f, 5 + j // n3 if not OPT["rpt"] or f in WCL else 0, 7))
        rq = [int(ch) for ch in f"{OPT['rq' if lab == 'Wn' else 'rqq']:08d}"]
        extra = {}; slot_extra = {}
        for c in range(8):
            n = rq[c] if c < 7 else len(L)
            extra[c] = []
            while L and len(extra[c]) < n and L[0][1] <= c: extra[c].append(L.pop(0))
            assert all(l >= c for _, _, l in extra[c]) and all(l > c for _, _, l in L), ("late", c)
            extra[c] = [f for f, _, _ in extra[c]]
        print(";", lab, [len(extra[c]) for c in range(8)], file=sys.stderr)
    for c in range(8):
        def xr(c=c):
            for sp in range(4):
                g(f"ds_read_b128 {vr(XR+16*c+4*sp)}, {vX[sp]} offset:{(c & 3) * 16384}", tag=f"xr{4*c+sp}")
        nx = (extra[c] if c in extra else CK(c + 3)) + slot_extra.get(c, [])
        it[first[c]].bar = dict(vm=[f"ck{c}"], lead=OPT["BL"], drain=True, after=[] if OPT["xsp"] else [xr])
        if OPT["xsp"]:
            for sp in range(4):
                it[first[c] + sp].rpre.append(lambda c=c, sp=sp: g(f"ds_read_b128 {vr(XR+16*c+4*sp)}, {vX[sp]} offset:{(c & 3) * 16384}", tag=f"xr{4*c+sp}"))
        b0 = max(0, first[c] - OPT["BL"]); b1 = min(first[c + 1] - OPT["BL"], b0 + 6)
        it[b0].post.append(need(it[first[c]]))
        if c: b0 += OPT["dsh"]
        for j, f in enumerate(nx): it[b0 + (j if len(nx) <= b1 - b0 else j * (b1 - b0) // len(nx))].post.append(f)
    for s in range(32):
        c = s >> 2; sp = s & 3
        it.append(Item(vWlo if sp < 2 else vWhi, c * 8192 + (sp & 1) * 2048, 512, 64 + 4 * (s % 8), ACC1, XR + 4 * s, orient,
                       zero=(s == 0), D=OPT["D"]))
    for s in range(32):
        c = s >> 2; sp = s & 3
        it.append(Item(vWlo if sp < 2 else vWhi, c * 8192 + (sp & 1) * 2048, 512, cbufs[s % len(cbufs)], ACC2, XR + 4 * s,
                       zero=(s == 0), D=OPT["DP"]))
    it[PB].bar = dict(vm=[f"wb{c}" for c in range(4)], lead=OPT["BL2"], drain=True, after=wadd(LB - LC))
    it[PB + 16].bar = dict(vm=[f"wb{c}" for c in range(4, 8)] + [f"wc{c}" for c in range(8)], lead=OPT["BL2"], drain=True)
    it[PC].rpre += wadd(-LB)
    it[PB - OPT["BL2"]].post.append(need(it[PB]))
    for i, f in enumerate(after48): it[PB - OPT["BL2"] + i * OPT["a48"]].post.append(f)
    def tcw():
        g(f"v_add_u32 {vE0}, {sP[2]}, {vWDB}")
        g(f"buffer_load_dword {vE1}, {vE0}, {SW}, {sWC[0]} offen", tag="tw")
    if OPT["tc"]: it[OPT["tc"]].post.append(tcw)
    it[10].post.append(f"s_load_dword {sNON}, s[26:27], 0")
    it[40].post.append(nonce(lab))
    if OPT["tw"] and (lab == "Qn" or not OPT["twq"]): it[OPT["tw"]].post.append(touch)
    if OPT["tlb"]: it[OPT["tlp"]].post.append(tlbt(lab))
    if OPT["ds"]:
        df = deferred(lab[0])
        if lab == "Qn" and OPT["nd"] <= 2: df[2] = lambda: None
        df = df[OPT["nd"]:]
        if df: place(it, OPT["df0"], OPT["df1"], df)
        assert OPT["nd"] >= 12 or OPT["ft"] >= OPT["df0"] + (OPT["df1"] - OPT["df0"]) * (12 - OPT["nd"]) // len(df)
    if OPT["ft"]: it[OPT["ft"]].post.append(ftouch)
    if OPT["pt"]: it[OPT["pt"]].post.append(ptouch)
    if lab == "Wn":
        if OPT["at1"] and OPT["at1"] == OPT["at2"]: it[OPT["at1"]].post.append(atouch(sAp, 0, 0xffffffff, 0xffffff))
        else:
            if OPT["at1"]: it[OPT["at1"]].post.append(atouch(sAp, 0, 0xffff, 0xff0000))
            if OPT["at2"]: it[OPT["at2"]].post.append(atouch(sAp, 0, 0xffff0000, 0xffff))
    elif OPT["atq"]: it[OPT["atq"]].post.append(atouch(sAp, 7168, 0xffffff, 0))
    return it


def phase1i(orient, cbufs, lab, xitem, slot_extra, segx):
    it = []; first = []; xfirst = {}
    for c in range(8):
        first.append(len(it))
        seq = [(p, sp) for sp in range(4) for p in range(2)]
        if c == 7 and OPT["ilo"]: seq = [(p, sp) for p in range(2) for sp in range(4)]
        for p, sp in seq:
            s = 4 * c + sp
            xfirst.setdefault(s, len(it))
            it.append(Item(vWlo if sp < 2 else vWhi, p * (LB - LC) + (c & 3) * 8192 + (sp & 1) * 2048, 512,
                           64 + 4 * (len(it) % 8), (ACC0, ACC1)[p], XR + 4 * s, orient, zero=(s == 0), D=OPT["D"], lg=[f"xr{s}"]))
        L = OPT["sl"] if lab == "Qn" else 2
        for u in ([c - L] if L <= c < 7 else list(range(7 - L, 8)) if c == 7 else []):
            for j in range(2): it.append(xitem(u, j, 64 + 4 * (len(it) % 8)))
    assert len(it) == PC
    first.append(PC)
    extra = dict(segx); extra[0] = head()[OPT["np2"]:]
    for c in range(8):
        nx = (extra[c] if c in extra else CK(c + 3)) + slot_extra.get(c, [])
        it[first[c]].bar = dict(vm=[f"ck{c}"], lead=OPT["BL"], drain=True)
        for sp in range(4):
            it[xfirst[4 * c + sp]].rpre.append(lambda c=c, sp=sp: g(f"ds_read_b128 {vr(XR+16*c+4*sp)}, {vX[sp]} offset:{(c & 3) * 16384}", tag=f"xr{4*c+sp}"))
        b0 = max(0, first[c] - OPT["BL"]); b1 = min(first[c + 1] - OPT["BL"], b0 + OPT["ilw"])
        it[b0].post.append(need(it[first[c]]))
        if c: b0 += OPT["dsh"]
        for j, f in enumerate(nx): it[b0 + j * (b1 - b0) // len(nx)].post.append(f)
    for s in range(32):
        c = s >> 2; sp = s & 3
        it.append(Item(vWlo if sp < 2 else vWhi, c * 8192 + (sp & 1) * 2048, 512, cbufs[s], ACC2, XR + 4 * s,
                       zero=(s == 0), D=OPT["DP"]))
    it[PC].bar = dict(vm=[f"wc{c}" for c in range(4)], lead=OPT["BL2"], drain=True, after=wadd(LA - LC))
    it[PC + 16].bar = dict(vm=[f"wc{c}" for c in range(4, 8)], lead=OPT["BL3"], drain=True, after=[])
    it[12].post.append(f"s_load_dword {sNON}, s[26:27], 0")
    it[first[7] - OPT["BL"] - 1].post.append(nonce(lab))
    if OPT["tw"] and (lab == "Qn" or not OPT["twq"]): it[OPT["tw"]].post.append(touch)
    if OPT["ft"]: it[OPT["ft"]].post.append(ftouch)
    return it, first


def phase1q(orient, cbufs, lab, xitem):
    vq = [int(ch) for ch in f"{OPT['vq']:08d}"]
    L = OPT["sl"]
    slot = lambda j: LB + (0 if j == 7 else j) * 8192
    it = []; first = []; xfirst = {}; vfirst = {}; nb = [0]; kend = 0
    def bitem():
        s = nb[0]; nb[0] += 1
        c = s >> 2; sp = s & 3
        vfirst.setdefault(c, (len(it), len(first) - 1))
        a = vWlo if sp < 2 else vWhi
        o = slot(c) - (LC if vfirst[c][1] < 8 else LB)
        assert o < 65536 - 4096
        it.append(Item(a, o + (sp & 1) * 2048, 512, 64 + 4 * (len(it) % 8), ACC1, XR + 4 * s, orient, zero=(s == 0), D=OPT["D"]))
    for c in range(8):
        first.append(len(it))
        n = vq[c]
        for sp in range(4):
            s = 4 * c + sp
            xfirst[s] = len(it)
            it.append(Item(vWlo if sp < 2 else vWhi, (c & 3) * 8192 + (sp & 1) * 2048, 512,
                           64 + 4 * (len(it) % 8), ACC0, XR + 4 * s, orient, zero=(s == 0), D=OPT["D"], lg=[f"xr{s}"]))
        kend = len(it)
        for _ in range(n):
            assert nb[0] < 4 * c + 4
            bitem()
        for u in ([c - L] if L <= c < 7 else list(range(7 - L, 8)) if c == 7 else []):
            for j in range(2): it.append(xitem(u, j, 64 + 4 * (len(it) % 8)))
    gend = len(it)
    first.append(gend)
    while nb[0] < 32: bitem()
    assert len(it) == PC
    wc = WCs()
    early = [j for j in range(8) if vfirst[j][1] < 8]
    late = [j for j in range(8) if vfirst[j][1] == 8]
    wv = {j: dw(slot(j), j, vWDb, f"ck{vfirst[j][1]}" if j in early else f"wb{j}") for j in range(8)}
    assert 7 in late and vfirst[1][1] <= 5 and OPT["ew"] == 1 and vfirst[0][1] >= 1
    hd = head()
    extra = {0: hd[OPT["np2"]:]}
    for c in range(1, 5): extra[c] = CK(c + 3)
    for j in early:
        if j == 0: continue
        c = max(0, vfirst[j][1] - 3 - OPT["vle"])
        extra[c] = extra[c] + [wv[j]] if OPT["vlo"] else [wv[j]] + extra[c]
    tl = [wv[j] for j in late]
    n5 = OPT["n5"]
    use = 0
    for c in (5, 6, 7):
        extra[c] = tl[:n5]; tl = tl[n5:]
        while len(extra[c]) < n5 and use < 2 * (c - 4): extra[c].append(wc[use]); use += 1
    assert not tl
    for c in range(8):
        nx = extra[c]
        vm = [f"ck{c}"] + (["wb0"] if vfirst[0][1] == c else [])
        ld = lambda c: min(OPT["BLq"], 2) if c == 1 else OPT["BLq"]
        it[first[c]].bar = dict(vm=vm, lead=ld(c), drain=True)
        for sp in range(4):
            it[xfirst[4 * c + sp]].rpre.append(lambda c=c, sp=sp: g(f"ds_read_b128 {vr(XR+16*c+4*sp)}, {vX[sp]} offset:{(c & 3) * 16384}", tag=f"xr{4*c+sp}"))
        b0 = max(0, first[c] - ld(c)); b1 = min(first[c + 1] - ld(c + 1), b0 + OPT["ilw"])
        it[b0].post.append(need(it[first[c]]))
        if c: b0 += OPT["dsh"]
        for j, f in enumerate(nx): it[b0 + (j * (b1 - b0) // len(nx))].post.append(f)
    for s in range(32):
        c = s >> 2; sp = s & 3
        it.append(Item(vWlo if sp < 2 else vWhi, c * 8192 + (sp & 1) * 2048, 512, cbufs[s % len(cbufs)], ACC2, XR + 4 * s,
                       zero=(s == 0), D=OPT["DP"]))
    X1 = vfirst[late[0]][0]
    h2 = late[OPT["x2"]:]
    X2 = vfirst[h2[0]][0]
    nq = OPT["x2q"]
    it[X1].bar = dict(vm=[f"wb{j}" for j in late[:OPT["x2"]]], lead=OPT["BL2"], drain=True)
    it[X2].bar = dict(vm=[f"wb{j}" for j in h2] + [f"wc{c}" for c in range(nq)], lead=OPT["BL2"], drain=True)
    assert X1 - OPT["BL2"] >= kend - 1 or True
    place(it, X1 - OPT["BL2"], min(X2 - OPT["BL2"], X1 - OPT["BL2"] + (8 - use) * OPT["a48"]), wc[use:], it[X1])
    it[X1].bar["after"] = wadd(LB - LC)
    it[PC].rpre += wadd(LA - LB)
    if OPT["tw"]: it[OPT["tw"]].post.append(touch)
    it[10].post.append(f"s_load_dword {sNON}, s[26:27], 0")
    it[first[7] - OPT["BLq"] - 1].post.append(nonce(lab))
    if OPT["ft"]: it[OPT["ft"]].post.append(ftouch)
    print(f"; Q first={first} kend={kend} gend={gend} X1={X1} X2={X2} late={late} use={use}", file=sys.stderr)
    return it, kend, gend, X1, X2, nq


def p2items(steps, bufs, nt3, tm=0):
    order = []
    for p in range(18): order += [(p, t) for t in range(4)]
    defer = [(p, 3) for p in range(18 - nt3, 18)]
    order = [o for o in order if o not in defer]
    if tm:
        assert tm <= nt3
        order = [o for o in order if o[0] < 18 - tm] + [(p, t) for t in range(3) for p in range(18 - tm, 18)]
    order += defer
    seen = set(); it = []
    for n, (p, t) in enumerate(order):
        breg, ar, off = steps[p]
        it.append(Item(ar[t & 1], off + (t >> 1) * 4096, 1024, bufs[n % len(bufs)], TACC + 16 * t, breg,
                       zero=(t not in seen), D=OPT["D2"]))
        seen.add(t)
    first = {p: min(i for i, (q, _) in enumerate(order) if q == p) for p in range(18)}
    return it, order, len(order) - nt3, first


aA, aB, aC = ("v6", "v7"), ("v8", "v9"), ("v10", "v11")
vXW, vXRd, vOA, vFA = "v12", "v24", "v25", "v27"


def p2addr():
    return [f"s_lshl_b32 {sT}, {sCLS}, 13",
            f"v_add_u32 v7, {sT}, {vT0}",
            "v_xor_b32 v6, 64, v7",
            f"v_add_u32 v8, {GB()}, v6",
            f"v_add_u32 v9, {GB()}, v7",
            f"s_lshl_b32 {sT}, {sCLS}, 11",
            f"s_add_u32 {sT}, {sT}, {XC()+16384}",
            f"v_add_u32 v11, {sT}, {vT0}",
            "v_xor_b32 v10, 64, v11"]


def p2misc():
    if OPT["asym"]: pass
    elif OPT["nx"]:
        g(f"s_lshl_b32 {sT}, {sW}, 11")
        g(f"s_add_u32 {sT}, {sT}, {XC()}")
        g(f"v_add_u32 {vXW}, {sT}, {vL16}")
        g(f"v_xor_b32 {vXRd}, 0x2000, {vXW}")
    else:
        g(f"s_lshl_b32 {sT}, {sW}, 13")
        g(f"v_add_u32 {vXW}, {sT}, {vL16}")
        g(f"v_xor_b32 {vXRd}, 0x8000, {vXW}")
    g(f"v_and_b32 {vOA}, 31, {vLANE}")
    g(f"v_lshlrev_b32 {vOA}, 10, {vOA}")
    g(f"v_lshrrev_b32 v3, 5, {vLANE}")
    g(f"v_lshl_add_u32 {vOA}, v3, 4, {vOA}")
    if OPT["asym"]:
        g(f"s_lshl_b32 {sT}, {sRW}, 12")
        g(f"s_add_u32 {sT2}, {sT}, {XC()}")
        g(f"v_add_u32 v3, {sT2}, {vL16}")
        g(f"s_lshl_b32 {sT}, {sRW}, 13")
        g(f"s_add_u32 {sT}, {sT}, {GB()}")
        g(f"v_add_u32 v19, {sT}, {vL16}")
        g(f"v_sub_u32 {vFA}, 19, {vLANE}")
        g(f"v_lshlrev_b32 {vFA}, 7, {vFA}")
        g(f"v_xor_b32 {vFA}, {sFP}, {vFA}")
        g(f"v_lshl_add_u32 {vFA}, {vLANE}, 2, {vFA}")
        return
    if OPT["nx"]:
        g(f"v_and_b32 v3, 4, {vLANE}")
        g(f"v_lshlrev_b32 v3, 9, v3")
        g(f"v_xor_b32 {vFA}, 3, {vLANE}")
        g(f"v_and_b32 {vFA}, 3, {vFA}")
        g(f"v_lshl_or_b32 {vFA}, {vFA}, 7, v3")
        g(f"v_xor_b32 {vFA}, {sFP}, {vFA}")
        g(f"v_lshl_add_u32 {vFA}, {vLANE}, 2, {vFA}")
        g(f"s_mul_i32 {sT}, {sCLS}, {8*12288}")
        g(f"s_add_u32 {sKV}, {sPART}, {OFFB + 4*12288:#x}")
        g(f"s_sub_u32 {sKV}, {sKV}, {sT}")
        return
    q2 = OPT["q2"] and ROLE[0] == "QQ"
    g(f"s_lshl_b32 {sT}, {sW}, 11")
    g(f"s_add_u32 {sT}, {sT}, {XC() + (16384 if q2 else 0)}")
    g(f"v_add_u32 v3, {sT}, {vL16}")
    g(f"v_xor_b32 v26, 0x2000, v3")
    g(f"v_sub_u32 {vFA}, 3, {vLANE}")
    g(f"v_lshlrev_b32 {vFA}, 7, {vFA}")
    g(f"v_xor_b32 {vFA}, {sFP}, {vFA}")
    g(f"v_lshl_add_u32 {vFA}, {vLANE}, 2, {vFA}")
    if q2:
        g(f"s_lshl_b32 {sT}, {sW}, 12")
        g(f"s_add_u32 {sT}, {sT}, {GB()}")
        g(f"v_add_u32 v19, {sT}, {vL16}")
        g(f"v_xor_b32 v21, 0x4000, v19")
        return
    g(f"v_add_u32 v19, {GB()}, {vXW}")
    g(f"v_add_u32 v21, {GB()}, {vXRd}")


def p2tail_asym(role, it, base, nx, XB, IDENT, vSC, order):
    N = len(it) - base
    cls = CLS[0]
    last = [max(i for i, o in enumerate(order) if o[1] == t) for t in range(3)]
    AR = (("v19", 0), ("v19", 32768), ("v3", 0))
    R = [XB[0], 32, XB[0]]
    X3, T3 = XB[0], TACC + 48
    H = 4 * 12288
    it[base + nx - 1].post.append(st("t012"))
    if OPT["tp"]: it[base + OPT["tp"]].post.append("s_setprio 1")
    if cls == 0:
        for t in range(3):
            a, o = AR[t]
            l = [(lambda i=i, t=t, a=a, o=o: g(f"ds_write_b128 {a}, {vr(TACC+16*t+4*i)} offset:{o+i*1024}", tag="xw")) for i in range(4)]
            w = 1 if t == 2 else max(1, min(2, last[t + 1] - last[t]))
            spread(it, base + last[t] + 1, base + last[t] + 1 + w, l)
        it[base + nx].post += [f"v_lshl_add_u32 {vPA}, {vLANE}, 2, {sFP}", f"s_mov_b32 {sDEC}, 0"] + (["s_setprio 0"] if OPT["tp"] else [])
        it[base + nx - 1 + OPT["k0"]].post += [lambda: g.wait(lg="xw"), "s_barrier", st("pst")]
        if OPT["apr"] not in (4, 5): it[base + N - 1 - OPT["prl"]].post.append(poll_issue)
        FR = [52, 56, 60, 32, 36, 40]
        GP = Grp(role + "pr", [(FR[2 * t + h], sPART, t * 4096 + h * H) for t in range(3) for h in range(2)],
                 each=lambda i, reg: mfma(TACC + 16 * (i & 1), vr(IDENT), vr(reg), vr(TACC + 16 * (i & 1), 16) if i > 1 else 0))
        def tail():
            L = GP.loads()
            def xb1():
                g("s_barrier")
                for i in range(4):
                    g(f"ds_read_b128 {vr(X3+4*i)}, v19 offset:{i*1024}", tag="xr3")
                stamp("xb1")
            def comb():
                g.wait(lg="xr3")
                for i in range(16): g(f"v_add_f32 v{X3+i}, v{T3+(i+8)%16}, v{X3+i}")
                for i in range(16): g(f"v_mul_f32 v{X3+i}, {vSC}, v{X3+i}")
            if OPT["apr"] == 0:
                xb1(); take(7)(); stamp("pflag"); emit(L); comb()
            elif OPT["apr"] == 1:
                take(1)(); emit(L[:2]); take(2, False)(); emit(L[2:4]); xb1(); take(4, False)(); stamp("pflag"); emit(L[4:]); comb()
            elif OPT["apr"] == 2:
                take(1)(); emit(L[:2]); take(2, False)(); emit(L[2:4]); take(4, False)(); emit(L[4:]); xb1(); stamp("pflag"); comb()
            elif OPT["apr"] == 3:
                take(1)(); emit(L[:2]); take(2, False)(); emit(L[2:4]); xb1(); comb(); take(4, False)(); stamp("pflag"); emit(L[4:])
            elif OPT["apr"] == 4:
                emit(L); xb1(); stamp("pflag"); comb()
            elif OPT["apr"] == 5:
                xb1(); emit(L); stamp("pflag"); comb()
            elif OPT["apr"] == 6:
                take(3)(); emit(L); xb1(); stamp("pflag"); comb()
            emit(GP.check())
            stamp("pok")
            for h in range(2):
                b = X3 + 8 * (1 - h)
                for i in range(8): g(f"v_fmac_f32 v{b+i}, {vSC}, v{TACC+16*h+i}")
                for i in range(4): g(f"v_cvt_pk_bf16_f32 v{b+i}, v{b+2*i}, v{b+2*i+1}")
                g(f"buffer_store_dwordx4 {vr(b)}, {vOA}, {SOUT}, {sOUT} offen offset:{32*h}")
            finish(role, None)
    else:
        def rd(t):
            a, o = AR[t]
            def f():
                for i in range(4): g(f"ds_read_b128 {vr(R[t]+4*i)}, {a} offset:{o+i*1024}", tag=f"xr{t}")
            return f
        it[base + last[0] - OPT["b1l"]].post += ["s_barrier", rd(0), rd(1)]
        prev = -1
        for t in range(3):
            T = TACC + 16 * t
            l = [f"s_xor_b32 {sST}, {sPART}, {(3-t) << 10:#x}"]
            if t: l.append(f"s_add_u32 {sST}, {sST}, {t*4096}")
            l.append(lambda t=t: g.wait(lg=f"xr{t}"))
            for h in range(2):
                b = T + 8 * h
                l += [f"v_add_f32 v{b+i}, v{b+i}, v{R[t]+(8*h+8+i)%16}" for i in range(8)]
                if t == 0 and h == 1: l.append(rd(2))
                l += [f"v_cvt_pk_bf16_f32 v{b+i}, v{b+2*i}, v{b+2*i+1}" for i in range(4)]
                l += tstore(b, sST, 0, tag="pst")
                if h == 0: l.append(f"s_sub_u32 {sST}, {sST}, {H}")
            def flag(t=t):
                g(f"s_mov_b64 exec, {1 << t}")
                g(f"buffer_store_dword {vNON}, {vFA}, {SWS}, 0 offen sc1", tag="pub")
                g("s_mov_b64 exec, -1")
            if OPT["apr"] not in (4, 5): l.append(flag)
            pos = max(last[t] + OPT["nxd"], prev + 1)
            w = 1 if t == 2 else max(1, min(4, last[t + 1] + OPT["nxd"] - pos))
            spread(it, base + pos, base + pos + w, l)
            prev = pos + w - 1
        it[base + prev].post.append(st("pst"))
        def tail():
            for i in range(4):
                g(f"ds_write_b128 v19, {vr(T3+4*i)} offset:{i*1024}", tag="xw")
            g.wait(lg="xw")
            g("s_barrier")
            stamp("xb1"); stamp("pflag"); stamp("pok")
            finish(role, None)
    tail.split = base + last[0] - OPT["b1l"]
    return tail


def p2tail_nx(role, it, base, nx, XB, IDENT, vSC, order):
    N = len(it) - base
    S = TACC
    FR = [52, 56, 60, XB[0], XB[0] + 4, XB[1]]
    GP = Grp(role + "pr", [(FR[2 * t + h], (sPART, sKV)[h], t * 4096) for t in range(3) for h in range(2)],
             each=lambda i, reg: mfma(S, vr(IDENT), vr(reg), vr(S, 16) if i else 0))
    def send(t):
        T = TACC + 16 * t
        l = [f"s_xor_b32 {sST}, {sPART}, {(3-t) << 10:#x}"]
        if t: l.append(f"s_add_u32 {sST}, {sST}, {t*4096}")
        for h in range(2):
            b = T + 8 * h
            l += [f"v_cvt_pk_bf16_f32 v{b+i}, v{b+2*i}, v{b+2*i+1}" for i in range(4)]
            l += tstore(b, sST, 0, tag="pst")
            if h == 0: l.append(f"s_add_u32 {sST}, {sST}, {OFFB:#x}")
        def flag():
            g(f"s_mov_b64 exec, {0x11 << t:#x}")
            g(f"buffer_store_dword {vNON}, {vFA}, {SWS}, 0 offen sc1", tag="pub")
            g("s_mov_b64 exec, -1")
        return l + [flag]
    it[base + nx - 1].post.append(st("t012"))
    prev = -1
    for t in range(3):
        last = max(i for i, o in enumerate(order) if o[1] == t)
        pos = max(last + OPT["nxd"], prev + 1)
        w = 1 if t == 2 else max(1, min(3, max(i for i, o in enumerate(order) if o[1] == t + 1) + OPT["nxd"] - pos))
        spread(it, base + pos, base + pos + w, send(t))
        prev = pos + w - 1
    it[base + prev].post += [f"v_lshl_add_u32 {vPA}, {vLANE}, 2, {sFP}", f"s_mov_b32 {sDEC}, 0", st("pst")]
    if OPT["tp"]:
        it[base + OPT["tp"]].post.append("s_setprio 1")
        it[base + prev].post.append("s_setprio 0")
    assert prev < N - 1 - OPT["prl"]
    it[base + N - 1 - OPT["prl"]].post.append(poll_issue)
    def tail():
        T3 = TACC + 48
        for i in range(2):
            g(f"ds_write_b128 {vXW}, {vr(T3+8+4*i)} offset:{i*1024}", tag="xw")
        g.wait(lg="xw")
        g("s_barrier")
        for i in range(2):
            g(f"ds_read_b128 {vr(XB[3]+4*i)}, {vXRd} offset:{i*1024}", tag="xr3")
        stamp("xb1")
        take(0x77)()
        stamp("pflag")
        emit(GP.loads())
        g.wait(lg="xr3")
        for i in range(8): g(f"v_add_f32 v{XB[3]+i}, v{T3+i}, v{XB[3]+i}")
        for i in range(8): g(f"v_mul_f32 v{XB[3]+i}, {vSC}, v{XB[3]+i}")
        emit(GP.check())
        stamp("pok")
        for i in range(8): g(f"v_fmac_f32 v{XB[3]+i}, {vSC}, v{S+i}")
        finish(role, XB)
    return tail


def p2tail(role, it, base, nx, XB, IDENT, vSC, order):
    if OPT["asym"]: return p2tail_asym(role, it, base, nx, XB, IDENT, vSC, order)
    if OPT["nx"]: return p2tail_nx(role, it, base, nx, XB, IDENT, vSC, order)
    PR = 52
    N = len(it) - base
    def xsend012():
        for t, (a, o) in enumerate((("v19", 0), ("v19", 2048), ("v3", 0))):
            for i in range(2):
                g(f"ds_write_b128 {a}, {vr(TACC+16*t+8+4*i)} offset:{o+i*1024}", tag="xw")
    def xrecv012():
        g.wait(lg="xw")
        g("s_barrier")
        for t, (a, o) in enumerate((("v21", 0), ("v21", 2048), ("v26", 0))):
            for i in range(2):
                g(f"ds_read_b128 {vr(XB[t]+4*i)}, {a} offset:{o+i*1024}", tag=f"xr{t}")
    def xfin(t):
        def f():
            g(f"s_xor_b32 {sT}, {sPART}, {(3-t) << 10:#x}")
            if t: g(f"s_add_u32 {sT}, {sT}, {t*4096}")
            g.wait(lg=f"xr{t}")
            for i in range(8): g(f"v_add_f32 v{XB[t]+i}, v{XB[t]+i}, v{TACC+16*t+i}")
            for i in range(4): g(f"v_cvt_pk_bf16_f32 v{XB[t]+i}, v{XB[t]+2*i}, v{XB[t]+2*i+1}")
            emit(tstore(XB[t], sT, 0, tag="pst"))
        return f
    GP = Grp(role + "pr", [(PR + 4 * t, sPART, t * 4096) for t in range(3)])
    it[base + nx - 1].post.append(st("t012"))
    def pflag():
        g("s_mov_b64 exec, 7")
        g(f"buffer_store_dword {vNON}, {vFA}, {SWS}, 0 offen sc1", tag="pub")
        g("s_mov_b64 exec, -1")
        g(f"v_lshl_add_u32 {vPA}, {vLANE}, 2, {sFP}")
        g(f"s_mov_b32 {sDEC}, 0")
    xs = [xsend012, xrecv012, xfin(0), xfin(1), lambda: (xfin(2)(), stamp("pst"))]
    k = {0: 4, 1: 0, 2: 1, 3: 2}[OPT["efp"]]
    if not OPT["pd"]: xs[k] = (lambda f: lambda: (f(), pflag()))(xs[k])
    pt = OPT["wpt" if role == "W" else "qpt"]
    if pt: it[base + pt].post.append(ptouch)
    p1 = OPT["wp1" if role == "W" else "qp1"]
    if p1:
        it[base + p1].post.append(prio1(1))
        it[base + nx + 1].post.append("s_setprio 0")
    def early():
        g.wait(vm="poll")
        g(f"v_cmp_eq_u32 vcc, {sNON}, {vPR}")
        g(f"s_and_b32 {sFA}, vcc_lo, 7")
        g(f"s_cmp_lg_u32 {sFA}, 7")
        g(f"s_cbranch_scc1 PE_{role}")
        with g.optional(): emit(GP.loads(False))
        g.label(f"PE_{role}")
    if OPT["pe"]:
        it[base + nx - OPT["pe"]].post += [f"v_lshl_add_u32 {vPA}, {vLANE}, 2, {sFP}", poll_issue]
        xs[1] = (lambda f: lambda: (f(), early()))(xs[1])
    for i, f in enumerate(xs): it[base + min(nx + i, N - 1)].post.append(f)
    if OPT["pd"]:
        for f in GP.loads(): it[base + N - 1 - OPT["prl"]].post.append(f)
    elif not OPT["pe"]: it[base + max(min(nx + 5, N - 1), N - 1 - OPT["prl"])].post.append(poll_issue)
    def tail():
        T3 = TACC + 48
        for i in range(2):
            g(f"ds_write_b128 {vXW}, {vr(T3+8+4*i)} offset:{i*1024}", tag="xw")
        g.wait(lg="xw")
        g("s_barrier")
        for i in range(2):
            g(f"ds_read_b128 {vr(XB[3]+4*i)}, {vXRd} offset:{i*1024}", tag="xr3")
        stamp("xb1")
        if OPT["pe"]:
            g(f"s_cmp_eq_u32 {sFA}, 7")
            g("s_waitcnt vmcnt(4)")
            g(f"s_cbranch_scc1 PF_{role}")
            with g.optional():
                g(f"s_mov_b32 {sMASK}, 7")
                g(f"s_call_b64 {sRET}, SPIN")
                g.block("SPIN", SPIN, align=3)
                emit(GP.loads(False))
                g("s_waitcnt vmcnt(0)")
            g.label(f"PF_{role}")
            stamp("pflag")
        elif not OPT["pd"]:
            take(7)()
            stamp("pflag")
            emit(GP.loads())
        g.wait(lg="xr3")
        for i in range(8): g(f"v_mul_f32 v{XB[3]+i}, {vSC}, v{XB[3]+i}")
        emit(GP.check())
        stamp("pok")
        for t in range(3):
            mfma(T3, vr(IDENT), vr(PR + 4 * t), vr(T3, 16))
        for i in range(8): g(f"v_fmac_f32 v{XB[3]+i}, {vSC}, v{T3+i}")
        finish(role, XB)
    return tail


def finish(role, XB):
    if True:
        if XB is not None:
            for i in range(4): g(f"v_cvt_pk_bf16_f32 v{XB[3]+i}, v{XB[3]+2*i}, v{XB[3]+2*i+1}")
            g(f"buffer_store_dwordx4 {vr(XB[3])}, {vOA}, {SOUT}, {sOUT} offen{' sc1' if OPT['osc'] else ''}")
        if STAMP:
            stamp("end")
            g(f"{'s_memtime' if OPT['rts'] else 's_memrealtime'} s[6:7]")
            g("s_waitcnt lgkmcnt(0)")
            g(f"v_writelane_b32 {vSTAMP}, s6, 60")
            g(f"v_writelane_b32 {vSTAMP}, s98, {len(SN[ROLE[0]])-1}")
            g(f"v_writelane_b32 {vSTAMP}, {sCNT}, 63")
            g(f"v_writelane_b32 {vSTAMP}, s3, 61")
            g("s_lshl_b32 s3, s2, 3")
            g(f"s_add_u32 s3, s3, {sW}")
            g("s_lshl_b32 s3, s3, 8")
            g(f"s_add_u32 s3, s3, {STP:#x}")
            g(f"v_lshlrev_b32 v9, 2, {vLANE}")
            g(f"buffer_store_dword {vSTAMP}, v9, {SWS}, s3 offen")
            if OPT["hd"]:
                nm = SN[ROLE[0]]
                sel = ["i31", "i95", "P2bar", "gook", "t012", "end"] if role == "W" else ["i31", "i95", "kvok", "ost", "t012", "end"]
                b0 = 1 if role == "W" else 7
                g(f"s_cmp_lg_u32 {sRW}, 0")
                g(f"s_cbranch_scc1 HD_{role}")
                g("s_memrealtime s[6:7]")
                g("v_mov_b32 v8, 0")
                g(f"v_readlane_b32 s4, {vSTAMP}, 0")
                for k, n_ in enumerate(sel):
                    g(f"v_readlane_b32 s5, {vSTAMP}, {nm.index(n_)}")
                    g("s_nop 1")
                    g("s_sub_u32 s5, s5, s4")
                    g(f"v_writelane_b32 v8, s5, {b0 + k}")
                g(f"v_readlane_b32 s5, {vSTAMP}, 62")
                g("s_nop 1")
                g("v_writelane_b32 v8, s5, 14")
                g("s_not_b32 s5, s5")
                g("v_writelane_b32 v8, s5, 15")
                g("s_waitcnt lgkmcnt(0)")
                g("v_writelane_b32 v8, s6, 13")
                g("s_mov_b64 exec, 0xffff")
                g(f"buffer_atomic_umax v8, v9, {SDBG}, 0 offen sc1")
                g.label(f"HD_{role}")
        if OPT["cal"] and role == "Q":
            g("s_cmp_lg_u32 s2, 0")
            g("s_cbranch_scc1 CAL_e")
            g.label("CAL_l")
            g(("s_memrealtime" if OPT["cal"] == 1 else "s_memtime") + " s[98:99]")
            g("s_waitcnt lgkmcnt(0)")
            g("s_sub_u32 s3, s98, s6")
            g(f"s_cmp_lt_u32 s3, {OPT['calx']}")
            g("s_cbranch_scc1 CAL_l")
            g.label("CAL_e")
        if OPT["hx"]:
            g("s_memrealtime s[6:7]")
            g("s_and_b32 s3, s2, 7")
            g("s_lshl_b32 s3, s3, 2")
            g("s_add_u32 s3, s3, 4")
            g("v_mov_b32 v8, s98")
            g("s_mov_b64 exec, 1")
            g(f"buffer_atomic_umax v8, off, {SDBG}, s3 sc1")
            g("s_waitcnt lgkmcnt(0)")
            g("s_bfe_u32 s3, s2, 0x20001")
            g("s_lshl_b32 s3, s3, 2")
            g("v_mov_b32 v9, s6")
            g(f"buffer_atomic_umax v9, off, {SDBG}, s3 offset:36 sc1")
            g("s_getreg_b32 s4, hwreg(HW_REG_XCC_ID)")
            g("s_and_b32 s4, s4, 15")
            g("s_and_b32 s3, s2, 7")
            g("s_lshl_b32 s3, s3, 2")
            g("s_lshl_b32 s4, s4, s3")
            g("v_mov_b32 v10, s4")
            g(f"buffer_atomic_or v10, off, {SDBG}, 0 offset:52 sc1")
        if role == "W" and CLS[0] == 0: g.label("END")
        g("s_endpgm")


def unit(regs, ar, off):
    return [(r, ar, off + s * 2048) for s, r in enumerate(regs)]


def WW():
    DS = OPT["ds"]
    b0, b1, b2, b3 = ("v38", "v39", "v40", "v41") if DS else ("v60", "v61", "v62", "v63")
    def bias0():
        g(f"""
        v_mov_b32 v24, 0x3f80
        v_mov_b32 v25, 0
        v_mov_b32 v26, 1.0
        v_mov_b32 v27, 0
        v_mov_b32 v28, 0
        v_mov_b32 v29, 0
        v_mov_b32 v30, 0
        v_mov_b32 v31, 0
        v_mov_b32 {vBIAS2}, 0
        v_mov_b32 {b2}, 0
        v_mov_b32 {b3}, 0
        s_lshl_b32 {sT}, {sCLS}, 6
        v_lshl_add_u32 {b0}, {vLANE}, 1, {sT}
        s_lshl_b32 {sT}, {sCLS}, 5
        v_lshl_add_u32 {b1}, {vLANE}, 1, {sT}
        """)
    def biasld():
        g("s_mov_b32 exec_hi, 0")
        g(f"buffer_load_ushort v28, {b0}, {SB}, {sP[0]} offen", tag="bias")
        g(f"buffer_load_ushort {b2}, {b0}, {SB}, {sP[1]} offen", tag="bias")
        g(f"buffer_load_ushort {vBIAS2}, {b0}, {SB}, {sP[2]} offen", tag="bias")
        g("s_mov_b32 exec_lo, 0xffff")
        g(f"buffer_load_ushort {b3}, {b1}, {SB}, {sP[3]} offen", tag="bias")
        g("s_mov_b64 exec, -1")
    def u0():
        g(f"""
        v_and_b32 v37, 31, v32
        v_lshrrev_b32 v38, 2, v33
        v_lshl_add_u32 v38, v38, 5, v37
        v_mul_lo_u32 v38, v38, {sSTR}
        v_and_b32 v37, 3, v33
        v_lshl_add_u32 v38, v37, 4, v38
        v_add_u32 {vUD}, {sP[3]}, v38
        """)
        du(0, "ck2")()
    if DS:
        if OPT["ue"]: u0()
    else:
        bias0()
        du(0, "ck2")()
        biasld()
    def uitem(c, j, buf):
        return Item(vU, c * 4096 + j * 2048, 512, buf, ACC3, XR + 16 * c + 4 * j, zero=(c == 0 and j == 0), D=OPT["D"])
    if OPT["il"]: return WWi(uitem)
    wb = WBs(); wc = WCs()
    it = phase1("T", [64, 68, 72, 76, 100, 108], "Wn", uitem,
                {1: [du(1, "ck4")], 3: [du(2, "ck6")], 4: [du(3, "ck7")]},
                wb[1:3] + wc[:1] + wb[3:4] + wc[1:OPT["wct"]], wb[4:] + ([] if OPT["wcl"] else wc[OPT["wct"]:]), [u0] if DS and not OPT["ue"] else [])
    if OPT["wcl"]:
        place(it, OPT["wcl"], OPT["wch"], wc[OPT["wct"]:], it[PB])
        it[PB + 16].bar["vm"] = [f"wb{c}" for c in range(4, 8)]
        it[PC].bar = dict(vm=[f"wc{c}" for c in range(8)], lead=OPT["wcb"])
    def bias1():
        g.wait(vm="bias")
        g(f"v_lshl_or_b32 v28, {b2}, 16, v28")
        g(f"v_lshl_or_b32 {vBIAS2}, {b3}, 16, {vBIAS2}")
    o = 12 if DS else 0
    if DS:
        it[6].post.append(bias0); it[7].post.append(biasld)
    it[26 if DS else 7].post.append(bias1)
    it[19 + o].post.append(lambda: mfma(ACC0, "v[28:31]", "v[24:27]", vr(ACC0, 16)))
    it[21 + o].post.append(lambda: mfma(ACC1, "v[28:31]", "v[26:29]", 0))
    it[PB].zero = False
    it[23 + o].post.append(f"v_mov_b32 v28, {vBIAS2}")
    it[27 + o].post.append(lambda: mfma(ACC3, "v[28:31]", "v[26:29]", vr(ACC3, 16)))
    it[PC].post.append(lambda: mfma(ACC2, "v[28:31]", "v[24:27]", vr(ACC2, 16)))
    it[30 + o].post.append(f"s_add_u32 {sST}, {sAp}, 0x1000")
    Ga = Grp("Wga", [(128, sAo, 0), (132, sAo, 1024)])
    Gb = Grp("Wgq", [(140, sAo, 2048), (144, sAo, 3072), (136, sAo, 6144)])
    Gc = Grp("Wgc", [(148, sAo, 4096), (152, sAo, 5120)])
    Go = Grp("Wgo", [(156, sAp, 7168), (160, sAp, 8192), (172, sAp, 9216), (164, sAo, 7168), (168, sAo, 8192)])
    def xw():
        g(f"s_and_b32 {sT}, {sRm}, 0x1fff")
        g(f"s_add_u32 {sT}, {sT}, {LC}")
        g(f"v_add_u32 {vUD}, {sT}, {vL16}")
        g(f"v_xor_b32 {vU}, 0x1000, {vUD}")
        for i in range(2): g(f"ds_write_b128 {vU}, {vr(ACC3+8+4*i)} offset:{i*8192}", tag="xw")
    def xrd():
        for i in range(2): g(f"ds_read_b128 {vr(ACC3+8+4*i)}, {vUD} offset:{i*8192}", tag="xu")
    it[OPT['xwp']].post.append(xw)
    it[PB + 16].bar.update(lg=["xw"], after=[xrd])
    G1 = D2A("G1")
    G1[0] = (lambda f: lambda: (g.wait(lg="xu"), f()))(G1[0])
    place(it, OPT["g0"], OPT["g1"], D2A("G0") + G1, it[PB + 16])
    assert OPT["ea1"] <= PC - 2 and OPT["eu0"] >= PB + 16 - OPT["BL2"] and OPT["eu0"] >= OPT["ea1"] and OPT["eb0"] >= OPT["eu1"]
    spread(it, OPT["ea0"], OPT["ea1"], EH(ACC0, sAp, 0) + EH(ACC0 + 8, sAp, 1024, ACC0) + [publish(0)])
    eu = [lambda: g.wait(lg="xu")] + [f"v_add_f32 v{ACC3+i}, v{ACC3+i}, v{ACC3+8+i}" for i in range(8)] + \
        EH(ACC3, sST, 2048, ACC0 + 8) + ([publish(1)] if OPT["q2"] else []) + [st("ust")]
    it[OPT["eu0"]].post.append(need(it[PB + 16]))
    spread(it, OPT["eu0"], OPT["eu1"], eu)
    spread(it, OPT["eb0"], OPT["eb1"], EH(ACC1, sAp, 2048, ACC3) + EH(ACC1 + 8, sAp, 3072, ACC1) + [publish(2), st("bst")])
    o0, o1 = MAP["WW"][1:3]
    steps = unit((ACC0, ACC0 + 8), aB, o0) + unit((ACC1, ACC1 + 8), aB, o1) + \
        unit((128, 132), aB, o0 + 16384) + unit((140, 144), aB, o1 + 16384) + \
        unit((ACC3,), aC, 0) + unit((136,), aC, 8192) + \
        unit((ACC2, ACC2 + 8), aA, 0)
    sc_ = unit((148, 152), aA, 16384); so_ = unit((156, 160), aA, 32768) + unit((164, 168), aA, 32768 + 16384)
    steps += so_ + sc_ if OPT["wo2"] else sc_ + so_
    fc, fo = (16, 12) if OPT["wo2"] else (12, 14)
    p2, order, nx, first = p2items(steps, [116, 124, 72, 76, 108, 64, 68], OPT["wt3"], OPT["wtm"])
    B = len(it); it += p2
    assert B == P2
    it[B - 2].post += untag(ACC1 + 8)
    assert OPT["eb1"] <= B - OPT["D2"] - 1
    if OPT["wb3"]:
        M, N = OPT["wM"], B + OPT["wN"]
        assert M >= PC + 16 and OPT["g1"] <= M - 6 and B + 3 <= N <= B + first[8]
        it[M].bar = dict(vm=["wG0", "wG1"], lead=3, drain=True, after=[st("Mbar")])
        place(it, M - 3, B - 2, D2A("U") + D2A("P2"), it[M])
        it[B].rpre += p2addr()
        it[N].bar = dict(vm=["wU", "wP2"], lead=3, after=[st("Nbar")])
        place(it, N - 3, N + 5, D2A("O"), it[N])
        it[B + first[14]].bar = dict(vm=["wO"], lead=OPT["D2"])
    else:
        it[B].bar = dict(vm=["wG0", "wG1"], lead=OPT["D2"], drain=True, after=p2addr() + [st("P2bar")])
        place(it, B + OPT["wpd0"], B + OPT["wpd"], D2A("U") + D2A("P2") + D2A("O"), it[B])
    spread(it, B + OPT["ec0"], B + OPT["ec1"], EH(ACC2, sST, 0) + EH(ACC2 + 8, sST, 1024, ACC2) + [publish(3), st("cst")])
    assert OPT["ec1"] <= first[10] - 3
    it[B + first[10] - 2].post += untag(ACC2 + 8)
    assert OPT["wga"] >= PC + 3
    fetch(it, OPT["wga"], Ga.loads(), 0x1000, B - 6, pl=OPT["lpl"], pre=setFA(), post=[st("gafl")])
    spread(it, B - 7, B - 5, Ga.check() + [st("gaok")])
    fetch(it, B + OPT["wgb"], Gb.loads(), 0x4000, B + first[6] - 4, pl=OPT["lpl"], pre=setFA() if OPT["ssp"] == 3 else [], post=[st("gbfl")])
    spread(it, B + first[6] - 2, B + first[6], Gb.check() + [st("gbok")])
    it[B + first[10] + 1].post += [p2misc, ident(100)]
    if OPT["wb3"]: pass
    elif OPT["wob"]:
        it[B + first[8]].bar = dict(vm=["wU", "wP2"], lead=OPT["D2"])
        it[B + first[14]].bar = dict(vm=["wO"], lead=OPT["D2"])
    else:
        it[B + first[8]].bar = dict(vm=["wU", "wP2", "wO"], lead=OPT["D2"])
    f1 = lambda: fetch(it, B + OPT["wgc"], Gc.loads(), 0x8000, B + first[fc] - 4, pl=OPT["lpl"], post=[st("gcfl")])
    f2 = lambda: fetch(it, B + OPT["wgo"], Go.loads(), 0x0011, B + first[fo] - 4, pl=OPT["lpl"], post=[st("gofl")])
    for f in ((f1, f2) if OPT["wgc"] < OPT["wgo"] else (f2, f1)): f()
    spread(it, B + first[fc] - 2, B + first[fc], Gc.check() + [st("gcok")])
    spread(it, B + first[fo] - 3, B + first[fo], Go.check() + [st("gook")])
    assert OPT["wgc"] < first[fc] - 3 and OPT["wgo"] < first[fo] - 3 and OPT["wgb"] < first[6] - 3 and OPT["wga"] + 1 < B - 7
    tail = p2tail("W", it, B, nx, [176, 184, 32, 40], 100, "v174", order)
    run(it, tail)


def WWi(uitem):
    wc = WCs()
    k6 = OPT["cb6"] or OPT["ea1"] + OPT["DP"] + 1
    cb = []; n4 = 0
    for s in range(32):
        ring = [64, 68, 72, 76] if PC + s < k6 else [64, 68, 72, 76, 100, 108]
        rec = cb[-(len(ring) - 1):]
        cand = [r for r in ring if r not in rec]
        cb.append(min(cand, key=lambda r: max([i for i, x in enumerate(cb) if x == r], default=-1)))
    it, fs = phase1i("T", cb, "Wn", uitem, {1: [du(1, "ck4")], 3: [du(2, "ck6")], 4: [du(3, "ck7")]},
                     {5: wc[0:2], 6: wc[2:4], 7: wc[4:6]})
    def bias1():
        g.wait(vm="bias")
        g("v_lshl_or_b32 v28, v62, 16, v28")
        g(f"v_lshl_or_b32 {vBIAS2}, v63, 16, {vBIAS2}")
    it[17].post.append(bias1)
    it[28].post.append(lambda: mfma(ACC0, "v[28:31]", "v[24:27]", vr(ACC0, 16)))
    it[31].post.append(lambda: mfma(ACC1, "v[28:31]", "v[26:29]", vr(ACC1, 16)))
    it[38].post.append(f"v_mov_b32 v28, {vBIAS2}")
    it[44].post.append(lambda: mfma(ACC3, "v[28:31]", "v[26:29]", vr(ACC3, 16)))
    it[PC].post.append(lambda: mfma(ACC2, "v[28:31]", "v[24:27]", vr(ACC2, 16)))
    it[30].post.append(f"s_add_u32 {sST}, {sAp}, 0x1000")
    um = OPT["um"]
    Ga = Grp("Wga", [(128, sAo, 0), (132, sAo, 1024)])
    Gb = Grp("Wgq", [(140, sAo, 2048), (144, sAo, 3072)])
    Gc = Grp("Wgc", [(148, sAo, 4096), (152, sAo, 5120)] + ([(136, sAo, 6144)] if um else []))
    Gu = Grp("Wgp", [(136, sAo, 6144)])
    Go = Grp("Wgo", [(156, sAp, 7168), (160, sAp, 8192), (172, sAp, 9216), (164, sAo, 7168), (168, sAo, 8192)])
    def xw():
        g(f"s_lshl_b32 {sT}, {sW}, 11")
        g(f"s_add_u32 {sT}, {sT}, {XC()}")
        g(f"v_add_u32 {vU}, {sT}, {vL16}")
        g(f"v_xor_b32 {vUD}, 0x2000, {vU}")
        for i in range(2): g(f"ds_write_b128 {vU}, {vr(ACC3+8+4*i)} offset:{i*1024}", tag="xw")
    def xrd():
        for i in range(2): g(f"ds_read_b128 {vr(ACC3+8+4*i)}, {vUD} offset:{i*1024}", tag="xu")
    assert OPT["xwp"] >= PC
    it[OPT['xwp']].post.append(xw)
    M = PC + 16
    a0 = PC - OPT["BL2"]
    place(it, a0, OPT["gw1"], wc[6:] + D2A("G0") + D2A("G1") + D2A("U"), it[PC])
    assert OPT["ea0"] >= fs[7] + 3 and OPT["eb0"] >= OPT["ea1"] and OPT["eb0"] >= fs[7] + 7
    spread(it, OPT["ea0"], OPT["ea1"], EH(ACC0, sAp, 0) + EH(ACC0 + 8, sAp, 1024, ACC0) + [publish(0), st("ast")])
    spread(it, OPT["eb0"], OPT["eb1"], EH(ACC1, sAp, 2048, ACC0 + 8) + EH(ACC1 + 8, sAp, 3072, ACC1) + [publish(2), st("bst")])
    o0, o1 = MAP["WW"][1:3]
    U = dict(a=unit((ACC0, ACC0 + 8), aB, o0), b=unit((ACC1, ACC1 + 8), aB, o1), A=unit((128, 132), aB, o0 + 16384),
             B=unit((140, 144), aB, o1 + 16384), u=unit((ACC3,), aC, 0), U=unit((136,), aC, 8192), c=unit((ACC2, ACC2 + 8), aA, 0),
             C=unit((148, 152), aA, 16384), O=unit((156, 160), aA, 32768) + unit((164, 168), aA, 32768 + 16384))
    so = ["abABcuCOU", "abABcuCUO", "abABcuOCU", "abAcBuCOU"][OPT["wo2"]]
    steps = []; fp = {}
    for k in so: fp[k] = len(steps); steps += U[k]
    p2, order, nx, first = p2items(steps, [116, 124, 72, 76, 108, 64, 68], OPT["wt3"], OPT["wtm"])
    F = {k: P2 + first[v] for k, v in fp.items()}
    B = len(it); it += p2
    assert B == P2
    it[B - 2].post += untag(ACC1 + 8)
    assert OPT["eb1"] <= B - OPT["D2"] - 1
    xb = it[M] if OPT["xwp"] < M - OPT["BL3"] else it[B]
    assert OPT["xwp"] < B - OPT["D2"]
    if OPT["p2e"]:
        place(it, max(M - OPT["BL3"], OPT["gw1"]), B - OPT["D2"] - OPT["p2e"], D2A("P2"), it[M])
        it[B].bar = dict(vm=["wG0", "wG1", "wU", "wP2"], lead=OPT["D2"], drain=True, after=p2addr() + [st("P2bar")])
        place(it, B + OPT["wpd0"], B + OPT["wpd"], D2A("O"), it[B])
        it[F["O"]].bar = dict(vm=["wO"], lead=OPT["D2"])
    else:
        it[B].bar = dict(vm=["wG0", "wG1", "wU"], lead=OPT["D2"], drain=True, after=p2addr() + [st("P2bar")])
        place(it, B + OPT["wpd0"], B + OPT["wpd"], D2A("P2") + D2A("O"), it[B])
        it[F["c"]].bar = dict(vm=["wP2", "wO"], lead=OPT["D2"])
    xb.bar["lg"] = ["xw"]; xb.bar["after"] = [xrd] + xb.bar["after"]
    spread(it, B + OPT["ec0"], B + OPT["ec1"], EH(ACC2, sST, 0) + EH(ACC2 + 8, sST, 1024, ACC2) + ([] if um else [publish(3)]) + [st("cst")])
    assert B + OPT["ec1"] <= F["c"] - 1 and OPT["eu0"] >= OPT["ec1"] and B + OPT["eu0"] <= F["c"] + 1 and B + OPT["eu1"] <= F["u"] - 2
    eu = [lambda: g.wait(lg="xu")] + [f"v_add_f32 v{ACC3+i}, v{ACC3+i}, v{ACC3+8+i}" for i in range(8)]
    eu = untag(ACC2 + 8) + eu + EH(ACC3, sST, 2048) + [publish(3 if um else 1), st("ust")]
    spread(it, B + OPT["eu0"], B + OPT["eu1"], eu)
    it[F["u"] - 2].post += untag(ACC3)
    assert OPT["wga"] >= PC + 3
    ca = F["A"] - 2 if OPT["gac"] else B - 7
    fl = [(OPT["wga"], Ga, 0x1000, ca, 2, "ga"), (B + OPT["wgb"], Gb, 0x4000, F["B"] - 2, 2, "gb"),
          (B + OPT["wgc"], Gc, 0x8000, F["C"] - 2, 2, "gc"), (B + OPT["wgo"], Go, 0x0011, F["O"] - 3, 3, "go")]
    if not um: fl.append((B + OPT["wgu"], Gu, 0x2000, F["U"] - 1, 1, "gu"))
    else: assert F["U"] > F["C"]
    for n_, (pos, G, mask, cp, w, nm) in enumerate(sorted(fl, key=lambda x: x[0])):
        assert pos < cp - 1, (nm, pos - B, cp - B)
        fetch(it, pos, G.loads(), mask, cp - 2, pl=OPT["lpl"], pre=setFA() if n_ == 0 else [], post=[st(nm + "fl")])
    for pos, G, mask, cp, w, nm in fl: spread(it, cp, cp + w, G.check() + [st(nm + "ok")])
    it[F["u"] + 1].post += [p2misc, ident(100)]
    tail = p2tail("W", it, B, nx, [176, 184, 32, 40], 100, "v174", order)
    run(it, tail)


def QQ():
    def g0():
        if OPT["ds"]: g(f"v_lshlrev_b32 {vL16}, 4, {vLANE}")
        emit([f"s_lshl_b32 {sT}, {sROT}, 7", f"v_xor_b32 {vUD}, {sT}, {vL16}", f"s_add_u32 m0, {sW1K}, {LB+7*8192:#x}",
              f"s_lshl_b32 {sT}, {sCLS}, 6", f"s_add_u32 {sT}, {sT}, m0"])
        g(f"buffer_load_dwordx4 {vUD}, {SB}, 0 offen lds", tag="gate")
        emit([f"v_lshl_add_u32 {vU}, v35, 4, {sT}"] if OPT["ds"] else [f"v_lshrrev_b32 {vU}, 5, {vLANE}", f"v_lshl_add_u32 {vU}, {vU}, 4, {sT}"])
    late0 = OPT["ds"] and not OPT["ue"]
    if not late0: g0()
    def gitem(c, j, buf):
        x = Item(vU, c * 128 + j * 32, None, buf, ACC3, XR + 16 * c + 4 * j, zero=(c == 0 and j == 0), D=OPT["D"])
        if c == 0 and j == 0: x.rvm = ["gate"]
        return x
    wb = WBs(); wc = WCs()
    IL = OPT["il"]
    vLG, vLG2 = "v19", "v21"
    if IL:
        it, fs = phase1i("N", [64, 68, 72, 76] * 8, "Qn", gitem, {}, {5: wc[0:2], 6: wc[2:4], 7: wc[4:6]})
        it[PC].post.append(f"v_mov_b32 {vLG}, v{ACC3}")
        OPT["qlb"] = PC + 16
    elif OPT["iq"]:
        it, kend, gend, X1, X2, nq = phase1q("N", [64, 68, 72, 76], "Qn", gitem)
        it[gend + 1].post.append(f"v_mov_b32 {vLG}, v{ACC3}")
    else:
        it = phase1("N", [64, 68, 72, 76], "Qn", gitem, {}, wb[1:3] + wc[:1] + wb[3:OPT["qbt"]] + wc[1:OPT["qct"]], (wb[OPT["qbt"]:] + wc[OPT["qct"]:]), [g0] if late0 else [])
        it[PB + 1].post.append(f"v_mov_b32 {vLG}, v{ACC3}")
    VO = 32768 if OPT["vlb"] else 16384
    it[2].post += [f"s_lshl_b32 {sT}, {sW}, 11", f"s_add_u32 {sT}, {sT}, {LC}", f"v_add_u32 v24, {sT}, {vL16}",
                   f"s_and_b32 {sT}, {sRW}, 1", f"s_lshl_b32 {sT}, {sT}, 13", f"s_add_u32 {sT}, {sT}, {LC}",
                   f"v_add_u32 v25, {sT}, {vL16}"]
    it[4].post += [f"v_mov_b32 v{28+i}, 0x3f803f80" for i in range(4)] + \
                  [f"s_cmp_lt_u32 {sRW}, 2", "s_mov_b32 s5, 0xffff", "s_cselect_b32 s4, s5, 0xffff0000", "s_mov_b32 s5, s4",
                   f"v_add_u32 v26, 1024, {vL16}", f"v_cndmask_b32_e64 v26, v26, {vL16}, {sMK}"]
    def fw(reg, off):
        return lambda: g(f"ds_write_b128 v24, {vr(reg)} offset:{off}", tag="fw")
    vp = []
    for q in range(2):
        vp += [f"v_cvt_pk_bf16_f32 v{ACC1+8*q+i}, v{ACC1+8*q+2*i}, v{ACC1+8*q+2*i+1}" for i in range(4)] + [fw(ACC1 + 8 * q, VO + q * 1024)]
    if IL:
        assert OPT["pk0"] >= fs[7] + 3 and OPT["vp0"] >= fs[7] + 7 and OPT["jb"] >= max(OPT["pk1"] - 1, OPT["vp0"], PC)
        if not OPT["vlb"]: it[OPT["vp0"]].post.append(need(it[PC]))
        it[OPT["vp0"]].post += vp
        spread(it, OPT["pk0"], OPT["pk1"], PH(ACC0) + [fw(ACC0, 0)] + PH(ACC0 + 8) + [fw(ACC0 + 8, 1024)])
    elif OPT["iq"]:
        spread(it, kend, OPT["pk1"], PH(ACC0) + [fw(ACC0, 0)] + PH(ACC0 + 8) + [fw(ACC0 + 8, 1024)])
        it[PC].post += vp
    else:
        spread(it, OPT["ea0"], OPT["pk1"], PH(ACC0) + [fw(ACC0, 0)] + PH(ACC0 + 8) + [fw(ACC0 + 8, 1024)])
        it[PC].post += vp
    def kflag():
        g(f"s_and_b32 {sT2}, {sRW}, 1")
        g(f"s_lshl_b32 {sT2}, {sT2}, 8")
        g(f"s_and_b32 {sT}, {sRB}, 8")
        g(f"s_lshl_b32 {sT}, {sT}, 4")
        g(f"s_add_u32 {sT2}, {sT2}, {sT}")
        g(f"s_lshl_b32 {sT}, {sR8}, 3")
        g(f"s_add_u32 {sT2}, {sT2}, {sT}")
        g(f"s_and_b32 {sT}, {sRW}, 2")
        g(f"s_lshl_b32 {sT}, {sT}, 1")
        g(f"s_add_u32 {sT2}, {sT2}, {sT}")
        g(f"s_add_u32 {sT2}, {sT2}, {sFK}")
        g("s_mov_b64 exec, 1")
        g(f"buffer_store_dword {vNON}, off, {SWS}, {sT2} sc1")
        g(f"buffer_store_dword {vNON}, off, {SWS}, {sT2} offset:512")
        g("s_mov_b64 exec, -1")
    def jst(n):
        if OPT["js"]: g("s_waitcnt lgkmcnt(0)"); stamp(n)
    def job():
        g.wait(lg="fw", vm=[f"wc{c}" for c in range(8)] if OPT["iq"] else None)
        jst("j0")
        g("s_barrier")
        jst("j1")
        g(f"s_cmp_lg_u32 {sCLS}, 0")
        g("s_cbranch_scc1 Q_nojob")
        with g.optional():
            g("s_setprio 3")
            g(f"s_cmp_lt_u32 {sRW}, 2")
            g("s_cbranch_scc1 Q_jobc")
            with g.optional():
                for k in range(8): g(f"ds_read_b128 {vr(96+4*k)}, v25 offset:{k*1024}", tag=f"a{k}")
                if OPT["efk"]: kflag()
                for k in range(8):
                    g.wait(lg=f"a{k}")
                    mfma(ACC3, vr(96 + 4 * k), "v[28:31]", vr(ACC3, 16) if k else 0)
                g("s_branch Q_jobf")
            g.label("Q_jobc")
            for k in range(8):
                g(f"ds_read_b128 {vr(96+4*k)}, v25 offset:{k*1024}", tag=f"a{k}")
                if k < 4: g(f"ds_read_b128 {vr(TMP+4*k)}, v25 offset:{VO+k*1024}", tag=f"a{k}")
            if OPT["efk"]: kflag()
            for k in range(8):
                g.wait(lg=[f"a{k}", f"b{k}"])
                mfma(ACC3, vr(96 + 4 * k), vr(TMP + 4 * k) if k < 4 else vr(96 + 4 * (k - 4)), vr(ACC3, 16) if k else 0)
                if k < 4: g(f"ds_read_b128 {vr(96+4*k)}, v25 offset:{VO+(k+4)*1024}", tag=f"b{k+4}")
            g.label("Q_jobf")
            g(f"s_lshl_b32 {sT}, {sRB}, 12")
            g(f"s_and_b32 {sT2}, {sRW}, 1")
            g(f"s_lshl_b32 {sT2}, {sT2}, 11")
            g(f"s_add_u32 {sT}, {sT}, {sT2}")
            g(f"s_add_u32 {sT}, {sT}, {sKV}")
            for i in range(4): g(f"v_cvt_pk_bf16_f32 v{TMP+i}, v{ACC3+8+2*i}, v{ACC3+8+2*i+1}")
            g(f"s_mov_b64 exec, {sMK}")
            for i in range(4): g(f"v_cvt_pk_bf16_f32 v{TMP+i}, v{ACC3+2*i}, v{ACC3+2*i+1}")
            g("s_mov_b64 exec, -1")
            emit(tstore(TMP, sT, 0)[:2])
            g(f"buffer_store_dwordx4 {vr(TMP)}, v26, {SWS}, {sT} offen sc1")
            if not OPT["efk"]: kflag()
            g("s_setprio 0")
        g.label("Q_nojob")
        g(f"s_lshr_b32 {sT}, {sRW}, 1")
        g(f"s_lshl_b32 {sT}, {sT}, 15")
        g(f"s_add_u32 {sKV}, {sKV}, {sT}")
        g(f"s_and_b32 {sT}, {sRW}, 1")
        g(f"s_lshl_b32 {sT2}, {sCLS}, 1")
        g(f"s_add_u32 {sT}, {sT}, {sT2}")
        g(f"s_lshl_b32 {sT}, {sT}, 10")
        g(f"s_add_u32 {sKV}, {sKV}, {sT}")
        g(f"s_add_u32 {sST}, {sAp}, 7168")
    it[OPT["jb"]].post += [job, st("job")]
    if IL:
        M = PC + 16; M0 = M - OPT["BL3"]
        assert M0 > OPT["jb"]
        place(it, PC - OPT["BL2"], PC - OPT["BL2"] + 2, wc[6:], it[PC])
        if OPT["vlb"]:
            place(it, OPT["qg0"], OPT["qgw1"], D2A("G0") + D2A("U"), it[PC])
            late = D2A("G1")
        else:
            place(it, OPT["qg0"], OPT["qgw1"], D2A("G0") + D2A("G1"), it[PC])
            late = D2A("U")
        if OPT["p2e"]: late += D2A("O" if OPT["qoc"] else "P2")
        place(it, max(M0, OPT["qg1"]), max(M0, OPT["qg1"]) + OPT["qgw"], late, it[M])
    else:
        if OPT["iq"]: assert OPT["qg0"] > OPT["jb"] and OPT["jb"] + 4 < PC + 4 * nq
        place(it, OPT["qg0"], OPT["qg0"] + OPT["qgw"], D2A("G0"), None if OPT["iq"] else it[PB + 16])
        qg1 = OPT["qg1"] or OPT["jb"] + 1
        assert qg1 > OPT["jb"]
        place(it, qg1, qg1 + OPT["qgw"], D2A("G1"))
    if IL: pass
    elif not OPT["kq"]:
        it[OPT["qlb"]].bar = dict(lead=2)
        assert OPT["qlb"] - 2 > OPT["jb"]
        place(it, OPT["qlb"] - 2, OPT["qlb"], D2A("U"), it[OPT["qlb"]])
    KR = [128 + 4 * r for r in range(8)]
    Gk = Grp("Qkv", [(KR[r], sKV, r * 4096) for r in range(8)],
             each=(lambda r, reg: mfma(ACC3, vr(28), vr(reg), vr(ACC3, 16) if r else 0)) if OPT["kpi"] else None)
    Gp = Grp("Qgp", [(96, sAp, 0), (100, sAp, 1024), (104, sAo, 0), (108, sAo, 1024)])
    Gq = Grp("Qgq", [(112, sAp, 6144), (116, sAo, 6144), (160, sAp, 2048), (164, sAp, 3072), (168, sAo, 2048), (172, sAo, 3072)])
    Gc = Grp("Qgc", [(144, sAp, 4096), (148, sAp, 5120), (152, sAo, 4096), (156, sAo, 5120)])
    Go = Grp("Qgo", [(176, sAo, 7168), (180, sAo, 8192)])
    IDENT = 28
    OO, SCQ = 120, 188
    def ksum():
        stamp("kvok")
        if OPT["kpr"]: g(f"s_setprio {OPT['kpr']}")
        if OPT["efo"] == 2: publish(0)()
        if not OPT["kpi"]:
            for r in range(8): mfma(ACC3, vr(IDENT), vr(KR[r]), vr(ACC3, 16) if r else 0)
        for i in range(4): g(f"v_cvt_pk_bf16_f32 v{TMP+i}, v{ACC3+2*i}, v{ACC3+2*i+1}")
        g(f"ds_write_b128 v24, {vr(TMP)}", tag="kw")
        if OPT["kpr"]: g("s_setprio 0")
    def kx():
        g(f"ds_read_b32 {vLG2}, v27 offset:8192", tag="kl")
        for r in range(4): g(f"ds_read_b128 {vr(KR[r])}, v25 offset:{r*1024}", tag=f"kr{r}")
        if OPT["efo"] == 1: publish(0)()
    def ko():
        if OPT["kpr"]: g(f"s_setprio {OPT['kpr']}")
        g.wait(lg="kl")
        g(f"v_add_f32 {vLG}, {vLG}, {vLG2}")
        g(f"v_mul_f32 {vLG}, {sLOG2E}, {vLG}")
        g(f"v_min_f32 {vLG}, 0x42640000, {vLG}")
        g(f"v_exp_f32 {vLG}, {vLG}")
        for r in range(4):
            g.wait(lg=f"kr{r}")
            acc = (TMP, ACC3)[r & 1]
            mfma(acc, vr(KR[r]), vr(ACC2 + 8 * (r & 1)), vr(acc, 16) if r >= 2 else 0)
        g(f"v_add_f32 v{SCQ+2}, 1.0, {vLG}")
        g(f"v_rcp_f32 v{SCQ+2}, v{SCQ+2}")
        g(f"v_mov_b32 v{SCQ}, {TG0}")
        g(f"v_mov_b32 v{SCQ+1}, {TG1}")
        g(f"buffer_store_dwordx4 {vr(SCQ)}, {vL16}, {SWS}, {sST} offen offset:2048{LSC}", tag="st")
        for hd, (num, den) in enumerate(((TMP, TMP + 8), (ACC3 + 8, ACC3))):
            g(f"v_add_f32 v{den}, {sEPS}, v{den}")
            g(f"v_rcp_f32 v{den}, v{den}")
            g(f"v_mul_f32 v{den}, {vLG}, v{den}")
            for i in range(8): g(f"v_mul_f32 v{num+i}, v{den}, v{num+i}")
            for i in range(4): g(f"v_cvt_pk_bf16_f32 v{OO+4*hd+i}, v{num+2*i}, v{num+2*i+1}")
            emit(tstore(OO + 4 * hd, sST, hd * 1024))
        if OPT["efo"] == 0: publish(0)()
        if OPT["kpr"]: g("s_setprio 0")
        emit(untag(OO) + untag(OO + 4))
        stamp("ost")
    def kol():
        l = [lambda: g.wait(lg="kl"), f"v_add_f32 {vLG}, {vLG}, {vLG2}", f"v_mul_f32 {vLG}, {sLOG2E}, {vLG}",
             f"v_min_f32 {vLG}, 0x42640000, {vLG}", f"v_exp_f32 {vLG}, {vLG}"]
        def mm(r):
            g.wait(lg=f"kr{r}")
            acc = (TMP, ACC3)[r & 1]
            mfma(acc, vr(KR[r]), vr(ACC2 + 8 * (r & 1)), vr(acc, 16) if r >= 2 else 0)
        l += [(lambda r=r: mm(r)) for r in (0, 2, 1, 3)]
        l2 = [f"v_add_f32 v{SCQ+2}, 1.0, {vLG}", f"v_rcp_f32 v{SCQ+2}, v{SCQ+2}", f"v_mov_b32 v{SCQ}, {TG0}", f"v_mov_b32 v{SCQ+1}, {TG1}"]
        stq = [lambda: g(f"buffer_store_dwordx4 {vr(SCQ)}, {vL16}, {SWS}, {sST} offen offset:2048{LSC}", tag="st")]
        for hd, (num, den) in enumerate(((TMP, TMP + 8), (ACC3 + 8, ACC3))):
            l2 += [f"v_add_f32 v{den}, {sEPS}, v{den}", f"v_rcp_f32 v{den}, v{den}", f"v_mul_f32 v{den}, {vLG}, v{den}"]
            l2 += [f"v_mul_f32 v{num+i}, v{den}, v{num+i}" for i in range(8)]
            l2 += [f"v_cvt_pk_bf16_f32 v{OO+4*hd+i}, v{num+2*i}, v{num+2*i+1}" for i in range(4)]
            t = tstore(OO + 4 * hd, sST, hd * 1024)
            l2 += t[:2]; stq.append(t[2])
        return l, l2, stq + [publish(0)] + untag(OO) + untag(OO + 4) + [st("ost")]
    if IL:
        um = OPT["um"]
        Gq = Grp("Qgq", [(160, sAp, 2048), (164, sAp, 3072), (168, sAo, 2048), (172, sAo, 3072)])
        fu = [(112, sAp, 6144), (116, sAo, 6144)]
        Gu = Grp("Qga", fu)
        if um: Gc = Grp("Qgc", Gc.frags + fu)
        o0, o1 = MAP["QQ"][1:3]
        oc, oo = (32768, 0) if OPT["qoc"] else (0, 32768)
        U = dict(a=unit((96, 100), aB, o0) + unit((104, 108), aB, o0 + 16384), b=unit((160, 164), aB, o1) + unit((168, 172), aB, o1 + 16384),
                 u=unit((112,), aC, 0) + unit((116,), aC, 8192), o=unit((OO, OO + 4), aA, oo), O=unit((176, 180), aA, oo + 16384),
                 c=unit((144, 148), aA, oc) + unit((152, 156), aA, oc + 16384))
        so = ["abocOu", "abocuO", "aboOcu", "aobcOu"][OPT["qo2"]]
        steps = []; fp = {}
        for k in so: fp[k] = len(steps); steps += U[k]
        p2, order, nx, first = p2items(steps, [64, 68, 72, 76, 184], OPT["qt3"], OPT["qtm"])
        F = {k: P2 + first[v] for k, v in fp.items()}
        B = len(it); it += p2
        it[OPT["jb"] + 2].post.append(ident(IDENT))
        kp = B + OPT["qks"]
        fl = [(OPT["qa"], Gp, 0x1100, B - 3, 3, "gp", OPT["qapl"]), (OPT["qkv"], Gk, 0xffff, kp, 0, "kv", OPT["qpl"]),
              (B + OPT["qb"], Gq, 0x4400, F["b"] - 4, 4, "gq", OPT["lpl"]), (B + OPT["qgc"], Gc, 0x8800, F["c"] - 4, 4, "gc", OPT["lpl"]),
              (B + OPT["qgo"], Go, 0x0010, F["O"] - 2, 2, "go", OPT["lpl"])]
        if not um: fl.append((B + OPT["qgu"], Gu, 0x2200, F["u"] - 2, 2, "gu", OPT["lpl"]))
        else: assert F["u"] > F["c"]
        cur = None
        for pos, G, mask, cp, w, nm, pl in sorted(fl, key=lambda x: x[0]):
            assert pos < cp, (nm, pos - B, cp - B)
            kind = "k" if nm == "kv" else "a"
            fetch(it, pos, G.loads(), mask, cp - 1, pl=pl, step=0 if nm == "kv" else 1,
                  pre=[] if kind == cur else setFK() if kind == "k" else setFA(), post=[st(nm + "fl")])
            cur = kind
        assert OPT["qkv"] >= PC + 8 and OPT["qkv"] - OPT["qpl"] > OPT["jb"] and OPT["qa"] > OPT["jb"] and B + OPT["qb"] >= PC + 12
        assert B + OPT["qgc"] > kp
        it[M].post += [need(it[M]), f"s_add_u32 {sT}, {sW1K}, {LC}", f"v_add_u32 v24, {sT}, {vL16}",
                       f"s_lshl_b32 {sT2}, {sCLS}, 12", f"s_add_u32 {sT2}, {sT2}, {LC}", f"v_add_u32 v25, {sT2}, {vL16}",
                       f"v_lshl_add_u32 v26, {vLANE}, 2, {sT}", "v_xor_b32 v27, 0x1000, v26",
                       lambda: g(f"ds_write_b32 v26, {vLG} offset:8192", tag="kw")]
        spread(it, B + OPT["pq0"], B + OPT["pq1"], PH(ACC2) + PH(ACC2 + 8))
        it[kp].post += Gk.check() + [ksum]
        assert kp < B - 3 and kp > M
        e1, e2 = ("wO", "wP2") if OPT["qoc"] else ("wP2", "wO")
        if OPT["p2e"]:
            it[B].bar = dict(vm=["wG0", "wG1", "wU", e1], lead=3, drain=True, after=[kx] + p2addr() + [st("P2bar")])
            place(it, B + OPT["qpd0"], B + OPT["qpd"], D2A(e2[1:]), it[B])
            it[F["c" if OPT["qoc"] else "o"]].bar = dict(vm=[e2], lead=OPT["D2"])
        else:
            it[B].bar = dict(vm=["wG0", "wG1", "wU"], lead=3, drain=True, after=[kx] + p2addr() + [st("P2bar")])
            place(it, B + OPT["qpd0"], B + OPT["qpd"], D2A("O") + D2A("P2"), it[B])
            it[F["o"]].bar = dict(vm=["wP2", "wO"], lead=OPT["D2"])
        ke = B + OPT["pq1"]
        it[ke].post += [ko]
        assert ke < F["o"] - 1
        chk = []
        for pos, G, mask, cp, w, nm, pl in fl:
            if nm == "kv": continue
            for a_, b_ in chk: assert cp + w <= a_ or cp >= b_, ("checks overlap", nm)
            chk.append((cp, cp + w))
            spread(it, cp, cp + w, G.check() + [st(nm + "ok")])
        it[F["o"] + 1].post += [p2misc]
        tail = p2tail("Q", it, B, nx, [128, 136, 32, 40], IDENT, f"v{SCQ+2}", order)
        run(it, tail)
        return
    if OPT["q2"]:
        Gu = Grp("Qga", [(112, sAp, 6144), (116, sAo, 6144)])
        Gq = Grp("Qgq", [(160, sAp, 2048), (164, sAp, 3072), (168, sAo, 2048), (172, sAo, 3072)])
        sb_ = unit((160, 164), aB, 32768) + unit((168, 172), aB, 32768 + 16384)
        so_ = unit((OO, OO + 4), aA, 32768)
        steps = unit((96, 100), aB, 0) + unit((104, 108), aB, 16384) + unit((112,), aC, 0) + unit((116,), aC, 8192) + \
            (so_ + sb_ if OPT["q2"] == 1 else sb_ + so_) + unit((176, 180), aA, 32768 + 16384) + \
            unit((144, 148), aA, 0) + unit((152, 156), aA, 16384)
        fo, fb = (6, 8) if OPT["q2"] == 1 else (10, 6)
        assert OPT["qt3"] <= 12
        p2, order, nx, first = p2items(steps, [64, 68, 72, 76, 184], OPT["qt3"], OPT["qtm"])
        B = len(it); it += p2
        it[OPT["jb"] + 2].post.append(ident(IDENT))
        chk = []
        def check(G, lo, hi, extra):
            for a, b in chk: assert hi <= a or lo >= b, ("checks overlap", a - B, b - B, lo - B, hi - B)
            chk.append((lo, hi))
            spread(it, lo, hi, G.check() + extra)
        it[OPT["qlb"]].post += [need(it[OPT["qlb"]]), f"s_add_u32 {sT}, {sW1K}, {LC}", f"v_add_u32 v24, {sT}, {vL16}",
                       f"s_lshl_b32 {sT2}, {sCLS}, 12", f"s_add_u32 {sT2}, {sT2}, {LC}", f"v_add_u32 v25, {sT2}, {vL16}",
                       f"v_lshl_add_u32 v26, {vLANE}, 2, {sT}", "v_xor_b32 v27, 0x1000, v26",
                       lambda: g(f"ds_write_b32 v26, {vLG} offset:8192", tag="kw")]
        kp = B + OPT["qks"]; L = OPT["D2"] - 1; kb = B + first[fo] - L
        fl = [(OPT["qa"], lambda: fetch(it, OPT["qa"], Gp.loads(), 0x1100, B - 4, pl=OPT["qapl"], pre=setFA(), post=[st("gpfl")])),
              (OPT["qu"], lambda: fetch(it, OPT["qu"], Gu.loads(), 0x2200, B + first[4] - 4, pl=OPT["lpl"], pre=setFA(), post=[st("gufl")])),
              (OPT["qkv"], lambda: fetch(it, OPT["qkv"], Gk.loads(), 0xffff, kp - 1, pl=OPT["qpl"], step=OPT["qkw"], pre=setFK(), post=[st("kvfl")])),
              (B + OPT["qb"], lambda: fetch(it, B + OPT["qb"], Gq.loads(), 0x4400, B + first[fb] - 4, pl=OPT["lpl"], step=0 if OPT["q2"] == 1 else 1, pre=setFA(), post=[st("gqfl")])),
              (B + OPT["qgo"], lambda: fetch(it, B + OPT["qgo"], Go.loads(), 0x0010, B + first[12] - 3, pl=OPT["lpl"], pre=setFA(), post=[st("gofl")])),
              (B + OPT["qgc"], lambda: fetch(it, B + OPT["qgc"], Gc.loads(), 0x8800, B + first[14] - 5, pl=OPT["lpl"], pre=setFA(), post=[st("gcfl")]))]
        k1, k2, k3 = kol()
        it[kb + OPT["kd2"] - 1].post += [need(it[kb + L])] + k1
        spread(it, kb + OPT["kd2"], kb + L, k2)
        for _, f in sorted(fl, key=lambda x: x[0]): f()
        it[kb + L - 1].post += k3
        assert OPT["qkv"] >= PC + 8 and OPT["qkv"] - OPT["qpl"] > OPT["jb"] and OPT["qa"] > OPT["jb"] and OPT["qu"] > OPT["jb"]
        assert B + OPT["qgc"] > kp + OPT["qkn"] and OPT["qgo"] < first[12] - 2 and OPT["qgc"] < first[14] - 4 and OPT["qb"] < first[fb] - 3 and OPT["qu"] < B + first[4] - 3
        check(Gp, B - 3, B, [st("gpok")])
        check(Gu, B + first[4] - 2, B + first[4], [st("guok")])
        spread(it, B + OPT["pq0"], B + OPT["pq1"], PH(ACC2) + PH(ACC2 + 8))
        assert kp + OPT["qkn"] - 1 >= B + OPT["pq1"] and kp > OPT["qkv"] and kp + OPT["qkn"] <= kb
        check(Gk, kp, kp + OPT["qkn"], [ksum])
        it[B].bar = dict(vm=["wG0", "wG1", "wU"], lead=3, drain=True, after=p2addr() + [st("P2bar")])
        place(it, B + OPT["qpd0"], B + OPT["qpd"], D2A("O") + D2A("P2"), it[B])
        it[kb + L].bar = dict(vm=["wP2", "wO"], lg=["kw"], lead=L, after=[kx, st("kxb")])
        it[kb + L + 1].post += [p2misc]
        check(Gq, B + first[fb] - 3, B + first[fb], [st("gqok")])
        check(Go, B + first[12] - 2, B + first[12], [st("gook")])
        check(Gc, B + first[14] - 4, B + first[14], [st("gcok")])
        tail = p2tail("Q", it, B, nx, [128, 136, 32, 40], IDENT, f"v{SCQ+2}", order)
        run(it, tail)
        return
    steps = unit((96, 100), aB, 0) + unit((104, 108), aB, 16384) + unit((112,), aC, 0) + unit((116,), aC, 8192) + \
        unit((160, 164), aB, 32768) + unit((168, 172), aB, 32768 + 16384) + \
        unit((OO, OO + 4), aA, 32768) + \
        unit((144, 148), aA, 0) + unit((152, 156), aA, 16384) + \
        unit((176, 180), aA, 32768 + 16384)
    p2, order, nx, first = p2items(steps, [64, 68, 72, 76, 184], OPT["qt3"], OPT["qtm"])
    B = len(it); it += p2
    assert B == P2
    it[OPT["jb"] + 2].post.append(ident(IDENT))
    fa = lambda: fetch(it, OPT["qa"], Gp.loads(), 0x1100, B - 4, pl=OPT["qapl"], pre=setFA(), post=[st("gpfl")])
    fk = lambda: fetch(it, OPT["qkv"], Gk.loads(), 0xffff, B + 40, pl=OPT["qpl"], step=0, pre=setFK(), post=[st("kvfl")])
    for f in ((fa, fk) if OPT["qa"] < OPT["qkv"] else (fk, fa)): f()
    fetch(it, B + OPT["qb"], Gq.loads(), 0x4400, B + first[4] - 5, pl=OPT["lpl"], pre=setFA(), post=[st("gqfl")])
    assert OPT["qkv"] >= PC + 8 and OPT["qkv"] - OPT["qpl"] > OPT["jb"] and OPT["qa"] > OPT["jb"] and B + OPT["qb"] >= PC + 12
    kp = B + OPT["qks"]
    spread(it, B - 3, B, Gp.check() + [st("gpok")])
    it[B - 2 if OPT["kq"] else OPT["qlb"]].post += [need(it[B] if OPT["kq"] else it[OPT["qlb"]]), f"s_add_u32 {sT}, {sW1K}, {LC}", f"v_add_u32 v24, {sT}, {vL16}",
                   f"s_lshl_b32 {sT2}, {sCLS}, 12", f"s_add_u32 {sT2}, {sT2}, {LC}", f"v_add_u32 v25, {sT2}, {vL16}",
                   f"v_lshl_add_u32 v26, {vLANE}, 2, {sT}", "v_xor_b32 v27, 0x1000, v26",
                   lambda: g(f"ds_write_b32 v26, {vLG} offset:8192", tag="kw")]
    spread(it, B + OPT["pq0"], B + OPT["pq1"], PH(ACC2) + PH(ACC2 + 8))
    it[kp].post += Gk.check() + [ksum]
    if OPT["kq"]:
        assert kp >= B + OPT["pq1"] and kp > OPT["qkv"] and not (B + first[4] - 4 <= kp < B + first[4])
        it[B].bar = dict(vm=["wG0", "wG1"], lead=3, drain=True, after=p2addr() + [st("P2bar")])
        place(it, B - 3, B + OPT["pd1"], D2A("U") + D2A("O") + D2A("P2"), it[B])
        kb = kp + 1 + OPT["kd1"]
        assert kb <= B + first[4]
        L = min(OPT["D2"] - 1, B + first[4] - kb)
        it[kb + L].bar = dict(vm=["wU"], lg=["kw"], lead=L, after=[kx])
        ke = kb + OPT["kd2"] - 1
        it[ke].post += [need(it[kb + L]), ko]
    else:
        assert kp < B - 3 and kp > OPT["qkv"] and kp > OPT["qlb"]
        it[B].bar = dict(vm=["wG0", "wG1", "wU"], lead=3, drain=True, after=[kx] + p2addr() + [st("P2bar")])
        place(it, B + OPT["qpd0"], B + OPT["qpd"], D2A("O") + D2A("P2"), it[B])
        ke = B + OPT["pq1"]
        it[ke].post += [ko]
    spread(it, B + first[4] - 4, B + first[4], Gq.check() + [st("gqok")])
    assert ke < B + first[10] - 1
    it[B + first[10] + 1].post += [p2misc]
    it[B + first[10]].bar = dict(vm=["wP2", "wO"], lead=OPT["D2"])
    fetch(it, B + OPT["qgc"], Gc.loads(), 0x8800, B + first[12] - 5, pl=OPT["lpl"], post=[st("gcfl")])
    fetch(it, B + OPT["qgo"], Go.loads(), 0x0010, B + first[16] - 3, pl=OPT["lpl"], post=[st("gofl")])
    spread(it, B + first[12] - 4, B + first[12], Gc.check() + [st("gcok")])
    spread(it, B + first[16] - 2, B + first[16], Go.check() + [st("gook")])
    assert OPT["qgc"] < first[12] - 4 and OPT["qgo"] < first[16] - 2
    tail = p2tail("Q", it, B, nx, [128, 136, 32, 40], IDENT, f"v{SCQ+2}", order)
    run(it, tail)


NCL = 2 if OPT["asym"] else 1
for role, fn in (("WW", WW), ("QQ", QQ)):
    for cl_ in range(NCL):
        g.start_trace(role + str(cl_))
        ROLE[0] = role; CLS[0] = cl_; SUF[0] = ""; nlab[0] = 0; POLLS[role] = []; POLLS[role + "s"] = []
        old = SN[role]; SN[role] = ["start"]
        g.block(ENTRY, prologue)
        g.block(role, fn, align=(3 if role == "QQ" else None))
        assert cl_ == 0 or old == SN[role], (old, SN[role])
rt = []
for nm_, fn_ in retries:
    g.start_trace("RT_" + nm_)
    g.block("RT_" + nm_, fn_)
    rt.append("RT_" + nm_)
g.start_trace("end"); g.block("CODE_END", lambda: None)
g.hazards()
order = [ENTRY, "WW", "SPIN", "QQ"] + rt + ["CODE_END"]
if NCL == 2: order = [ENTRY, "WW", "WW0", "WW1", "SPIN", "QQ", "QQ0", "QQ1"] + rt + ["CODE_END"]
if OPT["ssp"] == 1: order.insert(order.index("SPIN"), "SSPIN")
assert sorted(order) == sorted(g.order), (g.order)

hdr = open("cdna_kernels/" + KN + ".s.ref").read().split("\n")
top = [l for l in hdr if l.startswith(";") and "@launch" not in l]
print("\n".join(top))
print("; @launch grid=(256,1,1) block=(512,1,1) lds=163840")
if STAMP:
    for r in SN: print("; STAMPS", r, " ".join(SN[r]))
    print("; RTS", OPT["rts"])
print('.amdgcn_target "amdgcn-amd-amdhsa--gfx950"\n.text')
print(f".globl {ENTRY}\n.p2align 8\n.type {ENTRY},@function")
print(g.text(order))
print("    s_endpgm")
print(f""".section .rodata,"a"
.p2align 6
.amdhsa_kernel {ENTRY}
  .amdhsa_next_free_vgpr 256
  .amdhsa_next_free_sgpr 102
  .amdhsa_accum_offset 256
  .amdhsa_group_segment_fixed_size 0
  .amdhsa_kernarg_size 88
  .amdhsa_user_sgpr_count 2
  .amdhsa_user_sgpr_kernarg_segment_ptr 1
  .amdhsa_system_sgpr_workgroup_id_x 1
.end_amdhsa_kernel""")
print(f"; maxvm={g.maxvm}", file=sys.stderr)
for name, tr in g.traces[:2 * NCL]:
    print(f"; trace {name}: barriers={sum(1 for o in tr if o.kind=='i' and o.mn=='s_barrier')} instrs={len(tr)}", file=sys.stderr)
```

```python
import re

KN = "gated_mix__linear_attn_block__dense_activation_mish__prompt"

TRANS = ("v_exp_f32", "v_rcp_f32", "v_log_f32", "v_rsq_f32", "v_sqrt_f32")


def regs_of(tok):
    tok = tok.strip()
    tok = tok.lstrip("-").strip("|")
    m = re.fullmatch(r"([vs])(\d+)", tok)
    if m:
        return m.group(1), {int(m.group(2))}
    m = re.fullmatch(r"([vs])\[(\d+):(\d+)\]", tok)
    if m:
        return m.group(1), set(range(int(m.group(2)), int(m.group(3)) + 1))
    if tok == "vcc":
        return "s", {106, 107}
    if tok == "m0":
        return "s", {124}
    if tok == "exec":
        return "s", {126, 127}
    return None


class I:
    __slots__ = ("text", "kind", "vm", "lg", "pre", "mn", "vr", "vw", "sr", "sw", "cls", "srcc", "sdata", "comment")

    def __init__(self, text, kind="i"):
        self.text = text
        self.kind = kind
        self.vm = 63
        self.lg = 15
        self.pre = 0
        self.comment = ""
        if kind == "i":
            self.parse()

    def parse(self):
        t = self.text.split(";")[0].strip()
        parts = t.split(None, 1)
        mn = parts[0]
        self.mn = mn
        ops = []
        if len(parts) > 1:
            cur = ""
            for ch in parts[1]:
                if ch == ",":
                    ops.append(cur.strip()); cur = ""
                else:
                    cur += ch
            ops.append(cur.strip())
            last = ops[-1].split()
            mods = last[1:]
            ops[-1] = last[0] if last else ""
        else:
            mods = []
        self.vr, self.vw, self.sr, self.sw = set(), set(), set(), set()
        self.srcc = set(); self.sdata = set()

        def rd(tok):
            r = regs_of(tok)
            if r: (self.vr if r[0] == "v" else self.sr).update(r[1])

        def wr(tok):
            r = regs_of(tok)
            if r: (self.vw if r[0] == "v" else self.sw).update(r[1])

        if mn.startswith("v_mfma"):
            self.cls = "mfma"
            wr(ops[0]); rd(ops[1]); rd(ops[2]); rd(ops[3])
            r = regs_of(ops[3])
            if r and r[0] == "v": self.srcc = set(r[1])
        elif mn.startswith("v_cmp"):
            self.cls = "valu"
            wr(ops[0])
            for o in ops[1:]: rd(o)
        elif mn.startswith("v_permlane"):
            self.cls = "perm"
            for o in ops: rd(o); wr(o)
        elif mn.startswith("v_"):
            self.cls = "trans" if mn.replace("_e32", "").replace("_e64", "") in TRANS else "valu"
            wr(ops[0])
            for o in ops[1:]: rd(o)
            if mn.startswith(("v_fmac", "v_mac", "v_dot2c")): rd(ops[0])
            if mn.startswith("v_cndmask") and len(ops) == 3: rd("vcc")
        elif mn.startswith("ds_read"):
            self.cls = "ds"
            wr(ops[0]); rd(ops[1])
        elif mn.startswith("ds_write"):
            self.cls = "ds"
            for o in ops: rd(o)
        elif mn.startswith("global_load"):
            self.cls = "vmem"
            wr(ops[0])
            for o in ops[1:]: rd(o)
        elif mn.startswith("buffer_load"):
            self.cls = "vmem"
            if "lds" in mods:
                self.cls = "dma"
                for o in ops: rd(o)
                rd("m0")
            else:
                wr(ops[0])
                if "d16" in mn: rd(ops[0])
                for o in ops[1:]: rd(o)
        elif mn.startswith(("buffer_store", "buffer_atomic")):
            self.cls = "vmem"
            for o in ops: rd(o)
            if "x4" in mn or "x3" in mn:
                self.sdata = set(regs_of(ops[0])[1])
        elif mn.startswith("s_"):
            self.cls = "salu"
            if mn.startswith(("s_cmp", "s_cbranch", "s_branch", "s_barrier", "s_nop", "s_waitcnt", "s_setprio", "s_endpgm", "s_sleep", "s_setpc", "s_bitcmp")):
                for o in ops: rd(o)
            else:
                wr(ops[0])
                for o in ops[1:]: rd(o)
                if mn.startswith(("s_addk", "s_mulk")): rd(ops[0])
        else:
            raise ValueError("unknown instr " + t)

    def states(self):
        if self.kind == "wait":
            return 1 if (self.vm < 63 or self.lg < 15) else 0
        if self.kind != "i":
            return 0
        if self.mn == "s_nop":
            return int(self.text.split()[1], 0) + 1
        return 1

    def render(self):
        out = []
        n = self.pre
        while n > 0:
            k = min(n, 16)
            out.append(f"    s_nop {k-1}")
            n -= k
        if self.kind == "wait":
            p = []
            if self.vm < 63: p.append(f"vmcnt({self.vm})")
            if self.lg < 15: p.append(f"lgkmcnt({self.lg})")
            if p: out.append("    s_waitcnt " + " ".join(p) + (("  ; " + self.comment) if self.comment else ""))
        elif self.kind == "label":
            out.append(self.text + ":")
        elif self.kind == "raw":
            out.append(self.text)
        else:
            out.append("    " + self.text)
        return out


class Gen:
    def __init__(self):
        self.blocks = {}
        self.order = []
        self.cur = None
        self.replay = None
        self.stack = []
        self.traces = []
        self.trace = None
        self.vm = []
        self.lg = []
        self.maxvm = 0
        self.nlab = 0

    def start_trace(self, name):
        self.trace = []
        self.traces.append((name, self.trace))
        self.vm = []; self.lg = []

    def block(self, name, fn, *args, align=None, **kw):
        self.stack.append((self.cur, self.replay))
        if name in self.blocks:
            self.cur = None
            self.replay = [self.blocks[name], 0]
            if align: self.replay[1] += 1
            self.replay[1] += 1
        else:
            self.blocks[name] = []
            self.order.append(name)
            self.cur = self.blocks[name]
            self.replay = None
            if align: self.cur.append(I(f".p2align {align}", "raw"))
            self.cur.append(I(name, "label"))
        fn(*args, **kw)
        if self.replay is not None:
            assert self.replay[1] == len(self.replay[0]), f"replay length mismatch in {name}"
        self.cur, self.replay = self.stack.pop()

    def _put(self, text, kind):
        if self.replay is not None:
            lst, idx = self.replay
            o = lst[idx]
            assert o.kind == kind and (kind == "wait" or o.text == text), f"replay mismatch: {o.text!r} vs {text!r}"
            self.replay[1] += 1
        else:
            o = I(text, kind)
            self.cur.append(o)
        self.trace.append(o)
        return o

    def __call__(self, s, tag=None, weak=False):
        for l in s.strip("\n").split("\n"):
            l = l.strip()
            if not l or l.startswith(";"): continue
            o = self._put(l, "i")
            if o.cls in ("vmem", "dma"):
                self.vm.append(("~" + tag) if weak else tag)
                self.maxvm = max(self.maxvm, len(self.vm))
                assert len(self.vm) <= 63, "too many outstanding vm ops"
            elif o.cls == "ds":
                self.lg.append(tag)
            elif o.mn.startswith("s_waitcnt"):
                m = re.search(r"vmcnt\((\d+)\)", l)
                if m:
                    n = int(m.group(1))
                    if n == 0: self.vm = []
                    elif not any(t and t[0] == "~" for t in self.vm):
                        self.vm = self.vm[len(self.vm) - n:] if n < len(self.vm) else self.vm
                m = re.search(r"lgkmcnt\((\d+)\)", l)
                if m:
                    n = int(m.group(1)); self.lg = self.lg[len(self.lg) - n:] if n < len(self.lg) else self.lg
                    if n == 0: self.lg = []

    def label(self, name):
        self._put(name, "label")

    def raw(self, t):
        self._put(t, "raw")

    def wait(self, vm=None, lg=None, comment=""):
        o = self._put("", "wait")
        if comment: o.comment = comment
        for lst_name, tags, attr, cap in (("vm", vm, "vm", 63), ("lg", lg, "lg", 15)):
            if tags is None: continue
            if isinstance(tags, str): tags = [tags]
            lst = getattr(self, lst_name)
            last = -1
            for k, t in enumerate(lst):
                if t in tags or (t and t[0] == "~" and t[1:] in tags): last = k
            if last >= 0:
                n = sum(1 for t in lst[last + 1:] if not (t and t[0] == "~"))
                if n > cap - 1:
                    n = cap - 1
                    c = 0; last = len(lst) - 1
                    while c < n:
                        if not (lst[last] and lst[last][0] == "~"): c += 1
                        last -= 1
                setattr(o, attr, min(getattr(o, attr), n))
                setattr(self, lst_name, lst[last + 1:])
        return o

    def optional(self):
        g = self
        class C:
            def __enter__(s):
                s.vm = list(g.vm); s.lg = list(g.lg)
            def __exit__(s, *a):
                g.vm = s.vm; g.lg = s.lg
        return C()

    def hazards(self):
        changed = True
        it = 0
        while changed:
            changed = False
            it += 1
            for name, tr in self.traces:
                hist = []
                pos = 0
                for o in tr:
                    if o.kind not in ("i", "wait"): continue
                    pos += o.pre
                    if o.kind == "i":
                        need = 0
                        for (p, q) in reversed(hist):
                            dist = pos - p - 1
                            if dist >= 20: break
                            r = self.req(q, o)
                            if r > dist: need = max(need, r - dist)
                        if need:
                            o.pre += need; pos += need; changed = True
                        hist.append((pos + o.states() - 1, o))
                        if len(hist) > 40: hist = hist[-40:]
                    pos += o.states()
            assert it < 10

    @staticmethod
    def req(q, o):
        r = 0
        qc, oc = q.cls, o.cls
        valu_q = qc in ("valu", "trans", "perm")
        valu_o = oc in ("valu", "trans", "perm")
        if valu_q and oc == "mfma" and (q.vw & o.vr): r = max(r, 2)
        if qc == "mfma" and "16x16x32" in q.mn:
            if oc == "mfma":
                t = o.text.split(None, 1)[1].split(",")
                abr = set()
                for tok in t[1:3]:
                    x = regs_of(tok)
                    if x and x[0] == "v": abr |= x[1]
                if q.vw & abr: r = max(r, 8)
                if (q.vw & o.srcc) and q.vw != o.srcc: r = max(r, 6)
                if (q.vw & o.vw) and not (q.vw == o.srcc): r = max(r, 8)
            else:
                if (q.vw & o.vr) or (q.vw & o.vw): r = max(r, 8)
                if valu_o and (q.srcc & o.vw): r = max(r, 3)
        elif qc == "mfma":
            if oc == "mfma":
                ab = o.vr - o.srcc if o.srcc else o.vr
                t = o.text.split(None, 1)[1].split(",")
                abr = set()
                for tok in t[1:3]:
                    x = regs_of(tok)
                    if x and x[0] == "v": abr |= x[1]
                if q.vw & abr: r = max(r, 12)
                if (q.vw & o.srcc) and q.vw != o.srcc: r = max(r, 10)
                if (q.vw & o.vw) and not (q.vw == o.srcc): r = max(r, 12)
            else:
                if (q.vw & o.vr) or (q.vw & o.vw): r = max(r, 12)
                if valu_o and (q.srcc & o.vw): r = max(r, 7)
        if qc == "trans" and valu_o and oc != "trans" and (q.vw & o.vr): r = max(r, 1)
        if qc == "trans" and oc == "trans" and (q.vw & o.vr): r = max(r, 1)
        if valu_q and q.sw:
            if valu_o and (q.sw & o.sr): r = max(r, 2)
            if oc in ("vmem", "dma") and (q.sw & o.sr): r = max(r, 5)
            if oc == "salu" and (q.sw & o.sr): r = max(r, 1)
        if valu_q and o.mn.startswith(("v_readfirstlane", "v_readlane")) and (q.vw & o.vr): r = max(r, 1)
        if valu_q and oc == "perm" and (q.vw & o.vr): r = max(r, 2)
        if q.sdata and (q.sdata & o.vw): r = max(r, 2)
        if qc == "salu" and 124 in q.sw and oc == "dma": r = max(r, 1)
        return r

    def text(self, order=None):
        out = []
        for n in (order or self.order):
            for o in self.blocks[n]:
                out.extend(o.render())
        return "\n".join(out)
```

```python
import sys
from fw import *

OPT = dict(ppi=0, kfe=0, kc=0, idm=0, idq=14, tw2=0, sw=0, sw2=0, swp=1, hwp=0, hwq=0, hw=0, qmb=4, wmb=4, wbe=0, wbo=0, map=0, lpf=0, mrot=0, g16=0, hx=0, wct=6, wcl=0, wch=72, wcb=4, qbt=7, qct=3, ds=1, nd=0, rp=0, rpt=0, rq=34455444, rqq=34444444, rt=3, ue=0, df0=0, df1=36, r00=99, il=0, BLq=2, iq=0, vq=2233330, vle=0, vlo=1, n5=3, x2=2, x2q=4, BL3=3, pk0=70, vp0=76, qo2=0, ilo=1, ilw=8, sl=2, cb6=0, um=0, wgu=40, qgu=40, gw1=98, p2e=1, qgw1=96, vlb=0, gac=1, qoc=0,
           wpd=10, qpd=10, qpd0=-3, wpd0=-4, pf=0, pfk=0, pfp=0, ssp=0, q2=0, qu=102, qkw=1, qkn=3, wo2=0, kpi=0, psf=0, plf=0, asf=0, apr=0, sdp=1, asym=0, b1l=1, k0=1, nx=0, wtm=0, qtm=0, tp=0, nxd=1, qg1=91, qgw=8, js=0, xwp=58, sd0=999, sd1=0, tc=0, a48=1, dsh=2, rm0=1, rmax=2, xsp=1, stamp=0, D=6, BL=2, BL2=4, DP=5, D2=4, lim=20000, rotm=7, tw=61, tlb=0, wt3=18, qt3=18, sp=0, slp=1,
           dsp=0, pst=0, osc=0, nochk=0, ew=1, pb=1, np1=5, np2=8, tlp=31, ft=1, bl=0,
           twd=0, stl=0, kq=0, kd1=1, kd2=1, kpr=0, wb3=0, wM=96, wN=10, pd=0, wpt=0, qpt=0, pe=0, wp1=0, qp1=0, fl=40, lpl=6, loc=0, at1=0, at2=0, atq=0, pt=0, g0=80, g1=100, pd1=10, wob=0,
           ea0=49, ea1=66, eu0=66, eu1=78, eb0=81, eb1=102, ec0=1, ec1=14, pk1=78,
           wga=92, wgb=2, wgc=24, wgo=31,
           twq=1, qg0=83, qapl=5, qa=92, qb=0, qkv=99, qpl=7, qks=-4, qlb=92, qgc=22, qgo=34, jb=82, pq0=0, pq1=5, efk=0, efo=0, efp=0,
           prl=0, hd=0, rts=1, cal=0, calx=4000, sper=8, sb0=999, sb1=0, s0=0, s1=999)
for a in sys.argv[1:]:
    k, v = a.split("="); assert k in OPT, k; OPT[k] = int(v, 0)
STAMP = OPT["stamp"]
LIM = OPT["lim"] << 16 if STAMP else OPT["lim"]

FLG = [" sc1", " sc0 sc1", " sc1 nt", " sc0 sc1 nt"]
LSC = "" if OPT["loc"] else FLG[OPT["asf"]]
LA, LB, LC = 0, 98304, 65536
MAP = {"WW": (LC, 32768, 0, LB + 32768), "QQ": (LB, 0, 32768, LC)}
if OPT["vlb"]: MAP["QQ"] = (LB, 32768, 0, LC)
def GB(): return MAP[ROLE[0]][0]
def XC(): return MAP[ROLE[0]][3]
PARTO, KVP, STP, FA, FK, FP = 640 * 1024, 0x1000000, 0x1100000, 0x10A0000, 0x10B0000, 0x10C0000
WS_SIZE = 0x1180000 if STAMP else 0x1100000
OFFB = 0x1200000
if OPT["nx"]: WS_SIZE = 0x2200000
SX, SW, SW2, SWO, SWS, SOUT, SB, SDBG = "s[32:35]", "s[36:39]", "s[40:43]", "s[44:47]", "s[48:51]", "s[52:55]", "s[56:59]", "s[60:63]"
sW, sRW, sRB, sCGI, sISW1, sSTR, sROT, sW1K, sXR, sCLS, sNON, sM = [f"s{64+i}" for i in range(12)]
sP = ["s76", "s77", "s78", "s79"]
sWC = [f"s{80+i}" for i in range(8)]
sT, sT2, sT3, sTB, sCNT, sKQ, sR8, sPAR, sTT, sLOG2E = [f"s{88+i}" for i in range(10)]
sTM = "s[98:99]"; sEPS = "s100"; sST = "s101"
sMK = "s[4:5]"
sAp, sAo, sRs, sRo, sRu, sRm, sRmu, sPART, sOUT, sKV, sFA, sPUB, sFP, sFK, sHAVE, sMASK = [f"s{8+i}" for i in range(16)]
sRET = "s[30:31]"
sDEC, sLC = "s6", "s7"
vWDB, vLANE, vXD, vWDa, vWDb, vW2D = "v0", "v1", "v2", "v3", "v4", "v5"
vX = ["v6", "v7", "v8", "v9"]
vWlo, vWhi, vU, vWOD, TG0, TG1, vL16, vCHK, vSTAMP, vBIAS2, vT0, vUD, vE0, vE1 = [f"v{10+i}" for i in range(14)]
vPR, vNON, vPA = "v0", "v2", "v4"
ACC0, ACC1, ACC2, ACC3, XR, TMP, TACC = 96, 112, 80, 48, 128, 32, 192

g = Gen()
retries = []
SUF = [""]
CLS = [0]
def add_retry(name, fn):
    if name not in [n for n, _ in retries]: retries.append((name, fn))


def vr(a, n=4):
    return f"v[{a}:{a+n-1}]"


SN = {"WW": ["start"], "QQ": ["start"]}
ROLE = [None]
def stamp(name):
    if not STAMP: return
    names = SN[ROLE[0]]
    g(f"v_writelane_b32 {vSTAMP}, s98, {len(names)-1}")
    g(f"{'s_memrealtime' if OPT['rts'] else 's_memtime'} {sTM}")
    names.append(str(name))
    assert len(names) < 59


def st(i):
    return lambda: stamp(i)


def mfma(d, a, b, c):
    g(f"v_mfma_f32_32x32x16_bf16 {vr(d,16)}, {a}, {b}, {c}")


def dx(c, i):
    def f():
        g(f"s_add_u32 m0, {sW1K}, {(c % 4) * 16384 + i * 8192:#x}")
        g(f"s_xor_b32 {sT2}, {sXR}, {c << 7 | i << 16:#x}")
        g(f"buffer_load_dwordx4 {vXD}, {SX}, {sT2} offen lds", tag=f"ck{c}")
    return f


def dw(lds, c, va, tag):
    def f():
        g(f"s_add_u32 m0, {sW1K}, {lds:#x}")
        g(f"buffer_load_dwordx4 {va}, {SW}, {sWC[c]} offen lds", tag=tag)
    return f


def CK(c):
    return [dx(c, 0), dx(c, 1), dw(LC + (c % 4) * 8192, c, vWDa, f"ck{c}")] + \
        ([dw(LB + (c % 4) * 8192, c, vWDb, f"ck{c}")] if OPT["il"] else [])


def WBs():
    if OPT["rotm"] != 3 or OPT["ds"]: return [dw(LB + c * 8192, c, vWDb, f"wb{c}") for c in range(8)]
    assert OPT["rotm"] == 3
    def sel(flip):
        def f():
            g(f"s_bitcmp{1 - flip}_b32 {sR8}, 2")
            g(f"s_cselect_b32 {sT2}, {sWC[4]}, {sWC[0]}")
            g(f"s_cselect_b32 {sT3}, {4 * 8192:#x}, 0")
            g(f"s_add_u32 {sT3}, {sT3}, {sW1K}")
            g(f"s_add_u32 m0, {sT3}, {LB:#x}")
            g(f"buffer_load_dwordx4 {vWDb}, {SW}, {sT2} offen lds", tag="wb0")
        return f
    return [sel(0), sel(1)] + [dw(LB + c * 8192, c, vWDb, f"wb{c}") for c in (1, 2, 3, 5, 6, 7)]


def head():
    if OPT["il"]: return CK(0) + CK(1) + CK(2) + CK(3)
    if OPT["rp"] and OPT["hw"]: return CK(0) + CK(1) + CK(2)[:OPT["hw"]]
    if OPT["rp"]: return CK(0) + CK(1) + WBs()[:1]
    c1 = CK(1)
    return CK(0) + c1[:2] + (WBs()[:1] if OPT["ew"] == 1 else []) + c1[2:] + CK(2) + CK(3)


WCL = []
def WCs():
    l = [dw(LA + c * 8192, c, vWDa, f"wc{c}") for c in range(8)]
    f0 = l[0]
    l[0] = lambda: (g(f"v_add_u32 {vWDa}, {sP[2]}, {vWDB}"), f0())
    WCL[:] = l
    return l


def du(n, tag):
    def f():
        g(f"s_xor_b32 {sT2}, {sROT}, {sCLS}")
        g(f"s_xor_b32 {sT2}, {sT2}, {2*n}")
        g(f"s_add_u32 m0, {sW1K}, {LB + 32768 + n*8192:#x}")
        g(f"s_mul_i32 {sT2}, {sT2}, {3584*64}")
        g(f"buffer_load_dwordx4 {vUD}, {SW}, {sT2} offen lds", tag=tag)
    return f


def d2(area, n):
    i = 2 * n
    prel, pp = (i >> 2) & 1, (i >> 1) & 1
    if area == "U": prel, pp = n, 0
    def f():
        if area in ("G0", "G1", "P2"):
            base = {"G0": GB() + MAP[ROLE[0]][1], "G1": GB() + MAP[ROLE[0]][2], "P2": LA + (32768 if ROLE[0] == "QQ" and OPT["qoc"] else 0)}[area]
            gofs = {"G0": 0, "G1": 1 << 16, "P2": 1 << 17}[area]
            g(f"s_xor_b32 m0, {sRm}, {base + (i << 12):#x}")
            g(f"s_xor_b32 {sT2}, {sRs}, {gofs | prel << 18 | pp << 15:#x}")
            g(f"buffer_load_dwordx4 {vW2D}, {SW2}, {sT2} offen lds", tag="w" + area)
        elif area == "O":
            g(f"s_xor_b32 m0, {sRm}, {LA + (0 if ROLE[0] == 'QQ' and OPT['qoc'] else 32768) + (i << 12):#x}")
            g(f"s_xor_b32 {sT2}, {sRo}, {prel << 16 | pp << 15:#x}")
            g(f"buffer_load_dwordx4 {vWOD}, {SWO}, {sT2} offen lds", tag="wO")
        else:
            g(f"s_xor_b32 m0, {sRmu}, {XC() + 16384 + (i << 12):#x}")
            g(f"s_xor_b32 {sT2}, {sRu}, {0x30000 | prel << 15:#x}")
            g(f"buffer_load_dwordx4 {vW2D}, {SW2}, {sT2} offen lds", tag="wU")
    return f


def D2A(area):
    return [d2(area, n) for n in range(2 if area == "U" else 4)]


def touch():
    q = OPT["twq"]
    if OPT["twd"]: stamp("tw0")
    if OPT["map"] == 2:
        g(f"s_lshr_b32 {sT}, s2, 1")
        g(f"s_and_b32 {sT}, {sT}, {0x38 if q else 0x78:#x}")
        q += 1
    elif OPT["map"] == 1:
        assert q == 0
        g(f"s_lshr_b32 {sT}, s2, 2")
        g(f"s_and_b32 {sT}, {sT}, 0x30")
        g(f"s_and_b32 {sT2}, s2, 8")
        g(f"s_or_b32 {sT}, {sT}, {sT2}")
        q = 2
    else: g(f"s_and_b32 {sT}, s2, {0x78 if q else 0xf8:#x}")
    g(f"s_add_u32 {sT}, {sT}, {sW}")
    g(f"s_mul_i32 {sT2}, {sT}, {14*128 << q}")
    g(f"s_mul_i32 {sT3}, {sKQ}, {448*1024}")
    g(f"s_add_u32 {sT2}, {sT2}, {sT3}")
    t2 = OPT["tw2"]
    g(f"v_lshlrev_b32 {vE0}, {7 - t2}, {vLANE}")
    if q + t2 == 2: g("s_mov_b32 exec_hi, 0xffffff")
    else: g(f"s_mov_b64 exec, {(1 << (14 << q + t2)) - 1:#x}")
    g(f"buffer_load_dword {vE1}, {vE0}, {SW2}, {sT2} offen", tag="tw")
    g(f"s_lshl_b32 {sT2}, {sT}, {9 + q}")
    g(f"s_lshl_b32 {sT3}, {sKQ}, 17")
    g(f"s_add_u32 {sT2}, {sT2}, {sT3}")
    g(f"s_mov_b64 exec, {(1 << (4 << q + t2)) - 1:#x}")
    g(f"buffer_load_dword {vE1}, {vE0}, {SWO}, {sT2} offen", tag="tw")
    g("s_mov_b64 exec, -1")
    if OPT["twd"]:
        g("s_waitcnt lgkmcnt(0)"); stamp("tw1"); g("s_waitcnt vmcnt(1) lgkmcnt(0)"); stamp("tw2"); g("s_waitcnt vmcnt(0) lgkmcnt(0)"); stamp("tw3"); g("s_waitcnt lgkmcnt(0)")


def publish(kind):
    def f():
        g("s_mov_b64 exec, 1")
        g(f"buffer_store_dword {vNON}, off, {SWS}, {sPUB} offset:{kind*4}", tag="pub")
        g("s_mov_b64 exec, -1")
    return f


def SPIN():
    g("s_mov_b64 exec, 0xffff")
    g.label("SPIN_loop")
    g(f"buffer_load_dword {vPR}, {vPA}, {SWS}, 0 offen sc1")
    g("s_waitcnt vmcnt(0)")
    g(f"v_cmp_eq_u32 vcc, {sNON}, {vPR}")
    g(f"s_add_u32 {sCNT}, {sCNT}, {0x10000 if STAMP else 1}")
    g(f"s_mov_b32 {sHAVE}, vcc_lo")
    g(f"s_and_b32 {sT}, {sHAVE}, {sMASK}")
    g(f"s_cmp_eq_u32 {sT}, {sMASK}")
    g("s_cbranch_scc1 SPIN_done")
    if OPT["slp"]: g(f"s_sleep {OPT['slp']}")
    g(f"s_sub_u32 {sLC}, {sLC}, {sDEC}")
    g(f"s_cmp_lt_i32 {sLC}, 0")
    g("s_cbranch_scc1 SPIN_done")
    g(f"s_cmp_lt_u32 {sCNT}, {LIM:#x}")
    g("s_cbranch_scc1 SPIN_loop")
    g.label("SPIN_done")
    g("s_mov_b64 exec, -1")
    g(f"s_setpc_b64 {sRET}")


def poll_issue():
    g("s_mov_b64 exec, 0xffff")
    g(f"buffer_load_dword {vPR}, {vPA}, {SWS}, 0 offen sc1", tag="poll")
    g("s_mov_b64 exec, -1")


nlab = [0]
def take(mask, fresh=True):
    def f():
        nlab[0] += 1
        lab = f"EN{ROLE[0]}{nlab[0]}{SUF[0]}"
        if fresh:
            g.wait(vm="poll")
            g(f"v_cmp_eq_u32 vcc, {sNON}, {vPR}")
            g(f"s_and_b32 {sHAVE}, vcc_lo, 0xffff")
        g(f"s_and_b32 {sT}, {sHAVE}, {mask:#x}")
        g(f"s_cmp_eq_u32 {sT}, {mask:#x}")
        g(f"s_cbranch_scc1 {lab}")
        with g.optional():
            g(f"s_mov_b32 {sMASK}, {mask:#x}")
            g(f"s_call_b64 {sRET}, SPIN")
            g.block("SPIN", SPIN, align=3)
        g.label(lab)
    return f


sQ0, sQ1, sQA = "s80", "s81", "s82"
def SSPIN():
    g.label("SSPIN_loop")
    g(f"s_buffer_load_dword {sQ0}, {SWS}, {sQA} glc")
    g(f"s_buffer_load_dword {sQ1}, {SWS}, s83 glc")
    g(f"s_add_u32 {sCNT}, {sCNT}, {0x10000 if STAMP else 1}")
    g("s_waitcnt lgkmcnt(0)")
    g(f"s_xor_b32 {sT}, {sQ0}, {sNON}")
    g(f"s_xor_b32 {sT2}, {sQ1}, {sNON}")
    g(f"s_or_b32 {sT}, {sT}, {sT2}")
    g("s_cbranch_scc0 SSPIN_done")
    if OPT["slp"]: g(f"s_sleep {OPT['slp']}")
    g(f"s_sub_u32 {sLC}, {sLC}, 1")
    g(f"s_cmp_lt_i32 {sLC}, 0")
    g("s_cbranch_scc0 SSPIN_loop")
    g.label("SSPIN_done")
    g(f"s_setpc_b64 {sRET}")


def sfetch(mask):
    bits = [b for b in range(16) if mask >> b & 1]
    GL = " glc" if OPT["ssp"] == 1 else ""
    def issue():
        if len(bits) == 2:
            assert bits[1] == bits[0] + 4
            g(f"s_add_u32 {sQA}, {sFA}, {bits[0]*4}")
            g(f"s_add_u32 s83, {sFA}, {bits[1]*4}")
            g("s_mov_b64 s[80:81], 0")
            g(f"s_buffer_load_dword {sQ0}, {SWS}, {sQA}{GL}")
            g(f"s_buffer_load_dword {sQ1}, {SWS}, s83{GL}")
        else:
            g(f"s_xor_b32 {sQA}, {sPUB}, {16 + (bits[0] & 3) * 4}")
            g(f"s_mov_b32 {sQ0}, 0")
            g(f"s_buffer_load_dword {sQ0}, {SWS}, {sQA}{GL}")
    def tk():
        nlab[0] += 1
        lab = f"EN{ROLE[0]}{nlab[0]}{SUF[0]}"
        if len(bits) == 2:
            g(f"s_xor_b32 {sT}, {sQ0}, {sNON}")
            g(f"s_xor_b32 {sT2}, {sQ1}, {sNON}")
            g(f"s_or_b32 {sT}, {sT}, {sT2}")
        else:
            g(f"s_cmp_lg_u32 {sQ0}, {sNON}")
        g(f"s_cbranch_scc0 {lab}")
        with g.optional():
            if OPT["ssp"] == 1:
                if len(bits) == 1: g(f"s_mov_b32 s83, {sQA}")
                g(f"s_call_b64 {sRET}, SSPIN")
                g.block("SSPIN", SSPIN, align=3)
            else:
                emit(setFA())
                g(f"s_mov_b32 {sMASK}, {mask:#x}")
                g(f"s_call_b64 {sRET}, SPIN")
                g.block("SPIN", SPIN, align=3)
        g.label(lab)
    return issue, tk


POLLS = {"WW": [], "QQ": []}
def fetch(it, pos, grp, mask, hi, pl=0, step=1, pre=(), post=(), lp=None):
    if OPT["ssp"] and mask != 0xffff and (OPT["ssp"] != 3 or mask in (0x1100, 0x1000)):
        P = POLLS.setdefault(ROLE[0] + "s", [])
        assert all(hi_ <= pos - pl for lo, hi_ in P), "fetch order"
        assert pos - pl > 60
        P.append((pos - pl, pos))
        a, b = sfetch(mask)
        it[pos - pl].post.append(a)
        it[pos].post += [b] + list(post)
    elif mask is not None:
        for lo, hi_ in POLLS[ROLE[0]]: assert pos <= lo or pos - pl >= hi_, ("polls overlap", lo, hi_, pos - pl, pos)
        assert all(hi_ <= pos - pl for lo, hi_ in POLLS[ROLE[0]]), "fetch order"
        POLLS[ROLE[0]].append((pos - pl, pos))
        it[pos - pl].post += list(pre) + [poll_issue]
        it[pos].post += [take(mask)] + list(post)
    if lp is not None: assert lp >= pos; pos = lp
    for i, f in enumerate(grp): it[min(pos + step * i, hi)].post.append(f)


GN = ["ga", "gp", "gq", "kv", "gc", "go", "pr"]
PA, PB, PC, P2 = 0, 48, 80, 112
class Grp:
    def __init__(s, name, frags, each=None, va=None, t2=1):
        s.name = name; s.frags = frags; s.each = each; s.va = va or vL16; s.t2 = t2

    def loads(s, tagged=True):
        out = []
        cur = [None]
        def one(i, reg, base, off):
            def f(first=True):
                hi = off & ~4095 if off >= 4096 else 0
                fl = FLG[OPT["plf"]] if s.name[1:] == "pr" else " sc1"
                k = OPT[{"pr": "pfp", "kv": "pfk"}.get(s.name[1:], "pf")]
                if tagged and k: fl = ("", "", " sc0", " nt")[k]
                if hi and not (s.t2 == 2 and off & 512): g(f"s_add_u32 {sT3}, {base}, {hi:#x}")
                g(f"buffer_load_dwordx4 {vr(reg)}, {s.va}, {SWS}, {sT3 if hi else base} offen offset:{off - hi}{fl}",
                  tag=f"{s.name}{i}" if tagged else None)
            return f
        return [one(i, *fr) for i, fr in enumerate(s.frags)]

    def decode(s, waits=True):
        out = []
        for i, (reg, _, _) in enumerate(s.frags):
            if waits: out.append(lambda i=i: g.wait(vm=f"{s.name}{i}"))
            out.append(f"v_xor_b32 v{reg}, {TG0}, v{reg}")
            r2 = reg + s.t2
            out.append(f"v_xor_b32 v{r2}, {TG1}, v{r2}")
            out.append(f"v_or_b32 {vCHK}, v{reg}, v{r2}" if i == 0 else f"v_or3_b32 {vCHK}, v{reg}, v{r2}, {vCHK}")
            if s.each: out.append(lambda i=i, reg=reg: s.each(i, reg))
        out.append(f"v_and_b32 {vCHK}, {sTB}, {vCHK}")
        return out

    def check(s):
        def fin():
            if OPT["nochk"]: return
            g(f"v_cmp_ne_u32 vcc, 0, {vCHK}")
            g("s_cmp_lg_u64 vcc, 0")
            nm = s.name + SUF[0]
            g(f"s_cbranch_scc1 RT_{nm}")
            g.label(f"OK_{nm}")
            add_retry(nm, lambda: s.retry(nm))
        return s.decode() + [fin]

    def retry(s, nm):
        if STAMP: g(f"s_or_b32 s3, s3, {1 << GN.index(s.name[1:])}")
        g(f"s_add_u32 {sCNT}, {sCNT}, 1")
        g(f"s_and_b32 {sT}, {sCNT}, 0xffff")
        g(f"s_cmp_gt_u32 {sT}, {OPT['lim']}")
        g(f"s_cbranch_scc1 OK_{nm}")
        if OPT["slp"]: g(f"s_sleep {OPT['slp']}")
        for f in s.loads(False): f()
        g("s_waitcnt vmcnt(0)")
        emit(s.decode(False))
        g(f"v_cmp_ne_u32 vcc, 0, {vCHK}")
        g("s_cmp_lg_u64 vcc, 0")
        if s.each: g("s_nop 15")
        g(f"s_cbranch_scc1 RT_{nm}")
        g(f"s_branch OK_{nm}")


def emit(lst):
    for x in lst:
        if isinstance(x, str): g(x)
        else: x()


def tstore(reg, base, off, keep=True, tag="st"):
    l = [f"v_and_or_b32 v{reg}, v{reg}, {sM}, {TG0}", f"v_and_or_b32 v{reg+1}, v{reg+1}, {sM}, {TG1}",
         lambda: g(f"buffer_store_dwordx4 {vr(reg)}, {vL16}, {SWS}, {base} offen offset:{off}{LSC if tag == 'st' else FLG[OPT['psf']]}", tag=tag)]
    return l


def untag(reg):
    return [f"v_xor_b32 v{reg}, {TG0}, v{reg}", f"v_xor_b32 v{reg+1}, {TG1}, v{reg+1}"]


def EH(b, base, off, prev=None):
    h = [f"v{b+i}" for i in range(8)]
    e = [f"v{TMP+i}" for i in range(8)]
    u = [f"v{TMP+8+i}" for i in range(8)]
    ins = []
    for i in range(8): ins.append(f"v_mul_f32 {e[i]}, {sLOG2E}, {h[i]}")
    if prev is not None: ins += untag(prev)
    for i in range(8): ins.append(f"v_exp_f32 {e[i]}, {e[i]}")
    for i in range(8): ins.append(f"v_fma_f32 {u[i]}, {e[i]}, 0.5, 1.0")
    for i in range(8): ins.append(f"v_fma_f32 {u[i]}, -{e[i]}, {u[i]}, -1.0")
    for i in range(8): ins.append(f"v_rcp_f32 {u[i]}, {u[i]}")
    for i in range(8): ins.append(f"v_fmac_f32 {h[i]}, {h[i]}, {u[i]}")
    for i in range(4): ins.append(f"v_cvt_pk_bf16_f32 {h[i]}, {h[2*i]}, {h[2*i+1]}")
    return ins + tstore(b, base, off)


def PH(b):
    h = [f"v{b+i}" for i in range(8)]
    e = [f"v{TMP+i}" for i in range(8)]
    ins = []
    for i in range(8): ins.append(f"v_mul_f32 {e[i]}, {sLOG2E}, {h[i]}")
    for i in range(8): ins.append(f"v_exp_f32_e64 {e[i]}, {e[i]} clamp")
    for i in range(8): ins.append(f"v_max_f32 {h[i]}, {sEPS}, {h[i]}")
    for i in range(8): ins.append(f"v_add_f32 {h[i]}, {e[i]}, {h[i]}")
    for i in range(4): ins.append(f"v_cvt_pk_bf16_f32 {h[i]}, {h[2*i]}, {h[2*i+1]}")
    return ins


def cost(x):
    if not isinstance(x, str): return 4
    return 8 if x.startswith(("v_exp", "v_rcp")) else 4


def merge(main, side):
    tot = sum(cost(x) for x in main); n = len(side); k = 0; acc = 0; out = []
    for x in main:
        while k < n and acc >= tot * k / n:
            out.append(side[k]); k += 1
        out.append(x); acc += cost(x)
    return out + side[k:]


class Item:
    def __init__(s, addr, imm, second, buf, acc, other, orient="T", zero=False, D=3, lg=(), vm=()):
        s.addr, s.imm, s.second, s.buf, s.acc, s.other, s.orient, s.zero, s.D = addr, imm, second, buf, acc, other, orient, zero, D
        s.lg, s.vm = list(lg), list(vm)
        s.bar = None
        s.rvm = []
        s.post = []
        s.pre = []
        s.rpre = []


def spread(items, lo, hi, fill):
    tot = sum(cost(x) for x in fill); n = hi - lo; acc = 0
    for x in fill:
        k = min(n - 1, int(acc * n / tot)) if tot else 0
        items[lo + k].post.append(x); acc += cost(x)


def run(items, tail):
    N = len(items)
    prev = {}
    for m, it in enumerate(items):
        it.prev = max([p for b, p in prev.items() if b == it.buf], default=-1)
        prev[it.buf] = m
    X = getattr(tail, "split", None)
    if X is None:
        seg(items, 0, N, 0); tail(); return
    nxt = seg(items, 0, X, 0)
    g(f"s_cmp_lg_u32 {sCLS}, 0")
    g(f"s_cbranch_scc1 {ROLE[0]}1")
    SUF[0] = f"_{CLS[0]}"
    g.block(f"{ROLE[0]}{CLS[0]}", lambda: (seg(items, X, N, nxt), tail()), align=(3 if CLS[0] else None))


def seg(items, n0, n1, nxt):
    N = len(items)
    for n in range(n0, n1):
        cnt = 0; lim = OPT["rmax"]
        while nxt < N and nxt <= n + items[nxt].D and items[nxt].prev < n:
            it = items[nxt]
            if it.bar is None and cnt >= lim and nxt > n: break
            if it.bar is not None:
                if nxt - n > it.bar.get("lead", 0): break
                emit(it.bar.get("before", []))
                sb = OPT["sb0"] <= nxt <= OPT["sb1"]
                if sb: stamp(f"pre{nxt}"); g("s_waitcnt lgkmcnt(0)")
                lgw = list(it.bar.get("lg") or [])
                if it.bar.get("drain"): lgw += [t for t in g.lg if t]
                g.wait(vm=it.bar.get("vm"), lg=lgw or None)
                emit(it.bar.get("at", []))
                if sb: stamp(f"at{nxt}"); g("s_waitcnt lgkmcnt(0)")
                g("s_barrier")
                if sb: stamp(f"bar{nxt}")
                it.bar_at = n
                emit(it.bar.get("after", []))
                items[n].pre += it.bar.get("after2", [])
                it.bar = None
                cnt = 0; lim = OPT["rm0"] if nxt else OPT["r00"]
                if cnt >= lim and nxt > n: break
            cnt += 1
            emit(it.rpre)
            if it.rvm: g.wait(vm=it.rvm)
            if it.second is None:
                g(f"ds_read_b128 {vr(it.buf)}, {it.addr} offset:{it.imm}", tag=f"w{nxt}")
            else:
                g(f"ds_read_b64_tr_b16 {vr(it.buf, 2)}, {it.addr} offset:{it.imm}", tag=f"w{nxt}")
                if True:
                    g(f"ds_read_b64_tr_b16 {vr(it.buf+2, 2)}, {it.addr} offset:{it.imm + it.second}", tag=f"w{nxt}")
            nxt += 1
        assert nxt > n
        it = items[n]
        emit(it.pre)
        g.wait(vm=it.vm or None, lg=[f"w{n}"] + it.lg)
        c = 0 if it.zero else vr(it.acc, 16)
        if getattr(it, "small", False):
            g(f"v_mfma_f32_16x16x32_bf16 {vr(it.acc)}, {vr(it.buf)}, {vr(it.other)}, {0 if it.zero else vr(it.acc)}")
        elif it.orient == "T": mfma(it.acc, vr(it.buf), vr(it.other), c)
        else: mfma(it.acc, vr(it.other), vr(it.buf), c)
        if OPT["sd0"] <= n < OPT["sd1"]:
            if OPT["sdp"]: g("s_waitcnt lgkmcnt(0)")
            stamp(f"m{n}")
            for k_, x_ in enumerate(it.post):
                emit([x_])
                if OPT["sdp"] and not isinstance(x_, str) and x_.__name__ != "fneed": g("s_waitcnt lgkmcnt(0)"); stamp(f"p{n}_{k_}")
        else: emit(it.post)
        if OPT["sper"] and n % OPT["sper"] == OPT["sper"] - 1 and OPT["s0"] <= n < OPT["s1"]: stamp(f"i{n}")
    return nxt


ENTRY = KN + "_kernel"
def wcs(a, b):
    l = []
    for c in range(a, b): l += [f"s_xor_b32 {sWC[c]}, {sROT}, {c}", f"s_mul_i32 {sWC[c]}, {sWC[c]}, {sST}"]
    return l


def prologue():
    k0, k1, k2 = ("v32", "v33", "v34") if OPT["ds"] else ("v64", "v67", "v68")
    if OPT["cal"]: g(("s_memrealtime" if OPT["cal"] == 1 else "s_memtime") + " s[6:7]")
    if OPT["hx"]: g("s_memrealtime s[98:99]")
    if STAMP:
        g(f"{'s_memrealtime' if OPT['rts'] else 's_memtime'} {sTM}")
        g(f"{'s_memtime' if OPT['rts'] else 's_memrealtime'} s[6:7]")
        g(f"v_mov_b32 {vSTAMP}, 0")
        g("s_mov_b32 s3, 0")
    g(f"""
    s_cmp_ge_u32 s2, 256
    s_cbranch_scc1 END
    s_load_dwordx16 s[8:23], s[0:1], 0
    s_load_dwordx4 s[24:27], s[0:1], 64
    s_load_dwordx2 s[28:29], s[0:1], 80
    s_getpc_b64 s[30:31]
    s_and_b32 {sT}, s2, 0xf8
    v_lshrrev_b32 v64, 6, v0
    v_add_u32 v65, {sT}, v64
    v_lshlrev_b32 v65, 7, v65
    v_min_u32 v65, CODE_END-{ENTRY}-256, v65
    s_mov_b64 exec, 1
    """)
    g("global_load_dword v255, v65, s[30:31]", tag="cp")
    if OPT["map"] == 0:
        MAPC = f"""s_bfe_u32 {sR8}, s2, 0x30003
    s_and_b32 {sRB}, s2, 1
    s_lshl_b32 {sRB}, {sRB}, 3
    s_or_b32 {sRB}, {sRB}, {sR8}
    s_bfe_u32 {sKQ}, s2, 0x20001"""
    elif OPT["map"] == 2:
        MAPC = f"""s_bfe_u32 {sR8}, s2, 0x20004
    s_lshl_b32 {sR8}, {sR8}, 1
    s_bfe_u32 {sRB}, s2, 0x10001
    s_or_b32 {sR8}, {sR8}, {sRB}
    s_and_b32 {sRB}, s2, 4
    s_lshl_b32 {sRB}, {sRB}, 1
    s_or_b32 {sRB}, {sRB}, {sR8}
    s_and_b32 {sKQ}, s2, 1
    s_lshl_b32 {sKQ}, {sKQ}, 1
    s_bfe_u32 {sT2}, s2, 0x10003
    s_or_b32 {sKQ}, {sKQ}, {sT2}"""
    else:
        MAPC = f"""s_bfe_u32 {sR8}, s2, 0x10003
    s_lshl_b32 {sR8}, {sR8}, 2
    s_and_b32 {sRB}, s2, 3
    s_or_b32 {sR8}, {sR8}, {sRB}
    s_and_b32 {sRB}, s2, 4
    s_lshl_b32 {sRB}, {sRB}, 1
    s_or_b32 {sRB}, {sRB}, {sR8}
    s_bfe_u32 {sKQ}, s2, 0x20004"""
    g(f"""
    s_mov_b64 exec, -1
    v_and_b32 {vLANE}, 63, v0
    v_readfirstlane_b32 {sW}, v64
    s_lshr_b32 {sTT}, s2, 6        ; t
    {MAPC}
    s_lshr_b32 {sISW1}, {sTT}, 1
    s_and_b32 {sPAR}, {sTT}, 1
    s_lshl_b32 {sCGI}, {sKQ}, 1
    s_or_b32 {sCGI}, {sCGI}, {sPAR}
    """)
    rt = OPT["rt"]
    if rt == 0: g(f"s_mov_b32 {sROT}, {sR8}")
    else:
        g(f"s_lshl_b32 {sROT}, {(sPAR, sISW1, sTT, sPAR)[rt - 1]}, {(2, 2, 1, 1)[rt - 1]}")
        g(f"s_xor_b32 {sROT}, {sROT}, {sR8}")
    if OPT["map"] == 2:
        if OPT["mrot"] >= 2: g(f"s_lshl_b32 {sT2}, {sT2}, 1")
        if OPT["mrot"] != 1: g(f"s_xor_b32 {sROT}, {sROT}, {sT2}")
        if OPT["mrot"] == 3: g(f"s_xor_b32 {sROT}, {sROT}, {sISW1}")
    if OPT["map"] == 1 and OPT["mrot"] == 0: g(f"s_xor_b32 {sROT}, {sROT}, {sKQ}")
    if OPT["map"] == 1 and OPT["mrot"] == 1:
        g(f"s_and_b32 {sROT}, {sROT}, 4")
        g(f"s_xor_b32 {sROT}, {sROT}, {sKQ}")
    if OPT["rotm"] != 7: g(f"s_and_b32 {sROT}, {sROT}, {OPT['rotm']}")
    g(f"""
    s_and_b32 {sRW}, {sW}, 3
    s_lshr_b32 {sCLS}, {sW}, 2
    s_lshl_b32 {sW1K}, {sW}, 10
    s_lshl_b32 {sSTR}, {sISW1}, 9
    s_add_u32 {sSTR}, {sSTR}, 3072
    s_lshl_b32 {sXR}, {sRB}, 17
    s_lshl_b32 {sT}, {sROT}, 7
    s_or_b32 {sXR}, {sXR}, {sT}
    v_lshrrev_b32 {k0}, 3, v0               ; w*8+l3
    v_and_b32 v65, 7, v0                   ; pos
    v_bfe_u32 {k1}, v0, 4, 3                ; (row>>1)&7
    v_xor_b32 {k1}, {k1}, v65
    v_lshlrev_b32 {k1}, 4, {k1}
    v_lshl_add_u32 {vXD}, {k0}, 10, {k1}
    v_bfe_u32 {k1}, v0, 4, 1
    v_lshlrev_b32 {k1}, 2, {k1}
    v_xor_b32 {k1}, {k1}, v65                ; pw
    v_lshlrev_b32 {k2}, 4, {k1}
    v_mul_lo_u32 v69, {k0}, {sSTR}
    v_add_u32 {vWDB}, v69, {k2}
    s_mul_i32 {sP[3]}, {sCGI}, 448
    s_lshl_b32 {sT2}, {sPAR}, 6
    s_add_u32 {sP[0]}, {sP[3]}, {sT2}
    s_add_u32 {sP[1]}, {sP[0]}, 128
    s_add_u32 {sP[2]}, {sP[0]}, 256
    s_cmp_eq_u32 {sPAR}, 0
    s_cselect_b32 {sT2}, 384, 0
    s_add_u32 {sP[3]}, {sP[3]}, {sT2}
    s_cmp_eq_u32 {sISW1}, 1
    s_cbranch_scc1 PRO_w1
    s_lshl_b32 {sP[2]}, {sCGI}, 7
    s_add_u32 {sP[0]}, {sP[2]}, 1024
    s_add_u32 {sP[1]}, {sP[2]}, 2048
    """)
    g.label("PRO_w1")
    if OPT["ds"]:
        g(f"s_lshl_b32 {sST}, {sSTR}, 6")
        g(f"s_mul_i32 {sWC[0]}, {sROT}, {sST}")
    else:
        g(f"s_lshl_b32 {sT}, {sSTR}, 6")
        for c in range(8):
            g(f"s_xor_b32 {sWC[c]}, {sROT}, {c}")
            g(f"s_mul_i32 {sWC[c]}, {sWC[c]}, {sT}")
    g(f"""
    v_add_u32 {vWDa}, {sP[0]}, {vWDB}
    v_add_u32 {vWDb}, {sP[1]}, {vWDB}
    s_mov_b32 s34, 0x200000
    s_mov_b32 s35, 0x20000
    s_mov_b32 s39, 0x20000
    s_lshl_b32 s38, {sSTR}, 9
    s_mul_i32 s58, {sISW1}, 2560
    s_add_u32 s58, s58, 1024
    s_mov_b32 s59, 0x20000
    """)
    if OPT["pst"]:
        g("s_waitcnt lgkmcnt(3)")
        stamp("prek")
    g(f"""
    s_cmp_eq_u32 {sISW1}, 1
    s_waitcnt lgkmcnt(0)
    s_mov_b32 s32, s8
    s_cselect_b32 s36, s16, s10
    s_cselect_b32 s37, s17, s11
    s_cselect_b32 s56, s18, s22
    s_cselect_b32 s57, s19, s23
    s_and_b32 s33, s9, 0xffff
    s_and_b32 s37, s37, 0xffff
    s_and_b32 s57, s57, 0xffff
    """)
    def ps(n):
        if OPT["pst"] and STAMP:
            stamp(n); g("s_waitcnt lgkmcnt(0)")
    ps("karg")
    h = head()
    n0 = 4 if OPT["il"] else 3
    emit(h[:n0])
    ps("ck0")
    def swarm():
        if OPT["sw"] & 4:
            g(f"s_mul_i32 {sT}, {sCGI}, 448")
            g(f"s_mul_i32 {sT}, {sT}, {sISW1}")
            g(f"s_lshl_b32 {sT2}, {sW}, 7")
            g(f"s_add_u32 {sT}, {sT}, {sT2}")
            g(f"s_buffer_load_dword {sNON}, {SB}, {sT}")
        if OPT["sw"] & 3:
            g(f"s_mul_i32 {sT}, {sW}, {sSTR}")
            g(f"s_lshl_b32 {sT}, {sT}, 3")
            g(f"s_add_u32 {sT}, {sT}, {sWC[0]}")
            if OPT["sw"] & 2: g(f"s_add_u32 {sT2}, {sT}, {sP[2]}")
            g(f"s_add_u32 {sT}, {sT}, {sP[1]}")
            for r in ([sT] if OPT["sw"] & 1 else []) + ([sT2] if OPT["sw"] & 2 else []):
                for i in range(8):
                    g(f"s_buffer_load_dword {sNON}, {SW}, {r}")
                    if OPT["sw2"]: g(f"s_buffer_load_dword {sNON}, {SW}, {r} offset:64")
                    if i < 7: g(f"s_add_u32 {r}, {r}, {sSTR}")
    if OPT["swp"] == 0: swarm()
    if OPT["pb"]: g("s_barrier")
    if OPT["ds"]: emit(wcs(1, 4))
    emit(h[n0:OPT["np1"]])
    if OPT["swp"] == 1: swarm()
    ps("ck1")
    setupA() if OPT["ds"] else setup2()
    if OPT["ds"]: emit(deferred("A")[:OPT["nd"]])
    ps("set2")
    emit(h[OPT["np1"]:OPT["np2"]])
    ps("ck2")
    g(f"s_cmp_eq_u32 {sISW1}, 0")
    g("s_cbranch_scc1 QQ")


def setupA():
    if STAMP:
        g(f"v_writelane_b32 {vSTAMP}, s6, 62")
    g(f"""
    v_and_b32 v64, 31, {vLANE}             ; row
    v_lshrrev_b32 v35, 5, {vLANE}          ; h
    v_bfe_u32 v66, {vLANE}, 1, 3           ; m
    v_xor_b32 v66, v66, v35                ; h ^ m
    s_lshl_b32 {sT}, {sCLS}, 2
    v_xor_b32 v66, {sT}, v66
    s_lshl_b32 {sT}, {sRW}, 12
    v_lshl_add_u32 v67, v64, 7, {sT}
    v_lshl_add_u32 {vX[0]}, v66, 4, v67
    v_xor_b32 {vX[1]}, 32, {vX[0]}
    v_xor_b32 {vX[2]}, 64, {vX[0]}
    v_xor_b32 {vX[3]}, 0x60, {vX[0]}
    v_bfe_u32 v68, {vLANE}, 2, 2           ; r
    v_lshlrev_b32 v69, 7, v68
    v_bfe_u32 v68, {vLANE}, 3, 1
    v_lshl_add_u32 v69, v68, 6, v69
    v_bfe_u32 v68, {vLANE}, 4, 1
    v_lshl_add_u32 {vT0}, v68, 5, v69
    v_and_b32 v68, 3, {vLANE}
    v_lshl_add_u32 v36, v68, 3, {vT0}
    v_lshl_add_u32 v36, v35, 10, v36
    s_mul_i32 {sT}, {sCLS}, {4096+64}
    s_add_u32 {sT}, {sT}, {LC}
    v_xor_b32 {vWlo}, {sT}, v36
    v_xor_b32 {vWhi}, 0x1000, {vWlo}
    """)


def deferred(role):
    G = []
    def grp(t): G.append(lambda t=t: g(t))
    def non():
        g(f"""
        s_mov_b32 s60, s26
        s_and_b32 s61, s27, 0xffff
        s_mov_b32 s62, 256
        s_mov_b32 s63, 0x20000
        """)
        if role == "W" or (role == "Q" and OPT["nd"]): return
        g(f"s_or_b32 {sT}, s2, {sW}")
        g("s_cbranch_scc1 S2_non")
        with g.optional():
            g(f"""
            s_memrealtime s[4:5]
            s_waitcnt lgkmcnt(0)
            s_mul_i32 {sT}, s4, 0x9e3779b1
            s_or_b32 {sT}, {sT}, 1
            v_mov_b32 v37, {sT}
            s_mov_b64 exec, 1
            buffer_store_dword v37, off, {SDBG}, 0 sc1
            s_mov_b64 exec, -1
            """)
        g.label("S2_non")
    G.append(non)
    grp("\n".join(wcs(4, 6)))
    if True:
        grp(f"""
        s_mul_i32 {sT}, {sCLS}, {64+32}
        s_add_u32 {sT}, {sT}, {LB+32768}
        v_xor_b32 {vU}, {sT}, v36
        v_lshlrev_b32 {vL16}, 4, {vLANE}
        """)
    grp("\n".join(wcs(6, 8)))
    grp(f"""
    s_mov_b32 s40, s20
    s_and_b32 s41, s21, 0xffff
    s_mov_b32 s42, 0x1c0000
    s_mov_b32 s43, 0x20000
    """)
    grp(f"""
    s_mov_b32 s44, s12
    s_and_b32 s45, s13, 0xffff
    s_mov_b32 s46, 0x80000
    s_mov_b32 s47, 0x20000
    """)
    grp(f"""
    s_mov_b32 s48, s28
    s_and_b32 s49, s29, 0xffff
    s_mov_b32 s50, {WS_SIZE:#x}
    s_mov_b32 s51, 0x20000
    """)
    grp(f"""
    s_mov_b32 s52, s24
    s_and_b32 s53, s25, 0xffff
    s_mov_b32 s54, 0x200000
    s_mov_b32 s55, 0x20000
    """)
    grp(f"""
    s_lshl_b32 {sT}, {sRB}, 2
    s_add_u32 {sT2}, {sT}, {sRW}
    s_lshl_b32 {sT2}, {sT2}, 2
    s_add_u32 {sT2}, {sT2}, {sKQ}
    s_lshl_b32 {sT2}, {sT2}, 1
    s_add_u32 {sFA}, {sT2}, {sCLS}
    """)
    grp(f"""
    s_lshl_b32 {sFA}, {sFA}, 7
    s_add_u32 {sFA}, {sFA}, {FA:#x}
    s_lshl_b32 {sT2}, {sTT}, 4
    s_add_u32 {sPUB}, {sFA}, {sT2}
    """)
    grp(f"""
    s_lshl_b32 {sT}, {sRB}, 2
    s_add_u32 {sT}, {sT}, {sTT}
    s_lshl_b32 {sT}, {sT}, 3
    s_add_u32 {sT}, {sT}, {sW}
    s_lshl_b32 {sFP}, {sT}, 2
    """)
    grp(f"""
    s_add_u32 {sFP}, {sFP}, {sKQ}
    s_lshl_b32 {sFP}, {sFP}, 7
    s_add_u32 {sFP}, {sFP}, {FP:#x}
    s_lshl_b32 {sFK}, {sCGI}, 10
    s_add_u32 {sFK}, {sFK}, {FK:#x}
    """)
    grp(f"""
    s_mov_b32 {sLOG2E}, 0x3fb8aa3b
    s_mov_b32 {sEPS}, 0x358637bd
    s_mov_b32 {sM}, 0xfffefffe
    s_mov_b32 {sTB}, 0x10001
    s_mov_b32 {sCNT}, 0
    s_mov_b32 {sLC}, {OPT['fl']}
    """)
    grp(f"""
    v_and_b32 v32, 31, v32
    v_lshl_add_u32 {vW2D}, v32, 10, v34
    s_lshl_b32 {sT}, {sTT}, 8
    s_lshl_b32 {sT2}, {sKQ}, 17
    s_add_u32 {sT2}, {sT2}, {sT}
    v_add_u32 {vWOD}, {sT2}, {vW2D}
    """)
    grp(f"""
    s_lshl_b32 {sT}, {sTT}, 8
    s_mul_i32 {sT2}, {sKQ}, {448*1024}
    s_add_u32 {sT2}, {sT2}, {sT}
    v_add_u32 {vW2D}, {sT2}, {vW2D}
    """)
    grp(f"""
    v_lshl_add_u32 {vT0}, v35, 9, {vT0}
    v_and_b32 v37, 1, {vLANE}
    v_lshl_add_u32 {vT0}, v37, 4, {vT0}
    v_bfe_u32 v37, {vLANE}, 1, 1
    v_lshl_add_u32 {vT0}, v37, 3, {vT0}
    """)
    grp(f"""
    s_and_b32 {sT}, {sKQ}, 1
    s_lshl_b32 {sT}, {sT}, 6
    s_lshl_b32 {sT2}, {sCLS}, 5
    s_or_b32 {sT}, {sT}, {sT2}
    v_xor_b32 {vT0}, {sT}, {vT0}
    """)
    grp(f"""
    s_xor_b32 {sRm}, {sR8}, {sCLS}
    s_lshr_b32 {sT}, {sKQ}, 1
    s_xor_b32 {sT}, {sT}, {sRm}
    s_xor_b32 {sT}, {sT}, 1
    s_and_b32 {sT}, {sT}, 1
    s_lshl_b32 {sRs}, {sT}, 7
    """)
    grp(f"""
    s_and_b32 {sT2}, {sR8}, 2
    s_lshl_b32 {sT2}, {sT2}, 14
    s_or_b32 {sRs}, {sRs}, {sT2}
    s_lshl_b32 {sT2}, {sPAR}, 15
    s_xor_b32 {sRu}, {sRs}, {sT2}
    """)
    grp(f"""
    s_lshr_b32 {sT}, {sR8}, 2
    s_xor_b32 {sT}, {sT}, {sPAR}
    s_lshl_b32 {sT2}, {sT}, 16
    s_or_b32 {sRo}, {sRs}, {sT2}
    s_lshl_b32 {sT2}, {sT}, 18
    s_or_b32 {sRs}, {sRs}, {sT2}
    """)
    grp(f"""
    s_lshl_b32 {sT}, {sRm}, 12
    s_lshl_b32 {sT2}, {sRW}, 10
    s_or_b32 {sRm}, {sT}, {sT2}
    s_and_b32 {sRmu}, {sRm}, 0x3fff
    """)
    grp(f"""
    s_lshl_b32 {sT}, {sRW}, 2
    s_add_u32 {sT}, {sT}, {sKQ}
    s_lshl_b32 {sT}, {sT}, 2
    s_add_u32 {sT}, {sT}, {sCLS}
    s_lshl_b32 {sT2}, {sPAR}, 1
    s_add_u32 {sAp}, {sT}, {sT2}
    """)
    grp(f"""
    s_xor_b32 {sAo}, {sAp}, 2
    s_mul_i32 {sAp}, {sAp}, 10240
    s_mul_i32 {sAo}, {sAo}, 10240
    s_lshl_b32 {sT3}, {sRB}, 20
    s_add_u32 {sAp}, {sAp}, {sT3}
    s_add_u32 {sAo}, {sAo}, {sT3}
    """)
    grp(f"""
    s_lshl_b32 {sT}, {sTT}, 3
    s_add_u32 {sT}, {sT}, {sW}
    s_mul_i32 {sT}, {sT}, 12288
    s_lshl_b32 {sT2}, {sKQ}, 10
    s_add_u32 {sPART}, {sT}, {sT2}
    """)
    grp(f"""
    s_lshl_b32 {sT3}, {sRB}, 20
    s_add_u32 {sPART}, {sPART}, {sT3}
    s_add_u32 {sPART}, {sPART}, {PARTO:#x}
    s_lshl_b32 {sKV}, {sCGI}, 16
    s_add_u32 {sKV}, {sKV}, {KVP:#x}
    """)
    grp(f"""
    s_lshl_b32 {sT}, {sRB}, 2
    s_add_u32 {sT}, {sT}, {sRW}
    s_lshl_b32 {sOUT}, {sT}, 15
    s_lshl_b32 {sT}, {sTT}, 8
    s_add_u32 {sOUT}, {sOUT}, {sT}
    """)
    grp(f"""
    s_lshl_b32 {sT}, {sKQ}, 6
    s_add_u32 {sOUT}, {sOUT}, {sT}
    s_lshl_b32 {sT}, {sCLS}, 5
    s_add_u32 {sOUT}, {sOUT}, {sT}
    """)
    return G


def setup2():
    if STAMP:
        g(f"v_writelane_b32 {vSTAMP}, s6, 62")
    g(f"""
    s_mov_b32 s60, s26
    s_and_b32 s61, s27, 0xffff
    s_mov_b32 s62, 256
    s_mov_b32 s63, 0x20000
    s_or_b32 {sT}, s2, {sW}
    s_cbranch_scc1 S2_non
    """)
    with g.optional():
        g(f"""
        s_memrealtime s[4:5]
        s_waitcnt lgkmcnt(0)
        s_mul_i32 {sT}, s4, 0x9e3779b1
        s_or_b32 {sT}, {sT}, 1
        v_mov_b32 v66, {sT}
        s_mov_b64 exec, 1
        buffer_store_dword v66, off, {SDBG}, 0 sc1
        s_mov_b64 exec, -1
        """)
    g.label("S2_non")
    g(f"""
    s_mov_b32 s40, s20
    s_and_b32 s41, s21, 0xffff
    s_mov_b32 s42, 0x1c0000
    s_mov_b32 s43, 0x20000
    s_mov_b32 s44, s12
    s_and_b32 s45, s13, 0xffff
    s_mov_b32 s46, 0x80000
    s_mov_b32 s47, 0x20000
    s_mov_b32 s48, s28
    s_and_b32 s49, s29, 0xffff
    s_mov_b32 s50, {WS_SIZE:#x}
    s_mov_b32 s51, 0x20000
    s_mov_b32 s52, s24
    s_and_b32 s53, s25, 0xffff
    s_mov_b32 s54, 0x200000
    s_mov_b32 s55, 0x20000
    s_mov_b32 {sLOG2E}, 0x3fb8aa3b
    s_mov_b32 {sEPS}, 0x358637bd
    s_mov_b32 {sM}, 0xfffefffe
    s_mov_b32 {sTB}, 0x10001
    s_mov_b32 {sCNT}, 0
    s_mov_b32 {sLC}, {OPT['fl']}
    v_and_b32 v64, 31, v64                 ; rw*8+l3
    v_lshl_add_u32 {vW2D}, v64, 10, v68
    v_lshrrev_b32 v69, 2, v67
    v_lshl_add_u32 v69, v69, 5, v64
    v_mul_lo_u32 v69, v69, {sSTR}
    v_and_b32 v70, 3, v67
    v_lshl_add_u32 v69, v70, 4, v69
    v_add_u32 {vUD}, {sP[3]}, v69
    s_lshl_b32 {sT}, {sTT}, 8
    s_lshl_b32 {sT2}, {sKQ}, 17
    s_add_u32 {sT2}, {sT2}, {sT}
    v_add_u32 {vWOD}, {sT2}, {vW2D}
    s_mul_i32 {sT2}, {sKQ}, {448*1024}
    s_add_u32 {sT2}, {sT2}, {sT}
    v_add_u32 {vW2D}, {sT2}, {vW2D}
    v_and_b32 v64, 31, {vLANE}             ; row
    v_lshrrev_b32 v65, 5, {vLANE}          ; h
    v_bfe_u32 v66, {vLANE}, 1, 3           ; m
    v_xor_b32 v66, v66, v65                ; h ^ m
    s_lshl_b32 {sT}, {sCLS}, 2
    v_xor_b32 v66, {sT}, v66
    s_lshl_b32 {sT}, {sRW}, 12
    v_lshl_add_u32 v67, v64, 7, {sT}
    """)
    for sp in range(4):
        g(f"v_xor_b32 v68, {2*sp}, v66")
        g(f"v_lshl_add_u32 {vX[sp]}, v68, 4, v67")
    g(f"""
    v_bfe_u32 v68, {vLANE}, 2, 2           ; r
    v_lshlrev_b32 v69, 7, v68
    v_bfe_u32 v68, {vLANE}, 3, 1
    v_lshl_add_u32 v69, v68, 6, v69
    v_bfe_u32 v68, {vLANE}, 4, 1
    v_lshl_add_u32 {vT0}, v68, 5, v69
    v_and_b32 v68, 3, {vLANE}
    v_lshl_add_u32 v69, v68, 3, {vT0}
    v_lshl_add_u32 v69, v65, 10, v69
    s_mul_i32 {sT}, {sCLS}, {4096+64}
    s_add_u32 {sT}, {sT}, {LC}
    v_xor_b32 {vWlo}, {sT}, v69
    v_xor_b32 {vWhi}, 0x1000, {vWlo}
    s_mul_i32 {sT}, {sCLS}, {64+32}
    s_add_u32 {sT}, {sT}, {LB+32768}
    v_xor_b32 {vU}, {sT}, v69
    ; phase-2 lane part: + h*512 + swapped col quad, unit kq&1, half cls
    v_lshl_add_u32 {vT0}, v65, 9, {vT0}
    v_and_b32 v68, 1, {vLANE}
    v_lshl_add_u32 {vT0}, v68, 4, {vT0}
    v_bfe_u32 v68, {vLANE}, 1, 1
    v_lshl_add_u32 {vT0}, v68, 3, {vT0}
    s_and_b32 {sT}, {sKQ}, 1
    s_lshl_b32 {sT}, {sT}, 6
    s_lshl_b32 {sT2}, {sCLS}, 5
    s_or_b32 {sT}, {sT}, {sT2}
    v_xor_b32 {vT0}, {sT}, {vT0}
    v_lshlrev_b32 {vL16}, 4, {vLANE}
    ; rotation constants (r8' = r8 ^ cls)
    s_xor_b32 {sT3}, {sR8}, {sCLS}
    s_lshr_b32 {sT}, {sKQ}, 1
    s_xor_b32 {sT}, {sT}, {sT3}
    s_xor_b32 {sT}, {sT}, 1
    s_and_b32 {sT}, {sT}, 1
    s_lshl_b32 {sT}, {sT}, 7               ; (b0^ho)<<7
    s_and_b32 {sT2}, {sR8}, 2
    s_lshl_b32 {sT2}, {sT2}, 14            ; b1<<15
    s_or_b32 {sRs}, {sT}, {sT2}
    s_lshl_b32 {sT2}, {sPAR}, 15
    s_xor_b32 {sRu}, {sRs}, {sT2}
    s_lshr_b32 {sT}, {sR8}, 2
    s_xor_b32 {sT}, {sT}, {sPAR}
    s_lshl_b32 {sT2}, {sT}, 16
    s_or_b32 {sRo}, {sRs}, {sT2}
    s_lshl_b32 {sT2}, {sT}, 18
    s_or_b32 {sRs}, {sRs}, {sT2}
    s_lshl_b32 {sT}, {sT3}, 12
    s_lshl_b32 {sT2}, {sRW}, 10
    s_or_b32 {sRm}, {sT}, {sT2}
    s_and_b32 {sRmu}, {sRm}, 0x3fff
    s_lshl_b32 {sT}, {sRW}, 2
    s_add_u32 {sT}, {sT}, {sKQ}
    s_lshl_b32 {sT}, {sT}, 2
    s_add_u32 {sT}, {sT}, {sCLS}
    s_lshl_b32 {sT2}, {sPAR}, 1
    s_add_u32 {sAp}, {sT}, {sT2}
    s_xor_b32 {sAo}, {sAp}, 2
    s_mul_i32 {sAp}, {sAp}, 10240
    s_mul_i32 {sAo}, {sAo}, 10240
    s_lshl_b32 {sT3}, {sRB}, 20
    s_add_u32 {sAp}, {sAp}, {sT3}
    s_add_u32 {sAo}, {sAo}, {sT3}
    s_lshl_b32 {sT}, {sTT}, 3
    s_add_u32 {sT}, {sT}, {sW}
    s_mul_i32 {sT}, {sT}, 12288
    s_lshl_b32 {sT2}, {sKQ}, 10
    s_add_u32 {sT}, {sT}, {sT2}
    s_add_u32 {sT}, {sT}, {sT3}
    s_add_u32 {sPART}, {sT}, {PARTO:#x}
    ; out
    s_lshl_b32 {sT}, {sRB}, 2
    s_add_u32 {sT}, {sT}, {sRW}
    s_lshl_b32 {sOUT}, {sT}, 15
    s_lshl_b32 {sT}, {sTT}, 8
    s_add_u32 {sOUT}, {sOUT}, {sT}
    s_lshl_b32 {sT}, {sKQ}, 6
    s_add_u32 {sOUT}, {sOUT}, {sT}
    s_lshl_b32 {sT}, {sCLS}, 5
    s_add_u32 {sOUT}, {sOUT}, {sT}
    s_lshl_b32 {sT}, {sRB}, 2
    s_add_u32 {sT2}, {sT}, {sRW}
    s_lshl_b32 {sT2}, {sT2}, 2
    s_add_u32 {sT2}, {sT2}, {sKQ}
    s_lshl_b32 {sT2}, {sT2}, 1
    s_add_u32 {sT2}, {sT2}, {sCLS}
    s_lshl_b32 {sT2}, {sT2}, 7
    s_add_u32 {sFA}, {sT2}, {FA:#x}
    s_lshl_b32 {sT2}, {sTT}, 4
    s_add_u32 {sPUB}, {sFA}, {sT2}
    s_add_u32 {sT}, {sT}, {sTT}
    s_lshl_b32 {sT}, {sT}, 3
    s_add_u32 {sT}, {sT}, {sW}
    s_lshl_b32 {sT}, {sT}, 2
    s_add_u32 {sT}, {sT}, {sKQ}
    s_lshl_b32 {sT}, {sT}, 7
    s_add_u32 {sFP}, {sT}, {FP:#x}
    s_lshl_b32 {sFK}, {sCGI}, 10
    s_add_u32 {sFK}, {sFK}, {FK:#x}
    ; kvp base of this cgi
    s_lshl_b32 {sKV}, {sCGI}, 16
    s_add_u32 {sKV}, {sKV}, {KVP:#x}
    """)
    if OPT["stl"]:
        g(f"s_mul_i32 {sT2}, {sKQ}, {448*1024}")
        g(f"s_buffer_load_dword s4, {SW2}, {sT2}")
        g(f"s_buffer_load_dword s4, {SWO}, 0")
        g(f"s_buffer_load_dword s4, {SWS}, {sPART}")
        g(f"s_buffer_load_dword s4, {SWS}, {sFP}")
        g(f"s_buffer_load_dword s4, {SOUT}, {sOUT}")
    if OPT["sp"]:
        g(f"s_cmp_eq_u32 {sCLS}, 0")
        g("s_cbranch_scc1 S2_sp")
        g(f"s_setprio {OPT['sp']}")
        g.label("S2_sp")


def tlbt(lab):
    def f():
        g(f"s_cmp_lg_u32 {sW}, 7")
        g(f"s_cbranch_scc1 TLB_{lab}")
        with g.optional():
            g(f"s_mul_i32 {sT2}, {sKQ}, {448*1024}")
            g("s_mov_b64 exec, 1")
            g(f"buffer_load_dword {vE1}, off, {SWS}, {sPART}")
            g(f"buffer_load_dword {vE1}, off, {SWS}, {sKV}")
            g(f"buffer_load_dword {vE1}, off, {SOUT}, {sOUT}")
            g(f"buffer_load_dword {vE1}, off, {SW2}, {sT2}")
            g(f"buffer_load_dword {vE1}, off, {SWO}, 0")
            g("s_mov_b64 exec, -1")
        g.label(f"TLB_{lab}")
    return f


def atouch(base, off, lo, hi):
    def f():
        g(f"v_lshlrev_b32 {vE0}, 7, {vLANE}")
        if off: g(f"s_add_u32 {sT}, {base}, {off}")
        g(f"s_mov_b32 exec_lo, {lo:#x}")
        g(f"s_mov_b32 exec_hi, {hi:#x}")
        g(f"buffer_load_dword {vE1}, {vE0}, {SWS}, {sT if off else base} offen", tag="tw")
        g("s_mov_b64 exec, -1")
    return f


def ptouch():
    g(f"v_lshrrev_b32 {vE0}, 3, {vLANE}")
    g(f"v_mul_u32_u24 {vE0}, {4096-1024}, {vE0}")
    g(f"v_lshl_add_u32 {vE0}, {vLANE}, 7, {vE0}")
    g("s_mov_b64 exec, 0xffffff")
    g(f"buffer_load_dword {vE1}, {vE0}, {SWS}, {sPART} offen", tag="tw")
    g("s_mov_b64 exec, -1")


def kvline():
    if OPT["map"]:
        return [f"s_mov_b32 {sT2}, 0", f"s_lshr_b32 {sT}, {sW}, 1", f"s_lshl_b32 {sT}, {sT}, 7", f"s_add_u32 {sT}, {sT}, {sFK}"]
    return [f"s_lshr_b32 {sT}, {sRB}, 2", f"s_xor_b32 {sT}, {sT}, {sRW}", f"s_bitcmp0_b32 {sT}, 1",
            f"s_cselect_b32 {sT2}, 1, 0", f"s_lshl_b32 {sT3}, {sT2}, 2", f"s_lshr_b32 {sT}, {sW}, 1", f"s_add_u32 {sT}, {sT}, {sT3}",
            f"s_lshl_b32 {sT}, {sT}, 7", f"s_add_u32 {sT}, {sT}, {sFK}"]


def ftouch():
    emit(kvline())
    g(f"v_mov_b32 {vE0}, {sFA}")
    g(f"v_writelane_b32 {vE0}, {sFP}, 1")
    g(f"v_writelane_b32 {vE0}, {sT}, 2")
    g("s_mov_b64 exec, 7")
    g(f"buffer_load_dword {vE1}, {vE0}, {SWS}, 0 offen sc1", tag="tw")
    g("s_mov_b64 exec, -1")


def nonce(lab):
    def f():
        g("s_waitcnt lgkmcnt(0)")
        g(f"s_cmp_eq_u32 {sNON}, 0")
        g(f"s_cbranch_scc1 RT_{lab}")
        g.label(f"OK_{lab}")
        class R:
            name = lab
            @staticmethod
            def retry():
                g(f"s_add_u32 {sCNT}, {sCNT}, 1")
                g(f"s_cmp_gt_u32 {sCNT}, {OPT['lim']}")
                g(f"s_cbranch_scc1 OK_{lab}")
                g(f"buffer_load_dword {TG0}, off, {SDBG}, 0 sc1")
                g("s_waitcnt vmcnt(0)")
                g(f"v_readfirstlane_b32 {sNON}, {TG0}")
                g(f"s_cmp_eq_u32 {sNON}, 0")
                g(f"s_cbranch_scc1 RT_{lab}")
                g(f"s_branch OK_{lab}")
        add_retry(lab, R.retry)
        g(f"v_and_b32 {TG1}, 7, {vLANE}")
        g(f"v_lshrrev_b32_e64 {TG0}, {TG1}, {sNON}")
        g(f"v_lshrrev_b32 {TG1}, 8, {TG0}")
        g(f"v_and_b32 {TG0}, {sTB}, {TG0}")
        g(f"v_and_b32 {TG1}, {sTB}, {TG1}")
        g(f"v_mov_b32 {vNON}, {sNON}")
    return f


def setFA():
    return [f"s_lshl_b32 {sT}, {sPAR}, 2", f"v_xor_b32 {vPA}, {sT}, {vLANE}", f"v_lshl_add_u32 {vPA}, {vPA}, 2, {sFA}", f"s_mov_b32 {sDEC}, 1"]


def setFK():
    return kvline() + [f"v_lshl_add_u32 {vPA}, {vLANE}, 2, {sT}", f"s_mov_b32 {sDEC}, {sT2}"]


def ident(I):
    a, b, c = f"v{TMP}", f"v{TMP+1}", f"v{TMP+2}"
    l = [f"v_mov_b32 {b}, 0x3f80",
         f"v_and_b32 {a}, 1, {vLANE}",
         f"v_lshlrev_b32 {a}, 4, {a}",
         f"v_lshlrev_b32 {a}, {a}, {b}",
         f"v_lshrrev_b32 {b}, 3, {vLANE}",
         f"v_xor_b32 {b}, {b}, {vLANE}",
         f"v_and_b32 {b}, 4, {b}",
         f"v_and_b32 {c}, 0x1a, {vLANE}",
         f"v_or_b32 {b}, {b}, {c}"]
    def f():
        emit(l)
        for k, key in enumerate((0, 2, 8, 10)):
            g(f"v_cmp_eq_u32 vcc, {key}, {b}")
            g(f"v_cndmask_b32 v{I+k}, 0, {a}, vcc")
    return f


def identm(I, small, a, mk=True):
    def on(l, j):
        if small: return 8 * ((l >> 4) & 1) + j == (l & 15)
        return (l & 31) == 8 * (j >> 2) + 4 * (l >> 5) + (j & 3)
    out = []
    if mk: out.append(lambda: emit([f"v_mov_b32 {a}, 0x3f80", "s_mov_b32 vcc_lo, 0x55555555", "s_mov_b32 vcc_hi, vcc_lo",
                                    f"v_cndmask_b32 {a}, 1.0, {a}, vcc"]))
    for k in range(4):
        m = sum(1 << l for l in range(64) if on(l, 2 * k + (l & 1)))
        assert all(not on(l, 2 * k + 1 - (l & 1)) for l in range(64))
        out.append(lambda k=k, m=m: emit([f"s_mov_b32 vcc_lo, {m & 0xffffffff:#x}", f"s_mov_b32 vcc_hi, {m >> 32:#x}",
                                          f"v_cndmask_b32 v{I+k}, 0, {a}, vcc"]))
    return out


def mfma16(d, a, b, c):
    g(f"v_mfma_f32_16x16x32_bf16 {vr(d)}, {a}, {b}, {c}")


def prio1(p):
    def f():
        nlab[0] += 1
        g(f"s_cmp_eq_u32 {sCLS}, 0")
        g(f"s_cbranch_scc1 PR{ROLE[0]}{nlab[0]}{SUF[0]}")
        g(f"s_setprio {p}")
        g.label(f"PR{ROLE[0]}{nlab[0]}{SUF[0]}")
    return f


def wadd(d):
    return [f"v_add_u32 {r}, {d:#x}, {r}" if d > 0 else f"v_subrev_u32 {r}, {-d:#x}, {r}" for r in (vWlo, vWhi)]


def need(item):
    def fneed(): assert item.bar is None
    return fneed


def place(it, lo, hi, fs, after=None):
    n = len(fs)
    if after is not None: it[lo].post.append(need(after))
    for i, f in enumerate(fs): it[lo + (hi - lo) * i // n].post.append(f)


def phase1(orient, cbufs, lab, xitem, slot_extra, tail_dma, after48, pre0=()):
    it = []; first = []
    for c in range(8):
        first.append(len(it))
        for sp in range(4):
            s = 4 * c + sp
            it.append(Item(vWlo if sp < 2 else vWhi, (c & 3) * 8192 + (sp & 1) * 2048, 512,
                           64 + 4 * (len(it) % 8), ACC0, XR + 4 * s, orient, zero=(s == 0), D=OPT["D"], lg=[f"xr{s}"]))
        for u in ([c - 2] if 2 <= c < 7 else [5, 6, 7] if c == 7 else []):
            for j in range(2): it.append(xitem(u, j, 64 + 4 * (len(it) % 8)))
    assert len(it) == PB
    first.append(PB)
    hwp = OPT["hwq"] if lab == "Qn" and OPT["hwq"] else OPT["hwp"]
    if OPT["hw"] and not hwp: tail_dma = WBs()[:1] + list(tail_dma)
    n3 = (len(tail_dma) + 2) // 3
    extra = {0: list(pre0) + head()[OPT["np2"]:], 5: tail_dma[:n3], 6: tail_dma[n3:2 * n3], 7: tail_dma[2 * n3:]}
    if OPT["rp"]:
        assert OPT["np2"] == (6 + OPT["hw"] if OPT["hw"] else 7)
        L = [(f, 0, 0) for f in pre0]
        for c in range(2, 8):
            L += [(f, c - 3, c - 2) for f in CK(c)[OPT["hw"] if c == 2 else 0:]]
            for k, v in slot_extra.items():
                if {1: 4, 3: 6, 4: 7}[k] == c: L += [(f, 0, c - 2) for f in v]
            if OPT["hw"] and hwp == c: L.append((WBs()[0], 0, 7))
        for j, f in enumerate(tail_dma): L.append((f, max(getattr(f, "emin", 0), 5 + j // n3 if not OPT["rpt"] or f in WCL else 0), 7))
        rq = [int(ch) for ch in f"{OPT['rq' if lab == 'Wn' else 'rqq']:08d}"]
        extra = {}; slot_extra = {}
        for c in range(8):
            n = rq[c] if c < 7 else len(L)
            extra[c] = []
            while L and len(extra[c]) < n and L[0][1] <= c: extra[c].append(L.pop(0))
            assert all(l >= c for _, _, l in extra[c]) and all(l > c for _, _, l in L), ("late", c)
            extra[c] = [f for f, _, _ in extra[c]]
        print(";", lab, [len(extra[c]) for c in range(8)], file=sys.stderr)
    for c in range(8):
        def xr(c=c):
            for sp in range(4):
                g(f"ds_read_b128 {vr(XR+16*c+4*sp)}, {vX[sp]} offset:{(c & 3) * 16384}", tag=f"xr{4*c+sp}")
        nx = (extra[c] if c in extra else CK(c + 3)) + slot_extra.get(c, [])
        it[first[c]].bar = dict(vm=[f"ck{c}"], lead=OPT["BL"], drain=True, after=[] if OPT["xsp"] else [xr])
        if OPT["xsp"]:
            for sp in range(4):
                it[first[c] + sp].rpre.append(lambda c=c, sp=sp: g(f"ds_read_b128 {vr(XR+16*c+4*sp)}, {vX[sp]} offset:{(c & 3) * 16384}", tag=f"xr{4*c+sp}"))
        b0 = max(0, first[c] - OPT["BL"]); b1 = min(first[c + 1] - OPT["BL"], b0 + 6)
        it[b0].post.append(need(it[first[c]]))
        if c: b0 += OPT["dsh"]
        for j, f in enumerate(nx): it[b0 + (j if len(nx) <= b1 - b0 else j * (b1 - b0) // len(nx))].post.append(f)
    for s in range(32):
        c = s >> 2; sp = s & 3
        it.append(Item(vWlo if sp < 2 else vWhi, c * 8192 + (sp & 1) * 2048, 512, 64 + 4 * (s % 8), ACC1, XR + 4 * s, orient,
                       zero=(s == 0), D=OPT["D"]))
    for s in range(32):
        c = s >> 2; sp = s & 3
        it.append(Item(vWlo if sp < 2 else vWhi, c * 8192 + (sp & 1) * 2048, 512, cbufs[s % len(cbufs)], ACC2, XR + 4 * s,
                       zero=(s == 0), D=OPT["DP"]))
    mb = OPT["wmb" if lab == "Wn" else "qmb"]
    it[PB].bar = dict(vm=[f"wb{c}" for c in range(mb)], lead=OPT["BL2"], drain=True, after=wadd(LB - LC))
    it[PB + 4 * mb].bar = dict(vm=[f"wb{c}" for c in range(mb, 8)] + [f"wc{c}" for c in range(8)], lead=OPT["BL2"], drain=True)
    it[PC].rpre += wadd(-LB)
    it[PB - OPT["BL2"]].post.append(need(it[PB]))
    for i, f in enumerate(after48): it[PB - OPT["BL2"] + i * OPT["a48"]].post.append(f)
    def tcw():
        g(f"v_add_u32 {vE0}, {sP[2]}, {vWDB}")
        g(f"buffer_load_dword {vE1}, {vE0}, {SW}, {sWC[0]} offen", tag="tw")
    if OPT["tc"]: it[OPT["tc"]].post.append(tcw)
    it[10].post.append(f"s_load_dword {sNON}, s[26:27], 0")
    it[40].post.append(nonce(lab))
    if OPT["tw"] and (lab == "Qn" or not OPT["twq"]): it[OPT["tw"]].post.append(touch)
    if OPT["tlb"]: it[OPT["tlp"]].post.append(tlbt(lab))
    if OPT["ds"]:
        df = deferred(lab[0])
        if lab == "Qn" and OPT["nd"] <= 2: df[2] = lambda: None
        df = df[OPT["nd"]:]
        if df: place(it, OPT["df0"], OPT["df1"], df)
        assert OPT["nd"] >= 12 or OPT["ft"] >= OPT["df0"] + (OPT["df1"] - OPT["df0"]) * (12 - OPT["nd"]) // len(df)
    if OPT["ft"]: it[OPT["ft"]].post.append(ftouch)
    if OPT["pt"]: it[OPT["pt"]].post.append(ptouch)
    if lab == "Wn":
        if OPT["at1"] and OPT["at1"] == OPT["at2"]: it[OPT["at1"]].post.append(atouch(sAp, 0, 0xffffffff, 0xffffff))
        else:
            if OPT["at1"]: it[OPT["at1"]].post.append(atouch(sAp, 0, 0xffff, 0xff0000))
            if OPT["at2"]: it[OPT["at2"]].post.append(atouch(sAp, 0, 0xffff0000, 0xffff))
    elif OPT["atq"]: it[OPT["atq"]].post.append(atouch(sAp, 7168, 0xffffff, 0))
    return it


def phase1i(orient, cbufs, lab, xitem, slot_extra, segx):
    it = []; first = []; xfirst = {}
    for c in range(8):
        first.append(len(it))
        seq = [(p, sp) for sp in range(4) for p in range(2)]
        if c == 7 and OPT["ilo"]: seq = [(p, sp) for p in range(2) for sp in range(4)]
        for p, sp in seq:
            s = 4 * c + sp
            xfirst.setdefault(s, len(it))
            it.append(Item(vWlo if sp < 2 else vWhi, p * (LB - LC) + (c & 3) * 8192 + (sp & 1) * 2048, 512,
                           64 + 4 * (len(it) % 8), (ACC0, ACC1)[p], XR + 4 * s, orient, zero=(s == 0), D=OPT["D"], lg=[f"xr{s}"]))
        L = OPT["sl"] if lab == "Qn" else 2
        for u in ([c - L] if L <= c < 7 else list(range(7 - L, 8)) if c == 7 else []):
            for j in range(2): it.append(xitem(u, j, 64 + 4 * (len(it) % 8)))
    assert len(it) == PC
    first.append(PC)
    extra = dict(segx); extra[0] = head()[OPT["np2"]:]
    for c in range(8):
        nx = (extra[c] if c in extra else CK(c + 3)) + slot_extra.get(c, [])
        it[first[c]].bar = dict(vm=[f"ck{c}"], lead=OPT["BL"], drain=True)
        for sp in range(4):
            it[xfirst[4 * c + sp]].rpre.append(lambda c=c, sp=sp: g(f"ds_read_b128 {vr(XR+16*c+4*sp)}, {vX[sp]} offset:{(c & 3) * 16384}", tag=f"xr{4*c+sp}"))
        b0 = max(0, first[c] - OPT["BL"]); b1 = min(first[c + 1] - OPT["BL"], b0 + OPT["ilw"])
        it[b0].post.append(need(it[first[c]]))
        if c: b0 += OPT["dsh"]
        for j, f in enumerate(nx): it[b0 + j * (b1 - b0) // len(nx)].post.append(f)
    for s in range(32):
        c = s >> 2; sp = s & 3
        it.append(Item(vWlo if sp < 2 else vWhi, c * 8192 + (sp & 1) * 2048, 512, cbufs[s], ACC2, XR + 4 * s,
                       zero=(s == 0), D=OPT["DP"]))
    it[PC].bar = dict(vm=[f"wc{c}" for c in range(4)], lead=OPT["BL2"], drain=True, after=wadd(LA - LC))
    it[PC + 16].bar = dict(vm=[f"wc{c}" for c in range(4, 8)], lead=OPT["BL3"], drain=True, after=[])
    it[12].post.append(f"s_load_dword {sNON}, s[26:27], 0")
    it[first[7] - OPT["BL"] - 1].post.append(nonce(lab))
    if OPT["tw"] and (lab == "Qn" or not OPT["twq"]): it[OPT["tw"]].post.append(touch)
    if OPT["ft"]: it[OPT["ft"]].post.append(ftouch)
    return it, first


def phase1q(orient, cbufs, lab, xitem):
    vq = [int(ch) for ch in f"{OPT['vq']:08d}"]
    L = OPT["sl"]
    slot = lambda j: LB + (0 if j == 7 else j) * 8192
    it = []; first = []; xfirst = {}; vfirst = {}; nb = [0]; kend = 0
    def bitem():
        s = nb[0]; nb[0] += 1
        c = s >> 2; sp = s & 3
        vfirst.setdefault(c, (len(it), len(first) - 1))
        a = vWlo if sp < 2 else vWhi
        o = slot(c) - (LC if vfirst[c][1] < 8 else LB)
        assert o < 65536 - 4096
        it.append(Item(a, o + (sp & 1) * 2048, 512, 64 + 4 * (len(it) % 8), ACC1, XR + 4 * s, orient, zero=(s == 0), D=OPT["D"]))
    for c in range(8):
        first.append(len(it))
        n = vq[c]
        for sp in range(4):
            s = 4 * c + sp
            xfirst[s] = len(it)
            it.append(Item(vWlo if sp < 2 else vWhi, (c & 3) * 8192 + (sp & 1) * 2048, 512,
                           64 + 4 * (len(it) % 8), ACC0, XR + 4 * s, orient, zero=(s == 0), D=OPT["D"], lg=[f"xr{s}"]))
        kend = len(it)
        for _ in range(n):
            assert nb[0] < 4 * c + 4
            bitem()
        for u in ([c - L] if L <= c < 7 else list(range(7 - L, 8)) if c == 7 else []):
            for j in range(2): it.append(xitem(u, j, 64 + 4 * (len(it) % 8)))
    gend = len(it)
    first.append(gend)
    while nb[0] < 32: bitem()
    assert len(it) == PC
    wc = WCs()
    early = [j for j in range(8) if vfirst[j][1] < 8]
    late = [j for j in range(8) if vfirst[j][1] == 8]
    wv = {j: dw(slot(j), j, vWDb, f"ck{vfirst[j][1]}" if j in early else f"wb{j}") for j in range(8)}
    assert 7 in late and vfirst[1][1] <= 5 and OPT["ew"] == 1 and vfirst[0][1] >= 1
    hd = head()
    extra = {0: hd[OPT["np2"]:]}
    for c in range(1, 5): extra[c] = CK(c + 3)
    for j in early:
        if j == 0: continue
        c = max(0, vfirst[j][1] - 3 - OPT["vle"])
        extra[c] = extra[c] + [wv[j]] if OPT["vlo"] else [wv[j]] + extra[c]
    tl = [wv[j] for j in late]
    n5 = OPT["n5"]
    use = 0
    for c in (5, 6, 7):
        extra[c] = tl[:n5]; tl = tl[n5:]
        while len(extra[c]) < n5 and use < 2 * (c - 4): extra[c].append(wc[use]); use += 1
    assert not tl
    for c in range(8):
        nx = extra[c]
        vm = [f"ck{c}"] + (["wb0"] if vfirst[0][1] == c else [])
        ld = lambda c: min(OPT["BLq"], 2) if c == 1 else OPT["BLq"]
        it[first[c]].bar = dict(vm=vm, lead=ld(c), drain=True)
        for sp in range(4):
            it[xfirst[4 * c + sp]].rpre.append(lambda c=c, sp=sp: g(f"ds_read_b128 {vr(XR+16*c+4*sp)}, {vX[sp]} offset:{(c & 3) * 16384}", tag=f"xr{4*c+sp}"))
        b0 = max(0, first[c] - ld(c)); b1 = min(first[c + 1] - ld(c + 1), b0 + OPT["ilw"])
        it[b0].post.append(need(it[first[c]]))
        if c: b0 += OPT["dsh"]
        for j, f in enumerate(nx): it[b0 + (j * (b1 - b0) // len(nx))].post.append(f)
    for s in range(32):
        c = s >> 2; sp = s & 3
        it.append(Item(vWlo if sp < 2 else vWhi, c * 8192 + (sp & 1) * 2048, 512, cbufs[s % len(cbufs)], ACC2, XR + 4 * s,
                       zero=(s == 0), D=OPT["DP"]))
    X1 = vfirst[late[0]][0]
    h2 = late[OPT["x2"]:]
    X2 = vfirst[h2[0]][0]
    nq = OPT["x2q"]
    it[X1].bar = dict(vm=[f"wb{j}" for j in late[:OPT["x2"]]], lead=OPT["BL2"], drain=True)
    it[X2].bar = dict(vm=[f"wb{j}" for j in h2] + [f"wc{c}" for c in range(nq)], lead=OPT["BL2"], drain=True)
    assert X1 - OPT["BL2"] >= kend - 1 or True
    place(it, X1 - OPT["BL2"], min(X2 - OPT["BL2"], X1 - OPT["BL2"] + (8 - use) * OPT["a48"]), wc[use:], it[X1])
    it[X1].bar["after"] = wadd(LB - LC)
    it[PC].rpre += wadd(LA - LB)
    if OPT["tw"]: it[OPT["tw"]].post.append(touch)
    it[10].post.append(f"s_load_dword {sNON}, s[26:27], 0")
    it[first[7] - OPT["BLq"] - 1].post.append(nonce(lab))
    if OPT["ft"]: it[OPT["ft"]].post.append(ftouch)
    print(f"; Q first={first} kend={kend} gend={gend} X1={X1} X2={X2} late={late} use={use}", file=sys.stderr)
    return it, kend, gend, X1, X2, nq


def p2items(steps, bufs, nt3, tm=0):
    order = []
    for p in range(18): order += [(p, t) for t in range(4)]
    defer = [(p, 3) for p in range(18 - nt3, 18)]
    order = [o for o in order if o not in defer]
    if tm:
        assert tm <= nt3
        order = [o for o in order if o[0] < 18 - tm] + [(p, t) for t in range(3) for p in range(18 - tm, 18)]
    order += defer
    seen = set(); it = []
    for n, (p, t) in enumerate(order):
        breg, ar, off = steps[p]
        it.append(Item(ar[t & 1], off + (t >> 1) * 4096, 1024, bufs[n % len(bufs)], TACC + 16 * t, breg,
                       zero=(t not in seen), D=OPT["D2"]))
        seen.add(t)
    first = {p: min(i for i, (q, _) in enumerate(order) if q == p) for p in range(18)}
    return it, order, len(order) - nt3, first


aA, aB, aC = ("v6", "v7"), ("v8", "v9"), ("v10", "v11")
vXW, vXRd, vOA, vFA = "v12", "v24", "v25", "v27"


def p2addr():
    return [f"s_lshl_b32 {sT}, {sCLS}, 13",
            f"v_add_u32 v7, {sT}, {vT0}",
            "v_xor_b32 v6, 64, v7",
            f"v_add_u32 v8, {GB()}, v6",
            f"v_add_u32 v9, {GB()}, v7",
            f"s_lshl_b32 {sT}, {sCLS}, 11",
            f"s_add_u32 {sT}, {sT}, {XC()+16384}",
            f"v_add_u32 v11, {sT}, {vT0}",
            "v_xor_b32 v10, 64, v11"]


def p2misc():
    if OPT["asym"]: pass
    elif OPT["nx"]:
        g(f"s_lshl_b32 {sT}, {sW}, 11")
        g(f"s_add_u32 {sT}, {sT}, {XC()}")
        g(f"v_add_u32 {vXW}, {sT}, {vL16}")
        g(f"v_xor_b32 {vXRd}, 0x2000, {vXW}")
    else:
        g(f"s_lshl_b32 {sT}, {sW}, 13")
        g(f"v_add_u32 {vXW}, {sT}, {vL16}")
        g(f"v_xor_b32 {vXRd}, 0x8000, {vXW}")
    g(f"v_and_b32 {vOA}, 31, {vLANE}")
    g(f"v_lshlrev_b32 {vOA}, 10, {vOA}")
    g(f"v_lshrrev_b32 v3, 5, {vLANE}")
    g(f"v_lshl_add_u32 {vOA}, v3, 4, {vOA}")
    if OPT["asym"]:
        g(f"s_lshl_b32 {sT}, {sRW}, 12")
        g(f"s_add_u32 {sT2}, {sT}, {XC()}")
        g(f"v_add_u32 v3, {sT2}, {vL16}")
        g(f"s_lshl_b32 {sT}, {sRW}, 13")
        g(f"s_add_u32 {sT}, {sT}, {GB()}")
        g(f"v_add_u32 v19, {sT}, {vL16}")
        g(f"v_sub_u32 {vFA}, 19, {vLANE}")
        g(f"v_lshlrev_b32 {vFA}, 7, {vFA}")
        g(f"v_xor_b32 {vFA}, {sFP}, {vFA}")
        g(f"v_lshl_add_u32 {vFA}, {vLANE}, 2, {vFA}")
        return
    if OPT["nx"]:
        g(f"v_and_b32 v3, 4, {vLANE}")
        g(f"v_lshlrev_b32 v3, 9, v3")
        g(f"v_xor_b32 {vFA}, 3, {vLANE}")
        g(f"v_and_b32 {vFA}, 3, {vFA}")
        g(f"v_lshl_or_b32 {vFA}, {vFA}, 7, v3")
        g(f"v_xor_b32 {vFA}, {sFP}, {vFA}")
        g(f"v_lshl_add_u32 {vFA}, {vLANE}, 2, {vFA}")
        g(f"s_mul_i32 {sT}, {sCLS}, {8*12288}")
        g(f"s_add_u32 {sKV}, {sPART}, {OFFB + 4*12288:#x}")
        g(f"s_sub_u32 {sKV}, {sKV}, {sT}")
        return
    q2 = OPT["q2"] and ROLE[0] == "QQ"
    g(f"s_lshl_b32 {sT}, {sW}, 11")
    g(f"s_add_u32 {sT}, {sT}, {XC() + (16384 if q2 else 0)}")
    g(f"v_add_u32 v3, {sT}, {vL16}")
    g(f"v_xor_b32 v26, 0x2000, v3")
    g(f"v_sub_u32 {vFA}, 3, {vLANE}")
    g(f"v_lshlrev_b32 {vFA}, 7, {vFA}")
    g(f"v_xor_b32 {vFA}, {sFP}, {vFA}")
    g(f"v_lshl_add_u32 {vFA}, {vLANE}, 2, {vFA}")
    if q2:
        g(f"s_lshl_b32 {sT}, {sW}, 12")
        g(f"s_add_u32 {sT}, {sT}, {GB()}")
        g(f"v_add_u32 v19, {sT}, {vL16}")
        g(f"v_xor_b32 v21, 0x4000, v19")
        return
    g(f"v_add_u32 v19, {GB()}, {vXW}")
    g(f"v_add_u32 v21, {GB()}, {vXRd}")


def p2tail_asym(role, it, base, nx, XB, IDENT, vSC, order):
    N = len(it) - base
    cls = CLS[0]
    last = [max(i for i, o in enumerate(order) if o[1] == t) for t in range(3)]
    AR = (("v19", 0), ("v19", 32768), ("v3", 0))
    R = [XB[0], 32, XB[0]]
    X3, T3 = XB[0], TACC + 48
    H = 4 * 12288
    it[base + nx - 1].post.append(st("t012"))
    if OPT["tp"]: it[base + OPT["tp"]].post.append("s_setprio 1")
    if cls == 0:
        for t in range(3):
            a, o = AR[t]
            l = [(lambda i=i, t=t, a=a, o=o: g(f"ds_write_b128 {a}, {vr(TACC+16*t+4*i)} offset:{o+i*1024}", tag="xw")) for i in range(4)]
            w = 1 if t == 2 else max(1, min(2, last[t + 1] - last[t]))
            spread(it, base + last[t] + 1, base + last[t] + 1 + w, l)
        it[base + nx].post += [f"v_lshl_add_u32 {vPA}, {vLANE}, 2, {sFP}", f"s_mov_b32 {sDEC}, 0"] + (["s_setprio 0"] if OPT["tp"] else [])
        it[base + nx - 1 + OPT["k0"]].post += [lambda: g.wait(lg="xw"), "s_barrier", st("pst")]
        if OPT["apr"] not in (4, 5): it[base + N - 1 - OPT["prl"]].post.append(poll_issue)
        FR = [52, 56, 60, 32, 36, 40]
        GP = Grp(role + "pr", [(FR[2 * t + h], sPART, t * 4096 + h * H) for t in range(3) for h in range(2)],
                 each=lambda i, reg: mfma(TACC + 16 * (i & 1), vr(IDENT), vr(reg), vr(TACC + 16 * (i & 1), 16) if i > 1 else 0))
        def tail():
            L = GP.loads()
            def xb1():
                g("s_barrier")
                for i in range(4):
                    g(f"ds_read_b128 {vr(X3+4*i)}, v19 offset:{i*1024}", tag="xr3")
                stamp("xb1")
            def comb():
                g.wait(lg="xr3")
                for i in range(16): g(f"v_add_f32 v{X3+i}, v{T3+(i+8)%16}, v{X3+i}")
                for i in range(16): g(f"v_mul_f32 v{X3+i}, {vSC}, v{X3+i}")
            if OPT["apr"] == 0:
                xb1(); take(7)(); stamp("pflag"); emit(L); comb()
            elif OPT["apr"] == 1:
                take(1)(); emit(L[:2]); take(2, False)(); emit(L[2:4]); xb1(); take(4, False)(); stamp("pflag"); emit(L[4:]); comb()
            elif OPT["apr"] == 2:
                take(1)(); emit(L[:2]); take(2, False)(); emit(L[2:4]); take(4, False)(); emit(L[4:]); xb1(); stamp("pflag"); comb()
            elif OPT["apr"] == 3:
                take(1)(); emit(L[:2]); take(2, False)(); emit(L[2:4]); xb1(); comb(); take(4, False)(); stamp("pflag"); emit(L[4:])
            elif OPT["apr"] == 4:
                emit(L); xb1(); stamp("pflag"); comb()
            elif OPT["apr"] == 5:
                xb1(); emit(L); stamp("pflag"); comb()
            elif OPT["apr"] == 6:
                take(3)(); emit(L); xb1(); stamp("pflag"); comb()
            emit(GP.check())
            stamp("pok")
            for h in range(2):
                b = X3 + 8 * (1 - h)
                for i in range(8): g(f"v_fmac_f32 v{b+i}, {vSC}, v{TACC+16*h+i}")
                for i in range(4): g(f"v_cvt_pk_bf16_f32 v{b+i}, v{b+2*i}, v{b+2*i+1}")
                g(f"buffer_store_dwordx4 {vr(b)}, {vOA}, {SOUT}, {sOUT} offen offset:{32*h}")
            finish(role, None)
    else:
        def rd(t):
            a, o = AR[t]
            def f():
                for i in range(4): g(f"ds_read_b128 {vr(R[t]+4*i)}, {a} offset:{o+i*1024}", tag=f"xr{t}")
            return f
        it[base + last[0] - OPT["b1l"]].post += ["s_barrier", rd(0), rd(1)]
        prev = -1
        for t in range(3):
            T = TACC + 16 * t
            l = [f"s_xor_b32 {sST}, {sPART}, {(3-t) << 10:#x}"]
            if t: l.append(f"s_add_u32 {sST}, {sST}, {t*4096}")
            l.append(lambda t=t: g.wait(lg=f"xr{t}"))
            for h in range(2):
                b = T + 8 * h
                l += [f"v_add_f32 v{b+i}, v{b+i}, v{R[t]+(8*h+8+i)%16}" for i in range(8)]
                if t == 0 and h == 1: l.append(rd(2))
                l += [f"v_cvt_pk_bf16_f32 v{b+i}, v{b+2*i}, v{b+2*i+1}" for i in range(4)]
                l += tstore(b, sST, 0, tag="pst")
                if h == 0: l.append(f"s_sub_u32 {sST}, {sST}, {H}")
            def flag(t=t):
                g(f"s_mov_b64 exec, {1 << t}")
                g(f"buffer_store_dword {vNON}, {vFA}, {SWS}, 0 offen sc1", tag="pub")
                g("s_mov_b64 exec, -1")
            if OPT["apr"] not in (4, 5): l.append(flag)
            pos = max(last[t] + OPT["nxd"], prev + 1)
            w = 1 if t == 2 else max(1, min(4, last[t + 1] + OPT["nxd"] - pos))
            spread(it, base + pos, base + pos + w, l)
            prev = pos + w - 1
        it[base + prev].post.append(st("pst"))
        def tail():
            for i in range(4):
                g(f"ds_write_b128 v19, {vr(T3+4*i)} offset:{i*1024}", tag="xw")
            g.wait(lg="xw")
            g("s_barrier")
            stamp("xb1"); stamp("pflag"); stamp("pok")
            finish(role, None)
    tail.split = base + last[0] - OPT["b1l"]
    return tail


def p2tail_nx(role, it, base, nx, XB, IDENT, vSC, order):
    N = len(it) - base
    S = TACC
    FR = [52, 56, 60, XB[0], XB[0] + 4, XB[1]]
    GP = Grp(role + "pr", [(FR[2 * t + h], (sPART, sKV)[h], t * 4096) for t in range(3) for h in range(2)],
             each=lambda i, reg: mfma(S, vr(IDENT), vr(reg), vr(S, 16) if i else 0))
    def send(t):
        T = TACC + 16 * t
        l = [f"s_xor_b32 {sST}, {sPART}, {(3-t) << 10:#x}"]
        if t: l.append(f"s_add_u32 {sST}, {sST}, {t*4096}")
        for h in range(2):
            b = T + 8 * h
            l += [f"v_cvt_pk_bf16_f32 v{b+i}, v{b+2*i}, v{b+2*i+1}" for i in range(4)]
            l += tstore(b, sST, 0, tag="pst")
            if h == 0: l.append(f"s_add_u32 {sST}, {sST}, {OFFB:#x}")
        def flag():
            g(f"s_mov_b64 exec, {0x11 << t:#x}")
            g(f"buffer_store_dword {vNON}, {vFA}, {SWS}, 0 offen sc1", tag="pub")
            g("s_mov_b64 exec, -1")
        return l + [flag]
    it[base + nx - 1].post.append(st("t012"))
    prev = -1
    for t in range(3):
        last = max(i for i, o in enumerate(order) if o[1] == t)
        pos = max(last + OPT["nxd"], prev + 1)
        w = 1 if t == 2 else max(1, min(3, max(i for i, o in enumerate(order) if o[1] == t + 1) + OPT["nxd"] - pos))
        spread(it, base + pos, base + pos + w, send(t))
        prev = pos + w - 1
    it[base + prev].post += [f"v_lshl_add_u32 {vPA}, {vLANE}, 2, {sFP}", f"s_mov_b32 {sDEC}, 0", st("pst")]
    if OPT["tp"]:
        it[base + OPT["tp"]].post.append("s_setprio 1")
        it[base + prev].post.append("s_setprio 0")
    assert prev < N - 1 - OPT["prl"]
    it[base + N - 1 - OPT["prl"]].post.append(poll_issue)
    def tail():
        T3 = TACC + 48
        for i in range(2):
            g(f"ds_write_b128 {vXW}, {vr(T3+8+4*i)} offset:{i*1024}", tag="xw")
        g.wait(lg="xw")
        g("s_barrier")
        for i in range(2):
            g(f"ds_read_b128 {vr(XB[3]+4*i)}, {vXRd} offset:{i*1024}", tag="xr3")
        stamp("xb1")
        take(0x77)()
        stamp("pflag")
        emit(GP.loads())
        g.wait(lg="xr3")
        for i in range(8): g(f"v_add_f32 v{XB[3]+i}, v{T3+i}, v{XB[3]+i}")
        for i in range(8): g(f"v_mul_f32 v{XB[3]+i}, {vSC}, v{XB[3]+i}")
        emit(GP.check())
        stamp("pok")
        for i in range(8): g(f"v_fmac_f32 v{XB[3]+i}, {vSC}, v{S+i}")
        finish(role, XB)
    return tail


def p2tail(role, it, base, nx, XB, IDENT, vSC, order):
    if OPT["asym"]: return p2tail_asym(role, it, base, nx, XB, IDENT, vSC, order)
    if OPT["nx"]: return p2tail_nx(role, it, base, nx, XB, IDENT, vSC, order)
    PR = 52
    N = len(it) - base
    def xsend012():
        for t, (a, o) in enumerate((("v19", 0), ("v19", 2048), ("v3", 0))):
            for i in range(2):
                g(f"ds_write_b128 {a}, {vr(TACC+16*t+8+4*i)} offset:{o+i*1024}", tag="xw")
    def xrecv012():
        g.wait(lg="xw")
        g("s_barrier")
        for t, (a, o) in enumerate((("v21", 0), ("v21", 2048), ("v26", 0))):
            for i in range(2):
                g(f"ds_read_b128 {vr(XB[t]+4*i)}, {a} offset:{o+i*1024}", tag=f"xr{t}")
    def xfin(t):
        def f():
            g(f"s_xor_b32 {sT}, {sPART}, {(3-t) << 10:#x}")
            if t: g(f"s_add_u32 {sT}, {sT}, {t*4096}")
            g.wait(lg=f"xr{t}")
            for i in range(8): g(f"v_add_f32 v{XB[t]+i}, v{XB[t]+i}, v{TACC+16*t+i}")
            for i in range(4): g(f"v_cvt_pk_bf16_f32 v{XB[t]+i}, v{XB[t]+2*i}, v{XB[t]+2*i+1}")
            emit(tstore(XB[t], sT, 0, tag="pst"))
        return f
    GP = Grp(role + "pr", [(PR + 4 * t, sPART, t * 4096) for t in range(3)],
             each=(lambda t, reg: mfma(TACC, vr(IDENT), vr(reg), vr(TACC + (0 if t else 48), 16))) if OPT["ppi"] else None)
    it[base + nx - 1].post.append(st("t012"))
    def pflag():
        g("s_mov_b64 exec, 7")
        g(f"buffer_store_dword {vNON}, {vFA}, {SWS}, 0 offen{'' if OPT['lpf'] else ' sc1'}", tag="pub")
        g("s_mov_b64 exec, -1")
        g(f"v_lshl_add_u32 {vPA}, {vLANE}, 2, {sFP}")
        g(f"s_mov_b32 {sDEC}, {OPT['lpf']}")
    xs = [xsend012, xrecv012, xfin(0), xfin(1), lambda: (xfin(2)(), stamp("pst"))]
    k = {0: 4, 1: 0, 2: 1, 3: 2}[OPT["efp"]]
    if not OPT["pd"]: xs[k] = (lambda f: lambda: (f(), pflag()))(xs[k])
    pt = OPT["wpt" if role == "W" else "qpt"]
    if pt: it[base + pt].post.append(ptouch)
    p1 = OPT["wp1" if role == "W" else "qp1"]
    if p1:
        it[base + p1].post.append(prio1(1))
        it[base + nx + 1].post.append("s_setprio 0")
    def early():
        g.wait(vm="poll")
        g(f"v_cmp_eq_u32 vcc, {sNON}, {vPR}")
        g(f"s_and_b32 {sFA}, vcc_lo, 7")
        g(f"s_cmp_lg_u32 {sFA}, 7")
        g(f"s_cbranch_scc1 PE_{role}")
        with g.optional(): emit(GP.loads(False))
        g.label(f"PE_{role}")
    if OPT["pe"]:
        it[base + nx - OPT["pe"]].post += [f"v_lshl_add_u32 {vPA}, {vLANE}, 2, {sFP}", poll_issue]
        xs[1] = (lambda f: lambda: (f(), early()))(xs[1])
    for i, f in enumerate(xs): it[base + min(nx + i, N - 1)].post.append(f)
    if OPT["pd"]:
        for f in GP.loads(): it[base + N - 1 - OPT["prl"]].post.append(f)
    elif not OPT["pe"]: it[base + max(min(nx + 5, N - 1), N - 1 - OPT["prl"])].post.append(poll_issue)
    def tail():
        T3 = TACC + 48
        for i in range(2):
            g(f"ds_write_b128 {vXW}, {vr(T3+8+4*i)} offset:{i*1024}", tag="xw")
        g.wait(lg="xw")
        g("s_barrier")
        for i in range(2):
            g(f"ds_read_b128 {vr(XB[3]+4*i)}, {vXRd} offset:{i*1024}", tag="xr3")
        stamp("xb1")
        if OPT["pe"]:
            g(f"s_cmp_eq_u32 {sFA}, 7")
            g("s_waitcnt vmcnt(4)")
            g(f"s_cbranch_scc1 PF_{role}")
            with g.optional():
                g(f"s_mov_b32 {sMASK}, 7")
                g(f"s_call_b64 {sRET}, SPIN")
                g.block("SPIN", SPIN, align=3)
                emit(GP.loads(False))
                g("s_waitcnt vmcnt(0)")
            g.label(f"PF_{role}")
            stamp("pflag")
        elif not OPT["pd"]:
            take(7)()
            stamp("pflag")
            emit(GP.loads())
        g.wait(lg="xr3")
        for i in range(8): g(f"v_mul_f32 v{XB[3]+i}, {vSC}, v{XB[3]+i}")
        emit(GP.check())
        stamp("pok")
        if OPT["ppi"]: T3 = TACC
        else:
            for t in range(3):
                mfma(T3, vr(IDENT), vr(PR + 4 * t), vr(T3, 16))
        for i in range(8): g(f"v_fmac_f32 v{XB[3]+i}, {vSC}, v{T3+i}")
        finish(role, XB)
    return tail


def finish(role, XB):
    if True:
        if XB is not None:
            for i in range(4): g(f"v_cvt_pk_bf16_f32 v{XB[3]+i}, v{XB[3]+2*i}, v{XB[3]+2*i+1}")
            g(f"buffer_store_dwordx4 {vr(XB[3])}, {vOA}, {SOUT}, {sOUT} offen{' sc1' if OPT['osc'] else ''}")
        if STAMP:
            stamp("end")
            g(f"{'s_memtime' if OPT['rts'] else 's_memrealtime'} s[6:7]")
            g("s_waitcnt lgkmcnt(0)")
            g(f"v_writelane_b32 {vSTAMP}, s6, 60")
            g(f"v_writelane_b32 {vSTAMP}, s98, {len(SN[ROLE[0]])-1}")
            g(f"v_writelane_b32 {vSTAMP}, {sCNT}, 63")
            g(f"v_writelane_b32 {vSTAMP}, s3, 61")
            g("s_lshl_b32 s3, s2, 3")
            g(f"s_add_u32 s3, s3, {sW}")
            g("s_lshl_b32 s3, s3, 8")
            g(f"s_add_u32 s3, s3, {STP:#x}")
            g(f"v_lshlrev_b32 v9, 2, {vLANE}")
            g(f"buffer_store_dword {vSTAMP}, v9, {SWS}, s3 offen")
            if OPT["hd"]:
                nm = SN[ROLE[0]]
                sel = ["i31", "i95", "P2bar", "gook", "t012", "end"] if role == "W" else ["i31", "i95", "kvok", "ost", "t012", "end"]
                b0 = 1 if role == "W" else 7
                g(f"s_cmp_lg_u32 {sRW}, 0")
                g(f"s_cbranch_scc1 HD_{role}")
                g("s_memrealtime s[6:7]")
                g("v_mov_b32 v8, 0")
                g(f"v_readlane_b32 s4, {vSTAMP}, 0")
                for k, n_ in enumerate(sel):
                    g(f"v_readlane_b32 s5, {vSTAMP}, {nm.index(n_)}")
                    g("s_nop 1")
                    g("s_sub_u32 s5, s5, s4")
                    g(f"v_writelane_b32 v8, s5, {b0 + k}")
                g(f"v_readlane_b32 s5, {vSTAMP}, 62")
                g("s_nop 1")
                g("v_writelane_b32 v8, s5, 14")
                g("s_not_b32 s5, s5")
                g("v_writelane_b32 v8, s5, 15")
                g("s_waitcnt lgkmcnt(0)")
                g("v_writelane_b32 v8, s6, 13")
                g("s_mov_b64 exec, 0xffff")
                g(f"buffer_atomic_umax v8, v9, {SDBG}, 0 offen sc1")
                g.label(f"HD_{role}")
        if OPT["cal"] and role == "Q":
            g("s_cmp_lg_u32 s2, 0")
            g("s_cbranch_scc1 CAL_e")
            g.label("CAL_l")
            g(("s_memrealtime" if OPT["cal"] == 1 else "s_memtime") + " s[98:99]")
            g("s_waitcnt lgkmcnt(0)")
            g("s_sub_u32 s3, s98, s6")
            g(f"s_cmp_lt_u32 s3, {OPT['calx']}")
            g("s_cbranch_scc1 CAL_l")
            g.label("CAL_e")
        if OPT["hx"]:
            g("s_memrealtime s[6:7]")
            g("s_and_b32 s3, s2, 7")
            g("s_lshl_b32 s3, s3, 2")
            g("s_add_u32 s3, s3, 4")
            g("v_mov_b32 v8, s98")
            g("s_mov_b64 exec, 1")
            g(f"buffer_atomic_umax v8, off, {SDBG}, s3 sc1")
            g("s_waitcnt lgkmcnt(0)")
            g("s_bfe_u32 s3, s2, 0x20001")
            g("s_lshl_b32 s3, s3, 2")
            g("v_mov_b32 v9, s6")
            g(f"buffer_atomic_umax v9, off, {SDBG}, s3 offset:36 sc1")
            g("s_getreg_b32 s4, hwreg(HW_REG_XCC_ID)")
            g("s_and_b32 s4, s4, 15")
            g("s_and_b32 s3, s2, 7")
            g("s_lshl_b32 s3, s3, 2")
            g("s_lshl_b32 s4, s4, s3")
            g("v_mov_b32 v10, s4")
            g(f"buffer_atomic_or v10, off, {SDBG}, 0 offset:52 sc1")
        if role == "W" and CLS[0] == 0: g.label("END")
        g("s_endpgm")


def unit(regs, ar, off):
    return [(r, ar, off + s * 2048) for s, r in enumerate(regs)]


def WW():
    DS = OPT["ds"]
    b0, b1, b2, b3 = ("v38", "v39", "v40", "v41") if DS else ("v60", "v61", "v62", "v63")
    def bias0():
        g(f"""
        v_mov_b32 v24, 0x3f80
        v_mov_b32 v25, 0
        v_mov_b32 v26, 1.0
        v_mov_b32 v27, 0
        v_mov_b32 v28, 0
        v_mov_b32 v29, 0
        v_mov_b32 v30, 0
        v_mov_b32 v31, 0
        v_mov_b32 {vBIAS2}, 0
        v_mov_b32 {b2}, 0
        v_mov_b32 {b3}, 0
        s_lshl_b32 {sT}, {sCLS}, 6
        v_lshl_add_u32 {b0}, {vLANE}, 1, {sT}
        s_lshl_b32 {sT}, {sCLS}, 5
        v_lshl_add_u32 {b1}, {vLANE}, 1, {sT}
        """)
    def biasld():
        g("s_mov_b32 exec_hi, 0")
        g(f"buffer_load_ushort v28, {b0}, {SB}, {sP[0]} offen", tag="bias")
        g(f"buffer_load_ushort {b2}, {b0}, {SB}, {sP[1]} offen", tag="bias")
        g(f"buffer_load_ushort {vBIAS2}, {b0}, {SB}, {sP[2]} offen", tag="bias")
        g("s_mov_b32 exec_lo, 0xffff")
        g(f"buffer_load_ushort {b3}, {b1}, {SB}, {sP[3]} offen", tag="bias")
        g("s_mov_b64 exec, -1")
    def u0():
        g(f"""
        v_and_b32 v37, 31, v32
        v_lshrrev_b32 v38, 2, v33
        v_lshl_add_u32 v38, v38, 5, v37
        v_mul_lo_u32 v38, v38, {sSTR}
        v_and_b32 v37, 3, v33
        v_lshl_add_u32 v38, v37, 4, v38
        v_add_u32 {vUD}, {sP[3]}, v38
        """)
        du(0, "ck2")()
    if DS:
        if OPT["ue"]: u0()
    else:
        bias0()
        du(0, "ck2")()
        biasld()
    def uitem(c, j, buf):
        return Item(vU, c * 4096 + j * 2048, 512, buf, ACC3, XR + 16 * c + 4 * j, zero=(c == 0 and j == 0), D=OPT["D"])
    if OPT["il"]: return WWi(uitem)
    wb = WBs(); wc = WCs()
    PM = PB + 4 * OPT["wmb"]
    assert OPT["wbe"] <= 2 and OPT["wmb"] <= 4 + OPT["wbe"]
    wb[4].emin = 4; wb[5].emin = 6
    if OPT["wbo"]: WT = wb[1:4 + OPT["wbe"]] + wc[:OPT["wct"]]
    else: WT = wb[1:3] + wc[:1] + wb[3:4 + OPT["wbe"]] + wc[1:OPT["wct"]]
    it = phase1("T", [64, 68, 72, 76, 100, 108], "Wn", uitem,
                {1: [du(1, "ck4")], 3: [du(2, "ck6")], 4: [du(3, "ck7")]},
                WT, wb[4 + OPT["wbe"]:] + ([] if OPT["wcl"] else wc[OPT["wct"]:]), [u0] if DS and not OPT["ue"] else [])
    if OPT["wcl"]:
        place(it, OPT["wcl"], OPT["wch"], wc[OPT["wct"]:], it[PB])
        it[PM].bar["vm"] = [f"wb{c}" for c in range(OPT["wmb"], 8)]
        it[PC].bar = dict(vm=[f"wc{c}" for c in range(8)], lead=OPT["wcb"])
    def bias1():
        g.wait(vm="bias")
        g(f"v_lshl_or_b32 v28, {b2}, 16, v28")
        g(f"v_lshl_or_b32 {vBIAS2}, {b3}, 16, {vBIAS2}")
    o = 12 if DS else 0
    if DS:
        it[6].post.append(bias0); it[7].post.append(biasld)
    it[26 if DS else 7].post.append(bias1)
    it[19 + o].post.append(lambda: mfma(ACC0, "v[28:31]", "v[24:27]", vr(ACC0, 16)))
    it[21 + o].post.append(lambda: mfma(ACC1, "v[28:31]", "v[26:29]", 0))
    it[PB].zero = False
    it[23 + o].post.append(f"v_mov_b32 v28, {vBIAS2}")
    it[27 + o].post.append(lambda: mfma(ACC3, "v[28:31]", "v[26:29]", vr(ACC3, 16)))
    it[PC].post.append(lambda: mfma(ACC2, "v[28:31]", "v[24:27]", vr(ACC2, 16)))
    it[30 + o].post.append(f"s_add_u32 {sST}, {sAp}, 0x1000")
    Ga = Grp("Wga", [(128, sAo, 0), (132, sAo, 1024)])
    Gb = Grp("Wgq", [(140, sAo, 2048), (144, sAo, 3072), (136, sAo, 6144)])
    Gc = Grp("Wgc", [(148, sAo, 4096), (152, sAo, 5120)])
    Go = Grp("Wgo", [(156, sAp, 7168), (160, sAp, 8192), (172, sAp, 9216), (164, sAo, 7168), (168, sAo, 8192)])
    def xw():
        g(f"s_and_b32 {sT}, {sRm}, 0x1fff")
        g(f"s_add_u32 {sT}, {sT}, {LC}")
        g(f"v_add_u32 {vUD}, {sT}, {vL16}")
        g(f"v_xor_b32 {vU}, 0x1000, {vUD}")
        for i in range(2): g(f"ds_write_b128 {vU}, {vr(ACC3+8+4*i)} offset:{i*8192}", tag="xw")
    def xrd():
        for i in range(2): g(f"ds_read_b128 {vr(ACC3+8+4*i)}, {vUD} offset:{i*8192}", tag="xu")
    it[OPT['xwp']].post.append(xw)
    it[PM].bar.update(lg=["xw"], after=[xrd])
    G1 = D2A("G1")
    G1[0] = (lambda f: lambda: (g.wait(lg="xu"), f()))(G1[0])
    place(it, OPT["g0"], OPT["g1"], D2A("G0") + G1, it[PM])
    assert OPT["ea1"] <= PC - 2 and OPT["eu0"] >= PM - OPT["BL2"] and OPT["eu0"] >= OPT["ea1"] and OPT["eb0"] >= OPT["eu1"]
    spread(it, OPT["ea0"], OPT["ea1"], EH(ACC0, sAp, 0) + EH(ACC0 + 8, sAp, 1024, ACC0) + [publish(0)])
    eu = [lambda: g.wait(lg="xu")] + [f"v_add_f32 v{ACC3+i}, v{ACC3+i}, v{ACC3+8+i}" for i in range(8)] + \
        EH(ACC3, sST, 2048, ACC0 + 8) + ([publish(1)] if OPT["q2"] else []) + [st("ust")]
    it[OPT["eu0"]].post.append(need(it[PM]))
    spread(it, OPT["eu0"], OPT["eu1"], eu)
    spread(it, OPT["eb0"], OPT["eb1"], EH(ACC1, sAp, 2048, ACC3) + EH(ACC1 + 8, sAp, 3072, ACC1) + [publish(2), st("bst")])
    o0, o1 = MAP["WW"][1:3]
    steps = unit((ACC0, ACC0 + 8), aB, o0) + unit((ACC1, ACC1 + 8), aB, o1) + \
        unit((128, 132), aB, o0 + 16384) + unit((140, 144), aB, o1 + 16384) + \
        unit((ACC3,), aC, 0) + unit((136,), aC, 8192) + \
        unit((ACC2, ACC2 + 8), aA, 0)
    sc_ = unit((148, 152), aA, 16384); so_ = unit((156, 160), aA, 32768) + unit((164, 168), aA, 32768 + 16384)
    steps += so_ + sc_ if OPT["wo2"] else sc_ + so_
    fc, fo = (16, 12) if OPT["wo2"] else (12, 14)
    p2, order, nx, first = p2items(steps, [116, 124, 72, 76, 108, 64, 68], OPT["wt3"], OPT["wtm"])
    B = len(it); it += p2
    assert B == P2
    it[B - 2].post += untag(ACC1 + 8)
    assert OPT["eb1"] <= B - OPT["D2"] - 1
    if OPT["wb3"]:
        M, N = OPT["wM"], B + OPT["wN"]
        assert M >= PC + 16 and OPT["g1"] <= M - 6 and B + 3 <= N <= B + first[8]
        it[M].bar = dict(vm=["wG0", "wG1"], lead=3, drain=True, after=[st("Mbar")])
        place(it, M - 3, B - 2, D2A("U") + D2A("P2"), it[M])
        it[B].rpre += p2addr()
        it[N].bar = dict(vm=["wU", "wP2"], lead=3, after=[st("Nbar")])
        place(it, N - 3, N + 5, D2A("O"), it[N])
        it[B + first[14]].bar = dict(vm=["wO"], lead=OPT["D2"])
    else:
        it[B].bar = dict(vm=["wG0", "wG1"], lead=OPT["D2"], drain=True, after=p2addr() + [st("P2bar")])
        place(it, B + OPT["wpd0"], B + OPT["wpd"], D2A("U") + D2A("P2") + D2A("O"), it[B])
    spread(it, B + OPT["ec0"], B + OPT["ec1"], EH(ACC2, sST, 0) + EH(ACC2 + 8, sST, 1024, ACC2) + [publish(3), st("cst")])
    assert OPT["ec1"] <= first[10] - 3
    it[B + first[10] - 2].post += untag(ACC2 + 8)
    assert OPT["wga"] >= PC + 3
    fetch(it, OPT["wga"], Ga.loads(), 0x1000, B - 6, pl=OPT["lpl"], pre=setFA(), post=[st("gafl")])
    spread(it, B - 7, B - 5, Ga.check() + [st("gaok")])
    fetch(it, B + OPT["wgb"], Gb.loads(), 0x4000, B + first[6] - 4, pl=OPT["lpl"], pre=setFA() if OPT["ssp"] == 3 else [], post=[st("gbfl")])
    spread(it, B + first[6] - 2, B + first[6], Gb.check() + [st("gbok")])
    it[B + first[10] + 1].post += [p2misc] + (identm(100, 0, f"v{TMP}") if OPT["idm"] else [ident(100)])
    if OPT["wb3"]: pass
    elif OPT["wob"]:
        it[B + first[8]].bar = dict(vm=["wU", "wP2"], lead=OPT["D2"])
        it[B + first[14]].bar = dict(vm=["wO"], lead=OPT["D2"])
    else:
        it[B + first[8]].bar = dict(vm=["wU", "wP2", "wO"], lead=OPT["D2"])
    f1 = lambda: fetch(it, B + OPT["wgc"], Gc.loads(), 0x8000, B + first[fc] - 4, pl=OPT["lpl"], post=[st("gcfl")])
    f2 = lambda: fetch(it, B + OPT["wgo"], Go.loads(), 0x0011, B + first[fo] - 4, pl=OPT["lpl"], post=[st("gofl")])
    for f in ((f1, f2) if OPT["wgc"] < OPT["wgo"] else (f2, f1)): f()
    spread(it, B + first[fc] - 2, B + first[fc], Gc.check() + [st("gcok")])
    spread(it, B + first[fo] - 3, B + first[fo], Go.check() + [st("gook")])
    assert OPT["wgc"] < first[fc] - 3 and OPT["wgo"] < first[fo] - 3 and OPT["wgb"] < first[6] - 3 and OPT["wga"] + 1 < B - 7
    tail = p2tail("W", it, B, nx, [176, 184, 32, 40], 100, "v174", order)
    run(it, tail)


def WWi(uitem):
    wc = WCs()
    k6 = OPT["cb6"] or OPT["ea1"] + OPT["DP"] + 1
    cb = []; n4 = 0
    for s in range(32):
        ring = [64, 68, 72, 76] if PC + s < k6 else [64, 68, 72, 76, 100, 108]
        rec = cb[-(len(ring) - 1):]
        cand = [r for r in ring if r not in rec]
        cb.append(min(cand, key=lambda r: max([i for i, x in enumerate(cb) if x == r], default=-1)))
    it, fs = phase1i("T", cb, "Wn", uitem, {1: [du(1, "ck4")], 3: [du(2, "ck6")], 4: [du(3, "ck7")]},
                     {5: wc[0:2], 6: wc[2:4], 7: wc[4:6]})
    def bias1():
        g.wait(vm="bias")
        g("v_lshl_or_b32 v28, v62, 16, v28")
        g(f"v_lshl_or_b32 {vBIAS2}, v63, 16, {vBIAS2}")
    it[17].post.append(bias1)
    it[28].post.append(lambda: mfma(ACC0, "v[28:31]", "v[24:27]", vr(ACC0, 16)))
    it[31].post.append(lambda: mfma(ACC1, "v[28:31]", "v[26:29]", vr(ACC1, 16)))
    it[38].post.append(f"v_mov_b32 v28, {vBIAS2}")
    it[44].post.append(lambda: mfma(ACC3, "v[28:31]", "v[26:29]", vr(ACC3, 16)))
    it[PC].post.append(lambda: mfma(ACC2, "v[28:31]", "v[24:27]", vr(ACC2, 16)))
    it[30].post.append(f"s_add_u32 {sST}, {sAp}, 0x1000")
    um = OPT["um"]
    Ga = Grp("Wga", [(128, sAo, 0), (132, sAo, 1024)])
    Gb = Grp("Wgq", [(140, sAo, 2048), (144, sAo, 3072)])
    Gc = Grp("Wgc", [(148, sAo, 4096), (152, sAo, 5120)] + ([(136, sAo, 6144)] if um else []))
    Gu = Grp("Wgp", [(136, sAo, 6144)])
    Go = Grp("Wgo", [(156, sAp, 7168), (160, sAp, 8192), (172, sAp, 9216), (164, sAo, 7168), (168, sAo, 8192)])
    def xw():
        g(f"s_lshl_b32 {sT}, {sW}, 11")
        g(f"s_add_u32 {sT}, {sT}, {XC()}")
        g(f"v_add_u32 {vU}, {sT}, {vL16}")
        g(f"v_xor_b32 {vUD}, 0x2000, {vU}")
        for i in range(2): g(f"ds_write_b128 {vU}, {vr(ACC3+8+4*i)} offset:{i*1024}", tag="xw")
    def xrd():
        for i in range(2): g(f"ds_read_b128 {vr(ACC3+8+4*i)}, {vUD} offset:{i*1024}", tag="xu")
    assert OPT["xwp"] >= PC
    it[OPT['xwp']].post.append(xw)
    M = PC + 16
    a0 = PC - OPT["BL2"]
    place(it, a0, OPT["gw1"], wc[6:] + D2A("G0") + D2A("G1") + D2A("U"), it[PC])
    assert OPT["ea0"] >= fs[7] + 3 and OPT["eb0"] >= OPT["ea1"] and OPT["eb0"] >= fs[7] + 7
    spread(it, OPT["ea0"], OPT["ea1"], EH(ACC0, sAp, 0) + EH(ACC0 + 8, sAp, 1024, ACC0) + [publish(0), st("ast")])
    spread(it, OPT["eb0"], OPT["eb1"], EH(ACC1, sAp, 2048, ACC0 + 8) + EH(ACC1 + 8, sAp, 3072, ACC1) + [publish(2), st("bst")])
    o0, o1 = MAP["WW"][1:3]
    U = dict(a=unit((ACC0, ACC0 + 8), aB, o0), b=unit((ACC1, ACC1 + 8), aB, o1), A=unit((128, 132), aB, o0 + 16384),
             B=unit((140, 144), aB, o1 + 16384), u=unit((ACC3,), aC, 0), U=unit((136,), aC, 8192), c=unit((ACC2, ACC2 + 8), aA, 0),
             C=unit((148, 152), aA, 16384), O=unit((156, 160), aA, 32768) + unit((164, 168), aA, 32768 + 16384))
    so = ["abABcuCOU", "abABcuCUO", "abABcuOCU", "abAcBuCOU"][OPT["wo2"]]
    steps = []; fp = {}
    for k in so: fp[k] = len(steps); steps += U[k]
    p2, order, nx, first = p2items(steps, [116, 124, 72, 76, 108, 64, 68], OPT["wt3"], OPT["wtm"])
    F = {k: P2 + first[v] for k, v in fp.items()}
    B = len(it); it += p2
    assert B == P2
    it[B - 2].post += untag(ACC1 + 8)
    assert OPT["eb1"] <= B - OPT["D2"] - 1
    xb = it[M] if OPT["xwp"] < M - OPT["BL3"] else it[B]
    assert OPT["xwp"] < B - OPT["D2"]
    if OPT["p2e"]:
        place(it, max(M - OPT["BL3"], OPT["gw1"]), B - OPT["D2"] - OPT["p2e"], D2A("P2"), it[M])
        it[B].bar = dict(vm=["wG0", "wG1", "wU", "wP2"], lead=OPT["D2"], drain=True, after=p2addr() + [st("P2bar")])
        place(it, B + OPT["wpd0"], B + OPT["wpd"], D2A("O"), it[B])
        it[F["O"]].bar = dict(vm=["wO"], lead=OPT["D2"])
    else:
        it[B].bar = dict(vm=["wG0", "wG1", "wU"], lead=OPT["D2"], drain=True, after=p2addr() + [st("P2bar")])
        place(it, B + OPT["wpd0"], B + OPT["wpd"], D2A("P2") + D2A("O"), it[B])
        it[F["c"]].bar = dict(vm=["wP2", "wO"], lead=OPT["D2"])
    xb.bar["lg"] = ["xw"]; xb.bar["after"] = [xrd] + xb.bar["after"]
    spread(it, B + OPT["ec0"], B + OPT["ec1"], EH(ACC2, sST, 0) + EH(ACC2 + 8, sST, 1024, ACC2) + ([] if um else [publish(3)]) + [st("cst")])
    assert B + OPT["ec1"] <= F["c"] - 1 and OPT["eu0"] >= OPT["ec1"] and B + OPT["eu0"] <= F["c"] + 1 and B + OPT["eu1"] <= F["u"] - 2
    eu = [lambda: g.wait(lg="xu")] + [f"v_add_f32 v{ACC3+i}, v{ACC3+i}, v{ACC3+8+i}" for i in range(8)]
    eu = untag(ACC2 + 8) + eu + EH(ACC3, sST, 2048) + [publish(3 if um else 1), st("ust")]
    spread(it, B + OPT["eu0"], B + OPT["eu1"], eu)
    it[F["u"] - 2].post += untag(ACC3)
    assert OPT["wga"] >= PC + 3
    ca = F["A"] - 2 if OPT["gac"] else B - 7
    fl = [(OPT["wga"], Ga, 0x1000, ca, 2, "ga"), (B + OPT["wgb"], Gb, 0x4000, F["B"] - 2, 2, "gb"),
          (B + OPT["wgc"], Gc, 0x8000, F["C"] - 2, 2, "gc"), (B + OPT["wgo"], Go, 0x0011, F["O"] - 3, 3, "go")]
    if not um: fl.append((B + OPT["wgu"], Gu, 0x2000, F["U"] - 1, 1, "gu"))
    else: assert F["U"] > F["C"]
    for n_, (pos, G, mask, cp, w, nm) in enumerate(sorted(fl, key=lambda x: x[0])):
        assert pos < cp - 1, (nm, pos - B, cp - B)
        fetch(it, pos, G.loads(), mask, cp - 2, pl=OPT["lpl"], pre=setFA() if n_ == 0 else [], post=[st(nm + "fl")])
    for pos, G, mask, cp, w, nm in fl: spread(it, cp, cp + w, G.check() + [st(nm + "ok")])
    it[F["u"] + 1].post += [p2misc, ident(100)]
    tail = p2tail("W", it, B, nx, [176, 184, 32, 40], 100, "v174", order)
    run(it, tail)


def QQ():
    def g0():
        if OPT["ds"]: g(f"v_lshlrev_b32 {vL16}, 4, {vLANE}")
        emit([f"s_lshl_b32 {sT}, {sROT}, 7", f"v_xor_b32 {vUD}, {sT}, {vL16}", f"s_add_u32 m0, {sW1K}, {LB+7*8192:#x}",
              f"s_lshl_b32 {sT}, {sCLS}, 6", f"s_add_u32 {sT}, {sT}, m0"])
        if OPT["g16"]:
            emit([f"v_lshrrev_b32 {vU}, 2, {vLANE}", f"v_xor_b32 {vU}, {sCLS}, {vU}", f"v_and_b32 {vU}, 1, {vU}",
                  f"v_lshl_or_b32 {vUD}, {vU}, 10, {vUD}"])
        g(f"buffer_load_dwordx4 {vUD}, {SB}, 0 offen lds", tag="gate")
        emit([f"v_lshl_add_u32 {vU}, v35, 4, {sT}"] if OPT["ds"] else [f"v_lshrrev_b32 {vU}, 5, {vLANE}", f"v_lshl_add_u32 {vU}, {vU}, 4, {sT}"])
        if OPT["g16"]:
            emit([f"s_mov_b32 s4, 0x10100101", f"s_mov_b32 s5, s4", f"v_xor_b32 {vUD}, 64, {vU}",
                  f"v_cndmask_b32_e64 {vU}, {vUD}, {vU}, s[4:5]"])
    late0 = OPT["ds"] and not OPT["ue"]
    if not late0: g0()
    def gitem(c, j, buf):
        x = Item(vU, c * 128 + j * 32, None, buf, ACC3, XR + 16 * c + 4 * j, zero=(c == 0 and j == 0), D=OPT["D"])
        if c == 0 and j == 0: x.rvm = ["gate"]
        x.small = bool(OPT["g16"])
        return x
    wb = WBs(); wc = WCs()
    IL = OPT["il"]
    vLG, vLG2 = "v19", "v21"
    if IL:
        it, fs = phase1i("N", [64, 68, 72, 76] * 8, "Qn", gitem, {}, {5: wc[0:2], 6: wc[2:4], 7: wc[4:6]})
        it[PC].post.append(f"v_mov_b32 {vLG}, v{ACC3}")
        OPT["qlb"] = PC + 16
    elif OPT["iq"]:
        it, kend, gend, X1, X2, nq = phase1q("N", [64, 68, 72, 76], "Qn", gitem)
        it[gend + 1].post.append(f"v_mov_b32 {vLG}, v{ACC3}")
    else:
        it = phase1("N", [64, 68, 72, 76], "Qn", gitem, {}, wb[1:3] + wc[:1] + wb[3:OPT["qbt"]] + wc[1:OPT["qct"]], (wb[OPT["qbt"]:] + wc[OPT["qct"]:]), [g0] if late0 else [])
        it[PB + 1].post.append(f"v_mov_b32 {vLG}, v{ACC3}")
    VO = 32768 if OPT["vlb"] else 16384
    KC = OPT["kc"]
    ONES, ID16, vKA = 60, 56, vE0
    if KC:
        assert OPT["g16"] and not IL and not OPT["iq"] and not OPT["kq"] and not OPT["q2"]
        it[2].post += [f"s_lshl_b32 {sT}, {sW}, 11", f"s_add_u32 {sT}, {sT}, {LC}", f"v_add_u32 v24, {sT}, {vL16}",
                       f"s_lshr_b32 {sT}, {sRW}, 1", f"s_lshl_b32 {sT}, {sT}, 13", f"s_and_b32 {sT2}, {sRW}, 1", f"s_lshl_b32 {sT2}, {sT2}, 8",
                       f"s_add_u32 {sT}, {sT}, {sT2}", f"s_add_u32 {sT}, {sT}, {LC}",
                       f"v_and_b32 v25, 0x300, {vL16}", f"v_add3_u32 v25, v25, {vL16}, {sT}"]
        it[4].post += [f"v_mov_b32 v{ONES+i}, 0x3f803f80" for i in range(4)]
        place(it, OPT["idq"], OPT["idq"] + 9, identm(ID16, 1, "v52") + identm(28, 0, "v52", False))
        it[OPT["tw"] + 2].post += [f"v_lshrrev_b32 {vKA}, 5, {vLANE}", f"v_mul_u32_u24 {vKA}, {4096-512}, {vKA}", f"v_add_u32 {vKA}, {vKA}, {vL16}"]
    else:
        it[2].post += [f"s_lshl_b32 {sT}, {sW}, 11", f"s_add_u32 {sT}, {sT}, {LC}", f"v_add_u32 v24, {sT}, {vL16}",
                       f"s_and_b32 {sT}, {sRW}, 1", f"s_lshl_b32 {sT}, {sT}, 13", f"s_add_u32 {sT}, {sT}, {LC}",
                       f"v_add_u32 v25, {sT}, {vL16}"]
        it[4].post += [f"v_mov_b32 v{28+i}, 0x3f803f80" for i in range(4)] + \
                      [f"s_cmp_lt_u32 {sRW}, 2", "s_mov_b32 s5, 0xffff", "s_cselect_b32 s4, s5, 0xffff0000", "s_mov_b32 s5, s4",
                       f"v_add_u32 v26, 1024, {vL16}", f"v_cndmask_b32_e64 v26, v26, {vL16}, {sMK}"]
    def fw(reg, off):
        return lambda: g(f"ds_write_b128 v24, {vr(reg)} offset:{off}", tag="fw")
    vp = []
    for q in range(2):
        vp += [f"v_cvt_pk_bf16_f32 v{ACC1+8*q+i}, v{ACC1+8*q+2*i}, v{ACC1+8*q+2*i+1}" for i in range(4)] + [fw(ACC1 + 8 * q, VO + q * 1024)]
    if IL:
        assert OPT["pk0"] >= fs[7] + 3 and OPT["vp0"] >= fs[7] + 7 and OPT["jb"] >= max(OPT["pk1"] - 1, OPT["vp0"], PC)
        if not OPT["vlb"]: it[OPT["vp0"]].post.append(need(it[PC]))
        it[OPT["vp0"]].post += vp
        spread(it, OPT["pk0"], OPT["pk1"], PH(ACC0) + [fw(ACC0, 0)] + PH(ACC0 + 8) + [fw(ACC0 + 8, 1024)])
    elif OPT["iq"]:
        spread(it, kend, OPT["pk1"], PH(ACC0) + [fw(ACC0, 0)] + PH(ACC0 + 8) + [fw(ACC0 + 8, 1024)])
        it[PC].post += vp
    else:
        spread(it, OPT["ea0"], OPT["pk1"], PH(ACC0) + [fw(ACC0, 0)] + PH(ACC0 + 8) + [fw(ACC0 + 8, 1024)])
        it[PC].post += vp
    def kflag(part=3):
        if part & 1: kfa()
        if part & 2: kfs()
    def kfa():
        g(f"s_and_b32 {sT2}, {sRW}, {2 if KC else 1}")
        g(f"s_lshl_b32 {sT2}, {sT2}, {7 if KC else 8}")
        g(f"s_and_b32 {sT}, {sRB}, 8")
        g(f"s_lshl_b32 {sT}, {sT}, 4")
        g(f"s_add_u32 {sT2}, {sT2}, {sT}")
        g(f"s_lshl_b32 {sT}, {sR8}, 3")
        g(f"s_add_u32 {sT2}, {sT2}, {sT}")
        g(f"s_and_b32 {sT}, {sRW}, {1 if KC else 2}")
        g(f"s_lshl_b32 {sT}, {sT}, {2 if KC else 1}")
        g(f"s_add_u32 {sT2}, {sT2}, {sT}")
        g(f"s_add_u32 {sT2}, {sT2}, {sFK}")
    def kfs():
        g("s_mov_b64 exec, 1")
        g(f"buffer_store_dword {vNON}, off, {SWS}, {sT2} sc1")
        if not OPT["map"]: g(f"buffer_store_dword {vNON}, off, {SWS}, {sT2} offset:512")
        g("s_mov_b64 exec, -1")
    def jst(n):
        if OPT["js"]: g("s_waitcnt lgkmcnt(0)"); stamp(n)
    def job():
        g.wait(lg="fw", vm=[f"wc{c}" for c in range(8)] if OPT["iq"] else None)
        jst("j0")
        g("s_barrier")
        jst("j1")
        g(f"s_cmp_lg_u32 {sCLS}, 0")
        g("s_cbranch_scc1 Q_nojob")
        if KC:
          with g.optional():
            g("s_setprio 3")
            for k in range(4):
                g(f"ds_read_b128 {vr(96+8*k)}, v25 offset:{k*2048}", tag=f"a{k}")
                g(f"ds_read_b128 {vr(100+8*k)}, v25 offset:{VO+k*2048}", tag=f"b{k}")
            g(f"s_lshl_b32 {sT3}, {sRB}, 12")
            g(f"s_add_u32 {sT3}, {sT3}, {sW1K}")
            g(f"s_add_u32 {sT3}, {sT3}, {sKV}")
            if OPT["kfe"]: kflag(1)
            for k in range(4):
                g.wait(lg=f"a{k}")
                mfma16(ACC3 + 4, vr(96 + 8 * k), vr(ONES), vr(ACC3 + 4) if k else 0)
                g.wait(lg=f"b{k}")
                mfma16(ACC3, vr(96 + 8 * k), vr(100 + 8 * k), vr(ACC3) if k else 0)
            for i in (2, 3, 0, 1): g(f"v_cvt_pk_bf16_f32 v{TMP+i}, v{ACC3+2*i}, v{ACC3+2*i+1}")
            g(f"v_and_or_b32 v{TMP+2}, v{TMP+2}, {sM}, {TG1}")
            g(f"v_and_or_b32 v{TMP}, v{TMP}, {sM}, {TG0}")
            g(f"buffer_store_dwordx4 {vr(TMP)}, {vL16}, {SWS}, {sT3} offen sc1")
            kflag(2 if OPT["kfe"] else 3)
            g("s_setprio 0")
        else:
          with g.optional():
            g("s_setprio 3")
            g(f"s_cmp_lt_u32 {sRW}, 2")
            g("s_cbranch_scc1 Q_jobc")
            with g.optional():
                for k in range(8): g(f"ds_read_b128 {vr(96+4*k)}, v25 offset:{k*1024}", tag=f"a{k}")
                if OPT["efk"]: kflag()
                for k in range(8):
                    g.wait(lg=f"a{k}")
                    mfma(ACC3, vr(96 + 4 * k), "v[28:31]", vr(ACC3, 16) if k else 0)
                g("s_branch Q_jobf")
            g.label("Q_jobc")
            for k in range(8):
                g(f"ds_read_b128 {vr(96+4*k)}, v25 offset:{k*1024}", tag=f"a{k}")
                if k < 4: g(f"ds_read_b128 {vr(TMP+4*k)}, v25 offset:{VO+k*1024}", tag=f"a{k}")
            if OPT["efk"]: kflag()
            for k in range(8):
                g.wait(lg=[f"a{k}", f"b{k}"])
                mfma(ACC3, vr(96 + 4 * k), vr(TMP + 4 * k) if k < 4 else vr(96 + 4 * (k - 4)), vr(ACC3, 16) if k else 0)
                if k < 4: g(f"ds_read_b128 {vr(96+4*k)}, v25 offset:{VO+(k+4)*1024}", tag=f"b{k+4}")
            g.label("Q_jobf")
            g(f"s_lshl_b32 {sT}, {sRB}, 12")
            g(f"s_and_b32 {sT2}, {sRW}, 1")
            g(f"s_lshl_b32 {sT2}, {sT2}, 11")
            g(f"s_add_u32 {sT}, {sT}, {sT2}")
            g(f"s_add_u32 {sT}, {sT}, {sKV}")
            for i in range(4): g(f"v_cvt_pk_bf16_f32 v{TMP+i}, v{ACC3+8+2*i}, v{ACC3+8+2*i+1}")
            g(f"s_mov_b64 exec, {sMK}")
            for i in range(4): g(f"v_cvt_pk_bf16_f32 v{TMP+i}, v{ACC3+2*i}, v{ACC3+2*i+1}")
            g("s_mov_b64 exec, -1")
            emit(tstore(TMP, sT, 0)[:2])
            g(f"buffer_store_dwordx4 {vr(TMP)}, v26, {SWS}, {sT} offen sc1")
            if not OPT["efk"]: kflag()
            g("s_setprio 0")
        g.label("Q_nojob")
        g(f"s_lshr_b32 {sT}, {sRW}, 1")
        g(f"s_lshl_b32 {sT}, {sT}, 15")
        g(f"s_add_u32 {sKV}, {sKV}, {sT}")
        g(f"s_and_b32 {sT}, {sRW}, 1")
        g(f"s_lshl_b32 {sT2}, {sCLS}, 1")
        g(f"s_add_u32 {sT}, {sT}, {sT2}")
        g(f"s_lshl_b32 {sT}, {sT}, 10")
        g(f"s_add_u32 {sKV}, {sKV}, {sT}")
        g(f"s_add_u32 {sST}, {sAp}, 7168")
    it[OPT["jb"]].post += [job, st("job")]
    if IL:
        M = PC + 16; M0 = M - OPT["BL3"]
        assert M0 > OPT["jb"]
        place(it, PC - OPT["BL2"], PC - OPT["BL2"] + 2, wc[6:], it[PC])
        if OPT["vlb"]:
            place(it, OPT["qg0"], OPT["qgw1"], D2A("G0") + D2A("U"), it[PC])
            late = D2A("G1")
        else:
            place(it, OPT["qg0"], OPT["qgw1"], D2A("G0") + D2A("G1"), it[PC])
            late = D2A("U")
        if OPT["p2e"]: late += D2A("O" if OPT["qoc"] else "P2")
        place(it, max(M0, OPT["qg1"]), max(M0, OPT["qg1"]) + OPT["qgw"], late, it[M])
    else:
        if OPT["iq"]: assert OPT["qg0"] > OPT["jb"] and OPT["jb"] + 4 < PC + 4 * nq
        place(it, OPT["qg0"], OPT["qg0"] + OPT["qgw"], D2A("G0"), None if OPT["iq"] else it[PB + 4 * OPT["qmb"]])
        qg1 = OPT["qg1"] or OPT["jb"] + 1
        assert qg1 > OPT["jb"]
        place(it, qg1, qg1 + OPT["qgw"], D2A("G1"))
    if IL: pass
    elif not OPT["kq"]:
        it[OPT["qlb"]].bar = dict(lead=2)
        assert OPT["qlb"] - 2 > OPT["jb"]
        place(it, OPT["qlb"] - 2, OPT["qlb"], D2A("U"), it[OPT["qlb"]])
    KR = [128 + 4 * r for r in range(8)]
    Gk = Grp("Qkv", [(KR[r], sKV, r * 4096) for r in range(8)],
             each=(lambda r, reg: mfma(ACC3, vr(28), vr(reg), vr(ACC3, 16) if r else 0)) if OPT["kpi"] else None)
    if KC: Gk = Grp("Qkv", [(KR[r], sKV, (r >> 1) * 8192 + (r & 1) * 512) for r in range(8)], va=vKA, t2=2,
                    each=(lambda r, reg: mfma16(ACC3 + 4 * (r & 1), vr(ID16), vr(reg), vr(ACC3 + 4 * (r & 1)) if r > 1 else 0)) if OPT["kpi"] else None)
    Gp = Grp("Qgp", [(96, sAp, 0), (100, sAp, 1024), (104, sAo, 0), (108, sAo, 1024)])
    Gq = Grp("Qgq", [(112, sAp, 6144), (116, sAo, 6144), (160, sAp, 2048), (164, sAp, 3072), (168, sAo, 2048), (172, sAo, 3072)])
    Gc = Grp("Qgc", [(144, sAp, 4096), (148, sAp, 5120), (152, sAo, 4096), (156, sAo, 5120)])
    Go = Grp("Qgo", [(176, sAo, 7168), (180, sAo, 8192)])
    IDENT = 28
    OO, SCQ = 120, 188
    def ksum():
        stamp("kvok")
        if OPT["kpr"]: g(f"s_setprio {OPT['kpr']}")
        if OPT["efo"] == 2: publish(0)()
        if KC and not OPT["kpi"]:
            for r in range(8): mfma16(ACC3 + 4 * (r & 1), vr(ID16), vr(KR[r]), vr(ACC3 + 4 * (r & 1)) if r > 1 else 0)
        elif not OPT["kpi"]:
            for r in range(8): mfma(ACC3, vr(IDENT), vr(KR[r]), vr(ACC3, 16) if r else 0)
        for i in range(4): g(f"v_cvt_pk_bf16_f32 v{TMP+i}, v{ACC3+2*i}, v{ACC3+2*i+1}")
        g(f"ds_write_b128 v24, {vr(TMP)}", tag="kw")
        if OPT["kpr"]: g("s_setprio 0")
    def kx():
        g(f"ds_read_b32 {vLG2}, v27 offset:8192", tag="kl")
        for r in range(4): g(f"ds_read_b128 {vr(KR[r])}, v25 offset:{r*1024}", tag=f"kr{r}")
        if OPT["efo"] == 1: publish(0)()
    def ko():
        if OPT["kpr"]: g(f"s_setprio {OPT['kpr']}")
        g.wait(lg="kl")
        g(f"v_add_f32 {vLG}, {vLG}, {vLG2}")
        g(f"v_mul_f32 {vLG}, {sLOG2E}, {vLG}")
        g(f"v_min_f32 {vLG}, 0x42640000, {vLG}")
        g(f"v_exp_f32 {vLG}, {vLG}")
        for r in range(4):
            g.wait(lg=f"kr{r}")
            acc = (TMP, ACC3)[r & 1]
            mfma(acc, vr(KR[r]), vr(ACC2 + 8 * (r & 1)), vr(acc, 16) if r >= 2 else 0)
        g(f"v_add_f32 v{SCQ+2}, 1.0, {vLG}")
        g(f"v_rcp_f32 v{SCQ+2}, v{SCQ+2}")
        g(f"v_mov_b32 v{SCQ}, {TG0}")
        g(f"v_mov_b32 v{SCQ+1}, {TG1}")
        g(f"buffer_store_dwordx4 {vr(SCQ)}, {vL16}, {SWS}, {sST} offen offset:2048{LSC}", tag="st")
        for hd, (num, den) in enumerate(((TMP, TMP + 8), (ACC3, ACC3 + 8) if KC else (ACC3 + 8, ACC3))):
            g(f"v_add_f32 v{den}, {sEPS}, v{den}")
            g(f"v_rcp_f32 v{den}, v{den}")
            g(f"v_mul_f32 v{den}, {vLG}, v{den}")
            for i in range(8): g(f"v_mul_f32 v{num+i}, v{den}, v{num+i}")
            for i in range(4): g(f"v_cvt_pk_bf16_f32 v{OO+4*hd+i}, v{num+2*i}, v{num+2*i+1}")
            emit(tstore(OO + 4 * hd, sST, hd * 1024))
        if OPT["efo"] == 0: publish(0)()
        if OPT["kpr"]: g("s_setprio 0")
        emit(untag(OO) + untag(OO + 4))
        stamp("ost")
    def kol():
        l = [lambda: g.wait(lg="kl"), f"v_add_f32 {vLG}, {vLG}, {vLG2}", f"v_mul_f32 {vLG}, {sLOG2E}, {vLG}",
             f"v_min_f32 {vLG}, 0x42640000, {vLG}", f"v_exp_f32 {vLG}, {vLG}"]
        def mm(r):
            g.wait(lg=f"kr{r}")
            acc = (TMP, ACC3)[r & 1]
            mfma(acc, vr(KR[r]), vr(ACC2 + 8 * (r & 1)), vr(acc, 16) if r >= 2 else 0)
        l += [(lambda r=r: mm(r)) for r in (0, 2, 1, 3)]
        l2 = [f"v_add_f32 v{SCQ+2}, 1.0, {vLG}", f"v_rcp_f32 v{SCQ+2}, v{SCQ+2}", f"v_mov_b32 v{SCQ}, {TG0}", f"v_mov_b32 v{SCQ+1}, {TG1}"]
        stq = [lambda: g(f"buffer_store_dwordx4 {vr(SCQ)}, {vL16}, {SWS}, {sST} offen offset:2048{LSC}", tag="st")]
        for hd, (num, den) in enumerate(((TMP, TMP + 8), (ACC3 + 8, ACC3))):
            l2 += [f"v_add_f32 v{den}, {sEPS}, v{den}", f"v_rcp_f32 v{den}, v{den}", f"v_mul_f32 v{den}, {vLG}, v{den}"]
            l2 += [f"v_mul_f32 v{num+i}, v{den}, v{num+i}" for i in range(8)]
            l2 += [f"v_cvt_pk_bf16_f32 v{OO+4*hd+i}, v{num+2*i}, v{num+2*i+1}" for i in range(4)]
            t = tstore(OO + 4 * hd, sST, hd * 1024)
            l2 += t[:2]; stq.append(t[2])
        return l, l2, stq + [publish(0)] + untag(OO) + untag(OO + 4) + [st("ost")]
    if IL:
        um = OPT["um"]
        Gq = Grp("Qgq", [(160, sAp, 2048), (164, sAp, 3072), (168, sAo, 2048), (172, sAo, 3072)])
        fu = [(112, sAp, 6144), (116, sAo, 6144)]
        Gu = Grp("Qga", fu)
        if um: Gc = Grp("Qgc", Gc.frags + fu)
        o0, o1 = MAP["QQ"][1:3]
        oc, oo = (32768, 0) if OPT["qoc"] else (0, 32768)
        U = dict(a=unit((96, 100), aB, o0) + unit((104, 108), aB, o0 + 16384), b=unit((160, 164), aB, o1) + unit((168, 172), aB, o1 + 16384),
                 u=unit((112,), aC, 0) + unit((116,), aC, 8192), o=unit((OO, OO + 4), aA, oo), O=unit((176, 180), aA, oo + 16384),
                 c=unit((144, 148), aA, oc) + unit((152, 156), aA, oc + 16384))
        so = ["abocOu", "abocuO", "aboOcu", "aobcOu"][OPT["qo2"]]
        steps = []; fp = {}
        for k in so: fp[k] = len(steps); steps += U[k]
        p2, order, nx, first = p2items(steps, [64, 68, 72, 76, 184], OPT["qt3"], OPT["qtm"])
        F = {k: P2 + first[v] for k, v in fp.items()}
        B = len(it); it += p2
        it[OPT["jb"] + 2].post.append(ident(IDENT))
        kp = B + OPT["qks"]
        fl = [(OPT["qa"], Gp, 0x1100, B - 3, 3, "gp", OPT["qapl"]), (OPT["qkv"], Gk, 0xffff, kp, 0, "kv", OPT["qpl"]),
              (B + OPT["qb"], Gq, 0x4400, F["b"] - 4, 4, "gq", OPT["lpl"]), (B + OPT["qgc"], Gc, 0x8800, F["c"] - 4, 4, "gc", OPT["lpl"]),
              (B + OPT["qgo"], Go, 0x0010, F["O"] - 2, 2, "go", OPT["lpl"])]
        if not um: fl.append((B + OPT["qgu"], Gu, 0x2200, F["u"] - 2, 2, "gu", OPT["lpl"]))
        else: assert F["u"] > F["c"]
        cur = None
        for pos, G, mask, cp, w, nm, pl in sorted(fl, key=lambda x: x[0]):
            assert pos < cp, (nm, pos - B, cp - B)
            kind = "k" if nm == "kv" else "a"
            fetch(it, pos, G.loads(), mask, cp - 1, pl=pl, step=0 if nm == "kv" else 1,
                  pre=[] if kind == cur else setFK() if kind == "k" else setFA(), post=[st(nm + "fl")])
            cur = kind
        assert OPT["qkv"] >= PC + 8 and OPT["qkv"] - OPT["qpl"] > OPT["jb"] and OPT["qa"] > OPT["jb"] and B + OPT["qb"] >= PC + 12
        assert B + OPT["qgc"] > kp
        it[M].post += [need(it[M]), f"s_add_u32 {sT}, {sW1K}, {LC}", f"v_add_u32 v24, {sT}, {vL16}",
                       f"s_lshl_b32 {sT2}, {sCLS}, 12", f"s_add_u32 {sT2}, {sT2}, {LC}", f"v_add_u32 v25, {sT2}, {vL16}",
                       f"v_lshl_add_u32 v26, {vLANE}, 2, {sT}", "v_xor_b32 v27, 0x1000, v26",
                       lambda: g(f"ds_write_b32 v26, {vLG} offset:8192", tag="kw")]
        spread(it, B + OPT["pq0"], B + OPT["pq1"], PH(ACC2) + PH(ACC2 + 8))
        it[kp].post += Gk.check() + [ksum]
        assert kp < B - 3 and kp > M
        e1, e2 = ("wO", "wP2") if OPT["qoc"] else ("wP2", "wO")
        if OPT["p2e"]:
            it[B].bar = dict(vm=["wG0", "wG1", "wU", e1], lead=3, drain=True, after=[kx] + p2addr() + [st("P2bar")])
            place(it, B + OPT["qpd0"], B + OPT["qpd"], D2A(e2[1:]), it[B])
            it[F["c" if OPT["qoc"] else "o"]].bar = dict(vm=[e2], lead=OPT["D2"])
        else:
            it[B].bar = dict(vm=["wG0", "wG1", "wU"], lead=3, drain=True, after=[kx] + p2addr() + [st("P2bar")])
            place(it, B + OPT["qpd0"], B + OPT["qpd"], D2A("O") + D2A("P2"), it[B])
            it[F["o"]].bar = dict(vm=["wP2", "wO"], lead=OPT["D2"])
        ke = B + OPT["pq1"]
        it[ke].post += [ko]
        assert ke < F["o"] - 1
        chk = []
        for pos, G, mask, cp, w, nm, pl in fl:
            if nm == "kv": continue
            for a_, b_ in chk: assert cp + w <= a_ or cp >= b_, ("checks overlap", nm)
            chk.append((cp, cp + w))
            spread(it, cp, cp + w, G.check() + [st(nm + "ok")])
        it[F["o"] + 1].post += [p2misc]
        tail = p2tail("Q", it, B, nx, [128, 136, 32, 40], IDENT, f"v{SCQ+2}", order)
        run(it, tail)
        return
    if OPT["q2"]:
        Gu = Grp("Qga", [(112, sAp, 6144), (116, sAo, 6144)])
        Gq = Grp("Qgq", [(160, sAp, 2048), (164, sAp, 3072), (168, sAo, 2048), (172, sAo, 3072)])
        sb_ = unit((160, 164), aB, 32768) + unit((168, 172), aB, 32768 + 16384)
        so_ = unit((OO, OO + 4), aA, 32768)
        steps = unit((96, 100), aB, 0) + unit((104, 108), aB, 16384) + unit((112,), aC, 0) + unit((116,), aC, 8192) + \
            (so_ + sb_ if OPT["q2"] == 1 else sb_ + so_) + unit((176, 180), aA, 32768 + 16384) + \
            unit((144, 148), aA, 0) + unit((152, 156), aA, 16384)
        fo, fb = (6, 8) if OPT["q2"] == 1 else (10, 6)
        assert OPT["qt3"] <= 12
        p2, order, nx, first = p2items(steps, [64, 68, 72, 76, 184], OPT["qt3"], OPT["qtm"])
        B = len(it); it += p2
        it[OPT["jb"] + 2].post.append(ident(IDENT))
        chk = []
        def check(G, lo, hi, extra):
            for a, b in chk: assert hi <= a or lo >= b, ("checks overlap", a - B, b - B, lo - B, hi - B)
            chk.append((lo, hi))
            spread(it, lo, hi, G.check() + extra)
        it[OPT["qlb"]].post += [need(it[OPT["qlb"]]), f"s_add_u32 {sT}, {sW1K}, {LC}", f"v_add_u32 v24, {sT}, {vL16}",
                       f"s_lshl_b32 {sT2}, {sCLS}, 12", f"s_add_u32 {sT2}, {sT2}, {LC}", f"v_add_u32 v25, {sT2}, {vL16}",
                       f"v_lshl_add_u32 v26, {vLANE}, 2, {sT}", "v_xor_b32 v27, 0x1000, v26",
                       lambda: g(f"ds_write_b32 v26, {vLG} offset:8192", tag="kw")]
        kp = B + OPT["qks"]; L = OPT["D2"] - 1; kb = B + first[fo] - L
        fl = [(OPT["qa"], lambda: fetch(it, OPT["qa"], Gp.loads(), 0x1100, B - 4, pl=OPT["qapl"], pre=setFA(), post=[st("gpfl")])),
              (OPT["qu"], lambda: fetch(it, OPT["qu"], Gu.loads(), 0x2200, B + first[4] - 4, pl=OPT["lpl"], pre=setFA(), post=[st("gufl")])),
              (OPT["qkv"], lambda: fetch(it, OPT["qkv"], Gk.loads(), 0xffff, kp - 1, pl=OPT["qpl"], step=OPT["qkw"], pre=setFK(), post=[st("kvfl")])),
              (B + OPT["qb"], lambda: fetch(it, B + OPT["qb"], Gq.loads(), 0x4400, B + first[fb] - 4, pl=OPT["lpl"], step=0 if OPT["q2"] == 1 else 1, pre=setFA(), post=[st("gqfl")])),
              (B + OPT["qgo"], lambda: fetch(it, B + OPT["qgo"], Go.loads(), 0x0010, B + first[12] - 3, pl=OPT["lpl"], pre=setFA(), post=[st("gofl")])),
              (B + OPT["qgc"], lambda: fetch(it, B + OPT["qgc"], Gc.loads(), 0x8800, B + first[14] - 5, pl=OPT["lpl"], pre=setFA(), post=[st("gcfl")]))]
        k1, k2, k3 = kol()
        it[kb + OPT["kd2"] - 1].post += [need(it[kb + L])] + k1
        spread(it, kb + OPT["kd2"], kb + L, k2)
        for _, f in sorted(fl, key=lambda x: x[0]): f()
        it[kb + L - 1].post += k3
        assert OPT["qkv"] >= PC + 8 and OPT["qkv"] - OPT["qpl"] > OPT["jb"] and OPT["qa"] > OPT["jb"] and OPT["qu"] > OPT["jb"]
        assert B + OPT["qgc"] > kp + OPT["qkn"] and OPT["qgo"] < first[12] - 2 and OPT["qgc"] < first[14] - 4 and OPT["qb"] < first[fb] - 3 and OPT["qu"] < B + first[4] - 3
        check(Gp, B - 3, B, [st("gpok")])
        check(Gu, B + first[4] - 2, B + first[4], [st("guok")])
        spread(it, B + OPT["pq0"], B + OPT["pq1"], PH(ACC2) + PH(ACC2 + 8))
        assert kp + OPT["qkn"] - 1 >= B + OPT["pq1"] and kp > OPT["qkv"] and kp + OPT["qkn"] <= kb
        check(Gk, kp, kp + OPT["qkn"], [ksum])
        it[B].bar = dict(vm=["wG0", "wG1", "wU"], lead=3, drain=True, after=p2addr() + [st("P2bar")])
        place(it, B + OPT["qpd0"], B + OPT["qpd"], D2A("O") + D2A("P2"), it[B])
        it[kb + L].bar = dict(vm=["wP2", "wO"], lg=["kw"], lead=L, after=[kx, st("kxb")])
        it[kb + L + 1].post += [p2misc]
        check(Gq, B + first[fb] - 3, B + first[fb], [st("gqok")])
        check(Go, B + first[12] - 2, B + first[12], [st("gook")])
        check(Gc, B + first[14] - 4, B + first[14], [st("gcok")])
        tail = p2tail("Q", it, B, nx, [128, 136, 32, 40], IDENT, f"v{SCQ+2}", order)
        run(it, tail)
        return
    steps = unit((96, 100), aB, 0) + unit((104, 108), aB, 16384) + unit((112,), aC, 0) + unit((116,), aC, 8192) + \
        unit((160, 164), aB, 32768) + unit((168, 172), aB, 32768 + 16384) + \
        unit((OO, OO + 4), aA, 32768) + \
        unit((144, 148), aA, 0) + unit((152, 156), aA, 16384) + \
        unit((176, 180), aA, 32768 + 16384)
    p2, order, nx, first = p2items(steps, [64, 68, 72, 76, 184], OPT["qt3"], OPT["qtm"])
    B = len(it); it += p2
    assert B == P2
    if not KC: it[OPT["jb"] + 2].post.append(ident(IDENT))
    fa = lambda: fetch(it, OPT["qa"], Gp.loads(), 0x1100, B - 4, pl=OPT["qapl"], pre=setFA(), post=[st("gpfl")])
    fk = lambda: fetch(it, OPT["qkv"], Gk.loads(), 0xffff, B + 40, pl=OPT["qpl"], step=0, pre=setFK(), post=[st("kvfl")])
    for f in ((fa, fk) if OPT["qa"] < OPT["qkv"] else (fk, fa)): f()
    fetch(it, B + OPT["qb"], Gq.loads(), 0x4400, B + first[4] - 5, pl=OPT["lpl"], pre=setFA(), post=[st("gqfl")])
    assert OPT["qkv"] >= PC + 8 and OPT["qkv"] - OPT["qpl"] > OPT["jb"] and OPT["qa"] > OPT["jb"] and B + OPT["qb"] >= PC + 12
    kp = B + OPT["qks"]
    spread(it, B - 3, B, Gp.check() + [st("gpok")])
    it[B - 2 if OPT["kq"] else OPT["qlb"]].post += [need(it[B] if OPT["kq"] else it[OPT["qlb"]]), f"s_add_u32 {sT}, {sW1K}, {LC}", f"v_add_u32 v24, {sT}, {vL16}",
                   f"s_lshl_b32 {sT2}, {sCLS}, 12", f"s_add_u32 {sT2}, {sT2}, {LC}", f"v_add_u32 v25, {sT2}, {vL16}",
                   f"v_lshl_add_u32 v26, {vLANE}, 2, {sT}", "v_xor_b32 v27, 0x1000, v26",
                   lambda: g(f"ds_write_b32 v26, {vLG} offset:8192", tag="kw")]
    spread(it, B + OPT["pq0"], B + OPT["pq1"], PH(ACC2) + PH(ACC2 + 8))
    it[kp].post += Gk.check() + [ksum]
    if OPT["kq"]:
        assert kp >= B + OPT["pq1"] and kp > OPT["qkv"] and not (B + first[4] - 4 <= kp < B + first[4])
        it[B].bar = dict(vm=["wG0", "wG1"], lead=3, drain=True, after=p2addr() + [st("P2bar")])
        place(it, B - 3, B + OPT["pd1"], D2A("U") + D2A("O") + D2A("P2"), it[B])
        kb = kp + 1 + OPT["kd1"]
        assert kb <= B + first[4]
        L = min(OPT["D2"] - 1, B + first[4] - kb)
        it[kb + L].bar = dict(vm=["wU"], lg=["kw"], lead=L, after=[kx])
        ke = kb + OPT["kd2"] - 1
        it[ke].post += [need(it[kb + L]), ko]
    else:
        assert kp < B - 3 and kp > OPT["qkv"] and kp > OPT["qlb"]
        it[B].bar = dict(vm=["wG0", "wG1", "wU"], lead=3, drain=True, after=[kx] + p2addr() + [st("P2bar")])
        place(it, B + OPT["qpd0"], B + OPT["qpd"], D2A("O") + D2A("P2"), it[B])
        ke = B + OPT["pq1"]
        it[ke].post += [ko]
    spread(it, B + first[4] - 4, B + first[4], Gq.check() + [st("gqok")])
    assert ke < B + first[10] - 1
    it[B + first[10] + 1].post += [p2misc]
    it[B + first[10]].bar = dict(vm=["wP2", "wO"], lead=OPT["D2"])
    fetch(it, B + OPT["qgc"], Gc.loads(), 0x8800, B + first[12] - 5, pl=OPT["lpl"], post=[st("gcfl")])
    fetch(it, B + OPT["qgo"], Go.loads(), 0x0010, B + first[16] - 3, pl=OPT["lpl"], post=[st("gofl")])
    spread(it, B + first[12] - 4, B + first[12], Gc.check() + [st("gcok")])
    spread(it, B + first[16] - 2, B + first[16], Go.check() + [st("gook")])
    assert OPT["qgc"] < first[12] - 4 and OPT["qgo"] < first[16] - 2
    tail = p2tail("Q", it, B, nx, [128, 136, 32, 40], IDENT, f"v{SCQ+2}", order)
    run(it, tail)


NCL = 2 if OPT["asym"] else 1
for role, fn in (("WW", WW), ("QQ", QQ)):
    for cl_ in range(NCL):
        g.start_trace(role + str(cl_))
        ROLE[0] = role; CLS[0] = cl_; SUF[0] = ""; nlab[0] = 0; POLLS[role] = []; POLLS[role + "s"] = []
        old = SN[role]; SN[role] = ["start"]
        g.block(ENTRY, prologue)
        g.block(role, fn, align=(3 if role == "QQ" else None))
        assert cl_ == 0 or old == SN[role], (old, SN[role])
rt = []
for nm_, fn_ in retries:
    g.start_trace("RT_" + nm_)
    g.block("RT_" + nm_, fn_)
    rt.append("RT_" + nm_)
g.start_trace("end"); g.block("CODE_END", lambda: None)
g.hazards()
order = [ENTRY, "WW", "SPIN", "QQ"] + rt + ["CODE_END"]
if NCL == 2: order = [ENTRY, "WW", "WW0", "WW1", "SPIN", "QQ", "QQ0", "QQ1"] + rt + ["CODE_END"]
if OPT["ssp"] == 1: order.insert(order.index("SPIN"), "SSPIN")
assert sorted(order) == sorted(g.order), (g.order)

hdr = open("cdna_kernels/" + KN + ".s.ref").read().split("\n")
top = [l for l in hdr if l.startswith(";") and "@launch" not in l]
print("\n".join(top))
print("; @launch grid=(256,1,1) block=(512,1,1) lds=163840")
if STAMP:
    for r in SN: print("; STAMPS", r, " ".join(SN[r]))
    print("; RTS", OPT["rts"])
print('.amdgcn_target "amdgcn-amd-amdhsa--gfx950"\n.text')
print(f".globl {ENTRY}\n.p2align 8\n.type {ENTRY},@function")
print(g.text(order))
print("    s_endpgm")
print(f""".section .rodata,"a"
.p2align 6
.amdhsa_kernel {ENTRY}
  .amdhsa_next_free_vgpr 256
  .amdhsa_next_free_sgpr 102
  .amdhsa_accum_offset 256
  .amdhsa_group_segment_fixed_size 0
  .amdhsa_kernarg_size 88
  .amdhsa_user_sgpr_count 2
  .amdhsa_user_sgpr_kernarg_segment_ptr 1
  .amdhsa_system_sgpr_workgroup_id_x 1
.end_amdhsa_kernel""")
print(f"; maxvm={g.maxvm}", file=sys.stderr)
for name, tr in g.traces[:2 * NCL]:
    print(f"; trace {name}: barriers={sum(1 for o in tr if o.kind=='i' and o.mn=='s_barrier')} instrs={len(tr)}", file=sys.stderr)
```
